```python
import torch

def _softmax(x, axis=-1):
    return torch.softmax(x, dim=axis)
def _gelu(x):
    return torch.nn.functional.gelu(x, approximate="tanh")
def _silu(x):
    return torch.nn.functional.silu(x)
def _sigmoid(x):
    return torch.sigmoid(x)
def _layernorm(x, axis=-1, eps=1e-5):
    m = x.mean(dim=axis, keepdim=True)
    v = x.var(dim=axis, keepdim=True, unbiased=False)
    return (x - m) / torch.sqrt(v + eps)
def _scatter_add(tgt, idx, src, axis=0):
    return tgt.clone().index_add_(axis, idx, src)
def _segment_sum(src, seg, n):
    out = torch.zeros((n,) + src.shape[1:], dtype=src.dtype)
    return out.index_add_(0, seg, src)
def _pad(x, pw):
    flat = tuple(v for pair in reversed(pw) for v in pair)
    return torch.nn.functional.pad(x, flat)

kernel_name = 'interleave_layers__sliding_block__mixer_token_mlp__prompt'

def setup_inputs():

    _w = (lambda a: (lambda t: t.to(torch.bfloat16) if t.is_floating_point() else t)(torch.as_tensor(a)))
    def _A_setup():
        B, S, D = 1, 2048, 448
        return {
            "x": _w((lambda *s: torch.randn(*s, dtype=torch.bfloat16) * 0.05)(B, S, D)),
            "wqkv": _w((lambda *s: torch.randn(*s, dtype=torch.bfloat16) * 0.05)(D, 3 * D)),
            "wo": _w((lambda *s: torch.randn(*s, dtype=torch.bfloat16) * 0.05)(D, D)),
        }
    _A_in = _A_setup()

    def _B_setup():
        B, S, D, F = 1, 2048, 448, 1792
        return {
            "x": _w((lambda *s: torch.randn(*s, dtype=torch.bfloat16) * 0.05)(B, S, D)),
            "w1": _w((lambda *s: torch.randn(*s, dtype=torch.bfloat16) * 1.6)(S, F) * (S ** -0.5)),
            "b1": _w((lambda *s: torch.randn(*s, dtype=torch.bfloat16) * 12.8)(F) * 0.02),
            "w2": _w((lambda *s: torch.randn(*s, dtype=torch.bfloat16) * 0.8)(F, S) * (F ** -0.5)),
            "b2": _w((lambda *s: torch.randn(*s, dtype=torch.bfloat16) * 12.8)(S) * 0.02),
        }
    _B_in = _B_setup()

    return {
        "A_x": _A_in["x"],
        "A_wqkv": _A_in["wqkv"],
        "A_wo": _A_in["wo"],
        "B_x": _B_in["x"],
        "B_w1": _B_in["w1"],
        "B_b1": _B_in["b1"],
        "B_w2": _B_in["w2"],
        "B_b2": _B_in["b2"],
    }

def reference(A_x, A_wqkv, A_wo, B_x, B_w1, B_b1, B_w2, B_b2):
    def _A_ref(x, wqkv, wo):
        B, S, D = x.shape
        H = 16; Dh = D // H; W = 256
        qkv = (lambda x, *d: x.permute(*d))((x @ wqkv).reshape(B, S, 3, H, Dh), 2, 0, 3, 1, 4)
        q, k, v = qkv[0], qkv[1], qkv[2]
        scores = torch.einsum("bhqd,bhkd->bhqk", q, k) * (Dh ** -0.5)
        idx = torch.arange(S)
        mask = (idx[:, None] - idx[None, :] >= 0) & (idx[:, None] - idx[None, :] < W)
        scores = torch.where(mask[None, None], scores, -1e9)
        p = _softmax(scores, axis=-1)
        o = torch.einsum("bhqk,bhkd->bhqd", p, v)
        return (lambda x, *d: x.permute(*d))(o, 0, 2, 1, 3).reshape(B, S, D) @ wo

    def _B_ref(x, w1, b1, w2, b2):
        B, S, D = x.shape
        h = _layernorm(x, axis=-1)
        u = torch.einsum("bsd,sf->bdf", h, w1) + b1
        u = _gelu(u)
        y = torch.einsum("bdf,fs->bds", u, w2) + b2
        return (lambda x, *d: x.permute(*d))(y, 0, 2, 1)

    x = A_x
    x = x + _A_ref(_layernorm(x, axis=-1), A_wqkv, A_wo)
    x = x + _B_ref(_layernorm(x, axis=-1), B_w1, B_b1, B_w2, B_b2)
    x = x + _A_ref(_layernorm(x, axis=-1), A_wqkv, A_wo)
    x = x + _B_ref(_layernorm(x, axis=-1), B_w1, B_b1, B_w2, B_b2)
    return x
```

```python
import re

REG_RE = re.compile(r"^(v|a|s)(\d+)$|^(v|a|s)\[(\d+):(\d+)\]$")


def parse_reg(tok):
    tok = tok.strip()
    neg = tok
    if neg.startswith("-"):
        neg = neg[1:]
    if neg.startswith("abs(") and neg.endswith(")"):
        neg = neg[4:-1]
    if neg.startswith("|") and neg.endswith("|"):
        neg = neg[1:-1]
    m = REG_RE.match(neg)
    if m:
        if m.group(1):
            return {(m.group(1), int(m.group(2)))}
        return {(m.group(3), i) for i in range(int(m.group(4)), int(m.group(5)) + 1)}
    if neg == "vcc":
        return {("s", 106), ("s", 107)}
    if neg == "vcc_lo":
        return {("s", 106)}
    if neg == "vcc_hi":
        return {("s", 107)}
    if neg == "exec":
        return {("x", 0), ("x", 1)}
    if neg == "exec_lo":
        return {("x", 0)}
    if neg == "exec_hi":
        return {("x", 1)}
    if neg == "m0":
        return {("m", 0)}
    if neg == "scc":
        return {("c", 0)}
    return set()


TRANS = ("v_exp_f32", "v_log_f32", "v_rcp_f32", "v_rsq_f32", "v_sqrt_f32", "v_sin_f32", "v_cos_f32",
         "v_rcp_iflag_f32")


class Ins:
    __slots__ = ("text", "op", "defs", "uses", "kind", "passes", "srcc", "comment", "vm", "lg", "is_store_wide",
                 "store_data", "lds_dma", "dpp")

    def __init__(self, text):
        self.text = text
        body = text.split(";")[0].strip()
        parts = body.split(None, 1)
        self.op = parts[0]
        rest = parts[1] if len(parts) > 1 else ""
        ops = []
        cur = ""
        depth = 0
        for ch in rest:
            if ch == "[":
                depth += 1
            if ch == "]":
                depth -= 1
            if ch == "," and depth == 0:
                ops.append(cur.strip())
                cur = ""
            else:
                cur += ch
        if cur.strip():
            ops.append(cur.strip())
        mods = []
        if ops:
            last = ops[-1].split()
            ops[-1] = last[0]
            mods = last[1:]
        op = self.op
        self.defs = set()
        self.uses = set()
        self.kind = "other"
        self.passes = 0
        self.srcc = set()
        self.vm = False
        self.lg = False
        self.is_store_wide = False
        self.store_data = set()
        self.lds_dma = False
        self.dpp = any(m.startswith(("row_", "quad_perm", "wave_", "row_bcast", "bank_mask", "row_mask")) for m in mods)
        R = [parse_reg(o) for o in ops]
        if op.startswith("v_mfma"):
            self.kind = "mfma"
            self.passes = 8 if "32x32" in op else 4
            self.defs = R[0]
            self.uses = R[1] | R[2] | R[3]
            self.srcc = R[3]
        elif op.startswith("v_"):
            self.kind = "trans" if op.replace("_e32", "").replace("_e64", "") in TRANS else "valu"
            base = op.replace("_e32", "").replace("_e64", "")
            if base.startswith("v_cmp"):
                self.defs = R[0]
                for r in R[1:]:
                    self.uses |= r
                if base.startswith("v_cmpx"):
                    self.defs |= {("x", 0), ("x", 1)}
            elif base in ("v_add_co_u32", "v_sub_co_u32", "v_subrev_co_u32"):
                self.defs = R[0] | R[1]
                for r in R[2:]:
                    self.uses |= r
            elif base in ("v_addc_co_u32", "v_subb_co_u32"):
                self.defs = R[0] | R[1]
                for r in R[2:]:
                    self.uses |= r
            elif base.startswith("v_permlane") and "swap" in base:
                self.defs = R[0] | R[1]
                self.uses = R[0] | R[1]
                self.kind = "permlane"
            elif base in ("v_fmac_f32", "v_dot2c_f32_bf16", "v_pk_fmac_f16", "v_mac_f32", "v_writelane_b32"):
                self.defs = R[0]
                for r in R:
                    self.uses |= r
            else:
                self.defs = R[0]
                for r in R[1:]:
                    self.uses |= r
                if base == "v_cndmask_b32" and len(ops) == 3:
                    self.uses |= parse_reg("vcc")
            if base in ("v_readfirstlane_b32", "v_readlane_b32"):
                self.kind = "readlane"
            self.uses |= {("x", 0), ("x", 1)}
        elif op.startswith("ds_"):
            self.kind = "ds"
            self.lg = True
            if op.startswith(("ds_read", "ds_bpermute", "ds_permute", "ds_swizzle")) or "_rtn" in op:
                self.defs = R[0]
                for r in R[1:]:
                    self.uses |= r
            else:
                for r in R:
                    self.uses |= r
        elif op.startswith(("buffer_", "global_")):
            self.kind = "vmem"
            self.vm = True
            if op in ("buffer_inv", "buffer_wbl2"):
                pass
            elif "lds" in mods or "_lds_" in op:
                self.lds_dma = True
                for r in R:
                    self.uses |= r
                self.uses |= {("m", 0)}
            elif op.startswith(("buffer_load", "global_load")):
                self.defs = R[0]
                for r in R[1:]:
                    self.uses |= r
            elif "atomic" in op:
                for r in R:
                    self.uses |= r
                if "sc0" in mods:
                    self.defs = R[0] if op.startswith("buffer") else R[0]
            else:
                for r in R:
                    self.uses |= r
                data = R[0] if op.startswith("buffer") else R[1]
                if "x3" in op or "x4" in op:
                    self.is_store_wide = True
                    self.store_data = data
        elif op.startswith("s_"):
            self.kind = "salu"
            if op.startswith("s_load") or op.startswith("s_buffer_load") or op in ("s_memtime", "s_memrealtime"):
                self.kind = "smem"
                self.lg = True
                self.defs = R[0]
                for r in R[1:]:
                    self.uses |= r
            elif op.startswith(("s_cmp", "s_bitcmp")):
                for r in R:
                    self.uses |= r
                self.defs = {("c", 0)}
            elif op in ("s_waitcnt", "s_nop", "s_barrier", "s_endpgm", "s_branch", "s_sleep", "s_setprio") or \
                    op.startswith("s_cbranch"):
                self.kind = "ctl"
            elif "saveexec" in op:
                self.defs = R[0] | {("x", 0), ("x", 1), ("c", 0)}
                for r in R[1:]:
                    self.uses |= r
                self.uses |= {("x", 0), ("x", 1)}
            else:
                self.defs = R[0] if R else set()
                for r in R[1:]:
                    self.uses |= r
                if op.startswith(("s_add", "s_sub", "s_and", "s_or", "s_xor", "s_lshl", "s_lshr", "s_ashr", "s_min",
                                  "s_max", "s_not", "s_andn2", "s_bfe")):
                    self.defs = self.defs | {("c", 0)}
                if op in ("s_addk_i32", "s_mulk_i32"):
                    self.uses |= R[0]
                if op.startswith("s_cselect") or op.startswith("s_addc") or op.startswith("s_subb"):
                    self.uses |= {("c", 0)}

    def nstates(self):
        if self.op == "s_nop":
            return int(self.text.split()[1], 0) + 1
        return 1


def is_vgprish(r):
    return r[0] in ("v", "a")


class Asm:
    def __init__(self):
        self.out = []
        self.hist = []
        self.vmq = []
        self.lgq = []
        self.smem_pending = False
        self.ntok = 0
        self.nops_inserted = 0
        self.ninstr = 0

    def raw(self, text):
        self.out.append(text)

    def comment(self, text):
        self.out.append("    ; " + text)

    def label(self, name):
        self.out.append(name + ":")

    def _required_nops(self, ins):
        need = 0
        age = 0
        for p in reversed(self.hist):
            req = 0
            pv = p.kind in ("valu", "trans", "permlane", "readlane")
            vdefs = {r for r in p.defs if is_vgprish(r)}
            sdefs = {r for r in p.defs if r[0] == "s"}
            if pv:
                if ins.kind == "mfma" and vdefs & ins.uses:
                    req = max(req, 2)
                if ins.kind in ("valu", "trans", "permlane", "readlane") and sdefs & ins.uses:
                    req = max(req, 4 if ins.op.startswith(("v_readlane", "v_writelane")) else 2)
                if ins.kind == "vmem" and sdefs & ins.uses:
                    req = max(req, 5)
                if ins.kind == "readlane" and vdefs & ins.uses:
                    req = max(req, 1)
                if ins.kind == "permlane" and vdefs & ins.uses:
                    req = max(req, 2)
                if ins.dpp and vdefs & ins.uses:
                    req = max(req, 2)
                if p.kind == "trans" and ins.kind in ("valu", "permlane", "readlane", "mfma", "vmem", "ds") and \
                        vdefs & ins.uses:
                    req = max(req, 1)
                if ("x", 0) in p.defs and ins.kind == "mfma":
                    req = max(req, 4)
                if ("x", 0) in p.defs and ins.dpp:
                    req = max(req, 5)
                if ("x", 0) in p.defs and ins.kind in ("permlane", "readlane"):
                    req = max(req, 4)
            if p.kind == "mfma":
                big = 12 if p.passes == 8 else 8
                mid = 10 if p.passes == 8 else 6
                war = 7 if p.passes == 8 else 3
                if ins.kind == "mfma":
                    ab = ins.uses - ins.srcc
                    if p.defs & (ins.uses - ins.srcc):
                        req = max(req, big)
                    if p.defs & ins.srcc:
                        if ins.srcc == p.defs and ins.passes == p.passes:
                            pass
                        else:
                            req = max(req, mid)
                    if (p.defs & ins.defs) and not (ins.srcc == p.defs):
                        req = max(req, mid)
                else:
                    if p.defs & (ins.uses | ins.defs):
                        req = max(req, big)
                    if ins.kind in ("valu", "trans", "permlane", "readlane") and (p.srcc & ins.defs):
                        req = max(req, war)
            if p.kind == "salu" and ("m", 0) in p.defs and ins.lds_dma:
                req = max(req, 1)
            if p.is_store_wide and (p.store_data & ins.defs):
                req = max(req, 2 if ins.kind in ("valu", "trans", "permlane", "readlane") else 1)
            if req > age:
                need = max(need, req - age)
            age += p.nstates()
            if age > 24:
                break
        return need

    def _push(self, ins):
        self.out.append("    " + ins.text)
        self.hist.append(ins)
        if len(self.hist) > 40:
            self.hist = self.hist[-40:]
        self.ninstr += 1

    def nop(self, n):
        while n > 0:
            k = min(n, 16)
            self._push(Ins(f"s_nop {k - 1}"))
            n -= k

    def _auto_wait(self, ins):
        regs = ins.uses | ins.defs
        vm_need = None
        for i, o in enumerate(self.vmq):
            if o["defs"] & regs:
                vm_need = len(self.vmq) - 1 - i
        lg_need = None
        for i, o in enumerate(self.lgq):
            if o["defs"] & regs:
                lg_need = len(self.lgq) - 1 - i
                if o.get("smem"):
                    lg_need = 0
        if lg_need is not None and any(o.get("smem") for o in self.lgq):
            lg_need = 0
        self._emit_wait(vm_need, lg_need)

    def _emit_wait(self, vm, lg):
        parts = []
        if vm is not None and vm < len(self.vmq):
            vm = min(vm, 63)
            parts.append(f"vmcnt({vm})")
            self.vmq = self.vmq[len(self.vmq) - vm:] if vm > 0 else []
        if lg is not None and lg < len(self.lgq):
            lg = min(lg, 15)
            parts.append(f"lgkmcnt({lg})")
            self.lgq = self.lgq[len(self.lgq) - lg:] if lg > 0 else []
        if parts:
            self._push(Ins("s_waitcnt " + " ".join(parts)))

    def wait_vm(self, tok):
        for i, o in enumerate(self.vmq):
            if o["tok"] == tok:
                self._emit_wait(len(self.vmq) - 1 - i, None)
                return

    def wait_lg(self, tok):
        for i, o in enumerate(self.lgq):
            if o["tok"] == tok:
                n = len(self.lgq) - 1 - i
                if any(x.get("smem") for x in self.lgq):
                    n = 0
                self._emit_wait(None, n)
                return

    def wait_all(self, vm=True, lg=True):
        self._emit_wait(0 if vm else None, 0 if lg else None)

    def force_wait(self, vm=None, lg=None):
        parts = []
        if vm is not None:
            parts.append(f"vmcnt({vm})")
            self.vmq = self.vmq[len(self.vmq) - vm:] if (vm > 0 and vm < len(self.vmq)) else ([] if vm == 0 else self.vmq)
        if lg is not None:
            parts.append(f"lgkmcnt({lg})")
            self.lgq = self.lgq[len(self.lgq) - lg:] if (lg > 0 and lg < len(self.lgq)) else ([] if lg == 0 else self.lgq)
        self._push(Ins("s_waitcnt " + " ".join(parts)))

    def __call__(self, text):
        ins = Ins(text)
        self._auto_wait(ins)
        if ins.lg and len(self.lgq) >= 15:
            n14 = 0 if any(o.get("smem") for o in self.lgq) else 13
            self._emit_wait(None, n14)
        if ins.vm and len(self.vmq) >= 63:
            self._emit_wait(60, None)
        n = self._required_nops(ins)
        if n:
            self.nops_inserted += n
            self.nop(n)
        self._push(ins)
        tok = None
        if ins.vm:
            self.ntok += 1
            tok = self.ntok
            self.vmq.append({"defs": set(ins.defs), "tok": tok})
            assert len(self.vmq) <= 63, "too many outstanding vm ops: " + text
        if ins.lg:
            self.ntok += 1
            tok = self.ntok
            self.lgq.append({"defs": set(ins.defs), "tok": tok, "smem": ins.kind == "smem"})
            if len(self.lgq) > 15 and False:
                pass
        return tok

    def stamp(self, i):
        if not getattr(self, "stamps", False):
            return
        sb = getattr(self, "stamp_base", 70)
        self(f"s_memtime s[{sb + 2 * i}:{sb + 1 + 2 * i}]")
        self.wait_all(vm=False)
        self.nstamps = max(getattr(self, "nstamps", 0), i + 1)

    def dump_stamps(self, wg=0):
        if not getattr(self, "stamps", False):
            return
        n = self.nstamps
        sb = getattr(self, "stamp_base", 70)
        self.nstamps = 0
        self("s_load_dwordx2 s[60:61], s[0:1], 72")
        self.wait_all(vm=False)
        self("s_mov_b32 s62, 256")
        self("s_mov_b32 s63, 0x00020000")
        self(f"s_cmp_lg_u32 s2, {wg}")
        self("s_cbranch_scc1 L_nostamp_%d" % len(self.out))
        lab = "L_nostamp_%d" % (len(self.out) - 1)
        self("v_lshrrev_b32 v250, 6, v0")
        self("v_and_b32 v251, 63, v0")
        self("v_lshlrev_b32 v250, 6, v250")
        for i in range(n):
            self(f"s_sub_u32 s64, s{sb + 2 * i}, s{sb}")
            self("v_mov_b32 v252, s64")
            self(f"v_add_u32 v253, {4 * i}, v250")
            self("v_cmp_eq_u32 vcc, 0, v251")
            self("s_and_saveexec_b64 s[66:67], vcc")
            self("buffer_store_dword v252, v253, s[60:63], 0 offen")
            self("s_mov_b64 exec, s[66:67]")
        self.raw(lab + ":")

    def text(self):
        return "\n".join(self.out) + "\n"


def v(i, n=1):
    return f"v{i}" if n == 1 else f"v[{i}:{i + n - 1}]"


def a(i, n=1):
    return f"a{i}" if n == 1 else f"a[{i}:{i + n - 1}]"


def s(i, n=1):
    return f"s{i}" if n == 1 else f"s[{i}:{i + n - 1}]"
```

```python
import sys
import struct
sys.path.insert(0, "tools")
from dsl import Asm, v, a, s

S, D, H, DH, F = 2048, 448, 16, 28, 1792
KA_X, KA_WQKV, KA_WO, KA_BX, KA_W1, KA_B1, KA_W2, KA_B2, KA_OUT, KA_DBG, KA_WS = [8 * i for i in range(11)]
WS_QF = 0x000000
WS_KF = 0x200000
WS_VF = 0x400000
WS_OF = 0x600000
WS_X1T = 0x800000
WS_X1F = 0xA00000
WS_UF = 0xC00000
WS_X2 = 0xE00000
WS_ST = 0x1000000
XBYTES = S * D * 2


def f32(x):
    return struct.unpack("<I", struct.pack("<f", x))[0]


def hexf(x):
    return "0x%08x" % f32(x)


def srd(A, d, base_lo, base_hi, nbytes):
    if base_lo != d:
        A(f"s_mov_b32 s{d}, s{base_lo}")
    A(f"s_and_b32 s{d + 1}, s{base_hi}, 0xffff")
    A(f"s_mov_b32 s{d + 2}, {hex(nbytes)}")
    A(f"s_mov_b32 s{d + 3}, 0x00020000")


def srd_off(A, d, base_lo, base_hi, off, nbytes):
    A(f"s_add_u32 s{d}, s{base_lo}, {off}")
    A(f"s_addc_u32 s{d + 1}, s{base_hi}, 0")
    A(f"s_and_b32 s{d + 1}, s{d + 1}, 0xffff")
    A(f"s_mov_b32 s{d + 2}, {hex(nbytes)}")
    A(f"s_mov_b32 s{d + 3}, 0x00020000")


def kernel_begin(A, name, nwg):
    A.raw(f".globl {name}")
    A.raw(".p2align 8")
    A.raw(f".type {name},@function")
    A.raw(f"{name}:")
    A.hist = []
    A.vmq = []
    A.lgq = []
    A(f"s_cmp_ge_u32 s2, {nwg}")
    A(f"s_cbranch_scc1 L_{name}_end")


def kernel_end(A, name):
    A.raw(f"L_{name}_end:")
    A("s_endpgm")


def kd(name, nv=512, acc=256, ns=102):
    return f"""
.p2align 6
.amdhsa_kernel {name}
  .amdhsa_next_free_vgpr {nv}
  .amdhsa_next_free_sgpr {ns}
  .amdhsa_accum_offset {acc}
  .amdhsa_group_segment_fixed_size 0
  .amdhsa_kernarg_size 88
  .amdhsa_user_sgpr_count 2
  .amdhsa_user_sgpr_kernarg_segment_ptr 1
  .amdhsa_system_sgpr_workgroup_id_x 1
.end_amdhsa_kernel"""


def div_const(A, dst, src, d, tmp_s):
    m = (1 << 20) // d + 1
    for x in range(0, 4096):
        assert (x * m) >> 20 == x // d, (x, d)
    A(f"s_mov_b32 s{tmp_s}, {m}")
    A(f"v_mul_lo_u32 {dst}, {src}, s{tmp_s}")
    A(f"v_lshrrev_b32 {dst}, 20, {dst}")


def exec_lanes(A, n):
    if n == 64:
        A("s_mov_b64 exec, -1")
    elif n <= 32:
        A(f"s_mov_b64 exec, {hex((1 << n) - 1)}")
    else:
        raise ValueError


K1_XP = 16384
K1_WP = 64 * 192
K1_SLOT = K1_XP + K1_WP
K1_NS = 5
K1_MISC = K1_NS * K1_SLOT
K1_CSUM = K1_MISC
K1_TOK = K1_MISC + 512
K1_LDS = K1_MISC + 512 + 1024


def k1(A, name, layer):
    kernel_begin(A, name, 256)
    A.stamp_base = 70
    A.stamp(0)
    if layer == 0:
        A(f"s_load_dwordx2 s[4:5], s[0:1], {KA_X}")
    A(f"s_load_dwordx2 s[8:9], s[0:1], {KA_WQKV}")
    A(f"s_load_dwordx2 s[20:21], s[0:1], {KA_WS}")
    A("v_and_b32 v1, 63, v0")
    A("v_lshrrev_b32 v2, 6, v0")
    A("v_readfirstlane_b32 s22, v2")
    A("s_lshr_b32 s23, s2, 4")
    A("s_and_b32 s24, s2, 15")
    VXO = 2
    VWO = 4
    A("s_lshl_b32 s25, s23, 7")
    A("s_lshl_b32 s26, s22, 5")
    A("s_add_u32 s25, s25, s26")
    A("s_mul_i32 s25, s25, 896")
    A("v_lshrrev_b32 v16, 3, v1")
    A("v_mul_u32_u24 v16, 896, v16")
    A("v_lshrrev_b32 v17, 4, v1")
    A("v_and_b32 v18, 7, v1")
    A("v_xor_b32 v19, v18, v17")
    A("v_lshl_add_u32 v2, v19, 4, v16")
    A("v_xor_b32 v19, 4, v19")
    A("v_lshl_add_u32 v3, v19, 4, v16")
    A("v_add_u32 v2, s25, v2")
    A("v_add_u32 v3, s25, v3")
    A("s_lshl_b32 s26, s22, 4")
    A("s_mul_i32 s26, s26, 2688")
    A("s_mul_i32 s27, s24, 56")
    A("s_add_u32 s26, s26, s27")
    for i in range(3):
        A(f"v_add_u32 v16, {64 * i}, v1")
        div_const(A, "v17", "v16", 12, 27)
        A("v_mul_u32_u24 v18, 12, v17")
        A("v_sub_u32 v18, v16, v18")
        A("v_mul_u32_u24 v17, 2688, v17")
        A("v_lshrrev_b32 v19, 2, v18")
        A("v_mul_u32_u24 v19, 896, v19")
        A("v_and_b32 v18, 3, v18")
        A("v_lshl_add_u32 v17, v18, 4, v17")
        A("v_add_u32 v17, v17, v19")
        A(f"v_add_u32 v{VWO + i}, s26, v17")
    A.wait_all(vm=False)
    if layer == 0:
        srd(A, 4, 4, 5, XBYTES)
    else:
        srd_off(A, 4, 20, 21, hex(WS_X2), XBYTES)
    srd(A, 8, 8, 9, D * 3 * D * 2)
    srd(A, 12, 20, 21, 0x600000)
    if layer == 0:
        A("s_cmp_ge_u32 s2, 12")
        A(f"s_cbranch_scc1 L_{name}_nz")
        A("s_lshl_b32 s28, s2, 12")
        A(f"s_add_u32 s28, s28, {hex(WS_ST)}")
        A("v_lshlrev_b32 v16, 4, v0")
        for i in range(4):
            A(f"v_mov_b32 v{12 + i}, 0")
        srd(A, 16, 20, 21, 0x1100000)
        A("buffer_store_dwordx4 v[12:15], v16, s[16:19], s28 offen")
        A.raw(f"L_{name}_nz:")
    A("s_lshl_b32 s28, s22, 12")
    A("s_mul_i32 s29, s22, 3072")
    A(f"s_add_u32 s29, s29, {K1_XP}")

    tokq = {}

    def dma_piece_ops(p):
        slot = (p % K1_NS) * K1_SLOT
        ops = []
        for i in range(4):
            def f(i=i):
                A(f"s_add_u32 m0, s28, {slot + i * 1024}")
                A(f"s_mov_b32 s30, {p * 128 + i * 8 * 896}")
                A(f"buffer_load_dwordx4 v{VXO + (i & 1)}, s[4:7], s30 offen lds")
            ops.append(f)
        for i in range(3):
            def f(i=i):
                A(f"s_add_u32 m0, s29, {slot + i * 1024}")
                A(f"s_mov_b32 s31, {p * 64 * 2688}")
                tokq[p] = A(f"buffer_load_dwordx4 v{VWO + i}, s[8:11], s31 offen lds")
            ops.append(f)
        return ops

    A.stamp(1)
    K1_PRE = 3
    for p in range(K1_PRE):
        for f in dma_piece_ops(p):
            f()
    A.stamp(2)

    A("v_and_b32 v16, 31, v1")
    A("v_lshrrev_b32 v17, 5, v1")
    A("v_bfe_u32 v18, v1, 1, 3")
    A("v_xor_b32 v18, v18, v17")
    A("v_lshlrev_b32 v19, 7, v16")
    A("v_add_u32 v19, s28, v19")
    for st in range(4):
        A(f"v_xor_b32 v20, {2 * st}, v18")
        A(f"v_lshl_add_u32 v{8 + st}, v20, 4, v19")
    A("v_bfe_u32 v18, v1, 2, 2")
    A("v_lshl_add_u32 v19, v17, 3, v18")
    A("v_mul_u32_u24 v21, 192, v19")
    A("v_bfe_u32 v19, v1, 4, 1")
    A("v_lshl_add_u32 v21, v19, 5, v21")
    A("v_and_b32 v19, 3, v1")
    A("v_lshl_add_u32 v21, v19, 3, v21")
    A(f"v_add_u32 v21, {K1_XP}, v21")
    A("s_mul_i32 s32, s22, 3072")
    A("v_add_u32 v22, s32, v21")
    A("v_mul_u32_u24 v24, 192, v1")
    A("v_add_u32 v24, s32, v24")
    A(f"v_add_u32 v24, {K1_XP + 56}, v24")
    A("v_mov_b32 v26, 0x3f80")
    A("v_mov_b32 v27, 0")
    ONES = 28
    for i in range(4):
        A(f"v_mov_b32 v{ONES + i}, 0x3f803f80")
    A("v_lshlrev_b32 v25, 2, v1")
    A(f"v_add_u32 v25, {K1_CSUM}, v25")
    A("ds_write_b32 v25, v27")
    A("ds_write_b32 v25, v27 offset:256")
    AQ, AK, AV, AC = 64, 80, 96, 112
    for i in range(64, 160):
        A(f"v_mov_b32 v{i}, 0")
    SS = 36
    for i in range(4):
        A(f"v_mov_b32 v{SS + i}, 0")
    VX, VW, VC0, VP = 40, 44, 45, 46
    XF = 160
    WF = 172
    CF = 208

    def reads(st, buf):
        A(f"ds_read_b128 {v(XF + 4 * buf, 4)}, v{VX + st}")
        for t3 in range(3):
            for t in range(2):
                A(f"ds_read_b64_tr_b16 {v(WF + 12 * buf + 4 * t3 + 2 * t, 2)}, v{VW} "
                  f"offset:{(16 * st + 4 * t) * 192 + 64 * t3}")

    def creads():
        for t3 in range(3):
            A(f"ds_read_b64_tr_b16 {v(CF + 4 * t3, 2)}, v{VC0} offset:{64 * t3}")
            A(f"ds_read_b64_tr_b16 {v(CF + 4 * t3 + 2, 2)}, v{VC0} offset:{768 + 64 * t3}")

    def cmfma():
        for t3 in range(3):
            A(f"v_mfma_f32_32x32x16_bf16 {v(AC + 16 * t3, 16)}, {v(ONES, 4)}, {v(CF + 4 * t3, 4)}, {v(AC + 16 * t3, 16)}")

    gstep = 0
    for p in range(7):
        slot = (p % K1_NS) * K1_SLOT
        A.wait_vm(tokq[p])
        A(f"v_add_u32 v{VP}, {slot}, v24")
        exec_lanes(A, 16)
        A(f"ds_write_b64 v{VP}, v[26:27]")
        exec_lanes(A, 64)
        for st in range(4):
            A(f"v_add_u32 v{VX + st}, {slot}, v{8 + st}")
        A(f"v_add_u32 v{VW}, {slot}, v21")
        A(f"v_add_u32 v{VC0}, {slot}, v22")
        A.wait_all(vm=False)
        A("s_barrier")
        A.stamp(3 + p)
        pend = dma_piece_ops(p + K1_PRE) if p + K1_PRE < 7 else []
        reads(0, gstep % 3)
        reads(1, (gstep + 1) % 3)
        for st in range(4):
            b = gstep % 3
            xf = v(XF + 4 * b, 4)
            A(f"v_mfma_f32_32x32x16_bf16 {v(AQ, 16)}, {v(WF + 12 * b, 4)}, {xf}, {v(AQ, 16)}")
            if st + 2 < 4:
                reads(st + 2, (gstep + 2) % 3)
            if st == 2 and "nocs" not in sys.argv:
                creads()
            A(f"v_mfma_f32_32x32x16_bf16 {v(AK, 16)}, {v(WF + 12 * b + 4, 4)}, {xf}, {v(AK, 16)}")
            if pend: pend.pop(0)()
            for d in range(2 if "nodot" not in sys.argv else 0):
                A(f"v_dot2_f32_bf16 v{SS + d}, v{XF + 4 * b + d}, v{XF + 4 * b + d}, v{SS + d}")
            A(f"v_mfma_f32_32x32x16_bf16 {v(AV, 16)}, {xf}, {v(WF + 12 * b + 8, 4)}, {v(AV, 16)}")
            if pend: pend.pop(0)()
            for d in range(2, 4 if "nodot" not in sys.argv else 0):
                A(f"v_dot2_f32_bf16 v{SS + d}, v{XF + 4 * b + d}, v{XF + 4 * b + d}, v{SS + d}")
            if st == 3 and "nocs" not in sys.argv:
                cmfma()
            gstep += 1

    A.stamp(10)
    A("v_and_b32 v47, 31, v1")
    A("v_lshlrev_b32 v47, 2, v47")
    A(f"v_add_u32 v47, {K1_CSUM}, v47")
    A(f"v_add_f32 v{SS}, v{SS}, v{SS + 1}")
    A(f"v_add_f32 v{SS + 2}, v{SS + 2}, v{SS + 3}")
    A(f"v_add_f32 v{SS}, v{SS}, v{SS + 2}")
    A(f"v_mov_b32 v48, v{SS}")
    A(f"v_permlane32_swap_b32 v48, v{SS}")
    A(f"v_add_f32 v48, v48, v{SS}")
    A(f"v_mov_b32 v49, v{AQ + 12}")
    A(f"v_mov_b32 v50, v{AQ + 12}")
    A("v_permlane32_swap_b32 v49, v50")
    A(f"v_mul_f32 v50, {hexf(1.0 / 448)}, v50")
    A(f"v_mul_f32 v48, {hexf(1.0 / 448)}, v48")
    A("v_fma_f32 v48, -v50, v50, v48")
    A("v_max_f32 v48, 0, v48")
    A(f"v_add_f32 v48, {hexf(1e-5)}, v48")
    A("v_rsq_f32 v48, v48")
    exec_lanes(A, 32)
    for t3 in range(3):
        A(f"ds_add_f32 v47, v{AC + 16 * t3} offset:{128 * t3}")
    exec_lanes(A, 64)
    A("v_mul_f32 v50, -v50, v48")
    A("v_and_b32 v51, 31, v1")
    A("v_lshlrev_b32 v51, 2, v51")
    A("s_lshl_b32 s33, s22, 8")
    A(f"s_add_u32 s33, s33, {K1_TOK}")
    A("v_add_u32 v51, s33, v51")
    exec_lanes(A, 32)
    A("ds_write_b32 v51, v48")
    A("ds_write_b32 v51, v50 offset:128")
    exec_lanes(A, 64)
    A.wait_all(vm=False)
    A("s_barrier")
    A("v_lshlrev_b32 v52, 4, v17")
    A(f"v_add_u32 v53, {K1_CSUM}, v52")
    CS = 160
    for t3 in range(2):
        for j in range(4):
            A(f"ds_read_b128 {v(CS + 16 * t3 + 4 * j, 4)}, v53 offset:{128 * t3 + 32 * j}")
    A("ds_read_b32 v54, v47 offset:256")
    A("v_add_u32 v55, s33, v52")
    TA, TB = 192, 208
    for j in range(4):
        A(f"ds_read_b128 {v(TA + 4 * j, 4)}, v55 offset:{32 * j}")
        A(f"ds_read_b128 {v(TB + 4 * j, 4)}, v55 offset:{128 + 32 * j}")
    A("s_lshl_b32 s34, s24, 6")
    A("s_lshl_b32 s35, s23, 2")
    A("s_add_u32 s34, s34, s35")
    A("s_add_u32 s34, s34, s22")
    A("s_lshl_b32 s34, s34, 11")
    A("v_lshlrev_b32 v56, 4, v1")
    A("v_add_u32 v56, s34, v56")
    cq = (DH ** -0.5) * 1.4426950408889634
    A(f"v_mul_f32 v57, {hexf(cq)}, v48")
    A(f"v_mul_f32 v58, {hexf(cq)}, v50")
    A("v_cmp_eq_u32 s[36:37], 0, v17")
    PK = 224
    for t3, (acc, ra, rb_) in enumerate([(AQ, 57, 58), (AK, 48, 50)]):
        for r in range(16):
            A(f"v_mul_f32 v{CS + 16 * t3 + r}, v{CS + 16 * t3 + r}, v{rb_}")
            A(f"v_fma_f32 v{acc + r}, v{acc + r}, v{ra}, v{CS + 16 * t3 + r}")
        for d in range(8):
            A(f"v_cvt_pk_bf16_f32 v{PK + d}, v{acc + 2 * d}, v{acc + 2 * d + 1}")
        if t3 == 0:
            A("v_mov_b32 v59, 0x3f80")
            A(f"v_cndmask_b32 v{PK + 6}, v59, v{PK + 6}, s[36:37]")
        else:
            A(f"v_cndmask_b32 v{PK + 6}, 0, v{PK + 6}, s[36:37]")
        A(f"v_cndmask_b32 v{PK + 7}, 0, v{PK + 7}, s[36:37]")
        A(f"s_mov_b32 s38, {hex(WS_QF if t3 == 0 else WS_KF)}")
        A(f"buffer_store_dwordx4 {v(PK, 4)}, v56, s[12:15], s38 offen")
        A(f"buffer_store_dwordx4 {v(PK + 4, 4)}, v56, s[12:15], s38 offen offset:1024")
        PK += 8
    for r in range(16):
        A(f"v_mul_f32 v{TB + r}, v{TB + r}, v54")
        A(f"v_fma_f32 v{AV + r}, v{AV + r}, v{TA + r}, v{TB + r}")
    A("v_and_b32 v60, 31, v1")
    A("v_cmp_gt_u32 s[40:41], 28, v60")
    A("v_cmp_eq_u32 vcc, 28, v60")
    A("v_mov_b32 v61, 0x3f803f80")
    A("v_cndmask_b32 v61, 0, v61, vcc")
    for d in range(8):
        A(f"v_cvt_pk_bf16_f32 v{PK + d}, v{AV + 2 * d}, v{AV + 2 * d + 1}")
        A(f"v_cndmask_b32 v{PK + d}, v61, v{PK + d}, s[40:41]")
    A(f"s_mov_b32 s38, {hex(WS_VF)}")
    A(f"buffer_store_dwordx4 {v(PK, 4)}, v56, s[12:15], s38 offen")
    A(f"buffer_store_dwordx4 {v(PK + 4, 4)}, v56, s[12:15], s38 offen offset:1024")
    A.stamp(11)
    A.dump_stamps(STAMP_WG)
    kernel_end(A, name)
    return K1_LDS


K2_K, K2_V, K2_Q = 0, 24576, 49152
K2_LDS = 57344


def k2(A, name, layer):
    kernel_begin(A, name, 256)
    A.stamp_base = 76
    A.stamp(0)
    A(f"s_load_dwordx2 s[20:21], s[0:1], {KA_WS}")
    A("v_and_b32 v1, 63, v0")
    A("v_lshrrev_b32 v2, 6, v0")
    A("v_readfirstlane_b32 s22, v2")
    A("s_lshr_b32 s23, s2, 4")
    A("s_and_b32 s24, s2, 15")
    A("v_lshlrev_b32 v2, 4, v1")
    A("s_lshl_b32 s25, s24, 17")
    A.wait_all(vm=False)
    for (d, off) in [(4, WS_QF), (8, WS_KF), (12, WS_VF)]:
        A(f"s_add_u32 s26, s25, {hex(off)}")
        A(f"s_add_u32 s{d}, s20, s26")
        A(f"s_addc_u32 s{d + 1}, s21, 0")
        A(f"s_and_b32 s{d + 1}, s{d + 1}, 0xffff")
        A(f"s_mov_b32 s{d + 2}, 0x20000")
        A(f"s_mov_b32 s{d + 3}, 0x00020000")
    srd_off(A, 16, 20, 21, hex(WS_OF), 128 * 14 * 1024)
    A("s_lshl_b32 s26, s23, 2")
    A("s_sub_u32 s26, s26, 8")
    A("s_mul_i32 s27, s22, 3")
    A("s_add_u32 s26, s26, s27")
    A("s_mul_i32 s29, s22, 6144")
    for i in range(3):
        A(f"s_add_i32 s34, s26, {i}")
        A("s_lshl_b32 s35, s34, 11")
        A("s_cmp_lt_i32 s34, 0")
        A(f"s_cselect_b32 s{72 + i}, 0x40000000, s35")
    for i in range(6):
        A(f"s_add_u32 m0, s29, {K2_K + i * 1024}")
        A(f"s_add_u32 s30, s{72 + i // 2}, {(i & 1) * 1024}")
        A("buffer_load_dwordx4 v2, s[8:11], s30 offen lds")
    A("s_lshl_b32 s30, s23, 2")
    A("s_add_u32 s30, s30, s22")
    A("s_lshl_b32 s31, s30, 11")
    A("s_lshl_b32 s32, s22, 11")
    for i in range(2):
        A(f"s_add_u32 m0, s32, {K2_Q + i * 1024}")
        A(f"buffer_load_dwordx4 v2, s[4:7], s31 offen offset:0 lds") if i == 0 else None
        if i == 1:
            A("s_add_u32 s33, s31, 1024")
            A("buffer_load_dwordx4 v2, s[4:7], s33 offen lds")
    tokK = A.vmq[-1]["tok"]
    for i in range(6):
        A(f"s_add_u32 m0, s29, {K2_V + i * 1024}")
        A(f"s_add_u32 s30, s{72 + i // 2}, {(i & 1) * 1024}")
        tokV = A("buffer_load_dwordx4 v2, s[12:15], s30 offen lds")
    A.stamp(1)
    A("v_and_b32 v4, 31, v1")
    A("v_lshrrev_b32 v5, 5, v1")
    A("v_lshlrev_b32 v6, 2, v5")
    A("v_sub_u32 v6, v4, v6")
    MS = 40
    for r in range(16):
        kk = 8 * (r >> 2) + (r & 3)
        A(f"v_cmp_ge_i32 s[{MS + 2 * r}:{MS + 2 * r + 1}], v6, {kk}")
    PM = 8
    A("v_mov_b32 v7, 0xffff")
    A("v_mov_b32 v16, 0xffff0000")
    for d in range(8):
        A(f"v_cndmask_b32 v{PM + d}, 0, v7, s[{MS + 4 * d}:{MS + 4 * d + 1}]")
        A(f"v_cndmask_b32 v17, 0, v16, s[{MS + 4 * d + 2}:{MS + 4 * d + 3}]")
        A(f"v_or_b32 v{PM + d}, v{PM + d}, v17")
    A("v_mov_b32 v18, 0xf14a")
    A("v_mul_lo_u32 v18, v18, v5")
    A("v_add_u32 v19, s29, v2")
    A.wait_vm(tokK)
    for i in range(3):
        A(f"s_add_i32 s34, s26, {i}")
        A("s_cmp_ge_i32 s34, 0")
        lab = f"L_{name}_np{i}"
        A(f"s_cbranch_scc1 {lab}")
        A(f"ds_write_b32 v19, v18 offset:{K2_K + i * 2048 + 1024 + 8}")
        A.raw(lab + ":")
    A.force_wait(lg=0)
    A("s_barrier")
    A.stamp(2)
    A("s_lshl_b32 s35, s22, 11")
    A("v_add_u32 v28, s35, v2")
    A(f"ds_read_b128 v[20:23], v28 offset:{K2_Q}")
    A(f"ds_read_b128 v[24:27], v28 offset:{K2_Q + 1024}")
    for i in range(9):
        for st in range(2):
            A(f"ds_read_b128 {a(8 * i + 4 * st, 4)}, v28 offset:{K2_K + 2048 * i + 1024 * st}")
    SB = [64, 80, 96, 112]
    MX = 30
    order = [0, 8, 1, 2, 3, 4, 5, 6, 7]

    def qk(i, buf, cinit):
        A(f"v_mfma_f32_32x32x16_bf16 {v(buf, 16)}, {a(8 * i, 4)}, v[20:23], {cinit}")
        A(f"v_mfma_f32_32x32x16_bf16 {v(buf, 16)}, {a(8 * i + 4, 4)}, v[24:27], {v(buf, 16)}")

    def maxblk(buf, first):
        if first:
            A(f"v_max3_f32 v{MX}, v{buf}, v{buf + 1}, v{buf + 2}")
            rest = list(range(3, 16))
        else:
            rest = list(range(16))
        while len(rest) >= 2:
            A(f"v_max3_f32 v{MX}, v{MX}, v{buf + rest[0]}, v{buf + rest[1]}")
            rest = rest[2:]
        if rest:
            A(f"v_max_f32 v{MX}, v{MX}, v{buf + rest[0]}")

    qk(0, SB[0], "0")
    qk(8, SB[1], "0")
    qk(1, SB[2], "0")
    qk(2, SB[3], "0")
    for r in range(16):
        A(f"v_cndmask_b32 v{SB[0] + r}, v{SB[0] + r}, v{SB[1] + r}, s[{MS + 2 * r}:{MS + 2 * r + 1}]")
    qk(3, SB[1], "0")
    maxblk(SB[0], True)
    qk(4, SB[0], "0")
    maxblk(SB[2], False)
    qk(5, SB[2], "0")
    maxblk(SB[3], False)
    qk(6, SB[3], "0")
    maxblk(SB[1], False)
    qk(7, SB[1], "0")
    maxblk(SB[0], False)
    maxblk(SB[2], False)
    maxblk(SB[3], False)
    maxblk(SB[1], False)
    A(f"v_mov_b32 v31, v{MX}")
    A(f"v_permlane32_swap_b32 v31, v{MX}")
    A(f"v_max_f32 v{MX}, v{MX}, v31")
    CN = 128
    for r in range(16):
        A(f"v_sub_f32 v{CN + r}, 0, v{MX}")
    A.stamp(3)
    A.wait_vm(tokV)
    A("s_barrier")
    for i in range(9):
        for st in range(2):
            A(f"ds_read_b128 {a(72 + 8 * i + 4 * st, 4)}, v28 offset:{K2_V + 2048 * i + 1024 * st}")
    OA = 144
    PB = [160, 168, 176, 184]
    cn = v(CN, 16)

    def exppack(buf, pb):
        for r in range(16):
            A(f"v_exp_f32 v{buf + r}, v{buf + r}")
        for d in range(8):
            A(f"v_cvt_pk_bf16_f32 v{pb + d}, v{buf + 2 * d}, v{buf + 2 * d + 1}")

    first_pv = [True]

    def pv(i, pb):
        for st in range(2):
            c = "0" if first_pv[0] else v(OA, 16)
            first_pv[0] = False
            A(f"v_mfma_f32_32x32x16_bf16 {v(OA, 16)}, {a(72 + 8 * i + 4 * st, 4)}, {v(pb + 4 * st, 4)}, {c}")

    qk(0, SB[0], cn)
    qk(8, SB[1], cn)
    qk(1, SB[2], cn)
    qk(2, SB[3], cn)
    for r in range(16):
        A(f"v_cndmask_b32 v{SB[0] + r}, v{SB[0] + r}, v{SB[1] + r}, s[{MS + 2 * r}:{MS + 2 * r + 1}]")
    qk(3, SB[1], cn)
    exppack(SB[0], PB[0])
    for d in range(8):
        A(f"v_and_b32 v{PB[1] + d}, v{PM + d}, v{PB[0] + d}")
        A(f"v_xor_b32 v{PB[0] + d}, v{PB[0] + d}, v{PB[1] + d}")
    seq = [(1, SB[2]), (2, SB[3]), (3, SB[1]), (4, SB[0]), (5, SB[2]), (6, SB[3]), (7, SB[1])]
    qk(4, SB[0], cn)
    pv(0, PB[0])
    pv(8, PB[1])
    for n, (i, buf) in enumerate(seq):
        pb = PB[2 + (n & 1)]
        exppack(buf, pb)
        if i + 4 <= 7:
            qk(i + 4, buf, cn)
        pv(i, pb)
    A.stamp(4)
    A(f"v_mov_b32 v32, v{OA + 12}")
    A(f"v_mov_b32 v33, v{OA + 12}")
    A("v_permlane32_swap_b32 v32, v33")
    A("v_rcp_f32 v33, v33")
    for r in range(16):
        if r >= 12:
            pass
        A(f"v_mul_f32 v{OA + r}, v{OA + r}, v33")
    for d in range(8):
        A(f"v_cvt_pk_bf16_f32 v{160 + d}, v{OA + 2 * d}, v{OA + 2 * d + 1}")
    A("s_mul_i32 s36, s24, 7")
    A("v_add_u32 v34, s36, v5")
    A("s_lshl_b32 s37, s23, 2")
    A("s_add_u32 s37, s37, s22")
    A("s_mul_i32 s37, s37, 28672")
    A("v_bfe_u32 v35, v1, 4, 1")
    A("v_mul_u32_u24 v35, 14336, v35")
    A("v_and_b32 v36, 15, v1")
    A("v_lshl_add_u32 v35, v36, 4, v35")
    A("v_add_u32 v35, s37, v35")
    for j in range(4):
        A(f"v_add_u32 v36, {2 * j}, v34")
        A("v_lshrrev_b32 v37, 3, v36")
        A("v_lshl_add_u32 v38, v37, 10, v35")
        A("v_bfe_u32 v37, v36, 2, 1")
        A("v_lshl_add_u32 v38, v37, 9, v38")
        A("v_and_b32 v37, 1, v36")
        A("v_lshl_add_u32 v38, v37, 8, v38")
        A("v_bfe_u32 v37, v36, 1, 1")
        A("v_lshl_add_u32 v38, v37, 3, v38")
        if j == 3:
            exec_lanes(A, 32)
        A(f"buffer_store_dwordx2 {v(160 + 2 * j, 2)}, v38, s[16:19], 0 offen")
        if j == 3:
            exec_lanes(A, 64)
    A.stamp(5)
    A.dump_stamps(STAMP_WG)
    kernel_end(A, name)
    return K2_LDS


K3_O, K3_W, K3_X, K3_T = 0, 57344, 114688, 122880
K3_LDS = 131072


def reduce_groups(A, reg, tmp):
    A(f"v_mov_b32 v{tmp}, v{reg}")
    A(f"v_permlane16_swap_b32 v{tmp}, v{reg}")
    A(f"v_add_f32 v{reg}, v{reg}, v{tmp}")
    A(f"v_mov_b32 v{tmp}, v{reg}")
    A(f"v_permlane32_swap_b32 v{tmp}, v{reg}")
    A(f"v_add_f32 v{reg}, v{reg}, v{tmp}")


def k3(A, name, layer):
    kernel_begin(A, name, 224)
    A.stamp_base = 70
    A.stamp(0)
    A(f"s_load_dwordx2 s[20:21], s[0:1], {KA_WS}")
    A(f"s_load_dwordx2 s[8:9], s[0:1], {KA_WO}")
    if layer == 0:
        A(f"s_load_dwordx2 s[12:13], s[0:1], {KA_X}")
    A("v_and_b32 v1, 63, v0")
    A("v_lshrrev_b32 v2, 6, v0")
    A("v_readfirstlane_b32 s22, v2")
    A("s_lshr_b32 s23, s2, 5")
    A("s_and_b32 s24, s2, 31")
    A("v_lshlrev_b32 v2, 4, v1")
    A("v_lshrrev_b32 v3, 3, v1")
    A("v_bfe_u32 v4, v1, 4, 2")
    A("v_lshlrev_b32 v4, 1, v4")
    A("v_and_b32 v5, 7, v1")
    A("v_xor_b32 v4, v4, v5")
    A("v_mul_u32_u24 v5, 896, v3")
    A("v_lshl_add_u32 v5, v4, 4, v5")
    A("s_lshl_b32 s25, s23, 7")
    A("v_add_u32 v5, s25, v5")
    A.wait_all(vm=False)
    srd_off(A, 4, 20, 21, hex(WS_OF), 128 * 14336)
    srd(A, 8, 8, 9, D * D * 2)
    if layer == 0:
        srd(A, 12, 12, 13, XBYTES)
    else:
        srd_off(A, 12, 20, 21, hex(WS_X2), XBYTES)
    srd(A, 16, 20, 21, 0x1100000)
    A("s_lshl_b32 s26, s24, 2")
    A("s_add_u32 s26, s26, s22")
    A("s_mul_i32 s26, s26, 14336")
    A("s_mul_i32 s27, s22, 14336")
    A("s_mul_i32 s28, s22, 7168")
    A("s_lshl_b32 s29, s22, 10")
    toks = {}
    for half in range(2):
        for kp in range(7 * half, 7 * half + 7):
            A(f"s_add_u32 m0, s27, {K3_O + kp * 1024}")
            A(f"s_add_u32 s30, s26, {kp * 1024}")
            A("buffer_load_dwordx4 v2, s[4:7], s30 offen lds")
            A(f"s_add_u32 m0, s29, {K3_W + kp * 4096}")
            A(f"s_add_u32 s30, s28, {kp * 32 * 896}")
            toks[half] = A("buffer_load_dwordx4 v5, s[8:11], s30 offen lds")
    A("s_lshl_b32 s30, s24, 6")
    A("s_lshl_b32 s31, s22, 4")
    A("s_add_u32 s30, s30, s31")
    A("s_mul_i32 s30, s30, 896")
    A("s_lshl_b32 s31, s22, 11")
    for i in range(2):
        A(f"s_add_u32 m0, s31, {K3_X + i * 1024}")
        A(f"s_add_u32 s32, s30, {i * 8 * 896}")
        tokx = A("buffer_load_dwordx4 v5, s[12:15], s32 offen lds")
    A.stamp(1)
    A("s_and_b32 s33, s22, 1")
    A("s_lshr_b32 s34, s22, 1")
    A("s_mul_i32 s35, s33, 28672")
    A("v_add_u32 v6, s35, v2")
    A("v_lshrrev_b32 v7, 4, v1")
    A("v_bfe_u32 v8, v1, 2, 2")
    A("v_and_b32 v9, 3, v1")
    A("v_lshrrev_b32 v10, 1, v7")
    A("v_and_b32 v11, 1, v7")
    A("v_lshlrev_b32 v12, 4, v10")
    A("v_lshl_add_u32 v12, v11, 2, v12")
    A("v_add_u32 v12, v12, v8")
    A("v_lshlrev_b32 v12, 7, v12")
    A("v_lshl_add_u32 v12, v9, 3, v12")
    A("v_lshrrev_b32 v13, 1, v8")
    A("v_lshl_add_u32 v13, v11, 1, v13")
    A("s_lshl_b32 s36, s34, 1")
    for nt in range(2):
        A(f"s_add_u32 s37, s36, {nt}")
        A("v_xor_b32 v14, s37, v13")
        A(f"v_lshl_add_u32 v{16 + nt}, v14, 5, v12")
        A(f"v_add_u32 v{16 + nt}, {K3_W}, v{16 + nt}")
    A("v_lshl_add_u32 v14, v7, 2, v8")
    A("v_bfe_u32 v15, v14, 1, 2")
    A("v_lshlrev_b32 v14, 7, v14")
    A("v_lshl_add_u32 v14, v9, 3, v14")
    A("s_lshl_b32 s38, s33, 12")
    A(f"s_add_u32 s38, s38, {K3_X}")
    A("v_add_u32 v14, s38, v14")
    for nt in range(2):
        A(f"s_add_u32 s37, s36, {nt}")
        A("v_xor_b32 v20, s37, v15")
        A(f"v_lshl_add_u32 v{18 + nt}, v20, 5, v14")
    ACC = 32
    AF = 48
    BF = 64
    AF3, BF3 = 48, 72

    def reads(kp, buf):
        for mt in range(2):
            A(f"ds_read_b128 {v(AF3 + 8 * buf + 4 * mt, 4)}, v6 offset:{mt * 14336 + kp * 1024}")
        for nt in range(2):
            for t in range(2):
                A(f"ds_read_b64_tr_b16 {v(BF3 + 8 * buf + 4 * nt + 2 * t, 2)}, v{16 + nt} offset:{kp * 4096 + t * 1024}")

    def mfmas(kp, buf):
        for mt in range(2):
            for nt in range(2):
                c = "0" if kp == 0 else v(ACC + 4 * (2 * mt + nt), 4)
                A(f"v_mfma_f32_16x16x32_bf16 {v(ACC + 4 * (2 * mt + nt), 4)}, {v(AF3 + 8 * buf + 4 * mt, 4)}, "
                  f"{v(BF3 + 8 * buf + 4 * nt, 4)}, {c}")

    for half in range(2):
        A.wait_vm(toks[half] if half == 0 else tokx)
        A("s_barrier")
        A.stamp(2 + half)
        k0 = 7 * half
        reads(k0, k0 % 3)
        reads(k0 + 1, (k0 + 1) % 3)
        for kp in range(k0, k0 + 7):
            if kp + 2 < k0 + 7:
                reads(kp + 2, (kp + 2) % 3)
            mfmas(kp, kp % 3)
    A.stamp(4)
    XR = 96
    for mt in range(2):
        for nt in range(2):
            A(f"ds_read_b64_tr_b16 {v(XR + 2 * (2 * mt + nt), 2)}, v{18 + nt} offset:{mt * 2048}")
    PKD = 112
    for mt in range(2):
        for nt in range(2):
            i = 2 * mt + nt
            for hlf in range(2):
                x = XR + 2 * i + hlf
                A(f"v_lshlrev_b32 v104, 16, v{x}")
                A(f"v_and_b32 v105, 0xffff0000, v{x}")
                A(f"v_add_f32 v{ACC + 4 * i + 2 * hlf}, v{ACC + 4 * i + 2 * hlf}, v104")
                A(f"v_add_f32 v{ACC + 4 * i + 2 * hlf + 1}, v{ACC + 4 * i + 2 * hlf + 1}, v105")
                A(f"v_cvt_pk_bf16_f32 v{PKD + 4 * nt + 2 * mt + hlf}, v{ACC + 4 * i + 2 * hlf}, v{ACC + 4 * i + 2 * hlf + 1}")
    A("s_lshl_b32 s39, s24, 1")
    A("s_add_u32 s39, s39, s33")
    A("s_mul_i32 s39, s39, 28672")
    A("s_lshl_b32 s40, s23, 3")
    A("s_lshl_b32 s41, s34, 2")
    A("s_add_u32 s40, s40, s41")
    A("s_lshl_b32 s40, s40, 9")
    A("s_add_u32 s39, s39, s40")
    A(f"s_add_u32 s39, s39, {hex(WS_X1F)}")
    A("v_bfe_u32 v21, v1, 3, 1")
    A("v_lshlrev_b32 v21, 9, v21")
    A("v_lshl_add_u32 v21, v7, 7, v21")
    A("v_and_b32 v22, 7, v1")
    A("v_lshl_add_u32 v21, v22, 4, v21")
    for nt in range(2):
        A(f"buffer_store_dwordx4 {v(PKD + 4 * nt, 4)}, v21, s[16:19], s39 offen offset:{nt * 1024}")
    TP = 136
    A("v_and_b32 v22, 15, v1")
    A(f"v_mul_u32_u24 v23, {TP}, v22")
    A("v_lshl_add_u32 v23, v7, 3, v23")
    A(f"s_mul_i32 s41, s34, {32 * TP}")
    A("s_lshl_b32 s42, s33, 6")
    A("s_add_u32 s41, s41, s42")
    A(f"s_add_u32 s41, s41, {K3_T}")
    A("v_add_u32 v23, s41, v23")
    for nt in range(2):
        for mt in range(2):
            A(f"ds_write_b64 v23, {v(PKD + 4 * nt + 2 * mt, 2)} offset:{nt * 16 * TP + mt * 32}")
    A("v_lshl_add_u32 v24, v7, 2, v8")
    A(f"v_mul_u32_u24 v24, {TP}, v24")
    A("v_lshl_add_u32 v24, v9, 3, v24")
    A("v_add_u32 v24, s41, v24")
    TR = 120
    for mt in range(2):
        for nt in range(2):
            A(f"ds_read_b64_tr_b16 {v(TR + 2 * (2 * mt + nt), 2)}, v24 offset:{nt * 16 * TP + mt * 32}")
    A("s_lshl_b32 s42, s24, 2")
    A("s_lshl_b32 s43, s33, 1")
    A("s_add_u32 s42, s42, s43")
    A("s_mul_i32 s43, s42, 14336")
    A("s_lshl_b32 s44, s23, 4")
    A("s_lshl_b32 s45, s34, 3")
    A("s_add_u32 s44, s44, s45")
    A("s_lshl_b32 s44, s44, 7")
    A("s_add_u32 s43, s43, s44")
    A(f"s_add_u32 s43, s43, {hex(WS_X1T)}")
    A("v_lshlrev_b32 v25, 7, v7")
    A("v_lshl_add_u32 v25, v22, 3, v25")
    A("v_mov_b32 v26, 0x3f803f80")
    for mt in range(2):
        A(f"v_mov_b32 v{28 + 2 * mt}, 0")
        A(f"v_mov_b32 v{29 + 2 * mt}, 0")
    for mt in range(2):
        for nt in range(2):
            i = 2 * mt + nt
            A(f"s_add_u32 s44, s43, {mt * 14336 + nt * 512}")
            A(f"buffer_store_dwordx2 {v(TR + 2 * i, 2)}, v25, s[16:19], s44 offen")
            for hlf in range(2):
                A(f"v_dot2_f32_bf16 v{28 + 2 * mt}, v{TR + 2 * i + hlf}, v26, v{28 + 2 * mt}")
                A(f"v_dot2_f32_bf16 v{29 + 2 * mt}, v{TR + 2 * i + hlf}, v{TR + 2 * i + hlf}, v{29 + 2 * mt}")
    A("v_cmp_gt_u32 vcc, 16, v1")
    A("v_lshlrev_b32 v27, 2, v1")
    A("s_lshl_b32 s44, s42, 7")
    A(f"s_add_u32 s44, s44, {hex(WS_ST + (0 if layer == 0 else 2) * 16384)}")
    for mt in range(2):
        reduce_groups(A, 28 + 2 * mt, 104)
        reduce_groups(A, 29 + 2 * mt, 105)
        A(f"v_cndmask_b32 v{106 + mt}, v{29 + 2 * mt}, v{28 + 2 * mt}, vcc")
    exec_lanes(A, 32)
    A("buffer_atomic_add_f32 v106, v27, s[16:19], s44 offen")
    A("buffer_atomic_add_f32 v107, v27, s[16:19], s44 offen offset:128")
    exec_lanes(A, 64)
    A.stamp(5)
    A.dump_stamps(STAMP_WG)
    kernel_end(A, name)
    return K3_LDS


G_RING = 9
G_WL = 40960
G_TAB = 36864
G_LDS = 4 * G_WL


def gk(A, name, layer, which):
    g1 = which == 1
    nwg = 224 if g1 else 256
    NK = 16 if g1 else 14
    pitch = 3584 if g1 else 4096
    kernel_begin(A, name, nwg)
    A.stamp_base = 70
    A.stamp(0)
    A(f"s_load_dwordx2 s[20:21], s[0:1], {KA_WS}")
    A(f"s_load_dwordx2 s[4:5], s[0:1], {KA_W1 if g1 else KA_W2}")
    A(f"s_load_dwordx2 s[12:13], s[0:1], {KA_B1 if g1 else KA_B2}")
    if (not g1) and layer == 1:
        A(f"s_load_dwordx2 s[16:17], s[0:1], {KA_OUT}")
    A("v_and_b32 v1, 63, v0")
    A("v_lshrrev_b32 v2, 6, v0")
    A("v_readfirstlane_b32 s22, v2")
    NI4 = 7 if g1 else 8
    A("s_and_b32 s25, s2, 7")
    A("s_lshr_b32 s26, s2, 3")
    A("s_and_b32 s24, s25, 1")
    A("s_lshl_b32 s24, s24, 2")
    A("s_and_b32 s27, s26, 3")
    A("s_add_u32 s24, s24, s27")
    A("s_lshr_b32 s23, s25, 1")
    A(f"s_mul_i32 s23, s23, {NI4}")
    A("s_lshr_b32 s27, s26, 2")
    A("s_add_u32 s23, s23, s27")
    A("v_lshrrev_b32 v3, 3, v1")
    A("v_bfe_u32 v4, v1, 4, 2")
    A("v_lshlrev_b32 v4, 1, v4")
    A("v_and_b32 v5, 7, v1")
    A("v_xor_b32 v4, v4, v5")
    A(f"v_mul_u32_u24 v5, {pitch}, v3")
    A("v_lshl_add_u32 v5, v4, 4, v5")
    A(f"s_mul_i32 s27, s22, {NK * 32 * pitch}")
    A("s_lshl_b32 s28, s23, 7")
    A("s_add_u32 s27, s27, s28")
    A("v_add_u32 v5, s27, v5")
    A("v_lshrrev_b32 v7, 4, v1")
    A("v_and_b32 v8, 7, v1")
    A("v_lshlrev_b32 v8, 4, v8")
    A("v_lshl_add_u32 v8, v7, 7, v8")
    A("v_bfe_u32 v9, v1, 3, 1")
    A("v_lshl_add_u32 v6, v9, 9, v8")
    A.wait_all(vm=False)
    srd(A, 4, 4, 5, (S * F * 2))
    srd(A, 8, 20, 21, 0x1100000)
    srd(A, 12, 12, 13, (F if g1 else S) * 2)
    if (not g1) and layer == 1:
        srd(A, 16, 16, 17, XBYTES)
    elif not g1:
        srd_off(A, 16, 20, 21, hex(WS_X2), XBYTES)
    if g1:
        A(f"s_mul_i32 s29, s22, {16 * 28672}")
        A("s_mul_i32 s30, s24, 3584")
        A("s_add_u32 s29, s29, s30")
        A(f"s_add_u32 s29, s29, {hex(WS_X1F)}")
        bstep = 28672
    else:
        A("s_mul_i32 s29, s24, 56")
        A("s_mul_i32 s30, s22, 14")
        A("s_add_u32 s29, s29, s30")
        A("s_mul_i32 s29, s29, 3584")
        A(f"s_add_u32 s29, s29, {hex(WS_UF)}")
        bstep = 3584
    A(f"s_mul_i32 s31, s22, {G_WL}")
    NB = 8
    BR = 128
    toks = {}

    def issue(st):
        slot = st % G_RING
        for q in range(4):
            A(f"s_add_u32 m0, s31, {slot * 4096 + q * 1024}")
            A(f"s_mov_b32 s32, {(st * 32 + q * 8) * pitch}")
            A("buffer_load_dwordx4 v5, s[4:7], s32 offen lds")
        b = BR + 16 * (st % NB)
        A(f"s_add_u32 s33, s29, {st * bstep}")
        for nt in range(3):
            A(f"buffer_load_dwordx4 {v(b + 4 * nt, 4)}, v6, s[8:11], s33 offen offset:{nt * 1024}")
        toks[st] = A(f"buffer_load_dwordx4 {v(b + 12, 4)}, v8, s[8:11], s33 offen offset:3072")

    if g1:
        A("v_lshrrev_b32 v10, 2, v1")
        A("v_lshlrev_b32 v10, 7, v10")
        A("v_and_b32 v11, 3, v1")
        A("v_lshl_add_u32 v10, v11, 4, v10")
        A("s_lshl_b32 s34, s22, 12")
        A(f"s_add_u32 s34, s34, {hex(WS_ST + (0 if layer == 0 else 2) * 16384)}")
        for q in range(2):
            A(f"buffer_load_dwordx4 {v(16 + 8 * q, 4)}, v10, s[8:11], s34 offen offset:{q * 2048}")
            A(f"buffer_load_dwordx4 {v(20 + 8 * q, 4)}, v10, s[8:11], s34 offen offset:{q * 2048 + 64}")
    PRE = 7
    for st in range(PRE):
        issue(st)
    A.stamp(1)
    A("v_bfe_u32 v12, v1, 2, 2")
    A("v_and_b32 v13, 3, v1")
    A("v_and_b32 v14, 1, v7")
    A("v_lshlrev_b32 v15, 2, v7")
    tstep = 2048
    A("v_add_u32 v15, v15, v12")
    A("v_lshlrev_b32 v15, 7, v15")
    A("v_lshl_add_u32 v15, v13, 3, v15")
    A("v_add_u32 v15, s31, v15")
    A("v_lshrrev_b32 v32, 1, v12")
    A("v_lshl_add_u32 v32, v14, 1, v32")
    for mt in range(4):
        A(f"v_xor_b32 v33, {mt}, v32")
        A(f"v_lshl_add_u32 v{36 + mt}, v33, 5, v15")
    if g1:
        for q in range(2):
            for i in range(4):
                sm, sq = 16 + 8 * q + i, 20 + 8 * q + i
                A(f"v_mul_f32 v{sm}, {hexf(1.0 / 448)}, v{sm}")
                A(f"v_mul_f32 v{sq}, {hexf(1.0 / 448)}, v{sq}")
                A(f"v_fma_f32 v{sq}, -v{sm}, v{sm}, v{sq}")
                A(f"v_max_f32 v{sq}, 0, v{sq}")
                A(f"v_add_f32 v34, {hexf(1e-5)}, v{sq}")
                A("v_rcp_f32 v34, v34")
                A(f"v_mul_f32 v35, v{sq}, v34")
                A(f"v_add_f32 v35, {hexf(1e-5)}, v35")
                A("v_rcp_f32 v35, v35")
                A("v_mul_f32 v34, v34, v35")
                A(f"v_sqrt_f32 v{sq}, v34")
                A(f"v_mul_f32 v{sm}, -v{sm}, v{sq}")
        A("v_lshlrev_b32 v34, 4, v1")
        A("v_add_u32 v34, s31, v34")
        for q in range(2):
            A(f"ds_write_b128 v34, {v(20 + 8 * q, 4)} offset:{G_TAB + q * 1024}")
            A(f"ds_write_b128 v34, {v(16 + 8 * q, 4)} offset:{G_TAB + 2048 + q * 1024}")
        A("v_lshlrev_b32 v35, 4, v7")
        A("v_add_u32 v35, s31, v35")
    AFR = [0, 16]
    ACC = 32
    BN = [40, 56]
    AB = [72, 88]
    TMP = 104

    def lds_reads(st):
        slot = st % G_RING
        buf = st & 1
        for mt in range(4):
            for t in range(2):
                A(f"ds_read_b64_tr_b16 {a(AFR[buf] + 4 * mt + 2 * t, 2)}, v{36 + mt} offset:{slot * 4096 + t * tstep}")
        if g1:
            for t in range(2):
                A(f"ds_read_b128 {v(AB[buf] + 4 * t, 4)}, v35 offset:{G_TAB + st * 128 + t * 64}")
                A(f"ds_read_b128 {v(AB[buf] + 8 + 4 * t, 4)}, v35 offset:{G_TAB + 2048 + st * 128 + t * 64}")

    def normalize(st):
        buf = st & 1
        b = BR + 16 * (st % NB)
        for nt in range(4):
            for d in range(4):
                x = b + 4 * nt + d
                t0 = TMP + 2 * (d & 1)
                A(f"v_lshlrev_b32 v{t0}, 16, v{x}")
                A(f"v_and_b32 v{t0 + 1}, 0xffff0000, v{x}")
                A(f"v_pk_fma_f32 {v(t0, 2)}, {v(t0, 2)}, {v(AB[buf] + 2 * d, 2)}, {v(AB[buf] + 8 + 2 * d, 2)}")
                A(f"v_cvt_pk_bf16_f32 v{BN[buf] + 4 * nt + d}, v{t0}, v{t0 + 1}")

    def mfmas(st):
        buf = st & 1
        for mt in range(4):
            for nt in range(4):
                acc = a(ACC + 4 * (4 * mt + nt), 4)
                c = "0" if st == 0 else acc
                if g1:
                    A(f"v_mfma_f32_16x16x32_bf16 {acc}, {a(AFR[buf] + 4 * mt, 4)}, {v(BN[buf] + 4 * nt, 4)}, {c}")
                else:
                    b = BR + 16 * (st % NB)
                    A(f"v_mfma_f32_16x16x32_bf16 {acc}, {v(b + 4 * nt, 4)}, {a(AFR[buf] + 4 * mt, 4)}, {c}")

    A.wait_vm(toks[0])
    lds_reads(0)
    for st in range(NK):
        if st + 1 < NK:
            A.wait_vm(toks[st + 1])
            lds_reads(st + 1)
        if g1:
            normalize(st)
        mfmas(st)
        if st + PRE < NK:
            issue(st + PRE)
    A.stamp(2)
    def owner(mt, nt):
        return (2 * (mt >> 1) + (nt >> 1)) if g1 else mt
    A("v_lshlrev_b32 v34, 4, v1")
    A("v_add_u32 v33, s31, v34")
    slot_of = {}
    cnt = [0, 0, 0, 0]
    for mt in range(4):
        for nt in range(4):
            o = owner(mt, nt)
            slot_of[(mt, nt)] = (o, cnt[o])
            cnt[o] += 1
    for mt in range(4):
        for nt in range(4):
            o, k = slot_of[(mt, nt)]
            A(f"ds_write_b128 v33, {a(ACC + 4 * (4 * mt + nt), 4)} offset:{(o * 4 + k) * 1024}")
    A.wait_all(vm=False)
    A("s_barrier")
    A("s_lshl_b32 s35, s22, 12")
    A("v_add_u32 v33, s35, v34")
    RD = 40
    A(f"v_add_u32 v35, {2 * G_WL}, v33")
    for src in range(4):
        for k in range(4):
            A(f"ds_read_b128 {v(RD + 16 * src + 4 * k, 4)}, v{33 if src < 2 else 35} offset:{(src & 1) * G_WL + k * 1024}")
    for k in range(4):
        for r in range(4):
            A(f"v_add_f32 v{RD + 4 * k + r}, v{RD + 4 * k + r}, v{RD + 16 + 4 * k + r}")
            A(f"v_add_f32 v{RD + 32 + 4 * k + r}, v{RD + 32 + 4 * k + r}, v{RD + 48 + 4 * k + r}")
            A(f"v_add_f32 v{RD + 4 * k + r}, v{RD + 4 * k + r}, v{RD + 32 + 4 * k + r}")
    A.stamp(3)
    if g1:
        A("s_lshr_b32 s36, s22, 1")
        A("s_lshl_b32 s37, s23, 7")
        A("s_lshl_b32 s38, s36, 6")
        A("s_add_u32 s37, s37, s38")
        A("v_lshlrev_b32 v33, 3, v7")
        A("buffer_load_dwordx2 v[104:105], v33, s[12:15], s37 offen")
        A("buffer_load_dwordx2 v[106:107], v33, s[12:15], s37 offen offset:32")
        for m in range(2):
            for hlf in range(2):
                A(f"v_lshlrev_b32 v{108 + 4 * m + 2 * hlf}, 16, v{104 + 2 * m + hlf}")
                A(f"v_and_b32 v{109 + 4 * m + 2 * hlf}, 0xffff0000, v{104 + 2 * m + hlf}")
        c1 = -2.0 * 1.4426950408889634 * 0.7978845608028654
        c3 = c1 * 0.044715
        A(f"s_mov_b32 s39, {hexf(c1)}")
        A(f"s_mov_b32 s40, {hexf(c3)}")
        A("v_mov_b32 v116, s39")
        for k in range(4):
            m, n = k >> 1, k & 1
            for r in range(4):
                x = RD + 4 * k + r
                A(f"v_add_f32 v{x}, v{x}, v{108 + 4 * m + r}")
                A(f"v_mul_f32 v117, v{x}, v{x}")
                A("v_fma_f32 v117, v117, s40, v116")
                A(f"v_mul_f32 v117, v117, v{x}")
                A("v_exp_f32 v117, v117")
                A("v_add_f32 v117, 1.0, v117")
                A("v_rcp_f32 v117, v117")
                A(f"v_mul_f32 v{x}, v{x}, v117")
        for n in range(2):
            for m in range(2):
                k = 2 * m + n
                for hlf in range(2):
                    A(f"v_cvt_pk_bf16_f32 v{120 + 4 * n + 2 * m + hlf}, v{RD + 4 * k + 2 * hlf}, v{RD + 4 * k + 2 * hlf + 1}")
        A("s_mul_i32 s41, s24, 56")
        A("s_lshl_b32 s42, s23, 1")
        A("s_add_u32 s41, s41, s42")
        A("s_add_u32 s41, s41, s36")
        A("s_mul_i32 s41, s41, 3584")
        A(f"s_add_u32 s41, s41, {hex(WS_UF)}")
        A("s_and_b32 s42, s22, 1")
        A("s_lshl_b32 s43, s42, 11")
        A("s_add_u32 s41, s41, s43")
        A("buffer_store_dwordx4 v[120:123], v6, s[8:11], s41 offen")
        A("s_cmp_eq_u32 s42, 0")
        A("s_cselect_b64 s[44:45], -1, 0x00ff00ff")
        A("s_cselect_b32 s46, -1, 0x00ff00ff")
        A("s_mov_b32 s45, s46")
        A("s_mov_b64 exec, s[44:45]")
        A("buffer_store_dwordx4 v[124:127], v6, s[8:11], s41 offen offset:1024")
        A("s_mov_b64 exec, -1")
    else:
        A("s_lshl_b32 s36, s23, 2")
        A("s_add_u32 s36, s36, s22")
        A("s_mul_i32 s37, s36, 14336")
        A("s_mul_i32 s38, s24, 1792")
        A("s_add_u32 s37, s37, s38")
        A(f"s_add_u32 s37, s37, {hex(WS_X1T)}")
        A("v_and_b32 v33, 15, v1")
        A("v_lshlrev_b32 v35, 3, v33")
        A("v_lshl_add_u32 v35, v7, 7, v35")
        for k in range(4):
            A(f"buffer_load_dwordx2 {v(104 + 2 * k, 2)}, v35, s[8:11], s37 offen offset:{k * 512}")
        A("s_lshl_b32 s38, s36, 5")
        A("v_lshlrev_b32 v36, 1, v33")
        A("buffer_load_ushort v112, v36, s[12:15], s38 offen")
        A("v_lshlrev_b32 v112, 16, v112")
        for k in range(4):
            for hlf in range(2):
                x = 104 + 2 * k + hlf
                A(f"v_lshlrev_b32 v113, 16, v{x}")
                A(f"v_and_b32 v114, 0xffff0000, v{x}")
                y = RD + 4 * k + 2 * hlf
                A(f"v_add_f32 v{y}, v{y}, v112")
                A(f"v_add_f32 v{y + 1}, v{y + 1}, v112")
                A(f"v_add_f32 v{y}, v{y}, v113")
                A(f"v_add_f32 v{y + 1}, v{y + 1}, v114")
                A(f"v_cvt_pk_bf16_f32 v{120 + 2 * k + hlf}, v{y}, v{y + 1}")
        if layer == 0:
            A("v_mov_b32 v113, 0x3f803f80")
            A("v_mov_b32 v114, 0")
            A("v_mov_b32 v115, 0")
            A("v_cmp_gt_u32 vcc, 32, v1")
            A("v_cndmask_b32 v128, 0, v126, vcc")
            A("v_cndmask_b32 v129, 0, v127, vcc")
            for x in [120, 121, 122, 123, 124, 125, 128, 129]:
                A(f"v_dot2_f32_bf16 v114, v{x}, v113, v114")
                A(f"v_dot2_f32_bf16 v115, v{x}, v{x}, v115")
            reduce_groups(A, 114, 116)
            reduce_groups(A, 115, 117)
            A("v_cmp_gt_u32 vcc, 16, v1")
            A("v_cndmask_b32 v116, v115, v114, vcc")
            A("v_lshlrev_b32 v117, 2, v1")
            A("s_lshl_b32 s39, s36, 7")
            A(f"s_add_u32 s39, s39, {hex(WS_ST + 16384)}")
            exec_lanes(A, 32)
            A("buffer_atomic_add_f32 v116, v117, s[8:11], s39 offen")
            exec_lanes(A, 64)
        SP = 144
        A(f"v_mul_u32_u24 v36, {SP}, v33")
        A("v_lshl_add_u32 v36, v7, 3, v36")
        A("v_add_u32 v36, s31, v36")
        for k in range(4):
            A(f"ds_write_b64 v36, {v(120 + 2 * k, 2)} offset:{20480 + 32 * k}")
        A("s_lshl_b32 s39, s36, 4")
        A("s_mul_i32 s39, s39, 896")
        A("s_mul_i32 s40, s24, 112")
        A("s_add_u32 s39, s39, s40")
        for it in range(2):
            A(f"v_add_u32 v37, {64 * it}, v1")
            div_const(A, "v38", "v37", 7, 41)
            A("v_mul_u32_u24 v39, 7, v38")
            A("v_sub_u32 v39, v37, v39")
            A(f"v_mul_u32_u24 v37, {SP}, v38")
            A("v_lshl_add_u32 v37, v39, 4, v37")
            A("v_add_u32 v37, s31, v37")
            A(f"ds_read_b128 {v(132 + 4 * it, 4)}, v37 offset:20480")
            A("v_mul_u32_u24 v38, 896, v38")
            A(f"v_lshl_add_u32 v{140 + it}, v39, 4, v38")
        A("buffer_store_dwordx4 v[132:135], v140, s[16:19], s39 offen")
        A("s_mov_b32 exec_hi, 0xffff")
        A("buffer_store_dwordx4 v[136:139], v141, s[16:19], s39 offen")
        A("s_mov_b64 exec, -1")
    A.stamp(4)
    A.dump_stamps(STAMP_WG)
    kernel_end(A, name)
    return G_LDS


STAMP_WG = 37
def build(kernels, path, stamps=False):
    A = Asm()
    A.stamps = stamps
    launches = []
    kds = []
    for (name, fn, args, grid) in kernels:
        lds = fn(A, name, *args)
        launches.append(f"; @launch kernel={name} grid=({grid},1,1) block=(256,1,1) lds={lds}")
        kds.append(kd(name))
    head = open("interleave_layers__sliding_block__mixer_token_mlp__prompt.s.ref").read()
    hdr = [l for l in head.splitlines() if l.startswith(";") and "@launch" not in l][:13]
    txt = "\n".join(hdr) + "\n" + "\n".join(launches) + "\n"
    txt += '.amdgcn_target "amdgcn-amd-amdhsa--gfx950"\n.text\n'
    txt += A.text()
    txt += '.section .rodata,"a"\n' + "\n".join(kds) + "\n"
    open(path, "w").write(txt)
    print(f"wrote {path}: {A.ninstr} instrs, {A.nops_inserted} nop states inserted, {len(txt)} bytes")


if __name__ == "__main__":
    ks = []
    for L, c in enumerate("ab"):
        ks += [(f"k1{c}_kernel", k1, (L,), 256), (f"k2{c}_kernel", k2, (L,), 256), (f"k3{c}_kernel", k3, (L,), 224),
               (f"g1{c}_kernel", gk, (L, 1), 224), (f"g2{c}_kernel", gk, (L, 2), 256)]
    build(ks, sys.argv[1] if len(sys.argv) > 1 else "dev.s", stamps=("--stamps" in sys.argv))
```

```python
import re

REG_RE = re.compile(r"^(v|a|s)(\d+)$|^(v|a|s)\[(\d+):(\d+)\]$")


def parse_reg(tok):
    tok = tok.strip()
    neg = tok
    if neg.startswith("-"):
        neg = neg[1:]
    if neg.startswith("abs(") and neg.endswith(")"):
        neg = neg[4:-1]
    if neg.startswith("|") and neg.endswith("|"):
        neg = neg[1:-1]
    m = REG_RE.match(neg)
    if m:
        if m.group(1):
            return {(m.group(1), int(m.group(2)))}
        return {(m.group(3), i) for i in range(int(m.group(4)), int(m.group(5)) + 1)}
    if neg == "vcc":
        return {("s", 106), ("s", 107)}
    if neg == "vcc_lo":
        return {("s", 106)}
    if neg == "vcc_hi":
        return {("s", 107)}
    if neg == "exec":
        return {("x", 0), ("x", 1)}
    if neg == "exec_lo":
        return {("x", 0)}
    if neg == "exec_hi":
        return {("x", 1)}
    if neg == "m0":
        return {("m", 0)}
    if neg == "scc":
        return {("c", 0)}
    return set()


TRANS = ("v_exp_f32", "v_log_f32", "v_rcp_f32", "v_rsq_f32", "v_sqrt_f32", "v_sin_f32", "v_cos_f32",
         "v_rcp_iflag_f32")


class Ins:
    __slots__ = ("text", "op", "defs", "uses", "kind", "passes", "srcc", "comment", "vm", "lg", "is_store_wide",
                 "store_data", "lds_dma", "dpp")

    def __init__(self, text):
        self.text = text
        body = text.split(";")[0].strip()
        parts = body.split(None, 1)
        self.op = parts[0]
        rest = parts[1] if len(parts) > 1 else ""
        ops = []
        cur = ""
        depth = 0
        for ch in rest:
            if ch == "[":
                depth += 1
            if ch == "]":
                depth -= 1
            if ch == "," and depth == 0:
                ops.append(cur.strip())
                cur = ""
            else:
                cur += ch
        if cur.strip():
            ops.append(cur.strip())
        mods = []
        if ops:
            last = ops[-1].split()
            ops[-1] = last[0]
            mods = last[1:]
        op = self.op
        self.defs = set()
        self.uses = set()
        self.kind = "other"
        self.passes = 0
        self.srcc = set()
        self.vm = False
        self.lg = False
        self.is_store_wide = False
        self.store_data = set()
        self.lds_dma = False
        self.dpp = any(m.startswith(("row_", "quad_perm", "wave_", "row_bcast", "bank_mask", "row_mask")) for m in mods)
        R = [parse_reg(o) for o in ops]
        if op.startswith("v_mfma"):
            self.kind = "mfma"
            self.passes = 8 if "32x32" in op else 4
            self.defs = R[0]
            self.uses = R[1] | R[2] | R[3]
            self.srcc = R[3]
        elif op.startswith("v_"):
            self.kind = "trans" if op.replace("_e32", "").replace("_e64", "") in TRANS else "valu"
            base = op.replace("_e32", "").replace("_e64", "")
            if base.startswith("v_cmp"):
                self.defs = R[0]
                for r in R[1:]:
                    self.uses |= r
                if base.startswith("v_cmpx"):
                    self.defs |= {("x", 0), ("x", 1)}
            elif base in ("v_add_co_u32", "v_sub_co_u32", "v_subrev_co_u32"):
                self.defs = R[0] | R[1]
                for r in R[2:]:
                    self.uses |= r
            elif base in ("v_addc_co_u32", "v_subb_co_u32"):
                self.defs = R[0] | R[1]
                for r in R[2:]:
                    self.uses |= r
            elif base.startswith("v_permlane") and "swap" in base:
                self.defs = R[0] | R[1]
                self.uses = R[0] | R[1]
                self.kind = "permlane"
            elif base in ("v_fmac_f32", "v_dot2c_f32_bf16", "v_pk_fmac_f16", "v_mac_f32", "v_writelane_b32"):
                self.defs = R[0]
                for r in R:
                    self.uses |= r
            else:
                self.defs = R[0]
                for r in R[1:]:
                    self.uses |= r
                if base == "v_cndmask_b32" and len(ops) == 3:
                    self.uses |= parse_reg("vcc")
            if base in ("v_readfirstlane_b32", "v_readlane_b32"):
                self.kind = "readlane"
            self.uses |= {("x", 0), ("x", 1)}
        elif op.startswith("ds_"):
            self.kind = "ds"
            self.lg = True
            if op.startswith(("ds_read", "ds_bpermute", "ds_permute", "ds_swizzle")) or "_rtn" in op:
                self.defs = R[0]
                for r in R[1:]:
                    self.uses |= r
            else:
                for r in R:
                    self.uses |= r
        elif op.startswith(("buffer_", "global_")):
            self.kind = "vmem"
            self.vm = True
            if op in ("buffer_inv", "buffer_wbl2"):
                pass
            elif "lds" in mods or "_lds_" in op:
                self.lds_dma = True
                for r in R:
                    self.uses |= r
                self.uses |= {("m", 0)}
            elif op.startswith(("buffer_load", "global_load")):
                self.defs = R[0]
                for r in R[1:]:
                    self.uses |= r
            elif "atomic" in op:
                for r in R:
                    self.uses |= r
                if "sc0" in mods:
                    self.defs = R[0] if op.startswith("buffer") else R[0]
            else:
                for r in R:
                    self.uses |= r
                data = R[0] if op.startswith("buffer") else R[1]
                if "x3" in op or "x4" in op:
                    self.is_store_wide = True
                    self.store_data = data
        elif op.startswith("s_"):
            self.kind = "salu"
            if op.startswith("s_load") or op.startswith("s_buffer_load") or op in ("s_memtime", "s_memrealtime"):
                self.kind = "smem"
                self.lg = True
                self.defs = R[0]
                for r in R[1:]:
                    self.uses |= r
            elif op.startswith(("s_cmp", "s_bitcmp")):
                for r in R:
                    self.uses |= r
                self.defs = {("c", 0)}
            elif op in ("s_waitcnt", "s_nop", "s_barrier", "s_endpgm", "s_branch", "s_sleep", "s_setprio") or \
                    op.startswith("s_cbranch"):
                self.kind = "ctl"
            elif "saveexec" in op:
                self.defs = R[0] | {("x", 0), ("x", 1), ("c", 0)}
                for r in R[1:]:
                    self.uses |= r
                self.uses |= {("x", 0), ("x", 1)}
            else:
                self.defs = R[0] if R else set()
                for r in R[1:]:
                    self.uses |= r
                if op.startswith(("s_add", "s_sub", "s_and", "s_or", "s_xor", "s_lshl", "s_lshr", "s_ashr", "s_min",
                                  "s_max", "s_not", "s_andn2", "s_bfe")):
                    self.defs = self.defs | {("c", 0)}
                if op in ("s_addk_i32", "s_mulk_i32"):
                    self.uses |= R[0]
                if op.startswith("s_cselect") or op.startswith("s_addc") or op.startswith("s_subb"):
                    self.uses |= {("c", 0)}

    def nstates(self):
        if self.op == "s_nop":
            return int(self.text.split()[1], 0) + 1
        return 1


def is_vgprish(r):
    return r[0] in ("v", "a")


class Asm:
    def __init__(self):
        self.out = []
        self.hist = []
        self.vmq = []
        self.lgq = []
        self.smem_pending = False
        self.ntok = 0
        self.nops_inserted = 0
        self.ninstr = 0

    def raw(self, text):
        self.out.append(text)

    def comment(self, text):
        self.out.append("    ; " + text)

    def label(self, name):
        self.out.append(name + ":")

    def _required_nops(self, ins):
        need = 0
        age = 0
        for p in reversed(self.hist):
            req = 0
            pv = p.kind in ("valu", "trans", "permlane", "readlane")
            vdefs = {r for r in p.defs if is_vgprish(r)}
            sdefs = {r for r in p.defs if r[0] == "s"}
            if pv:
                if ins.kind == "mfma" and vdefs & ins.uses:
                    req = max(req, 2)
                if ins.kind in ("valu", "trans", "permlane", "readlane") and sdefs & ins.uses:
                    req = max(req, 4 if ins.op.startswith(("v_readlane", "v_writelane")) else 2)
                if ins.kind == "vmem" and sdefs & ins.uses:
                    req = max(req, 5)
                if ins.kind == "readlane" and vdefs & ins.uses:
                    req = max(req, 1)
                if ins.kind == "permlane" and vdefs & ins.uses:
                    req = max(req, 2)
                if ins.dpp and vdefs & ins.uses:
                    req = max(req, 2)
                if p.kind == "trans" and ins.kind in ("valu", "permlane", "readlane", "mfma", "vmem", "ds") and \
                        vdefs & ins.uses:
                    req = max(req, 1)
                if ("x", 0) in p.defs and ins.kind == "mfma":
                    req = max(req, 4)
                if ("x", 0) in p.defs and ins.dpp:
                    req = max(req, 5)
                if ("x", 0) in p.defs and ins.kind in ("permlane", "readlane"):
                    req = max(req, 4)
            if p.op.startswith("v_dot") and (vdefs & (ins.uses | ins.defs)):
                same = ins.op == p.op
                srcc_only = False
                if same:
                    ops_ = [x.strip() for x in ins.text.split(None, 1)[1].split(",")]
                    ab = parse_reg(ops_[1]) | parse_reg(ops_[2])
                    srcc_only = not (vdefs & ab)
                if not (same and srcc_only):
                    req = max(req, 3)
            if p.kind == "mfma":
                big = 12 if p.passes == 8 else 8
                mid = 10 if p.passes == 8 else 6
                war = 7 if p.passes == 8 else 3
                if ins.kind == "mfma":
                    ab = ins.uses - ins.srcc
                    if p.defs & (ins.uses - ins.srcc):
                        req = max(req, big)
                    if p.defs & ins.srcc:
                        if ins.srcc == p.defs and ins.passes == p.passes:
                            pass
                        else:
                            req = max(req, mid)
                    if (p.defs & ins.defs) and not (ins.srcc == p.defs):
                        req = max(req, mid)
                else:
                    if p.defs & (ins.uses | ins.defs):
                        req = max(req, big)
                    if ins.kind in ("valu", "trans", "permlane", "readlane") and (p.srcc & ins.defs):
                        req = max(req, war)
            if p.kind == "salu" and ("m", 0) in p.defs and ins.lds_dma:
                req = max(req, 1)
            if p.is_store_wide and (p.store_data & ins.defs):
                req = max(req, 2 if ins.kind in ("valu", "trans", "permlane", "readlane") else 1)
            if req > age:
                need = max(need, req - age)
            age += p.nstates()
            if age > 24:
                break
        return need

    def _push(self, ins):
        self.out.append("    " + ins.text)
        self.hist.append(ins)
        if len(self.hist) > 40:
            self.hist = self.hist[-40:]
        self.ninstr += 1

    def nop(self, n):
        while n > 0:
            k = min(n, 16)
            self._push(Ins(f"s_nop {k - 1}"))
            n -= k

    def _auto_wait(self, ins):
        regs = ins.uses | ins.defs
        vm_need = None
        for i, o in enumerate(self.vmq):
            if o["defs"] & regs:
                vm_need = len(self.vmq) - 1 - i
        lg_need = None
        for i, o in enumerate(self.lgq):
            if o["defs"] & regs:
                lg_need = len(self.lgq) - 1 - i
                if o.get("smem"):
                    lg_need = 0
        if lg_need is not None and any(o.get("smem") for o in self.lgq):
            lg_need = 0
        self._emit_wait(vm_need, lg_need)

    def _emit_wait(self, vm, lg):
        parts = []
        if vm is not None and vm < len(self.vmq):
            vm = min(vm, 63)
            parts.append(f"vmcnt({vm})")
            self.vmq = self.vmq[len(self.vmq) - vm:] if vm > 0 else []
        if lg is not None and lg < len(self.lgq):
            lg = min(lg, 15)
            parts.append(f"lgkmcnt({lg})")
            self.lgq = self.lgq[len(self.lgq) - lg:] if lg > 0 else []
        if parts:
            self._push(Ins("s_waitcnt " + " ".join(parts)))

    def wait_vm(self, tok):
        for i, o in enumerate(self.vmq):
            if o["tok"] == tok:
                self._emit_wait(len(self.vmq) - 1 - i, None)
                return

    def wait_lg(self, tok):
        for i, o in enumerate(self.lgq):
            if o["tok"] == tok:
                n = len(self.lgq) - 1 - i
                if any(x.get("smem") for x in self.lgq):
                    n = 0
                self._emit_wait(None, n)
                return

    def wait_all(self, vm=True, lg=True):
        self._emit_wait(0 if vm else None, 0 if lg else None)

    def force_wait(self, vm=None, lg=None):
        parts = []
        if vm is not None:
            parts.append(f"vmcnt({vm})")
            self.vmq = self.vmq[len(self.vmq) - vm:] if (vm > 0 and vm < len(self.vmq)) else ([] if vm == 0 else self.vmq)
        if lg is not None:
            parts.append(f"lgkmcnt({lg})")
            self.lgq = self.lgq[len(self.lgq) - lg:] if (lg > 0 and lg < len(self.lgq)) else ([] if lg == 0 else self.lgq)
        self._push(Ins("s_waitcnt " + " ".join(parts)))

    def __call__(self, text):
        if getattr(self, "store_mod", None) and text.startswith("buffer_store"):
            text = text + " " + self.store_mod
        ins = Ins(text)
        self._auto_wait(ins)
        if ins.lg and len(self.lgq) >= 15:
            n14 = 0 if any(o.get("smem") for o in self.lgq) else 13
            self._emit_wait(None, n14)
        if ins.vm and len(self.vmq) >= 63:
            self._emit_wait(60, None)
        n = self._required_nops(ins)
        if n:
            self.nops_inserted += n
            self.nop(n)
        self._push(ins)
        tok = None
        if ins.vm:
            self.ntok += 1
            tok = self.ntok
            self.vmq.append({"defs": set(ins.defs), "tok": tok})
            assert len(self.vmq) <= 63, "too many outstanding vm ops: " + text
        if ins.lg:
            self.ntok += 1
            tok = self.ntok
            self.lgq.append({"defs": set(ins.defs), "tok": tok, "smem": ins.kind == "smem"})
            if len(self.lgq) > 15 and False:
                pass
        return tok

    def stamp(self, i):
        if not getattr(self, "stamps", False):
            return
        sb = getattr(self, "stamp_base", 70)
        self(f"s_memtime s[{sb + 2 * i}:{sb + 1 + 2 * i}]")
        self.wait_all(vm=False)
        self.nstamps = max(getattr(self, "nstamps", 0), i + 1)

    def dump_stamps(self, wg=0):
        if not getattr(self, "stamps", False):
            return
        n = self.nstamps
        sb = getattr(self, "stamp_base", 70)
        self.nstamps = 0
        self("s_load_dwordx2 s[60:61], s[0:1], 72")
        self.wait_all(vm=False)
        self("s_mov_b32 s62, 256")
        self("s_mov_b32 s63, 0x00020000")
        self(f"s_cmp_lg_u32 s2, {wg}")
        self("s_cbranch_scc1 L_nostamp_%d" % len(self.out))
        lab = "L_nostamp_%d" % (len(self.out) - 1)
        self("v_lshrrev_b32 v60, 6, v0")
        self("v_and_b32 v61, 63, v0")
        self("v_lshlrev_b32 v60, 5, v60")
        for i in range(n):
            self(f"s_sub_u32 s64, s{sb + 2 * i}, s{sb}")
            self("v_mov_b32 v62, s64")
            self(f"v_add_u32 v63, {4 * i}, v60")
            self("v_cmp_eq_u32 vcc, 0, v61")
            self("s_and_saveexec_b64 s[66:67], vcc")
            self("buffer_store_dword v62, v63, s[60:63], 0 offen")
            self("s_mov_b64 exec, s[66:67]")
        self.raw(lab + ":")

    def text(self):
        return "\n".join(self.out) + "\n"


def v(i, n=1):
    return f"v{i}" if n == 1 else f"v[{i}:{i + n - 1}]"


def a(i, n=1):
    return f"a{i}" if n == 1 else f"a[{i}:{i + n - 1}]"


def s(i, n=1):
    return f"s{i}" if n == 1 else f"s[{i}:{i + n - 1}]"
```

```python
import sys
import struct
sys.path.insert(0, "tools")
OPT = set(sys.argv[1:])
from dsl import Asm, v, a, s

S, D, H, DH, F = 2048, 448, 16, 28, 1792
PREFETCH = 'nopf' not in sys.argv
KA_X, KA_WQKV, KA_WO, KA_BX, KA_W1, KA_B1, KA_W2, KA_B2, KA_OUT, KA_DBG, KA_WS = [8 * i for i in range(11)]
WS_QF = 0x000000
WS_KF = 0x200000
WS_VF = 0x400000
WS_OF = 0x600000
WS_X1T = 0x800000
WS_X1F = 0xA00000
WS_UF = 0xC00000
WS_X2 = 0xE00000
WS_WC = 0x1200000
WS_CS = 0x1380000
WS_ST = 0x1000000
XBYTES = S * D * 2


def f32(x):
    return struct.unpack("<I", struct.pack("<f", x))[0]


def hexf(x):
    return "0x%08x" % f32(x)


def srd(A, d, base_lo, base_hi, nbytes):
    if base_lo != d:
        A(f"s_mov_b32 s{d}, s{base_lo}")
    A(f"s_and_b32 s{d + 1}, s{base_hi}, 0xffff")
    A(f"s_mov_b32 s{d + 2}, {hex(nbytes)}")
    A(f"s_mov_b32 s{d + 3}, 0x00020000")


def srd_off(A, d, base_lo, base_hi, off, nbytes):
    A(f"s_add_u32 s{d}, s{base_lo}, {off}")
    A(f"s_addc_u32 s{d + 1}, s{base_hi}, 0")
    A(f"s_and_b32 s{d + 1}, s{d + 1}, 0xffff")
    A(f"s_mov_b32 s{d + 2}, {hex(nbytes)}")
    A(f"s_mov_b32 s{d + 3}, 0x00020000")


def kernel_begin(A, name, nwg):
    A.raw(f".globl {name}")
    A.raw(".p2align 8")
    A.raw(f".type {name},@function")
    A.raw(f"{name}:")
    A.hist = []
    A.vmq = []
    A.lgq = []
    A(f"s_cmp_ge_u32 s2, {nwg}")
    A(f"s_cbranch_scc1 L_{name}_end")
    if "rt" in OPT:
        A("s_memrealtime s[98:99]")


KIDX = [0]


def kernel_end(A, name):
    if "rt" in OPT:
        A.wait_all()
        A("s_memrealtime s[96:97]")
        A(f"s_load_dwordx2 s[60:61], s[0:1], {KA_WS}")
        A.wait_all()
        A("s_mov_b32 s62, 0x2000000")
        A("s_mov_b32 s63, 0x00020000")
        A("v_mov_b32 v2, s98")
        A("v_mov_b32 v3, s96")
        A("s_lshl_b32 s64, s2, 3")
        A(f"s_add_u32 s64, s64, {0x1800000 + KIDX[0] * 4096}")
        A("v_mov_b32 v4, s64")
        A("v_cmp_eq_u32 vcc, 0, v0")
        A("s_and_saveexec_b64 s[66:67], vcc")
        A(f"s_cbranch_execz L_{name}_end")
        A("buffer_store_dwordx2 v[2:3], v4, s[60:63], 0 offen")
        KIDX[0] += 1
    A.raw(f"L_{name}_end:")
    A("s_endpgm")


def kd(name, nv=512, acc=256, ns=102):
    return f"""
.p2align 6
.amdhsa_kernel {name}
  .amdhsa_next_free_vgpr {nv}
  .amdhsa_next_free_sgpr {ns}
  .amdhsa_accum_offset {acc}
  .amdhsa_group_segment_fixed_size 0
  .amdhsa_kernarg_size 88
  .amdhsa_user_sgpr_count 2
  .amdhsa_user_sgpr_kernarg_segment_ptr 1
  .amdhsa_system_sgpr_workgroup_id_x 1
.end_amdhsa_kernel"""


def div_const(A, dst, src, d, tmp_s, rng=4096):
    m = (1 << 20) // d + 1
    for x in range(0, rng):
        assert (x * m) >> 20 == x // d and x * m < (1 << 32), (x, d)
    A(f"s_mov_b32 s{tmp_s}, {m}")
    A(f"v_mul_lo_u32 {dst}, {src}, s{tmp_s}")
    A(f"v_lshrrev_b32 {dst}, 20, {dst}")


def exec_lanes(A, n):
    if n == 64:
        A("s_mov_b64 exec, -1")
    elif n <= 32:
        A(f"s_mov_b64 exec, {hex((1 << n) - 1)}")
    else:
        raise ValueError


STAMP_WG = 37


def interleave(main, fillers):
    n = len(main)
    done = 0
    for i, m in enumerate(main):
        m()
        want = (len(fillers) * (i + 1)) // n
        while done < want:
            fillers[done]()
            done += 1


def sprinkle(base, extra):
    if not base:
        return list(extra)
    out = []
    k = 0
    for i, b in enumerate(base):
        out.append(b)
        while k < (len(extra) * (i + 1)) // len(base):
            out.append(extra[k])
            k += 1
    out += extra[k:]
    return out


def reduce_groups(A, reg, tmp):
    A(f"v_mov_b32 v{tmp}, v{reg}")
    A(f"v_permlane16_swap_b32 v{tmp}, v{reg}")
    A(f"v_add_f32 v{reg}, v{reg}, v{tmp}")
    A(f"v_mov_b32 v{tmp}, v{reg}")
    A(f"v_permlane32_swap_b32 v{tmp}, v{reg}")
    A(f"v_add_f32 v{reg}, v{reg}, v{tmp}")


def w1_prefetch(A, sr, nwg, vd, prep_only=False):
    per = 14336 // (nwg // 8) // 8
    A("s_lshr_b32 s34, s2, 3")
    A("s_lshl_b32 s34, s34, 3")
    A("s_add_u32 s34, s34, s22")
    A(f"s_mul_i32 s35, s34, {per}")
    A("v_add_u32 v10, s35, v1")
    A("s_bfe_u32 s36, s2, 0x20001")
    div_const(A, "v11", "v10", 7, 35, rng=14400)
    A("v_mul_u32_u24 v12, 7, v11")
    A("v_sub_u32 v12, v10, v12")
    A("v_mul_u32_u24 v11, 3584, v11")
    A("v_lshl_add_u32 v11, v12, 7, v11")
    A("s_mul_i32 s36, s36, 896")
    srd(A, sr, sr, sr + 1, S * F * 2)
    if prep_only:
        A("s_mov_b32 s33, s36")
        return
    if per < 64:
        A(f"s_mov_b32 exec_hi, {hex((1 << (per - 32)) - 1)}")
    A(f"buffer_load_dword v{vd}, v11, s[{sr}:{sr + 3}], s36 offen")
    if per < 64:
        A("s_mov_b64 exec, -1")


G_RING = 9
G_RB = G_RING * 4096
G_TAB = 4 * G_RB
G_LDS = G_TAB + 16384


def gk(A, name, layer, which):
    g1 = which == 1
    nwg = 224 if g1 else 256
    NK = 16 if g1 else 14
    pitch = 3584 if g1 else 4096
    kernel_begin(A, name, nwg)
    A.stamp_base = 70
    A.stamp(0)
    A(f"s_load_dwordx2 s[20:21], s[0:1], {KA_WS}")
    A(f"s_load_dwordx2 s[4:5], s[0:1], {KA_W1 if g1 else KA_W2}")
    A(f"s_load_dwordx2 s[12:13], s[0:1], {KA_B1 if g1 else KA_B2}")
    if (not g1) and layer == 1:
        A(f"s_load_dwordx2 s[16:17], s[0:1], {KA_OUT}")
    if g1 and PREFETCH:
        A(f"s_load_dwordx2 s[92:93], s[0:1], {KA_W2}")
    A("v_and_b32 v1, 63, v0")
    A("v_lshrrev_b32 v2, 6, v0")
    A("v_readfirstlane_b32 s22, v2")
    NI4 = 7 if g1 else 8
    A("s_and_b32 s25, s2, 7")
    A("s_lshr_b32 s26, s2, 3")
    A("s_and_b32 s24, s25, 1")
    A("s_lshl_b32 s24, s24, 2")
    A("s_and_b32 s27, s26, 3")
    A("s_add_u32 s24, s24, s27")
    A("s_lshr_b32 s23, s25, 1")
    A(f"s_mul_i32 s23, s23, {NI4}")
    A("s_lshr_b32 s27, s26, 2")
    A("s_add_u32 s23, s23, s27")
    A("s_and_b32 s47, s22, 3")
    A("s_lshr_b32 s48, s22, 2")
    A("v_lshrrev_b32 v3, 3, v1")
    A("v_bfe_u32 v4, v1, 4, 2")
    A("v_lshlrev_b32 v4, 1, v4")
    A("v_and_b32 v5, 7, v1")
    A("v_xor_b32 v4, v4, v5")
    A(f"v_mul_u32_u24 v5, {pitch}, v3")
    A("v_lshl_add_u32 v5, v4, 4, v5")
    A(f"s_mul_i32 s27, s47, {NK * 32 * pitch}")
    A(f"s_mul_i32 s28, s48, {16 * pitch}")
    A("s_add_u32 s27, s27, s28")
    A("s_lshl_b32 s28, s23, 7")
    A("s_add_u32 s27, s27, s28")
    A("v_add_u32 v5, s27, v5")
    A("v_lshrrev_b32 v7, 4, v1")
    A("v_and_b32 v8, 7, v1")
    A("v_lshlrev_b32 v8, 4, v8")
    A("v_lshl_add_u32 v8, v7, 7, v8")
    A("v_bfe_u32 v9, v1, 3, 1")
    A("v_lshl_add_u32 v6, v9, 9, v8")
    A("s_cmp_eq_u32 s48, 0")
    A("s_cselect_b64 s[50:51], -1, 0")
    A("v_cndmask_b32 v9, v8, v6, s[50:51]")
    A.wait_all(vm=False)
    srd(A, 4, 4, 5, (S * F * 2))
    srd(A, 8, 20, 21, 0x1400000)
    srd(A, 12, 12, 13, (F if g1 else S) * 2)
    if (not g1) and layer == 1:
        srd(A, 16, 16, 17, XBYTES)
    elif not g1:
        srd_off(A, 16, 20, 21, hex(WS_X2), XBYTES)
    if g1:
        A(f"s_mul_i32 s29, s47, {16 * 28672}")
        A("s_mul_i32 s30, s24, 3584")
        A("s_add_u32 s29, s29, s30")
        A(f"s_add_u32 s29, s29, {hex(WS_X1F)}")
        bstep = 28672
    else:
        A("s_mul_i32 s29, s24, 56")
        A("s_mul_i32 s30, s47, 14")
        A("s_add_u32 s29, s29, s30")
        A("s_mul_i32 s29, s29, 3584")
        A(f"s_add_u32 s29, s29, {hex(WS_UF)}")
        bstep = 3584
    A("s_lshl_b32 s30, s48, 11")
    A("s_add_u32 s29, s29, s30")
    A(f"s_mul_i32 s31, s47, {G_RB}")
    A("s_lshl_b32 s30, s48, 11")
    A("s_add_u32 s49, s31, s30")
    NB = 8
    BR = 112
    toks = {}
    ROT = 54
    A("s_lshr_b32 s34, s2, 3")
    A(f"s_mul_i32 s34, s34, {NK * 2341 if g1 else NK * 2048}")
    A("s_lshr_b32 s34, s34, 16")
    if "norot" in OPT:
        A("s_mov_b32 s34, 0")
    for st in range(NK):
        A(f"s_add_u32 s{ROT + st}, s34, {st}")
        A(f"s_cmp_ge_u32 s{ROT + st}, {NK}")
        A(f"s_cselect_b32 s35, {NK}, 0")
        A(f"s_sub_u32 s{ROT + st}, s{ROT + st}, s35")

    def issue_ops(st):
        slot = st % G_RING
        b = BR + 8 * (st % NB)
        ops = []
        for q in range(2):
            def fa(q=q):
                A(f"s_add_u32 m0, s49, {slot * 4096 + q * 1024}")
                if q == 0:
                    A(f"s_mul_i32 s32, s{ROT + st}, {32 * pitch}")
                else:
                    A(f"s_add_u32 s32, s32, {8 * pitch}")
                A("buffer_load_dwordx4 v5, s[4:7], s32 offen lds")

            def fb(q=q):
                if q == 0:
                    A(f"s_mul_i32 s33, s{ROT + st}, {bstep}")
                    A("s_add_u32 s33, s33, s29")
                    A(f"buffer_load_dwordx4 {v(b, 4)}, v6, s[8:11], s33 offen")
                else:
                    toks[st] = A(f"buffer_load_dwordx4 {v(b + 4, 4)}, v9, s[8:11], s33 offen offset:1024")
            if "noA" not in OPT:
                ops.append(fa)
            if "noB" not in OPT:
                ops.append(fb)
            if "noB" in OPT and q == 1:
                def fz():
                    toks[st] = A.vmq[-1]["tok"]
                ops.append(fz)
        return ops

    if "touch" in OPT:
        A("s_lshr_b32 s34, s2, 3")
        A("s_lshl_b32 s34, s34, 3")
        A("s_add_u32 s34, s34, s22")
        A("s_lshl_b32 s35, s34, 6")
        A("v_add_u32 v10, s35, v1")
        A("s_bfe_u32 s36, s2, 0x20001")
        A("s_and_b32 s37, s2, 1")
        if g1:
            div_const(A, "v11", "v10", 7, 38, rng=14336)
            A("v_mul_u32_u24 v12, 7, v11")
            A("v_sub_u32 v12, v10, v12")
            A("v_mul_u32_u24 v11, 3584, v11")
            A("v_lshl_add_u32 v11, v12, 7, v11")
            A("s_mul_i32 s36, s36, 896")
        else:
            A("v_lshrrev_b32 v11, 3, v10")
            A("v_lshlrev_b32 v11, 12, v11")
            A("v_and_b32 v12, 7, v10")
            A("v_lshl_add_u32 v11, v12, 7, v11")
            A("s_lshl_b32 s36, s36, 10")
        A("s_lshl_b32 s35, s34, 5")
        A("v_add_u32 v10, s35, v1")
        if g1:
            div_const(A, "v12", "v10", 112, 38, rng=7200)
            A("v_mul_u32_u24 v13, 112, v12")
            A("v_sub_u32 v13, v10, v13")
            A("v_mul_u32_u24 v12, 28672, v12")
            A("v_lshl_add_u32 v12, v13, 7, v12")
            A("s_mul_i32 s37, s37, 14336")
            A(f"s_add_u32 s37, s37, {hex(WS_X1F)}")
        else:
            A("v_lshlrev_b32 v12, 7, v10")
            A("s_mul_i32 s37, s37, 802816")
            A(f"s_add_u32 s37, s37, {hex(WS_UF)}")
        exec_lanes(A, 32)
        A("buffer_load_dword v177, v12, s[8:11], s37 offen")
        exec_lanes(A, 64)
        A("buffer_load_dword v176, v11, s[4:7], s36 offen")
    if g1:
        A("v_lshrrev_b32 v10, 2, v1")
        A("v_lshlrev_b32 v10, 7, v10")
        A("v_and_b32 v11, 3, v1")
        A("v_lshl_add_u32 v10, v11, 4, v10")
        A("s_lshl_b32 s34, s22, 11")
        A(f"s_add_u32 s34, s34, {hex(WS_ST + (0 if layer == 0 else 2) * 16384)}")
        A("buffer_load_dwordx4 v[16:19], v10, s[8:11], s34 offen")
        A("buffer_load_dwordx4 v[20:23], v10, s[8:11], s34 offen offset:64")
    PRE0 = 7 if 'pre7' in OPT else 4
    PRE = 7
    for st in range(PRE0):
        for f in issue_ops(st):
            f()
    EP = 100
    if g1:
        A("s_lshr_b32 s36, s47, 1")
        A("s_lshl_b32 s37, s23, 7")
        A("s_lshl_b32 s38, s36, 6")
        A("s_add_u32 s37, s37, s38")
        A("v_lshlrev_b32 v33, 3, v7")
        A(f"buffer_load_dwordx2 {v(EP, 2)}, v33, s[12:15], s37 offen")
        A(f"buffer_load_dwordx2 {v(EP + 2, 2)}, v33, s[12:15], s37 offen offset:32")
    else:
        A("s_lshl_b32 s36, s23, 2")
        A("s_add_u32 s36, s36, s47")
        A("s_mul_i32 s37, s36, 14336")
        A("s_mul_i32 s38, s24, 1792")
        A("s_add_u32 s37, s37, s38")
        A("s_lshl_b32 s38, s48, 10")
        A("s_add_u32 s37, s37, s38")
        A(f"s_add_u32 s37, s37, {hex(WS_X1T)}")
        A("v_and_b32 v33, 15, v1")
        A("v_lshlrev_b32 v35, 3, v33")
        A("v_lshl_add_u32 v35, v7, 7, v35")
        for k in range(2):
            A(f"buffer_load_dwordx2 {v(EP + 2 * k, 2)}, v35, s[8:11], s37 offen offset:{k * 512}")
        A("s_lshl_b32 s38, s36, 5")
        A("v_lshlrev_b32 v36, 1, v33")
        A(f"buffer_load_ushort v{EP + 4}, v36, s[12:15], s38 offen")
    A.stamp(1)
    A("v_bfe_u32 v12, v1, 2, 2")
    A("v_and_b32 v13, 3, v1")
    A("v_and_b32 v14, 1, v7")
    A("v_lshlrev_b32 v15, 2, v7")
    A("v_add_u32 v15, v15, v12")
    A("v_lshlrev_b32 v15, 7, v15")
    A("v_lshl_add_u32 v15, v13, 3, v15")
    A("v_add_u32 v15, s31, v15")
    A("v_lshrrev_b32 v32, 1, v12")
    A("v_lshl_add_u32 v32, v14, 1, v32")
    for mt in range(4):
        A(f"v_xor_b32 v33, {mt}, v32")
        A(f"v_lshl_add_u32 v{36 + mt}, v33, 5, v15")
    if g1:
        for i in range(4):
            sm, sq = 16 + i, 20 + i
            A(f"v_mul_f32 v{sm}, {hexf(1.0 / 448)}, v{sm}")
            A(f"v_mul_f32 v{sq}, {hexf(1.0 / 448)}, v{sq}")
            A(f"v_fma_f32 v{sq}, -v{sm}, v{sm}, v{sq}")
            A(f"v_max_f32 v{sq}, 0, v{sq}")
            A(f"v_add_f32 v34, {hexf(1e-5)}, v{sq}")
            A("v_rcp_f32 v34, v34")
            A(f"v_mul_f32 v35, v{sq}, v34")
            A(f"v_add_f32 v35, {hexf(1e-5)}, v35")
            A("v_rcp_f32 v35, v35")
            A("v_mul_f32 v34, v34, v35")
            A(f"v_sqrt_f32 v{sq}, v34")
            A(f"v_mul_f32 v{sm}, -v{sm}, v{sq}")
        A("v_lshlrev_b32 v34, 4, v1")
        A("s_lshl_b32 s34, s22, 10")
        A(f"s_add_u32 s34, s34, {G_TAB}")
        A("v_add_u32 v34, s34, v34")
        A("ds_write_b128 v34, v[20:23]")
        A("ds_write_b128 v34, v[16:19] offset:8192")
        A("v_lshlrev_b32 v35, 4, v7")
        A("s_lshl_b32 s34, s47, 11")
        A(f"s_add_u32 s34, s34, {G_TAB}")
        A("v_add_u32 v35, s34, v35")
    AFR = [0, 16]
    ACC = 32
    BN = [40, 48]
    AB = [56, 72]
    TMP = 88

    def a_reads(st):
        slot = st % G_RING
        buf = st & 1
        if "nolds" in OPT and st > 1:
            return []
        return [(lambda mt=mt, t=t: A(f"ds_read_b64_tr_b16 {a(AFR[buf] + 4 * mt + 2 * t, 2)}, v{36 + mt} "
                                      f"offset:{slot * 4096 + t * 2048}")) for mt in range(4) for t in range(2)]

    def ab_reads(st):
        buf = st & 1
        ops = []
        if "nolds" in OPT and st > 1:
            return []

        def addr():
            A(f"s_lshl_b32 s46, s{ROT + st}, 7")
            A(f"v_add_u32 v{96 + buf}, s46, v35")
        ops.append(addr)
        for t in range(2):
            ops.append(lambda t=t: A(f"ds_read_b128 {v(AB[buf] + 4 * t, 4)}, v{96 + buf} offset:{t * 64}"))
            ops.append(lambda t=t: A(f"ds_read_b128 {v(AB[buf] + 8 + 4 * t, 4)}, v{96 + buf} offset:{8192 + t * 64}"))
        return ops

    def norm_ops(st):
        buf = st & 1
        b = BR + 8 * (st % NB)
        ops = []
        if "nonorm" in OPT:
            return [(lambda d=d: A(f"v_mov_b32 v{BN[buf] + d}, v{b + d}")) for d in range(8)]
        for nt in range(2):
            for dp in range(2):
                d0, d1 = 2 * dp, 2 * dp + 1
                x0, x1 = b + 4 * nt + d0, b + 4 * nt + d1
                tb = TMP + 4 * (dp & 1)
                ops.append(lambda x0=x0, tb=tb: A(f"v_lshlrev_b32 v{tb}, 16, v{x0}"))
                ops.append(lambda x0=x0, tb=tb: A(f"v_and_b32 v{tb + 1}, 0xffff0000, v{x0}"))
                ops.append(lambda x1=x1, tb=tb: A(f"v_lshlrev_b32 v{tb + 2}, 16, v{x1}"))
                ops.append(lambda x1=x1, tb=tb: A(f"v_and_b32 v{tb + 3}, 0xffff0000, v{x1}"))
                for (o, dd) in ((0, d0), (2, d1)):
                    for e in range(2):
                        ops.append(lambda tb=tb, o=o, dd=dd, e=e: A(
                            f"v_fma_f32 v{tb + o + e}, v{tb + o + e}, v{AB[buf] + 2 * dd + e}, v{AB[buf] + 8 + 2 * dd + e}"))
                ops.append(lambda tb=tb, nt=nt, d0=d0: A(f"v_cvt_pk_bf16_f32 v{BN[buf] + 4 * nt + d0}, v{tb}, v{tb + 1}"))
                ops.append(lambda tb=tb, nt=nt, d1=d1: A(f"v_cvt_pk_bf16_f32 v{BN[buf] + 4 * nt + d1}, v{tb + 2}, v{tb + 3}"))
        return ops

    def mfma_ops(st):
        buf = st & 1
        ops = []
        if "nomfma" in OPT and st > 0:
            return [lambda: A("s_nop 0")]
        for nt in range(2):
            for mt in range(4):
                acc = a(ACC + 4 * (2 * mt + nt), 4)
                c = "0" if st == 0 else acc
                if g1:
                    ops.append(lambda acc=acc, c=c, mt=mt, nt=nt: A(
                        f"v_mfma_f32_16x16x32_bf16 {acc}, {a(AFR[buf] + 4 * mt, 4)}, {v(BN[buf] + 4 * nt, 4)}, {c}"))
                else:
                    b = BR + 8 * (st % NB)
                    ops.append(lambda acc=acc, c=c, mt=mt, nt=nt, b=b: A(
                        f"v_mfma_f32_16x16x32_bf16 {acc}, {v(b + 4 * nt, 4)}, {a(AFR[buf] + 4 * mt, 4)}, {c}"))
        return ops

    def sync_op(st):
        def f():
            A.wait_vm(toks[st])
            if "nobar" not in OPT:
                A("s_barrier")
        return f

    next_issue = PRE0
    A.stamp(5)
    A.wait_vm(toks[0])
    A.wait_all(vm=False)
    A.stamp(6)
    A("s_barrier")
    A.stamp(7)
    for f in a_reads(0):
        f()
    if g1:
        for f in ab_reads(0) + ab_reads(1):
            f()
        for f in norm_ops(0):
            f()
    for st in range(NK):
        vm = []
        n_iss = 0
        while next_issue < NK and next_issue <= st + PRE and n_iss < 2:
            vm += issue_ops(next_issue)
            next_issue += 1
            n_iss += 1
        lds = []
        if st + 1 < NK:
            lds += [sync_op(st + 1)] + a_reads(st + 1)
        va = norm_ops(st + 1) if (g1 and st + 1 < NK) else []
        ab = ab_reads(st + 2) if (g1 and st + 2 < NK) else []
        seq = lds + sprinkle(va + ab, vm)
        interleave(mfma_ops(st), seq)
    if g1 and PREFETCH:
        A("s_lshr_b32 s44, s2, 3")
        A("s_bfe_u32 s45, s2, 0x20001")
        A("s_lshl_b32 s44, s44, 6")
        A("s_lshl_b32 s46, s22, 3")
        A("s_add_u32 s44, s44, s46")
        A("v_and_b32 v98, 7, v1")
        A("v_add_u32 v98, s44, v98")
        A("v_lshlrev_b32 v98, 12, v98")
        A("v_lshl_add_u32 v98, v3, 7, v98")
        A("s_lshl_b32 s45, s45, 10")
        A("v_add_u32 v98, s45, v98")
        srd(A, 92, 92, 93, S * F * 2)
        A("buffer_load_dword v175, v98, s[92:95], 0 offen")
    A.stamp(2)
    A("s_barrier")
    def owner(mt, nt):
        if g1:
            return (2 * (mt >> 1) + nt, mt & 1)
        return (mt, nt)
    A("v_lshlrev_b32 v34, 4, v1")
    A("s_lshl_b32 s35, s48, 15")
    A("s_lshl_b32 s34, s47, 13")
    A("s_add_u32 s34, s34, s35")
    A("v_add_u32 v33, s34, v34")
    for mt in range(4):
        for nt in range(2):
            o, k = owner(mt, nt)
            A(f"ds_write_b128 v33, {a(ACC + 4 * (2 * mt + nt), 4)} offset:{(o * 2 + k) * 1024}")
    A.wait_all(vm=False)
    A("s_barrier")
    A("s_lshl_b32 s34, s47, 11")
    A("s_add_u32 s34, s34, s35")
    A("v_add_u32 v33, s34, v34")
    RD = 40
    for k in range(2):
        for src in range(4):
            A(f"ds_read_b128 {v(RD + 8 * src + 4 * k, 4)}, v33 offset:{src * 8192 + k * 1024}")
    for k in range(2):
        for r in range(4):
            A(f"v_add_f32 v{RD + 4 * k + r}, v{RD + 4 * k + r}, v{RD + 8 + 4 * k + r}")
            A(f"v_add_f32 v{RD + 16 + 4 * k + r}, v{RD + 16 + 4 * k + r}, v{RD + 24 + 4 * k + r}")
        for r in range(4):
            A(f"v_add_f32 v{RD + 4 * k + r}, v{RD + 4 * k + r}, v{RD + 16 + 4 * k + r}")
    A.stamp(3)
    if g1:
        for m in range(2):
            for hlf in range(2):
                A(f"v_lshlrev_b32 v{76 + 4 * m + 2 * hlf}, 16, v{EP + 2 * m + hlf}")
                A(f"v_and_b32 v{77 + 4 * m + 2 * hlf}, 0xffff0000, v{EP + 2 * m + hlf}")
        c1 = -2.0 * 1.4426950408889634 * 0.7978845608028654
        c3 = c1 * 0.044715
        A(f"s_mov_b32 s39, {hexf(c1)}")
        A(f"s_mov_b32 s40, {hexf(c3)}")
        A("v_mov_b32 v84, s39")
        for m in range(2):
            for r in range(4):
                x = RD + 4 * m + r
                t = 85 + (r & 1)
                A(f"v_add_f32 v{x}, v{x}, v{76 + 4 * m + r}")
                A(f"v_mul_f32 v{t}, v{x}, v{x}")
                A(f"v_fma_f32 v{t}, v{t}, s40, v84")
                A(f"v_mul_f32 v{t}, v{t}, v{x}")
                A(f"v_exp_f32 v{t}, v{t}")
                A(f"v_add_f32 v{t}, 1.0, v{t}")
                A(f"v_rcp_f32 v{t}, v{t}")
                A(f"v_mul_f32 v{x}, v{x}, v{t}")
        for m in range(2):
            for hlf in range(2):
                A(f"v_cvt_pk_bf16_f32 v{88 + 2 * m + hlf}, v{RD + 4 * m + 2 * hlf}, v{RD + 4 * m + 2 * hlf + 1}")
        A("s_mul_i32 s41, s24, 56")
        A("s_lshl_b32 s42, s23, 1")
        A("s_add_u32 s41, s41, s42")
        A("s_add_u32 s41, s41, s36")
        A("s_mul_i32 s41, s41, 3584")
        A(f"s_add_u32 s41, s41, {hex(WS_UF)}")
        A("s_and_b32 s42, s47, 1")
        A("s_lshl_b32 s43, s48, 1")
        A("s_add_u32 s42, s42, s43")
        A("s_lshl_b32 s43, s42, 10")
        A("s_add_u32 s41, s41, s43")
        A("s_cmp_eq_u32 s42, 3")
        A("s_cselect_b32 s44, 0x00ff00ff, -1")
        A("s_mov_b32 s45, s44")
        A("s_mov_b64 exec, s[44:45]")
        A("buffer_store_dwordx4 v[88:91], v6, s[8:11], s41 offen")
        A("s_mov_b64 exec, -1")
    else:
        A("v_and_b32 v33, 15, v1")
        A(f"v_lshlrev_b32 v76, 16, v{EP + 4}")
        for k in range(2):
            for hlf in range(2):
                x = EP + 2 * k + hlf
                A(f"v_lshlrev_b32 v77, 16, v{x}")
                A(f"v_and_b32 v78, 0xffff0000, v{x}")
                y = RD + 4 * k + 2 * hlf
                A(f"v_add_f32 v{y}, v{y}, v76")
                A(f"v_add_f32 v{y + 1}, v{y + 1}, v76")
                A(f"v_add_f32 v{y}, v{y}, v77")
                A(f"v_add_f32 v{y + 1}, v{y + 1}, v78")
                A(f"v_cvt_pk_bf16_f32 v{88 + 2 * k + hlf}, v{y}, v{y + 1}")
        if layer == 0:
            A("s_cmp_eq_u32 s48, 0")
            A("s_cselect_b32 s45, -1, 0")
            A("s_mov_b32 s44, -1")
            A("v_cndmask_b32 v92, 0, v90, s[44:45]")
            A("v_cndmask_b32 v93, 0, v91, s[44:45]")
            A("v_mov_b32 v77, 0x3f803f80")
            A("v_mov_b32 v78, 0")
            A("v_mov_b32 v79, 0")
            for x in [88, 89, 92, 93]:
                A(f"v_dot2_f32_bf16 v78, v{x}, v77, v78")
                A(f"v_dot2_f32_bf16 v79, v{x}, v{x}, v79")
            reduce_groups(A, 78, 80)
            reduce_groups(A, 79, 81)
            A("v_cmp_gt_u32 vcc, 16, v1")
            A("v_cndmask_b32 v80, v79, v78, vcc")
            A("v_lshlrev_b32 v81, 2, v1")
            A("s_lshl_b32 s39, s36, 7")
            A(f"s_add_u32 s39, s39, {hex(WS_ST + 16384)}")
            exec_lanes(A, 32)
            A("buffer_atomic_add_f32 v80, v81, s[8:11], s39 offen")
            exec_lanes(A, 64)
        SP = 80
        A("s_lshl_b32 s40, s22, 11")
        A("s_add_u32 s40, s40, 65536")
        A(f"v_mul_u32_u24 v36, {SP}, v33")
        A("v_lshl_add_u32 v36, v7, 3, v36")
        A("v_add_u32 v36, s40, v36")
        for k in range(2):
            A(f"ds_write_b64 v36, {v(88 + 2 * k, 2)} offset:{32 * k}")
        A("v_lshrrev_b32 v37, 2, v1")
        A("v_and_b32 v38, 3, v1")
        A(f"v_mul_u32_u24 v39, {SP}, v37")
        A("v_lshl_add_u32 v39, v38, 4, v39")
        A("v_add_u32 v39, s40, v39")
        A("ds_read_b128 v[92:95], v39")
        A("s_lshl_b32 s39, s36, 4")
        A("s_mul_i32 s39, s39, 896")
        A("s_mul_i32 s41, s24, 112")
        A("s_add_u32 s39, s39, s41")
        A("s_lshl_b32 s41, s48, 6")
        A("s_add_u32 s39, s39, s41")
        A("v_mul_u32_u24 v37, 896, v37")
        A("v_lshl_add_u32 v37, v38, 4, v37")
        A("s_cmp_eq_u32 s48, 0")
        A("s_cselect_b32 s44, -1, 0x77777777")
        A("s_mov_b32 s45, s44")
        A("s_mov_b64 exec, s[44:45]")
        A("buffer_store_dwordx4 v[92:95], v37, s[16:19], s39 offen")
        A("s_mov_b64 exec, -1")
    A.stamp(4)
    A.dump_stamps(STAMP_WG)
    kernel_end(A, name)
    return G_LDS, 512, 244, 180


K1_XP = 16384
K1_WP = 64 * 192
K1_SLOT = K1_XP + K1_WP
K1_NS = 5
K1_MISC = K1_NS * K1_SLOT
K1_CSUM = K1_MISC
K1_TOK = K1_MISC + 512
K1_LDS = K1_MISC + 512 + 2048
K1_EX = 2 * K1_SLOT


def k1(A, name, layer):
    L0 = layer == 0
    kernel_begin(A, name, 256)
    A.stamp_base = 70
    A.stamp(0)
    if L0:
        A(f"s_load_dwordx2 s[4:5], s[0:1], {KA_X}")
        A(f"s_load_dwordx2 s[8:9], s[0:1], {KA_WQKV}")
    A(f"s_load_dwordx2 s[20:21], s[0:1], {KA_WS}")
    A("v_and_b32 v1, 63, v0")
    A("v_lshrrev_b32 v2, 6, v0")
    A("v_readfirstlane_b32 s22, v2")
    A("s_lshr_b32 s23, s2, 4")
    A("s_and_b32 s24, s2, 15")
    A("s_and_b32 s47, s22, 3")
    A("s_lshr_b32 s48, s22, 2")
    A("s_lshl_b32 s25, s23, 7")
    A("s_lshl_b32 s26, s47, 5")
    A("s_add_u32 s49, s25, s26")
    A("s_lshl_b32 s26, s48, 4")
    A("s_add_u32 s25, s49, s26")
    A("s_mul_i32 s25, s25, 896")
    A("v_lshrrev_b32 v16, 3, v1")
    A("v_mul_u32_u24 v16, 896, v16")
    A("v_lshrrev_b32 v17, 4, v1")
    A("v_and_b32 v18, 7, v1")
    A("v_xor_b32 v19, v18, v17")
    A("v_lshl_add_u32 v2, v19, 4, v16")
    A("v_xor_b32 v19, 4, v19")
    A("v_lshl_add_u32 v3, v19, 4, v16")
    A("v_add_u32 v2, s25, v2")
    A("v_add_u32 v3, s25, v3")
    A(f"v_add_u32 v3, {8 * 896 - 1024}, v3")
    if L0:
        A("s_lshl_b32 s26, s22, 3")
        A("s_mul_i32 s26, s26, 2688")
        A("s_mul_i32 s27, s24, 56")
        A("s_add_u32 s26, s26, s27")
        for i in range(2):
            A(f"v_add_u32 v16, {64 * i}, v1")
            div_const(A, "v17", "v16", 12, 27)
            A("v_mul_u32_u24 v18, 12, v17")
            A("v_sub_u32 v18, v16, v18")
            A("v_mul_u32_u24 v17, 2688, v17")
            A("v_lshrrev_b32 v19, 2, v18")
            A("v_mul_u32_u24 v19, 896, v19")
            A("v_and_b32 v18, 3, v18")
            A("v_lshl_add_u32 v17, v18, 4, v17")
            A("v_add_u32 v17, v17, v19")
            A(f"v_add_u32 v{4 + i}, s26, v17")
        A("v_subrev_u32 v5, 1024, v5")
        wstep = 64 * 2688
    else:
        A("s_mul_i32 s26, s24, 86016")
        A("s_mul_i32 s27, s22, 1536")
        A("s_add_u32 s26, s26, s27")
        A("v_lshlrev_b32 v4, 4, v1")
        A("v_add_u32 v4, s26, v4")
        A("v_mov_b32 v5, v4")
        wstep = 12288
    A.wait_all(vm=False)
    if L0:
        srd(A, 4, 4, 5, XBYTES)
        srd(A, 8, 8, 9, D * 3 * D * 2)
    else:
        srd_off(A, 4, 20, 21, hex(WS_X2), XBYTES)
        srd_off(A, 8, 20, 21, hex(WS_WC), 16 * 86016)
    srd(A, 12, 20, 21, 0x1400000)
    A("s_lshl_b32 s28, s47, 12")
    A("s_lshl_b32 s29, s48, 11")
    A("s_add_u32 s28, s28, s29")
    A("s_mul_i32 s29, s22, 1536")
    A(f"s_add_u32 s29, s29, {K1_XP}")
    tokq = {}
    ROT = 52
    A("s_mul_i32 s34, s23, 9363")
    A("s_lshr_b32 s34, s34, 16")
    A("s_mul_i32 s34, s34, 7")
    A("s_sub_u32 s34, s23, s34")
    if "norot" in OPT:
        A("s_mov_b32 s34, 0")
    for q in range(7):
        A(f"s_add_u32 s{ROT + q}, s34, {q}")
        A(f"s_cmp_ge_u32 s{ROT + q}, 7")
        A("s_cselect_b32 s35, 7, 0")
        A(f"s_sub_u32 s{ROT + q}, s{ROT + q}, s35")

    def dma_ops(p):
        slot = (p % K1_NS) * K1_SLOT

        def f0():
            A(f"s_add_u32 m0, s28, {slot}")
            A(f"s_lshl_b32 s30, s{ROT + p}, 7")
            A("buffer_load_dwordx4 v2, s[4:7], s30 offen lds")
            A("buffer_load_dwordx4 v3, s[4:7], s30 offen offset:1024 lds")

        def f1():
            A(f"s_add_u32 m0, s29, {slot}")
            A(f"s_mul_i32 s31, s{ROT + p}, {wstep}")
            A("buffer_load_dwordx4 v4, s[8:11], s31 offen lds")
            exec_lanes(A, 32)
            tokq[p] = A("buffer_load_dwordx4 v5, s[8:11], s31 offen offset:1024 lds")
            exec_lanes(A, 64)
        return [f0, f1]

    PRE = 3
    for f in dma_ops(0):
        f()
    if L0:
        A("s_lshl_b32 s32, s2, 13")
        A(f"s_add_u32 s32, s32, {hex(WS_ST)}")
        A("s_cmp_lt_u32 s2, 6")
        A("s_cselect_b32 s32, s32, 0x7fff0000")
        A("v_lshlrev_b32 v16, 4, v0")
        for i in range(4):
            A(f"v_mov_b32 v{12 + i}, 0")
        A("buffer_store_dwordx4 v[12:15], v16, s[12:15], s32 offen")
    else:
        A("v_and_b32 v16, 31, v1")
        A("v_add_u32 v16, s49, v16")
        A("v_lshrrev_b32 v17, 4, v16")
        A("v_lshlrev_b32 v17, 7, v17")
        A("v_and_b32 v16, 15, v16")
        A("v_lshl_add_u32 v17, v16, 2, v17")
        A(f"s_mov_b32 s32, {hex(WS_ST + 16384)}")
        A("buffer_load_dword v52, v17, s[12:15], s32 offen")
        A("buffer_load_dword v48, v17, s[12:15], s32 offen offset:64")
        A("v_lshrrev_b32 v17, 5, v1")
        A("v_lshlrev_b32 v17, 4, v17")
        A("s_mul_i32 s32, s24, 384")
        A("s_lshl_b32 s33, s48, 7")
        A("s_add_u32 s33, s33, s32")
        A(f"s_add_u32 s33, s33, {hex(WS_CS)}")
        for j in range(4):
            A(f"buffer_load_dwordx4 {v(112 + 4 * j, 4)}, v17, s[12:15], s33 offen offset:{32 * j}")
        A("v_and_b32 v16, 31, v1")
        A("v_lshlrev_b32 v16, 2, v16")
        A(f"s_add_u32 s32, s32, {hex(WS_CS + 256)}")
        A("buffer_load_dword v56, v16, s[12:15], s32 offen")
    for p in range(1, PRE):
        for f in dma_ops(p):
            f()
    A.stamp(1)
    A("v_and_b32 v16, 31, v1")
    A("v_lshrrev_b32 v17, 5, v1")
    A("v_bfe_u32 v18, v1, 1, 3")
    A("v_xor_b32 v18, v18, v17")
    A("v_lshlrev_b32 v19, 7, v16")
    A("s_lshl_b32 s32, s47, 12")
    A("v_add_u32 v19, s32, v19")
    A("s_lshl_b32 s33, s48, 2")
    for ls in range(2):
        A(f"s_add_u32 s34, s33, {2 * ls}")
        A("v_xor_b32 v20, s34, v18")
        A(f"v_lshl_add_u32 v{8 + ls}, v20, 4, v19")
    A("v_bfe_u32 v18, v1, 2, 2")
    A("v_bfe_u32 v19, v1, 4, 1")
    A("v_and_b32 v20, 3, v1")
    A("v_lshlrev_b32 v22, 5, v19")
    A("v_lshl_add_u32 v22, v20, 3, v22")
    A("v_lshl_add_u32 v21, v17, 3, v18")
    A("v_mul_u32_u24 v21, 192, v21")
    A("v_add_u32 v21, v21, v22")
    A(f"s_mul_i32 s34, s48, {32 * 192}")
    A(f"s_add_u32 s34, s34, {K1_XP}")
    A("v_add_u32 v21, s34, v21")
    ONES = 28
    SS = 36
    if L0:
        A("v_mul_u32_u24 v23, 192, v18")
        A("v_add_u32 v22, v22, v23")
        A("v_add_u32 v22, s29, v22")
        A("v_mul_u32_u24 v24, 192, v1")
        A("v_add_u32 v24, s29, v24")
        A("v_add_u32 v24, 56, v24")
        A("v_mov_b32 v26, 0x3f80")
        A("v_mov_b32 v27, 0")
        A("v_mov_b32 v32, 0x3f803f80")
        A("v_cmp_eq_u32 vcc, 0, v17")
        for i in range(4):
            A(f"v_cndmask_b32 v{ONES + i}, 0, v32, vcc")
        A("v_lshlrev_b32 v25, 2, v1")
        A(f"v_add_u32 v25, {K1_CSUM}, v25")
        A("ds_write_b32 v25, v27")
        A("ds_write_b32 v25, v27 offset:256")
        for i in range(4):
            A(f"v_mov_b32 v{SS + i}, 0")
        A("v_lshlrev_b32 v33, 4, v1")
        A("v_add_u32 v34, s29, v33")
        A("s_mul_i32 s50, s24, 86016")
        A("s_mul_i32 s51, s22, 1536")
        A("s_add_u32 s50, s50, s51")
        A(f"s_add_u32 s50, s50, {hex(WS_WC)}")
    AQ, AK, AV, AC = 64, 80, 96, 112
    XF = 160
    WF = 172
    CF = 208
    VA = 40

    def token_stats(sumreg, sqreg):
        A(f"v_mul_f32 v{sumreg}, {hexf(1.0 / 448)}, v{sumreg}")
        A(f"v_mul_f32 v{sqreg}, {hexf(1.0 / 448)}, v{sqreg}")
        A(f"v_fma_f32 v{sqreg}, -v{sumreg}, v{sumreg}, v{sqreg}")
        A(f"v_max_f32 v{sqreg}, 0, v{sqreg}")
        A(f"v_add_f32 v{sqreg}, {hexf(1e-5)}, v{sqreg}")
        A(f"v_rsq_f32 v{sqreg}, v{sqreg}")
        A(f"v_mul_f32 v{sumreg}, -v{sumreg}, v{sqreg}")
        A("v_and_b32 v57, 31, v1")
        A("v_lshlrev_b32 v57, 2, v57")
        A("s_lshl_b32 s35, s22, 8")
        A(f"s_add_u32 s35, s35, {K1_TOK}")
        A("v_add_u32 v57, s35, v57")
        exec_lanes(A, 32)
        A(f"ds_write_b32 v57, v{sqreg}")
        A(f"ds_write_b32 v57, v{sumreg} offset:128")
        exec_lanes(A, 64)
        A("v_lshlrev_b32 v58, 4, v17")
        A("s_lshl_b32 s36, s48, 6")
        A("s_add_u32 s36, s36, s35")
        A("v_add_u32 v58, s36, v58")
        for j in range(2):
            A(f"ds_read_b128 {v(TA + 4 * j, 4)}, v58 offset:{32 * j}")
            A(f"ds_read_b128 {v(TB + 4 * j, 4)}, v58 offset:{128 + 32 * j}")

    TA, TB = (204, 212) if L0 else (128, 136)
    CS = 188 if L0 else 112
    if not L0:
        token_stats(52, 48)

    def set_addr(p):
        slot = (p % K1_NS) * K1_SLOT
        b = VA + 4 * (p & 1)
        A(f"v_add_u32 v{b}, {slot}, v8")
        A(f"v_add_u32 v{b + 1}, {slot}, v9")
        A(f"v_add_u32 v{b + 2}, {slot}, v21")
        if L0:
            A(f"v_add_u32 v{b + 3}, {slot}, v22")

    def sync(p):
        slot = (p % K1_NS) * K1_SLOT
        set_addr(p)
        A.wait_vm(tokq[p])
        if L0:
            A(f"v_add_u32 v49, {slot}, v24")
            if p == 0:
                A(f"v_add_u32 v35, {slot}, v34")
                A("ds_read_b128 v[224:227], v35")
                A("ds_read_b128 v[228:231], v35 offset:1024")
                A(f"s_mul_i32 s51, s{ROT}, 12288")
                A("s_add_u32 s51, s51, s50")
                A("s_cmp_lt_u32 s23, 7")
                A("s_cselect_b32 s51, s51, 0x7fff0000")
                A("buffer_store_dwordx4 v[224:227], v33, s[12:15], s51 offen")
                exec_lanes(A, 32)
                A("buffer_store_dwordx4 v[228:231], v33, s[12:15], s51 offen offset:1024")
            exec_lanes(A, 8)
            A("ds_write_b64 v49, v[26:27]")
            exec_lanes(A, 64)
            A.wait_all(vm=False)
        A("s_barrier")

    def read_ops(gs):
        p, ls = gs >> 1, gs & 1
        b = VA + 4 * (p & 1)
        buf = gs % 3
        ops = [lambda: A(f"ds_read_b128 {v(XF + 4 * buf, 4)}, v{b + ls}")]
        for t3 in range(3):
            for t in range(2):
                ops.append(lambda t3=t3, t=t: A(
                    f"ds_read_b64_tr_b16 {v(WF + 12 * buf + 4 * t3 + 2 * t, 2)}, v{b + 2} "
                    f"offset:{(16 * ls + 4 * t) * 192 + 64 * t3}"))
        return ops

    def cread_ops(p):
        b = VA + 4 * (p & 1)
        ops = []
        for t3 in range(3):
            for t in range(2):
                ops.append(lambda t3=t3, t=t: A(
                    f"ds_read_b64_tr_b16 {v(CF + 4 * t3 + 2 * t, 2)}, v{b + 3} offset:{768 * t + 64 * t3}"))
        return ops

    sync(0)
    for f in read_ops(0) + read_ops(1):
        f()
    A.stamp(2)
    for gs in range(14):
        p, ls = gs >> 1, gs & 1
        b = gs % 3
        xf = v(XF + 4 * b, 4)
        first = gs == 0
        m = [
            lambda: A(f"v_mfma_f32_32x32x16_bf16 {v(AQ, 16)}, {v(WF + 12 * b, 4)}, {xf}, {'0' if first else v(AQ, 16)}"),
            lambda: A(f"v_mfma_f32_32x32x16_bf16 {v(AK, 16)}, {v(WF + 12 * b + 4, 4)}, {xf}, {'0' if first else v(AK, 16)}"),
            lambda: A(f"v_mfma_f32_32x32x16_bf16 {v(AV, 16)}, {xf}, {v(WF + 12 * b + 8, 4)}, {'0' if first else v(AV, 16)}"),
        ]
        if ls == 1 and L0:
            for t3 in range(3):
                m.append(lambda t3=t3: A(
                    f"v_mfma_f32_32x32x16_bf16 {v(AC + 16 * t3, 16)}, {v(ONES, 4)}, {v(CF + 4 * t3, 4)}, "
                    f"{'0' if p == 0 else v(AC + 16 * t3, 16)}"))
        fill = []
        if ls == 0:
            if L0:
                fill += cread_ops(p)
            if p + 1 < 7:
                fill += [lambda p=p: sync(p + 1)]
        if gs + 2 < 14:
            fill += read_ops(gs + 2)
        dots = [(lambda d=d: A(f"v_dot2_f32_bf16 v{SS + d}, v{XF + 4 * b + d}, v{XF + 4 * b + d}, v{SS + d}"))
                for d in range(4)] if L0 else []
        vm = dma_ops(p + PRE) if (ls == 1 and p + PRE < 7) else []
        fill = fill + sprinkle(dots, vm)
        interleave(m, fill)
    A.stamp(3)
    A("v_lshlrev_b32 v49, 4, v1")
    A("s_mul_i32 s33, s22, 7168")
    A(f"s_add_u32 s33, s33, {K1_EX}")
    A("v_add_u32 v50, s33, v49")
    A("s_xor_b32 s34, s22, 4")
    A("s_mul_i32 s34, s34, 7168")
    A(f"s_add_u32 s34, s34, {K1_EX}")
    A("v_add_u32 v51, s34, v49")
    if L0:
        A("v_and_b32 v47, 31, v1")
        A("v_lshlrev_b32 v47, 2, v47")
        A(f"v_add_u32 v47, {K1_CSUM}, v47")
        A(f"v_add_f32 v{SS}, v{SS}, v{SS + 1}")
        A(f"v_add_f32 v{SS + 2}, v{SS + 2}, v{SS + 3}")
        A(f"v_add_f32 v{SS}, v{SS}, v{SS + 2}")
        A(f"v_mov_b32 v53, v{SS}")
        A(f"v_permlane32_swap_b32 v53, v{SS}")
        A(f"v_add_f32 v53, v53, v{SS}")
        exec_lanes(A, 32)
        for t3 in range(3):
            A(f"ds_add_f32 v47, v{AC + 16 * t3} offset:{128 * t3}")
        exec_lanes(A, 64)
        A(f"v_mov_b32 v52, v{AQ + 12}")
    A("s_lshl_b32 s36, s24, 6")
    A("s_lshl_b32 s37, s23, 2")
    A("s_add_u32 s36, s36, s37")
    A("s_add_u32 s36, s36, s47")
    A("s_lshl_b32 s36, s36, 11")
    A("v_add_u32 v59, s36, v49")
    A("v_cmp_eq_u32 s[38:39], 0, v17")
    A("v_and_b32 v62, 31, v1")
    A("v_cmp_gt_u32 s[42:43], 28, v62")
    A("v_cmp_eq_u32 vcc, 28, v62")
    A("v_mov_b32 v63, 0x3f803f80")
    A("v_cndmask_b32 v63, 0, v63, vcc")
    A("s_cmp_eq_u32 s48, 0")
    A(f"s_cbranch_scc0 L_{name}_e1")
    save_vm = [dict(o) for o in A.vmq]
    save_lg = [dict(o) for o in A.lgq]
    RX = 160
    for kh in range(2):
        keep, send = (AQ, AK) if kh == 0 else (AK, AQ)
        vkeep, vsend = (AV, AV + 8) if kh == 0 else (AV + 8, AV)
        for j in range(4):
            A(f"ds_write_b128 v50, {v(send + 4 * j, 4)} offset:{1024 * j}")
        for j in range(2):
            A(f"ds_write_b128 v50, {v(vsend + 4 * j, 4)} offset:{4096 + 1024 * j}")
        if L0:
            A("ds_write_b64 v50, v[52:53] offset:6144")
        A.wait_all(vm=False)
        A.stamp(5)
        A("s_barrier")
        A.stamp(6)
        for j in range(6):
            A(f"ds_read_b128 {v(RX + 4 * j, 4)}, v51 offset:{1024 * j}")
        if L0:
            A(f"ds_read_b64 {v(RX + 24, 2)}, v51 offset:6144")
            A("v_lshlrev_b32 v54, 4, v17")
            A(f"v_add_u32 v55, {K1_CSUM}, v54")
            for j in range(4):
                A(f"ds_read_b128 {v(CS + 4 * j, 4)}, v55 offset:{128 * kh + 32 * j}")
            A("ds_read_b32 v56, v47 offset:256")
            A("s_mul_i32 s40, s24, 384")
            A(f"s_add_u32 s40, s40, {hex(WS_CS)}")
            A("s_or_b32 s41, s23, s47")
            A("s_cmp_eq_u32 s41, 0")
            A("s_cselect_b32 s40, s40, 0x7fff0000")
            A("v_lshlrev_b32 v60, 2, v1")
            A(f"v_add_u32 v61, {K1_CSUM}, v60")
            A("ds_read_b32 v46, v61")
            A("ds_read_b32 v45, v61 offset:256")
            A("buffer_store_dword v46, v60, s[12:15], s40 offen")
            exec_lanes(A, 32)
            A("buffer_store_dword v45, v60, s[12:15], s40 offen offset:256")
            exec_lanes(A, 64)
            A(f"v_add_f32 v52, v52, v{RX + 24}")
            A(f"v_add_f32 v48, v53, v{RX + 25}")
            A("v_mov_b32 v57, v52")
            A("v_permlane32_swap_b32 v57, v52")
            token_stats(52, 48)
        A.stamp(7)
        cq = (DH ** -0.5) * 1.4426950408889634
        if kh == 0:
            A(f"v_mul_f32 v60, {hexf(cq)}, v48")
            A(f"v_mul_f32 v61, {hexf(cq)}, v52")
            ra, rb_ = 60, 61
        else:
            ra, rb_ = 48, 52
        PK = 220
        for r in range(16):
            A(f"v_mul_f32 v{CS + r}, v{CS + r}, v{rb_}")
        for r in range(16):
            A(f"v_add_f32 v{keep + r}, v{keep + r}, v{RX + r}")
            A(f"v_fma_f32 v{keep + r}, v{keep + r}, v{ra}, v{CS + r}")
        for d in range(8):
            A(f"v_cvt_pk_bf16_f32 v{PK + d}, v{keep + 2 * d}, v{keep + 2 * d + 1}")
        if kh == 0:
            A("v_mov_b32 v62, 0x3f80")
            A(f"v_cndmask_b32 v{PK + 6}, v62, v{PK + 6}, s[38:39]")
        else:
            A(f"v_cndmask_b32 v{PK + 6}, 0, v{PK + 6}, s[38:39]")
        A(f"v_cndmask_b32 v{PK + 7}, 0, v{PK + 7}, s[38:39]")
        A(f"s_mov_b32 s40, {hex(WS_QF if kh == 0 else WS_KF)}")
        A(f"buffer_store_dwordx4 {v(PK, 4)}, v59, s[12:15], s40 offen")
        A(f"buffer_store_dwordx4 {v(PK + 4, 4)}, v59, s[12:15], s40 offen offset:1024")
        for r in range(8):
            A(f"v_mul_f32 v{TB + r}, v{TB + r}, v56")
        for r in range(8):
            A(f"v_add_f32 v{vkeep + r}, v{vkeep + r}, v{RX + 16 + r}")
            A(f"v_fma_f32 v{vkeep + r}, v{vkeep + r}, v{TA + r}, v{TB + r}")
        for d in range(4):
            A(f"v_cvt_pk_bf16_f32 v{RX + d}, v{vkeep + 2 * d}, v{vkeep + 2 * d + 1}")
            A(f"v_cndmask_b32 v{RX + d}, v63, v{RX + d}, s[42:43]")
        A(f"s_mov_b32 s40, {hex(WS_VF + 1024 * kh)}")
        A(f"buffer_store_dwordx4 {v(RX, 4)}, v59, s[12:15], s40 offen")
        if kh == 0:
            A(f"s_branch L_{name}_e2")
            A.raw(f"L_{name}_e1:")
            A.hist = []
            A.vmq = [dict(o) for o in save_vm]
            A.lgq = [dict(o) for o in save_lg]
            A.nop(2)
    A.raw(f"L_{name}_e2:")
    A.stamp(4)
    A.dump_stamps(STAMP_WG)
    kernel_end(A, name)
    return K1_LDS, 512, 232, 232


K2_K, K2_V, K2_Q = 0, 24576, 49152
K2_X = 57344
K2_LDS = K2_X + 8 * 4096


def k2(A, name, layer):
    kernel_begin(A, name, 256)
    A.stamp_base = 76
    A.stamp(0)
    A(f"s_load_dwordx2 s[20:21], s[0:1], {KA_WS}")
    if PREFETCH:
        A(f"s_load_dwordx2 s[88:89], s[0:1], {KA_W2}")
        A(f"s_load_dwordx2 s[84:85], s[0:1], {KA_W1}")
    A("v_and_b32 v1, 63, v0")
    A("v_lshrrev_b32 v2, 6, v0")
    A("v_readfirstlane_b32 s22, v2")
    A("s_lshr_b32 s23, s2, 4")
    A("s_and_b32 s24, s2, 15")
    A("s_and_b32 s38, s22, 3")
    A("s_lshr_b32 s39, s22, 2")
    A("v_lshlrev_b32 v2, 4, v1")
    A("s_lshl_b32 s25, s24, 17")
    A("s_lshl_b32 s26, s23, 2")
    A("s_sub_u32 s26, s26, 8")
    A("s_mul_i32 s27, s22, 3")
    for i in range(3):
        A(f"s_add_u32 s34, s27, {i}")
        A("s_lshr_b32 s35, s34, 1")
        A("s_add_i32 s35, s35, s26")
        A("s_lshl_b32 s36, s35, 11")
        A("s_and_b32 s37, s34, 1")
        A("s_lshl_b32 s37, s37, 10")
        A("s_add_u32 s36, s36, s37")
        A("s_cmp_lt_i32 s35, 0")
        A(f"s_cselect_b32 s{72 + i}, 0x40000000, s36")
    A("s_lshl_b32 s29, s27, 10")
    A.wait_all(vm=False)
    for (d, off) in [(4, WS_QF), (8, WS_KF), (12, WS_VF)]:
        A(f"s_add_u32 s28, s25, {hex(off)}")
        A(f"s_add_u32 s{d}, s20, s28")
        A(f"s_addc_u32 s{d + 1}, s21, 0")
        A(f"s_and_b32 s{d + 1}, s{d + 1}, 0xffff")
        A(f"s_mov_b32 s{d + 2}, 0x20000")
        A(f"s_mov_b32 s{d + 3}, 0x00020000")
    for i in range(3):
        A(f"s_add_u32 m0, s29, {K2_K + i * 1024}")
        A(f"buffer_load_dwordx4 v2, s[8:11], s{72 + i} offen lds")
    A("s_lshl_b32 s30, s23, 13")
    A("s_lshl_b32 s31, s22, 10")
    A("s_add_u32 s30, s30, s31")
    A(f"s_add_u32 m0, s31, {K2_Q}")
    tokK = A("buffer_load_dwordx4 v2, s[4:7], s30 offen lds")
    for i in range(3):
        A(f"s_add_u32 m0, s29, {K2_V + i * 1024}")
        tokV = A(f"buffer_load_dwordx4 v2, s[12:15], s{72 + i} offen lds")
    srd_off(A, 16, 20, 21, hex(WS_OF), 128 * 14 * 1024)
    if PREFETCH:
        if layer == 0:
            A("s_lshl_b32 s34, s2, 3")
            A("s_add_u32 s34, s34, s22")
            A("s_mul_i32 s34, s34, 3584")
            A("v_lshlrev_b32 v40, 7, v1")
            A("v_add_u32 v40, s34, v40")
            srd(A, 84, 84, 85, S * F * 2)
            srd(A, 88, 88, 89, S * F * 2)
        else:
            w1_prefetch(A, 84, 256, 42, prep_only=True)
            A("v_mov_b32 v40, v11")
    A.stamp(1)
    A("v_and_b32 v4, 31, v1")
    A("v_lshrrev_b32 v5, 5, v1")
    A("v_mov_b32 v18, 0xf14a")
    A("v_mul_lo_u32 v18, v18, v5")
    A("v_add_u32 v19, s29, v2")
    A("v_lshlrev_b32 v6, 2, v5")
    A("v_sub_u32 v6, v4, v6")
    MS = 40
    for r in range(16):
        kk = 8 * (r >> 2) + (r & 3)
        A(f"v_cmp_ge_i32 s[{MS + 2 * r}:{MS + 2 * r + 1}], v6, {kk}")
    PM = 8
    A("v_mov_b32 v7, 0xffff")
    A("v_mov_b32 v16, 0xffff0000")
    for d in range(8):
        A(f"v_cndmask_b32 v{PM + d}, 0, v7, s[{MS + 4 * d}:{MS + 4 * d + 1}]")
        A(f"v_cndmask_b32 v17, 0, v16, s[{MS + 4 * d + 2}:{MS + 4 * d + 3}]")
        A(f"v_or_b32 v{PM + d}, v{PM + d}, v17")
    A.wait_vm(tokK)
    for i in range(3):
        A(f"s_add_u32 s34, s27, {i}")
        A("s_and_b32 s34, s34, 1")
        A(f"s_cmp_eq_u32 s{72 + i}, 0x40000000")
        A("s_cselect_b32 s35, s34, 0")
        A("s_cmp_eq_u32 s35, 0")
        lab = f"L_{name}_np{i}"
        A(f"s_cbranch_scc1 {lab}")
        A(f"ds_write_b32 v19, v18 offset:{K2_K + i * 1024 + 8}")
        A.raw(lab + ":")
    A.force_wait(lg=0)
    A("s_barrier")
    A.stamp(2)
    A("s_lshl_b32 s35, s38, 11")
    A("v_add_u32 v28, s35, v2")
    A(f"ds_read_b128 v[20:23], v28 offset:{K2_Q}")
    A(f"ds_read_b128 v[24:27], v28 offset:{K2_Q + 1024}")
    def burst(i):
        if not PREFETCH:
            return
        if layer == 0:
            exec_lanes(A, 28)
            A(f"buffer_load_dword v{42 + i}, v40, s[{84 + 4 * i}:{87 + 4 * i}], 0 offen")
            exec_lanes(A, 64)
        else:
            if i == 0:
                exec_lanes(A, 28)
            else:
                A("s_mov_b32 exec_lo, 0xf0000000")
                A("s_mov_b32 exec_hi, 0x00ffffff")
            A(f"buffer_load_dword v{42 + i}, v40, s[84:87], s33 offen")
            exec_lanes(A, 64)
    burst(0)
    A("s_mul_i32 s36, s22, 4096")
    A(f"s_add_u32 s36, s36, {K2_X}")
    A("v_add_u32 v44, s36, v2")
    A("s_xor_b32 s37, s22, 4")
    A("s_mul_i32 s37, s37, 4096")
    A(f"s_add_u32 s37, s37, {K2_X}")
    A("v_add_u32 v45, s37, v2")
    A("s_cmp_eq_u32 s39, 0")
    A(f"s_cbranch_scc0 L_{name}_h1")
    A.vmq_save = [dict(o) for o in A.vmq]
    A.lgq_save = [dict(o) for o in A.lgq]
    SB = [48, 64, 80, 96]
    MX = 30
    CN = 112
    OA = 128
    PB = [144, 152, 160]

    for hf in range(2):
        blocks = [0, 8, 1, 2, 3] if hf == 0 else [4, 5, 6, 7]
        slotk = {b: i for i, b in enumerate(blocks)}
        for b in blocks:
            for st in range(2):
                A(f"ds_read_b128 {a(8 * slotk[b] + 4 * st, 4)}, v28 offset:{K2_K + 2048 * b + 1024 * st}")

        def qk(b, buf, cinit):
            k = 8 * slotk[b]
            A(f"v_mfma_f32_32x32x16_bf16 {v(buf, 16)}, {a(k, 4)}, v[20:23], {cinit}")
            A(f"v_mfma_f32_32x32x16_bf16 {v(buf, 16)}, {a(k + 4, 4)}, v[24:27], {v(buf, 16)}")

        def maxblk(buf, first):
            if first:
                A(f"v_max3_f32 v{MX}, v{buf}, v{buf + 1}, v{buf + 2}")
                rest = list(range(3, 16))
            else:
                rest = list(range(16))
            while len(rest) >= 2:
                A(f"v_max3_f32 v{MX}, v{MX}, v{buf + rest[0]}, v{buf + rest[1]}")
                rest = rest[2:]
            if rest:
                A(f"v_max_f32 v{MX}, v{MX}, v{buf + rest[0]}")

        def merge():
            for r in range(16):
                A(f"v_cndmask_b32 v{SB[0] + r}, v{SB[0] + r}, v{SB[1] + r}, s[{MS + 2 * r}:{MS + 2 * r + 1}]")

        if hf == 0:
            qk(0, SB[0], "0"); qk(8, SB[1], "0"); qk(1, SB[2], "0"); qk(2, SB[3], "0")
            merge()
            qk(3, SB[1], "0")
            maxblk(SB[0], True); maxblk(SB[2], False); maxblk(SB[3], False); maxblk(SB[1], False)
        else:
            for i, b in enumerate(blocks):
                qk(b, SB[i], "0")
            maxblk(SB[0], True); maxblk(SB[1], False); maxblk(SB[2], False); maxblk(SB[3], False)
        A(f"v_mov_b32 v31, v{MX}")
        A(f"v_permlane32_swap_b32 v31, v{MX}")
        A(f"v_max_f32 v{MX}, v{MX}, v31")
        A(f"ds_write_b32 v44, v{MX}")
        A.wait_vm(tokV)
        A.wait_all(vm=False)
        A("s_barrier")
        A("ds_read_b32 v31, v45")
        burst(1)
        for b in blocks:
            for st in range(2):
                A(f"ds_read_b128 {a(40 + 8 * slotk[b] + 4 * st, 4)}, v28 offset:{K2_V + 2048 * b + 1024 * st}")
        A(f"v_max_f32 v{MX}, v{MX}, v31")
        for r in range(16):
            A(f"v_sub_f32 v{CN + r}, 0, v{MX}")
        cn = v(CN, 16)

        def exppack(buf, pb):
            for r in range(16):
                A(f"v_exp_f32 v{buf + r}, v{buf + r}")
            for d in range(8):
                A(f"v_cvt_pk_bf16_f32 v{pb + d}, v{buf + 2 * d}, v{buf + 2 * d + 1}")

        first_pv = [True]

        def pv(b, pb):
            for st in range(2):
                c = "0" if first_pv[0] else v(OA, 16)
                first_pv[0] = False
                A(f"v_mfma_f32_32x32x16_bf16 {v(OA, 16)}, {a(40 + 8 * slotk[b] + 4 * st, 4)}, {v(pb + 4 * st, 4)}, {c}")

        if hf == 0:
            qk(0, SB[0], cn); qk(8, SB[1], cn); qk(1, SB[2], cn); qk(2, SB[3], cn)
            merge()
            qk(3, SB[1], cn)
            exppack(SB[0], PB[0])
            for d in range(8):
                A(f"v_and_b32 v{PB[1] + d}, v{PM + d}, v{PB[0] + d}")
                A(f"v_xor_b32 v{PB[0] + d}, v{PB[0] + d}, v{PB[1] + d}")
            pv(0, PB[0]); pv(8, PB[1])
            exppack(SB[2], PB[2]); pv(1, PB[2])
            exppack(SB[3], PB[0]); pv(2, PB[0])
            exppack(SB[1], PB[1]); pv(3, PB[1])
        else:
            for i, b in enumerate(blocks):
                qk(b, SB[i], cn)
            for i, b in enumerate(blocks):
                exppack(SB[i], PB[i % 3])
                pv(b, PB[i % 3])
        A.stamp(3)
        keep, send = (OA, OA + 8) if hf == 0 else (OA + 8, OA)
        A(f"ds_write_b128 v44, {v(send, 4)} offset:1024")
        A(f"ds_write_b128 v44, {v(send + 4, 4)} offset:2048")
        A(f"ds_write_b32 v44, v{OA + 12} offset:3072")
        A.wait_all(vm=False)
        A("s_barrier")
        A("ds_read_b128 v[144:147], v45 offset:1024")
        A("ds_read_b128 v[148:151], v45 offset:2048")
        A("ds_read_b32 v32, v45 offset:3072")
        A(f"v_add_f32 v32, v32, v{OA + 12}")
        A("v_mov_b32 v33, v32")
        A("v_permlane32_swap_b32 v33, v32")
        A("v_rcp_f32 v33, v32")
        for r in range(8):
            A(f"v_add_f32 v{keep + r}, v{keep + r}, v{144 + r}")
            A(f"v_mul_f32 v{keep + r}, v{keep + r}, v33")
        for d in range(4):
            A(f"v_cvt_pk_bf16_f32 v{152 + d}, v{keep + 2 * d}, v{keep + 2 * d + 1}")
        A("s_mul_i32 s36, s24, 7")
        A("v_add_u32 v34, s36, v5")
        A("s_lshl_b32 s37, s23, 2")
        A("s_add_u32 s37, s37, s38")
        A("s_mul_i32 s37, s37, 28672")
        A("v_bfe_u32 v35, v1, 4, 1")
        A("v_mul_u32_u24 v35, 14336, v35")
        A("v_and_b32 v36, 15, v1")
        A("v_lshl_add_u32 v35, v36, 4, v35")
        A("v_add_u32 v35, s37, v35")
        for jj in range(2):
            j = 2 * hf + jj
            A(f"v_add_u32 v36, {2 * j}, v34")
            A("v_lshrrev_b32 v37, 3, v36")
            A("v_lshl_add_u32 v38, v37, 10, v35")
            A("v_bfe_u32 v37, v36, 2, 1")
            A("v_lshl_add_u32 v38, v37, 9, v38")
            A("v_and_b32 v37, 1, v36")
            A("v_lshl_add_u32 v38, v37, 8, v38")
            A("v_bfe_u32 v37, v36, 1, 1")
            A("v_lshl_add_u32 v38, v37, 3, v38")
            if j == 3:
                exec_lanes(A, 32)
            A(f"buffer_store_dwordx2 {v(152 + 2 * jj, 2)}, v38, s[16:19], 0 offen")
            if j == 3:
                exec_lanes(A, 64)
        if hf == 0:
            A(f"s_branch L_{name}_done")
            A.raw(f"L_{name}_h1:")
            A.hist = []
            A.lgq = [o for o in A.lgq_save] if hasattr(A, "lgq_save") else []
            A.vmq = list(A.vmq_save)
            A.force_wait(lg=0)
    A.raw(f"L_{name}_done:")
    A.stamp(4)
    A.dump_stamps(STAMP_WG)
    kernel_end(A, name)
    return K2_LDS, 512, 248, 168


K3_O, K3_W, K3_X, K3_T = 0, 57344, 114688, 122880
K3_LDS = K3_T + 64 * 136


def k3(A, name, layer):
    kernel_begin(A, name, 224)
    A.stamp_base = 70
    A.stamp(0)
    A(f"s_load_dwordx2 s[20:21], s[0:1], {KA_WS}")
    A(f"s_load_dwordx2 s[8:9], s[0:1], {KA_WO}")
    if layer == 0:
        A(f"s_load_dwordx2 s[12:13], s[0:1], {KA_X}")
    if PREFETCH:
        A(f"s_load_dwordx2 s[48:49], s[0:1], {KA_W1}")
    A("v_and_b32 v1, 63, v0")
    A("v_lshrrev_b32 v2, 6, v0")
    A("v_readfirstlane_b32 s22, v2")
    A("s_lshr_b32 s23, s2, 5")
    A("s_and_b32 s24, s2, 31")
    A("v_lshlrev_b32 v2, 4, v1")
    A("v_lshrrev_b32 v3, 3, v1")
    A("v_bfe_u32 v4, v1, 4, 2")
    A("v_lshlrev_b32 v4, 1, v4")
    A("v_and_b32 v5, 7, v1")
    A("v_xor_b32 v4, v4, v5")
    A("v_mul_u32_u24 v5, 896, v3")
    A("v_lshl_add_u32 v5, v4, 4, v5")
    A("s_lshl_b32 s25, s23, 7")
    A("v_add_u32 v5, s25, v5")
    A.wait_all(vm=False)
    srd_off(A, 4, 20, 21, hex(WS_OF), 128 * 14336)
    srd(A, 8, 8, 9, D * D * 2)
    if layer == 0:
        srd(A, 12, 12, 13, XBYTES)
    else:
        srd_off(A, 12, 20, 21, hex(WS_X2), XBYTES)
    srd(A, 16, 20, 21, 0x1400000)
    A("s_cmp_lt_u32 s22, 4")
    A("s_cselect_b32 s40, s4, s8")
    A("s_cselect_b32 s41, s5, s9")
    A("s_cselect_b32 s42, s6, s10")
    A("s_mov_b32 s43, 0x00020000")
    A("s_cselect_b64 s[44:45], -1, 0")
    A("v_cndmask_b32 v6, v5, v2, s[44:45]")
    A("s_and_b32 s26, s22, 3")
    A("s_lshl_b32 s27, s24, 2")
    A("s_add_u32 s27, s27, s26")
    A("s_mul_i32 s27, s27, 14336")
    A("s_mul_i32 s28, s26, 7168")
    A("s_cmp_lt_u32 s22, 4")
    A("s_cselect_b32 s30, s27, s28")
    A("s_movk_i32 s36, 1024")
    A("s_cselect_b32 s31, s36, 28672")
    A("s_mul_i32 s27, s26, 14336")
    A("s_lshl_b32 s28, s26, 10")
    A(f"s_add_u32 s28, s28, {K3_W}")
    A("s_cmp_lt_u32 s22, 4")
    A("s_cselect_b32 s32, s27, s28")
    A("s_cselect_b32 s33, s36, 4096")
    toks = {}
    for kp in range(14):
        A("s_mov_b32 m0, s32")
        t = A("buffer_load_dwordx4 v6, s[40:43], s30 offen lds")
        toks[kp] = t
        A("s_add_u32 s30, s30, s31")
        A("s_add_u32 s32, s32, s33")
        if kp == 6:
            A("s_lshl_b32 s34, s24, 6")
            A("s_lshl_b32 s35, s22, 3")
            A("s_add_u32 s34, s34, s35")
            A("s_mul_i32 s34, s34, 896")
            A("s_lshl_b32 s35, s22, 10")
            A(f"s_add_u32 m0, s35, {K3_X}")
            A("buffer_load_dwordx4 v5, s[12:15], s34 offen lds")
    if PREFETCH and layer == 0:
        w1_prefetch(A, 48, 224, 126)
    A.stamp(1)
    A("s_and_b32 s33, s22, 1")
    A("s_lshr_b32 s34, s22, 1")
    A("s_mul_i32 s35, s33, 28672")
    A("v_add_u32 v6, s35, v2")
    A("v_lshrrev_b32 v7, 4, v1")
    A("v_bfe_u32 v8, v1, 2, 2")
    A("v_and_b32 v9, 3, v1")
    A("v_lshrrev_b32 v10, 1, v7")
    A("v_and_b32 v11, 1, v7")
    A("v_lshlrev_b32 v12, 4, v10")
    A("v_lshl_add_u32 v12, v11, 2, v12")
    A("v_add_u32 v12, v12, v8")
    A("v_lshlrev_b32 v12, 7, v12")
    A("v_lshl_add_u32 v12, v9, 3, v12")
    A("v_lshrrev_b32 v13, 1, v8")
    A("v_lshl_add_u32 v13, v11, 1, v13")
    A("v_xor_b32 v14, s34, v13")
    A("v_lshl_add_u32 v16, v14, 5, v12")
    A(f"v_add_u32 v16, {K3_W}, v16")
    A("v_lshl_add_u32 v14, v7, 2, v8")
    A("v_bfe_u32 v15, v14, 1, 2")
    A("v_lshlrev_b32 v14, 7, v14")
    A("v_lshl_add_u32 v14, v9, 3, v14")
    A("s_lshl_b32 s38, s33, 12")
    A(f"s_add_u32 s38, s38, {K3_X}")
    A("v_add_u32 v14, s38, v14")
    A("v_xor_b32 v20, s34, v15")
    A("v_lshl_add_u32 v18, v20, 5, v14")
    ACC = 32
    AF3, BF3 = 48, 72

    def reads(kp, buf):
        for mt in range(2):
            A(f"ds_read_b128 {v(AF3 + 8 * buf + 4 * mt, 4)}, v6 offset:{mt * 14336 + kp * 1024}")
        for t in range(2):
            A(f"ds_read_b64_tr_b16 {v(BF3 + 4 * buf + 2 * t, 2)}, v16 offset:{kp * 4096 + t * 1024}")

    def mfmas(kp, buf):
        for mt in range(2):
            c = "0" if kp == 0 else v(ACC + 4 * mt, 4)
            A(f"v_mfma_f32_16x16x32_bf16 {v(ACC + 4 * mt, 4)}, {v(AF3 + 8 * buf + 4 * mt, 4)}, {v(BF3 + 4 * buf, 4)}, {c}")

    for half in range(2):
        A.wait_vm(toks[6] if half == 0 else toks[13])
        A("s_barrier")
        A.stamp(2 + half)
        k0 = 7 * half
        reads(k0, k0 % 3)
        reads(k0 + 1, (k0 + 1) % 3)
        for kp in range(k0, k0 + 7):
            if kp + 2 < k0 + 7:
                reads(kp + 2, (kp + 2) % 3)
            if kp == 12:
                for mt in range(2):
                    A(f"ds_read_b64_tr_b16 {v(96 + 2 * mt, 2)}, v18 offset:{mt * 2048}")
            mfmas(kp, kp % 3)
    A.stamp(4)
    XR = 96
    PKD = 112
    for mt in range(2):
        for hlf in range(2):
            x = XR + 2 * mt + hlf
            A(f"v_lshlrev_b32 v104, 16, v{x}")
            A(f"v_and_b32 v105, 0xffff0000, v{x}")
            A(f"v_add_f32 v{ACC + 4 * mt + 2 * hlf}, v{ACC + 4 * mt + 2 * hlf}, v104")
            A(f"v_add_f32 v{ACC + 4 * mt + 2 * hlf + 1}, v{ACC + 4 * mt + 2 * hlf + 1}, v105")
            A(f"v_cvt_pk_bf16_f32 v{PKD + 2 * mt + hlf}, v{ACC + 4 * mt + 2 * hlf}, v{ACC + 4 * mt + 2 * hlf + 1}")
    A("s_lshl_b32 s39, s24, 1")
    A("s_add_u32 s39, s39, s33")
    A("s_mul_i32 s39, s39, 28672")
    A("s_lshl_b32 s40, s23, 3")
    A("s_lshl_b32 s41, s34, 1")
    A("s_add_u32 s40, s40, s41")
    A("s_lshl_b32 s40, s40, 9")
    A("s_add_u32 s39, s39, s40")
    A(f"s_add_u32 s39, s39, {hex(WS_X1F)}")
    A("v_bfe_u32 v21, v1, 3, 1")
    A("v_lshlrev_b32 v21, 9, v21")
    A("v_lshl_add_u32 v21, v7, 7, v21")
    A("v_and_b32 v22, 7, v1")
    A("v_lshl_add_u32 v21, v22, 4, v21")
    A(f"buffer_store_dwordx4 {v(PKD, 4)}, v21, s[16:19], s39 offen")
    TP = 136
    A("v_and_b32 v22, 15, v1")
    A(f"v_mul_u32_u24 v23, {TP}, v22")
    A("v_lshl_add_u32 v23, v7, 3, v23")
    A(f"s_mul_i32 s41, s34, {16 * TP}")
    A("s_lshl_b32 s42, s33, 6")
    A("s_add_u32 s41, s41, s42")
    A(f"s_add_u32 s41, s41, {K3_T}")
    A("v_add_u32 v23, s41, v23")
    for mt in range(2):
        A(f"ds_write_b64 v23, {v(PKD + 2 * mt, 2)} offset:{mt * 32}")
    A("v_lshl_add_u32 v24, v7, 2, v8")
    A(f"v_mul_u32_u24 v24, {TP}, v24")
    A("v_lshl_add_u32 v24, v9, 3, v24")
    A("v_add_u32 v24, s41, v24")
    TR = 120
    for mt in range(2):
        A(f"ds_read_b64_tr_b16 {v(TR + 2 * mt, 2)}, v24 offset:{mt * 32}")
    A("s_lshl_b32 s42, s24, 2")
    A("s_lshl_b32 s43, s33, 1")
    A("s_add_u32 s42, s42, s43")
    A("s_mul_i32 s43, s42, 14336")
    A("s_lshl_b32 s44, s23, 4")
    A("s_lshl_b32 s45, s34, 2")
    A("s_add_u32 s44, s44, s45")
    A("s_lshl_b32 s44, s44, 7")
    A("s_add_u32 s43, s43, s44")
    A(f"s_add_u32 s43, s43, {hex(WS_X1T)}")
    A("v_lshlrev_b32 v25, 7, v7")
    A("v_lshl_add_u32 v25, v22, 3, v25")
    A("v_mov_b32 v26, 0x3f803f80")
    for i in range(4):
        A(f"v_mov_b32 v{28 + i}, 0")
    for mt in range(2):
        A(f"s_add_u32 s44, s43, {mt * 14336}")
        A(f"buffer_store_dwordx2 {v(TR + 2 * mt, 2)}, v25, s[16:19], s44 offen")
        for hlf in range(2):
            A(f"v_dot2_f32_bf16 v{28 + 2 * mt}, v{TR + 2 * mt + hlf}, v26, v{28 + 2 * mt}")
            A(f"v_dot2_f32_bf16 v{29 + 2 * mt}, v{TR + 2 * mt + hlf}, v{TR + 2 * mt + hlf}, v{29 + 2 * mt}")
    A("v_cmp_gt_u32 vcc, 16, v1")
    A("v_lshlrev_b32 v27, 2, v1")
    A("s_lshl_b32 s44, s42, 7")
    A(f"s_add_u32 s44, s44, {hex(WS_ST + (0 if layer == 0 else 2) * 16384)}")
    for mt in range(2):
        reduce_groups(A, 28 + 2 * mt, 104)
        reduce_groups(A, 29 + 2 * mt, 105)
        A(f"v_cndmask_b32 v{106 + mt}, v{29 + 2 * mt}, v{28 + 2 * mt}, vcc")
    exec_lanes(A, 32)
    A("buffer_atomic_add_f32 v106, v27, s[16:19], s44 offen")
    A("buffer_atomic_add_f32 v107, v27, s[16:19], s44 offen offset:128")
    exec_lanes(A, 64)
    A.stamp(5)
    A.dump_stamps(STAMP_WG)
    kernel_end(A, name)
    return K3_LDS, 512, 128, 128


def pfx(A, name, nwg):
    kernel_begin(A, name, nwg)
    A(f"s_load_dwordx2 s[48:49], s[0:1], {KA_W1}")
    A("v_and_b32 v1, 63, v0")
    A("v_lshrrev_b32 v2, 6, v0")
    A("v_readfirstlane_b32 s22, v2")
    A.wait_all(vm=False)
    w1_prefetch(A, 48, nwg, 20)
    kernel_end(A, name)
    return 0, 512, 64, 64


def kd2(name, nv, acc):
    return kd(name, nv=nv, acc=acc)


def build(kernels, path, stamps=False):
    A = Asm()
    A.stamps = stamps
    A.store_mod = "sc0 sc1"
    for o in OPT:
        if o.startswith("st="):
            A.store_mod = o[3:].replace("+", " ")
    launches = []
    kds = []
    for (name, fn, args, grid) in kernels:
        lds, threads, nv, acc = fn(A, name, *args)
        launches.append(f"; @launch kernel={name} grid=({grid},1,1) block=({threads},1,1) lds={lds}")
        kds.append(kd2(name, nv, acc))
    head = open("interleave_layers__sliding_block__mixer_token_mlp__prompt.s.ref").read()
    hdr = [l for l in head.splitlines() if l.startswith(";") and "@launch" not in l][:12]
    txt = "\n".join(hdr) + "\n" + "\n".join(launches) + "\n"
    txt += '.amdgcn_target "amdgcn-amd-amdhsa--gfx950"\n.text\n'
    txt += A.text()
    txt += '.section .rodata,"a"\n' + "\n".join(kds) + "\n"
    open(path, "w").write(txt)
    print(f"wrote {path}: {A.ninstr} instrs, {A.nops_inserted} nop states inserted, {len(txt)} bytes")


if __name__ == "__main__":
    ks = []
    for L, c in enumerate("ab"):
        ks += [(f"k1{c}_kernel", k1, (L,), 256), (f"k2{c}_kernel", k2, (L,), 256), (f"k3{c}_kernel", k3, (L,), 224),
               (f"g1{c}_kernel", gk, (L, 1), 224), (f"g2{c}_kernel", gk, (L, 2), 256)]
    if "pfx" in OPT:
        ks += [("pfx_kernel", pfx, (224,), 224), ("pfy_kernel", pfx, (256,), 256)]
    build(ks, sys.argv[1] if len(sys.argv) > 1 else "dev.s", stamps=("--stamps" in sys.argv))
```

```python
import re

REG_RE = re.compile(r"^(v|a|s)(\d+)$|^(v|a|s)\[(\d+):(\d+)\]$")


def parse_reg(tok):
    tok = tok.strip()
    neg = tok
    if neg.startswith("-"):
        neg = neg[1:]
    if neg.startswith("abs(") and neg.endswith(")"):
        neg = neg[4:-1]
    if neg.startswith("|") and neg.endswith("|"):
        neg = neg[1:-1]
    m = REG_RE.match(neg)
    if m:
        if m.group(1):
            return {(m.group(1), int(m.group(2)))}
        return {(m.group(3), i) for i in range(int(m.group(4)), int(m.group(5)) + 1)}
    if neg == "vcc":
        return {("s", 106), ("s", 107)}
    if neg == "vcc_lo":
        return {("s", 106)}
    if neg == "vcc_hi":
        return {("s", 107)}
    if neg == "exec":
        return {("x", 0), ("x", 1)}
    if neg == "exec_lo":
        return {("x", 0)}
    if neg == "exec_hi":
        return {("x", 1)}
    if neg == "m0":
        return {("m", 0)}
    if neg == "scc":
        return {("c", 0)}
    return set()


TRANS = ("v_exp_f32", "v_log_f32", "v_rcp_f32", "v_rsq_f32", "v_sqrt_f32", "v_sin_f32", "v_cos_f32",
         "v_rcp_iflag_f32")


class Ins:
    __slots__ = ("text", "op", "defs", "uses", "kind", "passes", "srcc", "comment", "vm", "lg", "is_store_wide",
                 "store_data", "lds_dma", "dpp")

    def __init__(self, text):
        self.text = text
        body = text.split(";")[0].strip()
        parts = body.split(None, 1)
        self.op = parts[0]
        rest = parts[1] if len(parts) > 1 else ""
        ops = []
        cur = ""
        depth = 0
        for ch in rest:
            if ch == "[":
                depth += 1
            if ch == "]":
                depth -= 1
            if ch == "," and depth == 0:
                ops.append(cur.strip())
                cur = ""
            else:
                cur += ch
        if cur.strip():
            ops.append(cur.strip())
        mods = []
        if ops:
            last = ops[-1].split()
            ops[-1] = last[0]
            mods = last[1:]
        op = self.op
        self.defs = set()
        self.uses = set()
        self.kind = "other"
        self.passes = 0
        self.srcc = set()
        self.vm = False
        self.lg = False
        self.is_store_wide = False
        self.store_data = set()
        self.lds_dma = False
        self.dpp = any(m.startswith(("row_", "quad_perm", "wave_", "row_bcast", "bank_mask", "row_mask")) for m in mods)
        R = [parse_reg(o) for o in ops]
        if op.startswith("v_mfma"):
            self.kind = "mfma"
            self.passes = 8 if "32x32" in op else 4
            self.defs = R[0]
            self.uses = R[1] | R[2] | R[3]
            self.srcc = R[3]
        elif op.startswith("v_"):
            self.kind = "trans" if op.replace("_e32", "").replace("_e64", "") in TRANS else "valu"
            base = op.replace("_e32", "").replace("_e64", "")
            if base.startswith("v_cmp"):
                self.defs = R[0]
                for r in R[1:]:
                    self.uses |= r
                if base.startswith("v_cmpx"):
                    self.defs |= {("x", 0), ("x", 1)}
            elif base in ("v_add_co_u32", "v_sub_co_u32", "v_subrev_co_u32"):
                self.defs = R[0] | R[1]
                for r in R[2:]:
                    self.uses |= r
            elif base in ("v_addc_co_u32", "v_subb_co_u32"):
                self.defs = R[0] | R[1]
                for r in R[2:]:
                    self.uses |= r
            elif base.startswith("v_permlane") and "swap" in base:
                self.defs = R[0] | R[1]
                self.uses = R[0] | R[1]
                self.kind = "permlane"
            elif base in ("v_fmac_f32", "v_dot2c_f32_bf16", "v_pk_fmac_f16", "v_mac_f32", "v_writelane_b32"):
                self.defs = R[0]
                for r in R:
                    self.uses |= r
            else:
                self.defs = R[0]
                for r in R[1:]:
                    self.uses |= r
                if base == "v_cndmask_b32" and len(ops) == 3:
                    self.uses |= parse_reg("vcc")
            if base in ("v_readfirstlane_b32", "v_readlane_b32"):
                self.kind = "readlane"
            self.uses |= {("x", 0), ("x", 1)}
        elif op.startswith("ds_"):
            self.kind = "ds"
            self.lg = True
            if op.startswith(("ds_read", "ds_bpermute", "ds_permute", "ds_swizzle")) or "_rtn" in op:
                self.defs = R[0]
                for r in R[1:]:
                    self.uses |= r
            else:
                for r in R:
                    self.uses |= r
        elif op.startswith(("buffer_", "global_")):
            self.kind = "vmem"
            self.vm = True
            if op in ("buffer_inv", "buffer_wbl2"):
                pass
            elif "lds" in mods or "_lds_" in op:
                self.lds_dma = True
                for r in R:
                    self.uses |= r
                self.uses |= {("m", 0)}
            elif op.startswith(("buffer_load", "global_load")):
                self.defs = R[0]
                for r in R[1:]:
                    self.uses |= r
            elif "atomic" in op:
                for r in R:
                    self.uses |= r
                if "sc0" in mods:
                    self.defs = R[0] if op.startswith("buffer") else R[0]
            else:
                for r in R:
                    self.uses |= r
                data = R[0] if op.startswith("buffer") else R[1]
                if "x3" in op or "x4" in op:
                    self.is_store_wide = True
                    self.store_data = data
        elif op.startswith("s_"):
            self.kind = "salu"
            if op.startswith("s_load") or op.startswith("s_buffer_load") or op in ("s_memtime", "s_memrealtime"):
                self.kind = "smem"
                self.lg = True
                self.defs = R[0]
                for r in R[1:]:
                    self.uses |= r
            elif op.startswith(("s_cmp", "s_bitcmp")):
                for r in R:
                    self.uses |= r
                self.defs = {("c", 0)}
            elif op in ("s_waitcnt", "s_nop", "s_barrier", "s_endpgm", "s_branch", "s_sleep", "s_setprio") or \
                    op.startswith("s_cbranch"):
                self.kind = "ctl"
            elif "saveexec" in op:
                self.defs = R[0] | {("x", 0), ("x", 1), ("c", 0)}
                for r in R[1:]:
                    self.uses |= r
                self.uses |= {("x", 0), ("x", 1)}
            else:
                self.defs = R[0] if R else set()
                for r in R[1:]:
                    self.uses |= r
                if op.startswith(("s_add", "s_sub", "s_and", "s_or", "s_xor", "s_lshl", "s_lshr", "s_ashr", "s_min",
                                  "s_max", "s_not", "s_andn2", "s_bfe")):
                    self.defs = self.defs | {("c", 0)}
                if op in ("s_addk_i32", "s_mulk_i32"):
                    self.uses |= R[0]
                if op.startswith("s_cselect") or op.startswith("s_addc") or op.startswith("s_subb"):
                    self.uses |= {("c", 0)}

    def nstates(self):
        if self.op == "s_nop":
            return int(self.text.split()[1], 0) + 1
        return 1


def is_vgprish(r):
    return r[0] in ("v", "a")


class Asm:
    def __init__(self):
        self.out = []
        self.hist = []
        self.vmq = []
        self.lgq = []
        self.smem_pending = False
        self.ntok = 0
        self.nops_inserted = 0
        self.ninstr = 0

    def raw(self, text):
        self.out.append(text)

    def comment(self, text):
        self.out.append("    ; " + text)

    def label(self, name):
        self.out.append(name + ":")

    def _required_nops(self, ins):
        need = 0
        age = 0
        for p in reversed(self.hist):
            req = 0
            pv = p.kind in ("valu", "trans", "permlane", "readlane")
            vdefs = {r for r in p.defs if is_vgprish(r)}
            sdefs = {r for r in p.defs if r[0] == "s"}
            if pv:
                if ins.kind == "mfma" and vdefs & ins.uses:
                    req = max(req, 2)
                if ins.kind in ("valu", "trans", "permlane", "readlane") and sdefs & ins.uses:
                    req = max(req, 4 if ins.op.startswith(("v_readlane", "v_writelane")) else 2)
                if ins.kind == "vmem" and sdefs & ins.uses:
                    req = max(req, 5)
                if ins.kind == "readlane" and vdefs & ins.uses:
                    req = max(req, 1)
                if ins.kind == "permlane" and vdefs & ins.uses:
                    req = max(req, 2)
                if ins.dpp and vdefs & ins.uses:
                    req = max(req, 2)
                if p.kind == "trans" and ins.kind in ("valu", "permlane", "readlane", "mfma", "vmem", "ds") and \
                        vdefs & ins.uses:
                    req = max(req, 1)
                if ("x", 0) in p.defs and ins.kind == "mfma":
                    req = max(req, 4)
                if ("x", 0) in p.defs and ins.dpp:
                    req = max(req, 5)
                if ("x", 0) in p.defs and ins.kind in ("permlane", "readlane"):
                    req = max(req, 4)
            if p.op.startswith("v_dot") and (vdefs & (ins.uses | ins.defs)):
                same = ins.op == p.op
                srcc_only = False
                if same:
                    ops_ = [x.strip() for x in ins.text.split(None, 1)[1].split(",")]
                    ab = parse_reg(ops_[1]) | parse_reg(ops_[2])
                    srcc_only = not (vdefs & ab)
                if not (same and srcc_only):
                    req = max(req, 3)
            if p.kind == "mfma":
                big = 12 if p.passes == 8 else 8
                mid = 10 if p.passes == 8 else 6
                war = 7 if p.passes == 8 else 3
                if ins.kind == "mfma":
                    ab = ins.uses - ins.srcc
                    if p.defs & (ins.uses - ins.srcc):
                        req = max(req, big)
                    if p.defs & ins.srcc:
                        if ins.srcc == p.defs and ins.passes == p.passes:
                            pass
                        else:
                            req = max(req, mid)
                    if (p.defs & ins.defs) and not (ins.srcc == p.defs):
                        req = max(req, mid)
                else:
                    if p.defs & (ins.uses | ins.defs):
                        req = max(req, big)
                    if ins.kind in ("valu", "trans", "permlane", "readlane") and (p.srcc & ins.defs):
                        req = max(req, war)
            if p.kind == "salu" and ("m", 0) in p.defs and ins.lds_dma:
                req = max(req, 1)
            if p.is_store_wide and (p.store_data & ins.defs):
                req = max(req, 2 if ins.kind in ("valu", "trans", "permlane", "readlane") else 1)
            if req > age:
                need = max(need, req - age)
            age += p.nstates()
            if age > 24:
                break
        return need

    def _push(self, ins):
        self.out.append("    " + ins.text)
        self.hist.append(ins)
        if len(self.hist) > 40:
            self.hist = self.hist[-40:]
        self.ninstr += 1

    def nop(self, n):
        while n > 0:
            k = min(n, 16)
            self._push(Ins(f"s_nop {k - 1}"))
            n -= k

    def _auto_wait(self, ins):
        regs = ins.uses | ins.defs
        vm_need = None
        for i, o in enumerate(self.vmq):
            if o["defs"] & regs:
                vm_need = len(self.vmq) - 1 - i
        lg_need = None
        for i, o in enumerate(self.lgq):
            if o["defs"] & regs:
                lg_need = len(self.lgq) - 1 - i
                if o.get("smem"):
                    lg_need = 0
        if lg_need is not None and any(o.get("smem") for o in self.lgq):
            lg_need = 0
        self._emit_wait(vm_need, lg_need)

    def _emit_wait(self, vm, lg):
        parts = []
        if vm is not None and vm < len(self.vmq):
            vm = min(vm, 63)
            parts.append(f"vmcnt({vm})")
            self.vmq = self.vmq[len(self.vmq) - vm:] if vm > 0 else []
        if lg is not None and lg < len(self.lgq):
            lg = min(lg, 15)
            parts.append(f"lgkmcnt({lg})")
            self.lgq = self.lgq[len(self.lgq) - lg:] if lg > 0 else []
        if parts:
            self._push(Ins("s_waitcnt " + " ".join(parts)))

    def wait_vm(self, tok):
        for i, o in enumerate(self.vmq):
            if o["tok"] == tok:
                self._emit_wait(len(self.vmq) - 1 - i, None)
                return

    def wait_lg(self, tok):
        for i, o in enumerate(self.lgq):
            if o["tok"] == tok:
                n = len(self.lgq) - 1 - i
                if any(x.get("smem") for x in self.lgq):
                    n = 0
                self._emit_wait(None, n)
                return

    def wait_all(self, vm=True, lg=True):
        self._emit_wait(0 if vm else None, 0 if lg else None)

    def force_wait(self, vm=None, lg=None):
        parts = []
        if vm is not None:
            parts.append(f"vmcnt({vm})")
            self.vmq = self.vmq[len(self.vmq) - vm:] if (vm > 0 and vm < len(self.vmq)) else ([] if vm == 0 else self.vmq)
        if lg is not None:
            parts.append(f"lgkmcnt({lg})")
            self.lgq = self.lgq[len(self.lgq) - lg:] if (lg > 0 and lg < len(self.lgq)) else ([] if lg == 0 else self.lgq)
        self._push(Ins("s_waitcnt " + " ".join(parts)))

    def __call__(self, text):
        if getattr(self, "store_mod", None) and text.startswith("buffer_store"):
            text = text + " " + self.store_mod
        ins = Ins(text)
        self._auto_wait(ins)
        if ins.lg and len(self.lgq) >= 15:
            n14 = 0 if any(o.get("smem") for o in self.lgq) else 13
            self._emit_wait(None, n14)
        if ins.vm and len(self.vmq) >= 63:
            self._emit_wait(60, None)
        n = self._required_nops(ins)
        if n:
            self.nops_inserted += n
            self.nop(n)
        self._push(ins)
        tok = None
        if ins.vm:
            self.ntok += 1
            tok = self.ntok
            self.vmq.append({"defs": set(ins.defs), "tok": tok})
            assert len(self.vmq) <= 63, "too many outstanding vm ops: " + text
        if ins.lg:
            self.ntok += 1
            tok = self.ntok
            self.lgq.append({"defs": set(ins.defs), "tok": tok, "smem": ins.kind == "smem"})
            if len(self.lgq) > 15 and False:
                pass
        return tok

    def stamp(self, i):
        if not getattr(self, "stamps", False):
            return
        sb = getattr(self, "stamp_base", 70)
        self(f"s_memtime s[{sb + 2 * i}:{sb + 1 + 2 * i}]")
        self.wait_all(vm=False)
        self.nstamps = max(getattr(self, "nstamps", 0), i + 1)

    def dump_stamps(self, wg=0):
        if not getattr(self, "stamps", False):
            return
        n = self.nstamps
        sb = getattr(self, "stamp_base", 70)
        self.nstamps = 0
        self("s_load_dwordx2 s[60:61], s[0:1], 72")
        self.wait_all(vm=False)
        self("s_mov_b32 s62, 256")
        self("s_mov_b32 s63, 0x00020000")
        self(f"s_cmp_lg_u32 s2, {wg}")
        self("s_cbranch_scc1 L_nostamp_%d" % len(self.out))
        lab = "L_nostamp_%d" % (len(self.out) - 1)
        self("v_lshrrev_b32 v60, 6, v0")
        self("v_and_b32 v61, 63, v0")
        self("v_lshlrev_b32 v60, 5, v60")
        for i in range(n):
            self(f"s_sub_u32 s64, s{sb + 2 * i}, s{sb}")
            self("v_mov_b32 v62, s64")
            self(f"v_add_u32 v63, {4 * i}, v60")
            self("v_cmp_eq_u32 vcc, 0, v61")
            self("s_and_saveexec_b64 s[66:67], vcc")
            self("buffer_store_dword v62, v63, s[60:63], 0 offen")
            self("s_mov_b64 exec, s[66:67]")
        self.raw(lab + ":")

    def touch(self, text):
        ins = Ins(text)
        ins.defs = set()
        n = self._required_nops(ins)
        if n:
            self.nop(n)
        if len(self.vmq) >= 63:
            self._emit_wait(60, None)
        self._push(ins)
        self.ntok += 1
        self.vmq.append({"defs": set(), "tok": self.ntok})
        return self.ntok

    def text(self):
        return "\n".join(self.out) + "\n"


def v(i, n=1):
    return f"v{i}" if n == 1 else f"v[{i}:{i + n - 1}]"


def a(i, n=1):
    return f"a{i}" if n == 1 else f"a[{i}:{i + n - 1}]"


def s(i, n=1):
    return f"s{i}" if n == 1 else f"s[{i}:{i + n - 1}]"
```

```python
import sys
import struct
sys.path.insert(0, "tools")
OPT = set(sys.argv[1:])
from dsl import Asm, v, a, s

S, D, H, DH, F = 2048, 448, 16, 28, 1792
PREFETCH = 'nopf' not in sys.argv
KA_X, KA_WQKV, KA_WO, KA_BX, KA_W1, KA_B1, KA_W2, KA_B2, KA_OUT, KA_DBG, KA_WS = [8 * i for i in range(11)]
WS_QF = 0x000000
WS_KF = 0x200000
WS_VF = 0x400000
WS_OF = 0x600000
WS_X1T = 0x800000
WS_X1F = 0xA00000
WS_UF = 0xC00000
WS_X2 = 0xE00000
WS_WC = 0x1200000
WS_CS = 0x1380000
WS_CNT = 0x100C000
WS_ST = 0x1000000
XBYTES = S * D * 2
LB = 0x2000000
WSZ = 0x4000000


def f32(x):
    return struct.unpack("<I", struct.pack("<f", x))[0]


def hexf(x):
    return "0x%08x" % f32(x)


def srd(A, d, base_lo, base_hi, nbytes):
    if base_lo != d:
        A(f"s_mov_b32 s{d}, s{base_lo}")
    A(f"s_and_b32 s{d + 1}, s{base_hi}, 0xffff")
    A(f"s_mov_b32 s{d + 2}, {hex(nbytes)}")
    A(f"s_mov_b32 s{d + 3}, 0x00020000")


def srd_off(A, d, base_lo, base_hi, off, nbytes):
    A(f"s_add_u32 s{d}, s{base_lo}, {off}")
    A(f"s_addc_u32 s{d + 1}, s{base_hi}, 0")
    A(f"s_and_b32 s{d + 1}, s{d + 1}, 0xffff")
    A(f"s_mov_b32 s{d + 2}, {hex(nbytes)}")
    A(f"s_mov_b32 s{d + 3}, 0x00020000")


def kernel_begin(A, name, nwg):
    A.raw(f".globl {name}")
    A.raw(".p2align 8")
    A.raw(f".type {name},@function")
    A.raw(f"{name}:")
    A.hist = []
    A.vmq = []
    A.lgq = []
    A(f"s_cmp_ge_u32 s2, {nwg}")
    A(f"s_cbranch_scc1 L_{name}_end")
    if "rt" in OPT:
        A("s_memrealtime s[98:99]")


KIDX = [0]


def kernel_end(A, name):
    if "rt" in OPT:
        A.wait_all()
        A("s_memrealtime s[96:97]")
        A(f"s_load_dwordx2 s[60:61], s[0:1], {KA_WS}")
        A.wait_all()
        A("s_mov_b32 s62, 0x2000000")
        A("s_mov_b32 s63, 0x00020000")
        A("v_mov_b32 v2, s98")
        A("v_mov_b32 v3, s96")
        A("s_lshl_b32 s64, s2, 3")
        A(f"s_add_u32 s64, s64, {0x1800000 + KIDX[0] * 4096}")
        A("v_mov_b32 v4, s64")
        A("v_cmp_eq_u32 vcc, 0, v0")
        A("s_and_saveexec_b64 s[66:67], vcc")
        A(f"s_cbranch_execz L_{name}_end")
        A("buffer_store_dwordx2 v[2:3], v4, s[60:63], 0 offen")
        KIDX[0] += 1
    A.raw(f"L_{name}_end:")
    A("s_endpgm")


def kd(name, nv=512, acc=256, ns=102):
    return f"""
.p2align 6
.amdhsa_kernel {name}
  .amdhsa_next_free_vgpr {nv}
  .amdhsa_next_free_sgpr {ns}
  .amdhsa_accum_offset {acc}
  .amdhsa_group_segment_fixed_size 0
  .amdhsa_kernarg_size 88
  .amdhsa_user_sgpr_count 2
  .amdhsa_user_sgpr_kernarg_segment_ptr 1
  .amdhsa_system_sgpr_workgroup_id_x 1
.end_amdhsa_kernel"""


def div_const(A, dst, src, d, tmp_s, rng=4096):
    m = (1 << 20) // d + 1
    for x in range(0, rng):
        assert (x * m) >> 20 == x // d and x * m < (1 << 32), (x, d)
    A(f"s_mov_b32 s{tmp_s}, {m}")
    A(f"v_mul_lo_u32 {dst}, {src}, s{tmp_s}")
    A(f"v_lshrrev_b32 {dst}, 20, {dst}")


def exec_lanes(A, n):
    if n == 64:
        A("s_mov_b64 exec, -1")
    elif n <= 32:
        A(f"s_mov_b64 exec, {hex((1 << n) - 1)}")
    else:
        raise ValueError


STAMP_WG = 37


def interleave(main, fillers):
    n = len(main)
    done = 0
    for i, m in enumerate(main):
        m()
        want = (len(fillers) * (i + 1)) // n
        while done < want:
            fillers[done]()
            done += 1


def sprinkle(base, extra):
    if not base:
        return list(extra)
    out = []
    k = 0
    for i, b in enumerate(base):
        out.append(b)
        while k < (len(extra) * (i + 1)) // len(base):
            out.append(extra[k])
            k += 1
    out += extra[k:]
    return out


def C4(layer): return WS_CNT + layer * 1024
def C2(layer): return WS_CNT + 2048 + layer * 2048
def C3(layer): return WS_CNT + 6144 + layer * 1024
C5 = WS_CNT + 8192
F1 = WS_CNT + 10240
UID = [0]


def publish(A, sr, soff_sgpr):
    UID[0] += 1
    lab = f"L_pub{UID[0]}"
    A.force_wait(vm=0, lg=0)
    A("s_barrier")
    A("v_mov_b32 v10, 0")
    A("v_mov_b32 v11, 1")
    A("v_cmp_eq_u32 vcc, 0, v0")
    A("s_and_saveexec_b64 s[44:45], vcc")
    A(f"s_cbranch_execz {lab}")
    A(f"buffer_atomic_add v11, v10, s[{sr}:{sr + 3}], s{soff_sgpr} offen sc1")
    A.raw(lab + ":")
    A("s_mov_b64 exec, -1")


def await_cnt(A, sr, soff_sgpr, vaddr, nlanes, target):
    UID[0] += 1
    lp, lw, ld = f"L_awp{UID[0]}", f"L_aww{UID[0]}", f"L_awd{UID[0]}"
    A("s_cmp_lg_u32 s22, 0")
    A(f"s_cbranch_scc1 {lw}")
    A(f"s_mov_b64 exec, {hex((1 << nlanes) - 1)}")
    A("s_mov_b32 s45, 0x80000")
    A.raw(lp + ":")
    A.raw(f"    buffer_load_dword v11, v{vaddr}, s[{sr}:{sr + 3}], s{soff_sgpr} offen sc0 sc1")
    A.raw("    s_waitcnt vmcnt(0)")
    A.raw(f"    v_cmp_gt_u32 vcc, {target}, v11")
    A.raw(f"    s_cbranch_vccz {ld}")
    A.raw("    s_sub_u32 s45, s45, 1")
    A.raw("    s_cmp_lg_u32 s45, 0")
    A.raw(f"    s_cbranch_scc1 {lp}")
    A.raw(ld + ":")
    A.raw("    s_mov_b64 exec, -1")
    A.raw(lw + ":")
    A.hist = []
    A.nop(1)
    A("s_barrier")


def phase_begin(A):
    A.hist = []
    A.vmq = []
    A.lgq = []
    A.nop(2)


def reduce_groups(A, reg, tmp):
    A(f"v_mov_b32 v{tmp}, v{reg}")
    A(f"v_permlane16_swap_b32 v{tmp}, v{reg}")
    A(f"v_add_f32 v{reg}, v{reg}, v{tmp}")
    A(f"v_mov_b32 v{tmp}, v{reg}")
    A(f"v_permlane32_swap_b32 v{tmp}, v{reg}")
    A(f"v_add_f32 v{reg}, v{reg}, v{tmp}")


def w1_prefetch(A, sr, nwg, vd, prep_only=False):
    per = 14336 // (nwg // 8) // 8
    A("s_lshr_b32 s34, s2, 3")
    A("s_lshl_b32 s34, s34, 3")
    A("s_add_u32 s34, s34, s22")
    A(f"s_mul_i32 s35, s34, {per}")
    A("v_add_u32 v10, s35, v1")
    A("s_bfe_u32 s36, s2, 0x20001")
    div_const(A, "v11", "v10", 7, 35, rng=14400)
    A("v_mul_u32_u24 v12, 7, v11")
    A("v_sub_u32 v12, v10, v12")
    A("v_mul_u32_u24 v11, 3584, v11")
    A("v_lshl_add_u32 v11, v12, 7, v11")
    A("s_mul_i32 s36, s36, 896")
    srd(A, sr, sr, sr + 1, S * F * 2)
    if prep_only:
        A("s_mov_b32 s33, s36")
        return
    if per < 64:
        A(f"s_mov_b32 exec_hi, {hex((1 << (per - 32)) - 1)}")
    A.touch(f"buffer_load_dword v{vd}, v11, s[{sr}:{sr + 3}], s36 offen")
    if per < 64:
        A("s_mov_b64 exec, -1")


G_RING = 9
G_RB = G_RING * 4096
G_TAB = 4 * G_RB
G_LDS = G_TAB + 16384
G_PRE0 = int(([o[5:] for o in OPT if o.startswith("pre0=")] + ["3"])[0])
G_SP = int(([o[3:] for o in OPT if o.startswith("sp=")] + ["2"])[0])


def gk(A, name, layer, which, fused=False, pers=False):
    g1 = which == 1
    nwg = 224 if g1 else 256
    NK = 16 if g1 else 14
    pitch = 3584 if g1 else 4096
    if pers:
        phase_begin(A)
        if g1:
            A("s_cmp_ge_u32 s2, 224")
            A(f"s_cbranch_scc1 L_{name}_skip")
    elif not fused:
        kernel_begin(A, name, nwg)
    elif g1:
        kernel_begin(A, name, 256)
        A("s_cmp_ge_u32 s2, 224")
        A(f"s_cbranch_scc1 L_{name}_p2")
    else:
        A.raw(f"L_{name}_p2:")
        phase_begin(A)
    A.stamp_base = 70
    if not (fused and not g1) and not pers:
        A.stamp(0)
    A(f"s_load_dwordx2 s[20:21], s[0:1], {KA_WS}")
    A(f"s_load_dwordx2 s[4:5], s[0:1], {KA_W1 if g1 else KA_W2}")
    A(f"s_load_dwordx2 s[12:13], s[0:1], {KA_B1 if g1 else KA_B2}")
    if (not g1) and layer == 1:
        A(f"s_load_dwordx2 s[16:17], s[0:1], {KA_OUT}")
    if g1 and PREFETCH and not fused:
        A(f"s_load_dwordx2 s[92:93], s[0:1], {KA_W2}")
    A("v_and_b32 v1, 63, v0")
    A("v_lshrrev_b32 v2, 6, v0")
    A("v_readfirstlane_b32 s22, v2")
    NI4 = 7 if g1 else 8
    A("s_and_b32 s25, s2, 7")
    A("s_lshr_b32 s26, s2, 3")
    A("s_and_b32 s24, s25, 1")
    A("s_lshl_b32 s24, s24, 2")
    A("s_and_b32 s27, s26, 3")
    A("s_add_u32 s24, s24, s27")
    A("s_lshr_b32 s23, s25, 1")
    A(f"s_mul_i32 s23, s23, {NI4}")
    A("s_lshr_b32 s27, s26, 2")
    A("s_add_u32 s23, s23, s27")
    A("s_and_b32 s47, s22, 3")
    A("s_lshr_b32 s48, s22, 2")
    A("v_lshrrev_b32 v3, 3, v1")
    A("v_bfe_u32 v4, v1, 4, 2")
    A("v_lshlrev_b32 v4, 1, v4")
    A("v_and_b32 v5, 7, v1")
    A("v_xor_b32 v4, v4, v5")
    A(f"v_mul_u32_u24 v5, {pitch}, v3")
    A("v_lshl_add_u32 v5, v4, 4, v5")
    A(f"s_mul_i32 s27, s47, {NK * 32 * pitch}")
    A(f"s_mul_i32 s28, s48, {16 * pitch}")
    A("s_add_u32 s27, s27, s28")
    A("s_lshl_b32 s28, s23, 7")
    A("s_add_u32 s27, s27, s28")
    A("v_add_u32 v5, s27, v5")
    A("v_lshrrev_b32 v7, 4, v1")
    A("v_and_b32 v8, 7, v1")
    A("v_lshlrev_b32 v8, 4, v8")
    A("v_lshl_add_u32 v8, v7, 7, v8")
    A("v_bfe_u32 v9, v1, 3, 1")
    A("v_lshl_add_u32 v6, v9, 9, v8")
    A("s_cmp_eq_u32 s48, 0")
    A("s_cselect_b64 s[50:51], -1, 0")
    A("v_cndmask_b32 v9, v8, v6, s[50:51]")
    A.wait_all(vm=False)
    srd(A, 4, 4, 5, (S * F * 2))
    srd(A, 8, 20, 21, WSZ)
    srd(A, 12, 12, 13, (F if g1 else S) * 2)
    if (not g1) and layer == 1:
        srd(A, 16, 16, 17, XBYTES)
    elif not g1:
        srd_off(A, 16, 20, 21, hex(WS_X2), XBYTES)
    if g1:
        A(f"s_mul_i32 s29, s47, {16 * 28672}")
        A("s_mul_i32 s30, s24, 3584")
        A("s_add_u32 s29, s29, s30")
        A(f"s_add_u32 s29, s29, {hex(WS_X1F + layer * LB)}")
        bstep = 28672
    else:
        A("s_mul_i32 s29, s24, 56")
        A("s_mul_i32 s30, s47, 14")
        A("s_add_u32 s29, s29, s30")
        A("s_mul_i32 s29, s29, 3584")
        A(f"s_add_u32 s29, s29, {hex(WS_UF + layer * LB)}")
        bstep = 3584
    A("s_lshl_b32 s30, s48, 11")
    A("s_add_u32 s29, s29, s30")
    A(f"s_mul_i32 s31, s47, {G_RB}")
    A("s_lshl_b32 s30, s48, 11")
    A("s_add_u32 s49, s31, s30")
    NB = 8
    BR = 112
    toks = {}
    A(f"v_add_u32 v4, {8 * pitch - 1024}, v5")
    USE_ROT = "rotg" in OPT
    ROT = 54
    if USE_ROT:
        A("s_lshr_b32 s34, s2, 3")
        A(f"s_mul_i32 s34, s34, {NK * 2341 if g1 else NK * 2048}")
        A("s_lshr_b32 s34, s34, 16")
        A(f"s_mul_i32 s54, s34, {32 * pitch}")
        A(f"s_mul_i32 s55, s34, {bstep}")
        A("s_add_u32 s55, s55, s29")
        A(f"s_sub_u32 s56, {NK}, s34")
        A(f"s_mov_b32 s57, s34")

    def issue_ops(st, part=None):
        slot = st % G_RING
        b = BR + 8 * (st % NB)

        def fa0():
            A(f"s_add_u32 m0, s49, {slot * 4096}")
            if USE_ROT:
                A(f"s_cmp_le_u32 s56, {st}")
                A(f"s_cselect_b32 s35, {NK * 32 * pitch}, 0")
                A(f"s_add_u32 s32, s54, {st * 32 * pitch}")
                A("s_sub_u32 s32, s32, s35")
            else:
                A(f"s_mov_b32 s32, {st * 32 * pitch}")
            A("buffer_load_dwordx4 v5, s[4:7], s32 offen lds")

        def fb0():
            if USE_ROT:
                A(f"s_cmp_le_u32 s56, {st}")
                A(f"s_cselect_b32 s35, {NK * bstep}, 0")
                A(f"s_add_u32 s33, s55, {st * bstep}")
                A("s_sub_u32 s33, s33, s35")
            else:
                A(f"s_add_u32 s33, s29, {st * bstep}")
            A(f"buffer_load_dwordx4 {v(b, 4)}, v6, s[8:11], s33 offen")

        def fa1():
            A("buffer_load_dwordx4 v4, s[4:7], s32 offen offset:1024 lds")

        def fb1():
            toks[st] = A(f"buffer_load_dwordx4 {v(b + 4, 4)}, v9, s[8:11], s33 offen offset:1024")
        if part == "A":
            return [fa0, fa1]
        if part == "B":
            return [fb0, fb1]
        return [fa0, fa1, fb0, fb1]

    if "notouch" not in OPT:
        A("s_lshr_b32 s34, s2, 3")
        A("s_lshl_b32 s34, s34, 3")
        A("s_add_u32 s34, s34, s22")
        A("s_and_b32 s37, s2, 1")
        if g1:
            A("s_lshl_b32 s35, s34, 5")
        else:
            A("s_mul_i32 s35, s34, 25")
        A("v_add_u32 v10, s35, v1")
        if g1:
            div_const(A, "v12", "v10", 112, 38, rng=7200)
            A("v_mul_u32_u24 v13, 112, v12")
            A("v_sub_u32 v13, v10, v13")
            A("v_mul_u32_u24 v12, 28672, v12")
            A("v_lshl_add_u32 v12, v13, 7, v12")
            A("s_mul_i32 s37, s37, 14336")
            A(f"s_add_u32 s37, s37, {hex(WS_X1F + layer * LB)}")
        else:
            A("v_lshlrev_b32 v12, 7, v10")
            A("s_mul_i32 s37, s37, 802816")
            A(f"s_add_u32 s37, s37, {hex(WS_UF + layer * LB)}")
        exec_lanes(A, 32 if g1 else 25)
        A.touch("buffer_load_dword v99, v12, s[8:11], s37 offen")
        exec_lanes(A, 64)
    def stats_loads():
        A("v_lshrrev_b32 v10, 2, v1")
        A("v_lshlrev_b32 v10, 7, v10")
        A("v_and_b32 v11, 3, v1")
        A("v_lshl_add_u32 v10, v11, 4, v10")
        A("s_lshl_b32 s34, s22, 11")
        A(f"s_add_u32 s34, s34, {hex(WS_ST + (0 if layer == 0 else 2) * 16384)}")
        A("buffer_load_dwordx4 v[16:19], v10, s[8:11], s34 offen")
        A("buffer_load_dwordx4 v[20:23], v10, s[8:11], s34 offen offset:64")

    if g1 and not pers:
        stats_loads()
    PRE0 = G_PRE0
    PRE = 7
    F2 = (fused and not g1) or pers
    if F2:
        PRE0 = PRE
        for st in range(PRE0):
            for f in issue_ops(st, "A"):
                f()
    else:
        for st in range(PRE0):
            for f in issue_ops(st):
                f()
    EP = 100
    if g1:
        A("s_lshr_b32 s36, s47, 1")
        A("s_lshl_b32 s37, s23, 7")
        A("s_lshl_b32 s38, s36, 6")
        A("s_add_u32 s37, s37, s38")
        A("v_lshlrev_b32 v33, 3, v7")
        A(f"buffer_load_dwordx2 {v(EP, 2)}, v33, s[12:15], s37 offen")
        A(f"buffer_load_dwordx2 {v(EP + 2, 2)}, v33, s[12:15], s37 offen offset:32")

    def g2_early():
        A("s_lshl_b32 s36, s23, 2")
        A("s_add_u32 s36, s36, s47")
        A("s_mul_i32 s37, s36, 14336")
        A("s_mul_i32 s38, s24, 1792")
        A("s_add_u32 s37, s37, s38")
        A("s_lshl_b32 s38, s48, 10")
        A("s_add_u32 s37, s37, s38")
        A(f"s_add_u32 s37, s37, {hex(WS_X1T + layer * LB)}")
        A("v_and_b32 v33, 15, v1")
        A("v_lshlrev_b32 v35, 3, v33")
        A("v_lshl_add_u32 v35, v7, 7, v35")
        for k in range(2):
            A(f"buffer_load_dwordx2 {v(EP + 2 * k, 2)}, v35, s[8:11], s37 offen offset:{k * 512}")
        A("s_lshl_b32 s38, s36, 5")
        A("v_lshlrev_b32 v36, 1, v33")
        A(f"buffer_load_ushort v{EP + 4}, v36, s[12:15], s38 offen")
    if (not g1) and not F2:
        g2_early()
    if F2:
        if g1:
            A(f"s_mov_b32 s34, {hex(C3(layer))}")
            A("v_lshlrev_b32 v10, 7, v1")
            await_cnt(A, 8, 34, 10, 8, 28)
            stats_loads()
        else:
            A("s_lshl_b32 s34, s24, 7")
            A(f"s_add_u32 s34, s34, {hex(C4(layer))}")
            A("v_mov_b32 v10, 0")
            await_cnt(A, 8, 34, 10, 1, 28)
        for st in range(PRE0):
            for f in issue_ops(st, "B"):
                f()
        if not g1:
            g2_early()
    A.stamp(1)
    A("v_bfe_u32 v12, v1, 2, 2")
    A("v_and_b32 v13, 3, v1")
    A("v_and_b32 v14, 1, v7")
    A("v_lshlrev_b32 v15, 2, v7")
    A("v_add_u32 v15, v15, v12")
    A("v_lshlrev_b32 v15, 7, v15")
    A("v_lshl_add_u32 v15, v13, 3, v15")
    A("v_add_u32 v15, s31, v15")
    A("v_lshrrev_b32 v32, 1, v12")
    A("v_lshl_add_u32 v32, v14, 1, v32")
    for mt in range(4):
        A(f"v_xor_b32 v33, {mt}, v32")
        A(f"v_lshl_add_u32 v{36 + mt}, v33, 5, v15")
    if g1:
        for i in range(4):
            sm, sq = 16 + i, 20 + i
            A(f"v_mul_f32 v{sm}, {hexf(1.0 / 448)}, v{sm}")
            A(f"v_mul_f32 v{sq}, {hexf(1.0 / 448)}, v{sq}")
            A(f"v_fma_f32 v{sq}, -v{sm}, v{sm}, v{sq}")
            A(f"v_max_f32 v{sq}, 0, v{sq}")
            A(f"v_add_f32 v34, {hexf(1e-5)}, v{sq}")
            A("v_rcp_f32 v34, v34")
            A(f"v_mul_f32 v35, v{sq}, v34")
            A(f"v_add_f32 v35, {hexf(1e-5)}, v35")
            A("v_rcp_f32 v35, v35")
            A("v_mul_f32 v34, v34, v35")
            A(f"v_sqrt_f32 v{sq}, v34")
            A(f"v_mul_f32 v{sm}, -v{sm}, v{sq}")
        A("v_lshlrev_b32 v34, 4, v1")
        A("s_lshl_b32 s34, s22, 10")
        A(f"s_add_u32 s34, s34, {G_TAB}")
        A("v_add_u32 v34, s34, v34")
        A("ds_write_b128 v34, v[20:23]")
        A("ds_write_b128 v34, v[16:19] offset:8192")
        A("v_lshlrev_b32 v35, 4, v7")
        A("s_lshl_b32 s34, s47, 11")
        A(f"s_add_u32 s34, s34, {G_TAB}")
        A("v_add_u32 v35, s34, v35")
    AFR = [0, 16]
    ACC = 32
    BN = [40, 48]
    AB = [56, 72]
    TMP = 88

    def a_reads(st):
        slot = st % G_RING
        buf = st & 1
        if "nolds" in OPT and st > 1:
            return []
        return [(lambda mt=mt, t=t: A(f"ds_read_b64_tr_b16 {a(AFR[buf] + 4 * mt + 2 * t, 2)}, v{36 + mt} "
                                      f"offset:{slot * 4096 + t * 2048}")) for mt in range(4) for t in range(2)]

    def ab_reads(st):
        buf = st & 1
        ops = []
        if "nolds" in OPT and st > 1:
            return []

        if USE_ROT:
            def addr():
                A(f"s_add_u32 s46, s57, {st}")
                A("s_and_b32 s46, s46, 15")
                A("s_lshl_b32 s46, s46, 7")
                A(f"v_add_u32 v{96 + buf}, s46, v35")
            ops.append(addr)
            for t in range(2):
                ops.append(lambda t=t: A(f"ds_read_b128 {v(AB[buf] + 4 * t, 4)}, v{96 + buf} offset:{t * 64}"))
                ops.append(lambda t=t: A(f"ds_read_b128 {v(AB[buf] + 8 + 4 * t, 4)}, v{96 + buf} offset:{8192 + t * 64}"))
            return ops
        for t in range(2):
            ops.append(lambda t=t: A(f"ds_read_b128 {v(AB[buf] + 4 * t, 4)}, v35 offset:{st * 128 + t * 64}"))
            ops.append(lambda t=t: A(f"ds_read_b128 {v(AB[buf] + 8 + 4 * t, 4)}, v35 offset:{8192 + st * 128 + t * 64}"))
        return ops

    def norm_ops(st):
        buf = st & 1
        b = BR + 8 * (st % NB)
        ops = []
        if "nonorm" in OPT:
            return [(lambda d=d: A(f"v_mov_b32 v{BN[buf] + d}, v{b + d}")) for d in range(8)]
        for nt in range(2):
            for dp in range(2):
                d0, d1 = 2 * dp, 2 * dp + 1
                x0, x1 = b + 4 * nt + d0, b + 4 * nt + d1
                tb = TMP + 4 * (dp & 1)
                ops.append(lambda x0=x0, tb=tb: A(f"v_lshlrev_b32 v{tb}, 16, v{x0}"))
                ops.append(lambda x0=x0, tb=tb: A(f"v_and_b32 v{tb + 1}, 0xffff0000, v{x0}"))
                ops.append(lambda x1=x1, tb=tb: A(f"v_lshlrev_b32 v{tb + 2}, 16, v{x1}"))
                ops.append(lambda x1=x1, tb=tb: A(f"v_and_b32 v{tb + 3}, 0xffff0000, v{x1}"))
                for (o, dd) in ((0, d0), (2, d1)):
                    for e in range(2):
                        ops.append(lambda tb=tb, o=o, dd=dd, e=e: A(
                            f"v_fma_f32 v{tb + o + e}, v{tb + o + e}, v{AB[buf] + 2 * dd + e}, v{AB[buf] + 8 + 2 * dd + e}"))
                ops.append(lambda tb=tb, nt=nt, d0=d0: A(f"v_cvt_pk_bf16_f32 v{BN[buf] + 4 * nt + d0}, v{tb}, v{tb + 1}"))
                ops.append(lambda tb=tb, nt=nt, d1=d1: A(f"v_cvt_pk_bf16_f32 v{BN[buf] + 4 * nt + d1}, v{tb + 2}, v{tb + 3}"))
        return ops

    def mfma_ops(st):
        buf = st & 1
        ops = []
        if "nomfma" in OPT and st > 0:
            return [lambda: A("s_nop 0")]
        for nt in range(2):
            for mt in range(4):
                acc = a(ACC + 4 * (2 * mt + nt), 4)
                c = "0" if st == 0 else acc
                if g1:
                    ops.append(lambda acc=acc, c=c, mt=mt, nt=nt: A(
                        f"v_mfma_f32_16x16x32_bf16 {acc}, {a(AFR[buf] + 4 * mt, 4)}, {v(BN[buf] + 4 * nt, 4)}, {c}"))
                else:
                    b = BR + 8 * (st % NB)
                    ops.append(lambda acc=acc, c=c, mt=mt, nt=nt, b=b: A(
                        f"v_mfma_f32_16x16x32_bf16 {acc}, {v(b + 4 * nt, 4)}, {a(AFR[buf] + 4 * mt, 4)}, {c}"))
        return ops

    def sync_op(st):
        def f():
            A.wait_vm(toks[st])
            if "nobar" not in OPT:
                A("s_barrier")
        return f

    def w2_touch_ops():
        def f0():
            A("s_lshr_b32 s44, s2, 3")
            A("s_bfe_u32 s45, s2, 0x20001")
            A("s_lshl_b32 s44, s44, 6")
            A("s_lshl_b32 s46, s22, 3")
            A("s_add_u32 s44, s44, s46")
            A("v_and_b32 v98, 7, v1")
            A("v_add_u32 v98, s44, v98")
            A("v_lshlrev_b32 v98, 12, v98")
            A("v_lshl_add_u32 v98, v3, 7, v98")
            A("s_lshl_b32 s45, s45, 10")
            A("v_add_u32 v98, s45, v98")
            srd(A, 92, 92, 93, S * F * 2)

        def f1():
            A.touch("buffer_load_dword v99, v98, s[92:95], 0 offen")
        return [f0, f1]

    next_issue = PRE0
    A.stamp(5)
    A.wait_vm(toks[0])
    A.wait_all(vm=False)
    A.stamp(6)
    A("s_barrier")
    A.stamp(7)
    for f in a_reads(0):
        f()
    if g1:
        for f in ab_reads(0) + ab_reads(1):
            f()
        for f in norm_ops(0):
            f()
    SPD = G_SP
    synced = 0
    for st in range(NK):
        vm = []
        n_iss = 0
        issued_before = next_issue - 1
        while next_issue < NK and next_issue <= st + PRE and n_iss < 2:
            vm += issue_ops(next_issue)
            next_issue += 1
            n_iss += 1
        lds = []
        if st + 1 < NK:
            if st + 1 > synced:
                tgt = min(NK - 1, st + SPD, issued_before)
                lds += [sync_op(tgt)]
                synced = tgt
            lds += a_reads(st + 1)
        va = norm_ops(st + 1) if (g1 and st + 1 < NK) else []
        ab = ab_reads(st + 2) if (g1 and st + 2 < NK) else []
        if g1 and PREFETCH and (not fused) and st == NK - PRE + 1:
            vm += w2_touch_ops()
        seq = lds + sprinkle(va + ab, vm)
        interleave(mfma_ops(st), seq)
    A.stamp(2)
    PBASE = 0 if g1 else 5 * 4096

    def owner(mt, nt):
        if g1:
            return (2 * (mt >> 1) + nt, mt & 1)
        return (mt, nt)
    A("v_lshlrev_b32 v34, 4, v1")
    A("s_lshl_b32 s35, s48, 13")
    A("s_add_u32 s34, s31, s35")
    A(f"s_add_u32 s34, s34, {PBASE}")
    A("v_add_u32 v33, s34, v34")
    for mt in range(4):
        for nt in range(2):
            o, k = owner(mt, nt)
            A(f"ds_write_b128 v33, {a(ACC + 4 * (2 * mt + nt), 4)} offset:{(o * 2 + k) * 1024}")
    A.wait_all(vm=False)
    A("s_barrier")
    A("s_lshl_b32 s34, s47, 11")
    A("s_add_u32 s34, s34, s35")
    A(f"s_add_u32 s34, s34, {PBASE}")
    A("v_add_u32 v33, s34, v34")
    A(f"v_add_u32 v35, {2 * G_RB}, v33")
    RD = 40
    for k in range(2):
        for src in range(4):
            A(f"ds_read_b128 {v(RD + 8 * src + 4 * k, 4)}, v{33 if src < 2 else 35} offset:{(src & 1) * G_RB + k * 1024}")
    for k in range(2):
        for r in range(4):
            A(f"v_add_f32 v{RD + 4 * k + r}, v{RD + 4 * k + r}, v{RD + 8 + 4 * k + r}")
            A(f"v_add_f32 v{RD + 16 + 4 * k + r}, v{RD + 16 + 4 * k + r}, v{RD + 24 + 4 * k + r}")
        for r in range(4):
            A(f"v_add_f32 v{RD + 4 * k + r}, v{RD + 4 * k + r}, v{RD + 16 + 4 * k + r}")
    A.stamp(3)
    if g1:
        for m in range(2):
            for hlf in range(2):
                A(f"v_lshlrev_b32 v{76 + 4 * m + 2 * hlf}, 16, v{EP + 2 * m + hlf}")
                A(f"v_and_b32 v{77 + 4 * m + 2 * hlf}, 0xffff0000, v{EP + 2 * m + hlf}")
        c1 = -2.0 * 1.4426950408889634 * 0.7978845608028654
        c3 = c1 * 0.044715
        A(f"s_mov_b32 s39, {hexf(c1)}")
        A(f"s_mov_b32 s40, {hexf(c3)}")
        A("v_mov_b32 v84, s39")
        for m in range(2):
            for r in range(4):
                x = RD + 4 * m + r
                t = 85 + (r & 1)
                A(f"v_add_f32 v{x}, v{x}, v{76 + 4 * m + r}")
                A(f"v_mul_f32 v{t}, v{x}, v{x}")
                A(f"v_fma_f32 v{t}, v{t}, s40, v84")
                A(f"v_mul_f32 v{t}, v{t}, v{x}")
                A(f"v_exp_f32 v{t}, v{t}")
                A(f"v_add_f32 v{t}, 1.0, v{t}")
                A(f"v_rcp_f32 v{t}, v{t}")
                A(f"v_mul_f32 v{x}, v{x}, v{t}")
        for m in range(2):
            for hlf in range(2):
                A(f"v_cvt_pk_bf16_f32 v{88 + 2 * m + hlf}, v{RD + 4 * m + 2 * hlf}, v{RD + 4 * m + 2 * hlf + 1}")
        A("s_mul_i32 s41, s24, 56")
        A("s_lshl_b32 s42, s23, 1")
        A("s_add_u32 s41, s41, s42")
        A("s_add_u32 s41, s41, s36")
        A("s_mul_i32 s41, s41, 3584")
        A(f"s_add_u32 s41, s41, {hex(WS_UF + layer * LB)}")
        A("s_and_b32 s42, s47, 1")
        A("s_lshl_b32 s43, s48, 1")
        A("s_add_u32 s42, s42, s43")
        A("s_lshl_b32 s43, s42, 10")
        A("s_add_u32 s41, s41, s43")
        A("s_cmp_eq_u32 s42, 3")
        A("s_cselect_b32 s44, 0x00ff00ff, -1")
        A("s_mov_b32 s45, s44")
        A("s_mov_b64 exec, s[44:45]")
        A("buffer_store_dwordx4 v[88:91], v6, s[8:11], s41 offen")
        A("s_mov_b64 exec, -1")
    else:
        A("v_and_b32 v33, 15, v1")
        A(f"v_lshlrev_b32 v76, 16, v{EP + 4}")
        for k in range(2):
            for hlf in range(2):
                x = EP + 2 * k + hlf
                A(f"v_lshlrev_b32 v77, 16, v{x}")
                A(f"v_and_b32 v78, 0xffff0000, v{x}")
                y = RD + 4 * k + 2 * hlf
                A(f"v_add_f32 v{y}, v{y}, v76")
                A(f"v_add_f32 v{y + 1}, v{y + 1}, v76")
                A(f"v_add_f32 v{y}, v{y}, v77")
                A(f"v_add_f32 v{y + 1}, v{y + 1}, v78")
                A(f"v_cvt_pk_bf16_f32 v{88 + 2 * k + hlf}, v{y}, v{y + 1}")
        if layer == 0:
            A("s_cmp_eq_u32 s48, 0")
            A("s_cselect_b32 s45, -1, 0")
            A("s_mov_b32 s44, -1")
            A("v_cndmask_b32 v92, 0, v90, s[44:45]")
            A("v_cndmask_b32 v93, 0, v91, s[44:45]")
            A("v_mov_b32 v77, 0x3f803f80")
            A("v_mov_b32 v78, 0")
            A("v_mov_b32 v79, 0")
            for x in [88, 89, 92, 93]:
                A(f"v_dot2_f32_bf16 v78, v{x}, v77, v78")
                A(f"v_dot2_f32_bf16 v79, v{x}, v{x}, v79")
            reduce_groups(A, 78, 80)
            reduce_groups(A, 79, 81)
            A("v_cmp_gt_u32 vcc, 16, v1")
            A("v_cndmask_b32 v80, v79, v78, vcc")
            A("v_lshlrev_b32 v81, 2, v1")
            A("s_lshl_b32 s39, s36, 7")
            A(f"s_add_u32 s39, s39, {hex(WS_ST + 16384)}")
            exec_lanes(A, 32)
            A("buffer_atomic_add_f32 v80, v81, s[8:11], s39 offen")
            exec_lanes(A, 64)
        SP = 80
        A("s_lshl_b32 s40, s22, 11")
        A(f"s_add_u32 s40, s40, {G_TAB}")
        A(f"v_mul_u32_u24 v36, {SP}, v33")
        A("v_lshl_add_u32 v36, v7, 3, v36")
        A("v_add_u32 v36, s40, v36")
        for k in range(2):
            A(f"ds_write_b64 v36, {v(88 + 2 * k, 2)} offset:{32 * k}")
        A("v_lshrrev_b32 v37, 2, v1")
        A("v_and_b32 v38, 3, v1")
        A(f"v_mul_u32_u24 v39, {SP}, v37")
        A("v_lshl_add_u32 v39, v38, 4, v39")
        A("v_add_u32 v39, s40, v39")
        A("ds_read_b128 v[92:95], v39")
        A("s_lshl_b32 s39, s36, 4")
        A("s_mul_i32 s39, s39, 896")
        A("s_mul_i32 s41, s24, 112")
        A("s_add_u32 s39, s39, s41")
        A("s_lshl_b32 s41, s48, 6")
        A("s_add_u32 s39, s39, s41")
        A("v_mul_u32_u24 v37, 896, v37")
        A("v_lshl_add_u32 v37, v38, 4, v37")
        A("s_cmp_eq_u32 s48, 0")
        A("s_cselect_b32 s44, -1, 0x77777777")
        A("s_mov_b32 s45, s44")
        A("s_mov_b64 exec, s[44:45]")
        A("buffer_store_dwordx4 v[92:95], v37, s[16:19], s39 offen")
        A("s_mov_b64 exec, -1")
    if (fused or pers) and g1:
        A("s_lshl_b32 s34, s24, 7")
        A(f"s_add_u32 s34, s34, {hex(C4(layer))}")
        publish(A, 8, 34)
        if pers:
            A.raw(f"L_{name}_skip:")
        return None
    if pers:
        if layer == 0:
            A("s_lshr_b32 s34, s23, 1")
            A("s_lshl_b32 s34, s34, 7")
            A(f"s_add_u32 s34, s34, {hex(C5)}")
            publish(A, 8, 34)
        return None
    A.stamp(4)
    A.dump_stamps(STAMP_WG)
    kernel_end(A, name)
    return G_LDS, 512, 256, 176


K1_XP = 16384
K1_WP = 64 * 192
K1_SLOT = K1_XP + K1_WP
K1_NS = 5
K1_MISC = K1_NS * K1_SLOT
K1_CSUM = K1_MISC
K1_TOK = K1_MISC + 1024
K1_LDS = K1_MISC + 1024 + 2048
K1_EX = 2 * K1_SLOT


def k1(A, name, layer, pers=False):
    L0 = layer == 0
    if pers:
        phase_begin(A)
    else:
        kernel_begin(A, name, 256)
        A.stamp_base = 70
        A.stamp(0)
    if L0:
        A(f"s_load_dwordx2 s[4:5], s[0:1], {KA_X}")
        A(f"s_load_dwordx2 s[8:9], s[0:1], {KA_WQKV}")
    A(f"s_load_dwordx2 s[20:21], s[0:1], {KA_WS}")
    A("v_and_b32 v1, 63, v0")
    A("v_lshrrev_b32 v2, 6, v0")
    A("v_readfirstlane_b32 s22, v2")
    A("s_lshr_b32 s23, s2, 4")
    A("s_and_b32 s24, s2, 15")
    A("s_and_b32 s47, s22, 3")
    A("s_lshr_b32 s48, s22, 2")
    A("s_lshl_b32 s25, s23, 7")
    A("s_lshl_b32 s26, s47, 5")
    A("s_add_u32 s49, s25, s26")
    A("s_lshl_b32 s26, s48, 4")
    A("s_add_u32 s25, s49, s26")
    A("s_mul_i32 s25, s25, 896")
    A("v_lshrrev_b32 v16, 3, v1")
    A("v_mul_u32_u24 v16, 896, v16")
    A("v_lshrrev_b32 v17, 4, v1")
    A("v_and_b32 v18, 7, v1")
    A("v_xor_b32 v19, v18, v17")
    A("v_lshl_add_u32 v2, v19, 4, v16")
    A("v_xor_b32 v19, 4, v19")
    A("v_lshl_add_u32 v3, v19, 4, v16")
    A("v_add_u32 v2, s25, v2")
    A("v_add_u32 v3, s25, v3")
    A(f"v_add_u32 v3, {8 * 896 - 1024}, v3")
    if L0:
        A("s_lshl_b32 s26, s22, 3")
        A("s_mul_i32 s26, s26, 2688")
        A("s_mul_i32 s27, s24, 56")
        A("s_add_u32 s26, s26, s27")
        for i in range(2):
            A(f"v_add_u32 v16, {64 * i}, v1")
            div_const(A, "v17", "v16", 12, 27)
            A("v_mul_u32_u24 v18, 12, v17")
            A("v_sub_u32 v18, v16, v18")
            A("v_mul_u32_u24 v17, 2688, v17")
            A("v_lshrrev_b32 v19, 2, v18")
            A("v_mul_u32_u24 v19, 896, v19")
            A("v_and_b32 v18, 3, v18")
            A("v_lshl_add_u32 v17, v18, 4, v17")
            A("v_add_u32 v17, v17, v19")
            A(f"v_add_u32 v{4 + i}, s26, v17")
        A("v_subrev_u32 v5, 1024, v5")
        wstep = 64 * 2688
    else:
        A("s_mul_i32 s26, s24, 86016")
        A("s_mul_i32 s27, s22, 1536")
        A("s_add_u32 s26, s26, s27")
        A("v_lshlrev_b32 v4, 4, v1")
        A("v_add_u32 v4, s26, v4")
        A("v_mov_b32 v5, v4")
        wstep = 12288
    A.wait_all(vm=False)
    if L0:
        srd(A, 4, 4, 5, XBYTES)
        srd(A, 8, 8, 9, D * 3 * D * 2)
    else:
        srd_off(A, 4, 20, 21, hex(WS_X2), XBYTES)
        srd_off(A, 8, 20, 21, hex(WS_WC), 16 * 86016)
    srd(A, 12, 20, 21, WSZ)
    A("s_lshl_b32 s28, s47, 12")
    A("s_lshl_b32 s29, s48, 11")
    A("s_add_u32 s28, s28, s29")
    A("s_mul_i32 s29, s22, 1536")
    A(f"s_add_u32 s29, s29, {K1_XP}")
    tokq = {}
    ROT = 52
    A("s_add_u32 s35, s23, s24")
    A("s_mul_i32 s34, s35, 9363")
    A("s_lshr_b32 s34, s34, 16")
    A("s_mul_i32 s34, s34, 7")
    A("s_sub_u32 s34, s35, s34")
    if "norot" in OPT:
        A("s_mov_b32 s34, 0")
    for q in range(7):
        A(f"s_add_u32 s{ROT + q}, s34, {q}")
        A(f"s_cmp_ge_u32 s{ROT + q}, 7")
        A("s_cselect_b32 s35, 7, 0")
        A(f"s_sub_u32 s{ROT + q}, s{ROT + q}, s35")

    def dma_ops(p):
        slot = (p % K1_NS) * K1_SLOT

        def f0():
            A(f"s_add_u32 m0, s28, {slot}")
            A(f"s_lshl_b32 s30, s{ROT + p}, 7")
            A("buffer_load_dwordx4 v2, s[4:7], s30 offen lds")
            A("buffer_load_dwordx4 v3, s[4:7], s30 offen offset:1024 lds")

        def f1():
            A(f"s_add_u32 m0, s29, {slot}")
            A(f"s_mul_i32 s31, s{ROT + p}, {wstep}")
            A("buffer_load_dwordx4 v4, s[8:11], s31 offen lds")
            exec_lanes(A, 32)
            tokq[p] = A("buffer_load_dwordx4 v5, s[8:11], s31 offen offset:1024 lds")
            exec_lanes(A, 64)
        return [f0, f1]

    PRE = 3
    if pers:
        PRE = 4
        for p in range(5):
            dma_ops(p)[1]()
        A("s_lshl_b32 s32, s23, 7")
        A(f"s_add_u32 s32, s32, {hex(C5)}")
        A("v_mov_b32 v10, 0")
        await_cnt(A, 12, 32, 10, 1, 16)
        for p in range(PRE):
            dma_ops(p)[0]()
            tokq[p] = A.vmq[-1]["tok"]
    else:
        for f in dma_ops(0):
            f()
    if L0:
        A("s_lshl_b32 s32, s2, 13")
        A(f"s_add_u32 s32, s32, {hex(WS_ST)}")
        A("s_cmp_lt_u32 s2, 8")
        A("s_cselect_b32 s32, s32, 0x7fff0000")
        A("v_lshlrev_b32 v16, 4, v0")
        for i in range(4):
            A(f"v_mov_b32 v{12 + i}, 0")
        A("buffer_store_dwordx4 v[12:15], v16, s[12:15], s32 offen")
    else:
        A("v_and_b32 v16, 31, v1")
        A("v_add_u32 v16, s49, v16")
        A("v_lshrrev_b32 v17, 4, v16")
        A("v_lshlrev_b32 v17, 7, v17")
        A("v_and_b32 v16, 15, v16")
        A("v_lshl_add_u32 v17, v16, 2, v17")
        A(f"s_mov_b32 s32, {hex(WS_ST + 16384)}")
        A("buffer_load_dword v52, v17, s[12:15], s32 offen")
        A("buffer_load_dword v48, v17, s[12:15], s32 offen offset:64")
        A("v_lshrrev_b32 v17, 5, v1")
        A("v_lshlrev_b32 v17, 4, v17")
        A("s_mul_i32 s32, s24, 384")
        A("s_lshl_b32 s33, s48, 7")
        A("s_add_u32 s33, s33, s32")
        A(f"s_add_u32 s33, s33, {hex(WS_CS)}")
        for j in range(4):
            A(f"buffer_load_dwordx4 {v(120 + 4 * j, 4)}, v17, s[12:15], s33 offen offset:{32 * j}")
        A("v_and_b32 v16, 31, v1")
        A("v_lshlrev_b32 v16, 2, v16")
        A(f"s_add_u32 s32, s32, {hex(WS_CS + 256)}")
        A("buffer_load_dword v56, v16, s[12:15], s32 offen")
    if not pers:
        for p in range(1, PRE):
            for f in dma_ops(p):
                f()
    A.stamp(1)
    A("v_and_b32 v16, 31, v1")
    A("v_lshrrev_b32 v17, 5, v1")
    A("v_bfe_u32 v18, v1, 1, 3")
    A("v_xor_b32 v18, v18, v17")
    A("v_lshlrev_b32 v19, 7, v16")
    A("s_lshl_b32 s32, s47, 12")
    A("v_add_u32 v19, s32, v19")
    A("s_lshl_b32 s33, s48, 2")
    for ls in range(2):
        A(f"s_add_u32 s34, s33, {2 * ls}")
        A("v_xor_b32 v20, s34, v18")
        A(f"v_lshl_add_u32 v{8 + ls}, v20, 4, v19")
    A("v_bfe_u32 v18, v1, 2, 2")
    A("v_bfe_u32 v19, v1, 4, 1")
    A("v_and_b32 v20, 3, v1")
    A("v_lshlrev_b32 v22, 5, v19")
    A("v_lshl_add_u32 v22, v20, 3, v22")
    A("v_lshl_add_u32 v21, v17, 3, v18")
    A("v_mul_u32_u24 v21, 192, v21")
    A("v_add_u32 v21, v21, v22")
    A(f"s_mul_i32 s34, s48, {32 * 192}")
    A(f"s_add_u32 s34, s34, {K1_XP}")
    A("v_add_u32 v21, s34, v21")
    ONES = 28
    SS = 36
    if L0:
        A("s_mul_i32 s34, s22, 11")
        A("s_lshr_b32 s34, s34, 5")
        A("s_mul_i32 s35, s34, 3")
        A("s_sub_u32 s35, s22, s35")
        A("s_and_b32 s34, s34, 1")
        A(f"s_mul_i32 s34, s34, {32 * 192}")
        A("s_lshl_b32 s35, s35, 6")
        A("s_add_u32 s34, s34, s35")
        A(f"s_add_u32 s34, s34, {K1_XP}")
        A("v_lshl_add_u32 v23, v17, 3, v18")
        A("v_mul_u32_u24 v23, 192, v23")
        A("v_add_u32 v22, v22, v23")
        A("v_add_u32 v22, s34, v22")
        A("v_mul_u32_u24 v24, 192, v1")
        A("v_add_u32 v24, s29, v24")
        A("v_add_u32 v24, 56, v24")
        A("v_mov_b32 v26, 0x3f80")
        A("v_mov_b32 v27, 0")
        for i in range(4):
            A(f"v_mov_b32 v{ONES + i}, 0x3f803f80")
        for i in range(4):
            A(f"v_mov_b32 v{SS + i}, 0")
        A("v_lshlrev_b32 v33, 4, v1")
        A("v_add_u32 v34, s29, v33")
        A("s_mul_i32 s50, s24, 86016")
        A("s_mul_i32 s51, s22, 1536")
        A("s_add_u32 s50, s50, s51")
        A(f"s_add_u32 s50, s50, {hex(WS_WC)}")
    AQ, AK, AV, AC = 0, 16, 32, 48
    XF = 64
    WF = 76
    CF = 112
    VA = 40

    def token_stats(sumreg, sqreg):
        A(f"v_mul_f32 v{sumreg}, {hexf(1.0 / 448)}, v{sumreg}")
        A(f"v_mul_f32 v{sqreg}, {hexf(1.0 / 448)}, v{sqreg}")
        A(f"v_fma_f32 v{sqreg}, -v{sumreg}, v{sumreg}, v{sqreg}")
        A(f"v_max_f32 v{sqreg}, 0, v{sqreg}")
        A(f"v_add_f32 v{sqreg}, {hexf(1e-5)}, v{sqreg}")
        A(f"v_rsq_f32 v{sqreg}, v{sqreg}")
        A(f"v_mul_f32 v{sumreg}, -v{sumreg}, v{sqreg}")
        A("v_and_b32 v57, 31, v1")
        A("v_lshlrev_b32 v57, 2, v57")
        A("s_lshl_b32 s35, s22, 8")
        A(f"s_add_u32 s35, s35, {K1_TOK}")
        A("v_add_u32 v57, s35, v57")
        exec_lanes(A, 32)
        A(f"ds_write_b32 v57, v{sqreg}")
        A(f"ds_write_b32 v57, v{sumreg} offset:128")
        exec_lanes(A, 64)
        A("v_lshlrev_b32 v58, 4, v17")
        A("s_lshl_b32 s36, s48, 6")
        A("s_add_u32 s36, s36, s35")
        A("v_add_u32 v58, s36, v58")
        for j in range(2):
            A(f"ds_read_b128 {v(TA + 4 * j, 4)}, v58 offset:{32 * j}")
            A(f"ds_read_b128 {v(TB + 4 * j, 4)}, v58 offset:{128 + 32 * j}")

    TA, TB = 152, 160
    CS = 120
    if not L0:
        token_stats(52, 48)

    def set_addr(p):
        slot = (p % K1_NS) * K1_SLOT
        b = VA + 4 * (p & 1)
        A(f"v_add_u32 v{b}, {slot}, v8")
        A(f"v_add_u32 v{b + 1}, {slot}, v9")
        A(f"v_add_u32 v{b + 2}, {slot}, v21")
        if L0:
            A(f"v_add_u32 v{b + 3}, {slot}, v22")

    def sync(p):
        slot = (p % K1_NS) * K1_SLOT
        set_addr(p)
        A.wait_vm(tokq[p])
        if L0:
            A(f"v_add_u32 v49, {slot}, v24")
            if p == 0:
                A(f"v_add_u32 v35, {slot}, v34")
                A("ds_read_b128 v[120:123], v35")
                A("ds_read_b128 v[124:127], v35 offset:1024")
                A(f"s_mul_i32 s51, s{ROT}, 12288")
                A("s_add_u32 s51, s51, s50")
                A("s_cmp_lt_u32 s23, 7")
                A("s_cselect_b32 s51, s51, 0x7fff0000")
                A("buffer_store_dwordx4 v[120:123], v33, s[12:15], s51 offen")
                exec_lanes(A, 32)
                A("buffer_store_dwordx4 v[124:127], v33, s[12:15], s51 offen offset:1024")
            exec_lanes(A, 8)
            A("ds_write_b64 v49, v[26:27]")
            exec_lanes(A, 64)
            A.wait_all(vm=False)
        A("s_barrier")

    def read_ops(gs):
        p, ls = gs >> 1, gs & 1
        b = VA + 4 * (p & 1)
        buf = gs % 3
        ops = [lambda: A(f"ds_read_b128 {v(XF + 4 * buf, 4)}, v{b + ls}")]
        for t3 in range(3):
            for t in range(2):
                ops.append(lambda t3=t3, t=t: A(
                    f"ds_read_b64_tr_b16 {v(WF + 12 * buf + 4 * t3 + 2 * t, 2)}, v{b + 2} "
                    f"offset:{(16 * ls + 4 * t) * 192 + 64 * t3}"))
        return ops

    def cread_ops(p):
        b = VA + 4 * (p & 1)
        ops = []
        for f in range(2):
            for t in range(2):
                ops.append(lambda f=f, t=t: A(
                    f"ds_read_b64_tr_b16 {v(CF + 4 * f + 2 * t, 2)}, v{b + 3} offset:{(16 * f + 4 * t) * 192}"))
        return ops

    sync(0)
    for f in read_ops(0) + read_ops(1):
        f()
    A.stamp(2)
    for gs in range(14):
        p, ls = gs >> 1, gs & 1
        b = gs % 3
        xf = v(XF + 4 * b, 4)
        first = gs == 0
        m = [
            lambda: A(f"v_mfma_f32_32x32x16_bf16 {a(AQ, 16)}, {v(WF + 12 * b, 4)}, {xf}, {'0' if first else a(AQ, 16)}"),
            lambda: A(f"v_mfma_f32_32x32x16_bf16 {a(AK, 16)}, {v(WF + 12 * b + 4, 4)}, {xf}, {'0' if first else a(AK, 16)}"),
            lambda: A(f"v_mfma_f32_32x32x16_bf16 {a(AV, 16)}, {xf}, {v(WF + 12 * b + 8, 4)}, {'0' if first else a(AV, 16)}"),
        ]
        if ls == 1 and L0:
            for f in range(2):
                m.append(lambda f=f: A(
                    f"v_mfma_f32_32x32x16_bf16 {a(AC, 16)}, {v(ONES, 4)}, {v(CF + 4 * f, 4)}, "
                    f"{'0' if (p == 0 and f == 0) else a(AC, 16)}"))
        fill = []
        if ls == 0:
            if L0:
                fill += cread_ops(p)
            if p + 1 < 7:
                fill += [lambda p=p: sync(p + 1)]
        if gs + 2 < 14:
            fill += read_ops(gs + 2)
        dots = [(lambda d=d: A(f"v_dot2_f32_bf16 v{SS + d}, v{XF + 4 * b + d}, v{XF + 4 * b + d}, v{SS + d}"))
                for d in range(4)] if L0 else []
        vm = dma_ops(p + PRE) if (ls == 1 and p + PRE < 7) else []
        if pers and vm and p + PRE < 5:
            q_ = p + PRE

            def xonly(f=vm[0], q_=q_):
                f()
                tokq[q_] = A.vmq[-1]["tok"]
            vm = [xonly]
        elif pers and vm:
            vm = [vm[1], vm[0]]
            q_ = p + PRE
            vm.append(lambda q_=q_: tokq.__setitem__(q_, A.vmq[-1]["tok"]))
        fill = fill + sprinkle(dots, vm)
        interleave(m, fill)
    A.stamp(3)
    A("v_lshlrev_b32 v49, 4, v1")
    A("s_mul_i32 s33, s22, 7168")
    A(f"s_add_u32 s33, s33, {K1_EX}")
    A("v_add_u32 v50, s33, v49")
    A("s_xor_b32 s34, s22, 4")
    A("s_mul_i32 s34, s34, 7168")
    A(f"s_add_u32 s34, s34, {K1_EX}")
    A("v_add_u32 v51, s34, v49")
    if L0:
        A("v_and_b32 v47, 31, v1")
        A("v_lshlrev_b32 v47, 2, v47")
        A(f"v_add_u32 v47, {K1_CSUM}, v47")
        A(f"v_add_f32 v{SS}, v{SS}, v{SS + 1}")
        A(f"v_add_f32 v{SS + 2}, v{SS + 2}, v{SS + 3}")
        A(f"v_add_f32 v{SS}, v{SS}, v{SS + 2}")
        A(f"v_mov_b32 v53, v{SS}")
        A(f"v_permlane32_swap_b32 v53, v{SS}")
        A(f"v_add_f32 v53, v53, v{SS}")
        A("s_lshl_b32 s35, s22, 7")
        A("v_add_u32 v46, s35, v47")
        exec_lanes(A, 32)
        A(f"ds_write_b32 v46, a{AC}")
        exec_lanes(A, 64)
        A(f"v_accvgpr_read_b32 v52, a{AQ + 12}")
    A("s_lshl_b32 s36, s24, 6")
    A("s_lshl_b32 s37, s23, 2")
    A("s_add_u32 s36, s36, s37")
    A("s_add_u32 s36, s36, s47")
    A("s_lshl_b32 s36, s36, 11")
    A("v_add_u32 v59, s36, v49")
    A("v_cmp_eq_u32 s[38:39], 0, v17")
    A("v_and_b32 v62, 31, v1")
    A("v_cmp_gt_u32 s[42:43], 28, v62")
    A("v_cmp_eq_u32 vcc, 28, v62")
    A("v_mov_b32 v63, 0x3f803f80")
    A("v_cndmask_b32 v63, 0, v63, vcc")
    A("s_cmp_eq_u32 s48, 0")
    A(f"s_cbranch_scc0 L_{name}_e1")
    save_vm = [dict(o) for o in A.vmq]
    save_lg = [dict(o) for o in A.lgq]
    RX = 64
    KP = 92
    for kh in range(2):
        keep, send = (AQ, AK) if kh == 0 else (AK, AQ)
        vkeep, vsend = (AV, AV + 8) if kh == 0 else (AV + 8, AV)
        for j in range(4):
            A(f"ds_write_b128 v50, {a(send + 4 * j, 4)} offset:{1024 * j}")
        for j in range(2):
            A(f"ds_write_b128 v50, {a(vsend + 4 * j, 4)} offset:{4096 + 1024 * j}")
        if L0:
            A("ds_write_b64 v50, v[52:53] offset:6144")
        for r in range(16):
            A(f"v_accvgpr_read_b32 v{KP + r}, a{keep + r}")
        for r in range(8):
            A(f"v_accvgpr_read_b32 v{KP + 16 + r}, a{vkeep + r}")
        A.wait_all(vm=False)
        A.stamp(5)
        A("s_barrier")
        A.stamp(6)
        for j in range(6):
            A(f"ds_read_b128 {v(RX + 4 * j, 4)}, v51 offset:{1024 * j}")
        if L0:
            A(f"ds_read_b64 {v(RX + 24, 2)}, v51 offset:6144")
            A("v_lshlrev_b32 v54, 4, v17")
            A(f"v_add_u32 v55, {K1_CSUM}, v54")
            for j in range(4):
                A(f"ds_read_b128 {v(CS + 4 * j, 4)}, v55 offset:{128 * kh + 32 * j}")
                A(f"ds_read_b128 {v(136 + 4 * j, 4)}, v55 offset:{128 * (kh + 3) + 32 * j}")
            A("ds_read_b32 v56, v47 offset:256")
            A("ds_read_b32 v45, v47 offset:640")
            for r in range(16):
                A(f"v_add_f32 v{CS + r}, v{CS + r}, v{136 + r}")
            A("v_add_f32 v56, v56, v45")
            A("s_mul_i32 s40, s24, 384")
            A(f"s_add_u32 s40, s40, {hex(WS_CS + 128 * kh)}")
            A("s_or_b32 s41, s23, s47")
            A("s_cmp_eq_u32 s41, 0")
            A("s_cselect_b32 s40, s40, 0x7fff0000")
            A("v_and_b32 v60, 31, v1")
            A("v_lshlrev_b32 v60, 2, v60")
            A(f"ds_read_b32 v46, v47 offset:{128 * kh}")
            A(f"ds_read_b32 v45, v47 offset:{128 * (kh + 3)}")
            A("v_add_f32 v46, v46, v45")
            A("buffer_store_dword v46, v60, s[12:15], s40 offen")
            if kh == 0:
                A("buffer_store_dword v56, v60, s[12:15], s40 offen offset:256")
            A(f"v_add_f32 v52, v52, v{RX + 24}")
            A(f"v_add_f32 v48, v53, v{RX + 25}")
            A("v_mov_b32 v57, v52")
            A("v_permlane32_swap_b32 v57, v52")
            token_stats(52, 48)
        A.stamp(7)
        cq = (DH ** -0.5) * 1.4426950408889634
        if kh == 0:
            A(f"v_mul_f32 v60, {hexf(cq)}, v48")
            A(f"v_mul_f32 v61, {hexf(cq)}, v52")
            ra, rb_ = 60, 61
        else:
            ra, rb_ = 48, 52
        PK = 168
        for r in range(16):
            A(f"v_mul_f32 v{CS + r}, v{CS + r}, v{rb_}")
        for r in range(16):
            A(f"v_add_f32 v{KP + r}, v{KP + r}, v{RX + r}")
            A(f"v_fma_f32 v{KP + r}, v{KP + r}, v{ra}, v{CS + r}")
        for d in range(8):
            A(f"v_cvt_pk_bf16_f32 v{PK + d}, v{KP + 2 * d}, v{KP + 2 * d + 1}")
        if kh == 0:
            A("v_mov_b32 v62, 0x3f80")
            A(f"v_cndmask_b32 v{PK + 6}, v62, v{PK + 6}, s[38:39]")
        else:
            A(f"v_cndmask_b32 v{PK + 6}, 0, v{PK + 6}, s[38:39]")
        A(f"v_cndmask_b32 v{PK + 7}, 0, v{PK + 7}, s[38:39]")
        A(f"s_mov_b32 s40, {hex((WS_QF if kh == 0 else WS_KF) + layer * LB)}")
        A(f"buffer_store_dwordx4 {v(PK, 4)}, v59, s[12:15], s40 offen")
        A(f"buffer_store_dwordx4 {v(PK + 4, 4)}, v59, s[12:15], s40 offen offset:1024")
        for r in range(8):
            A(f"v_mul_f32 v{TB + r}, v{TB + r}, v56")
        for r in range(8):
            A(f"v_add_f32 v{KP + 16 + r}, v{KP + 16 + r}, v{RX + 16 + r}")
            A(f"v_fma_f32 v{KP + 16 + r}, v{KP + 16 + r}, v{TA + r}, v{TB + r}")
        for d in range(4):
            A(f"v_cvt_pk_bf16_f32 v{RX + d}, v{KP + 16 + 2 * d}, v{KP + 16 + 2 * d + 1}")
            A(f"v_cndmask_b32 v{RX + d}, v63, v{RX + d}, s[42:43]")
        A(f"s_mov_b32 s40, {hex(WS_VF + 1024 * kh + layer * LB)}")
        A(f"buffer_store_dwordx4 {v(RX, 4)}, v59, s[12:15], s40 offen")
        if kh == 0:
            A(f"s_branch L_{name}_e2")
            A.raw(f"L_{name}_e1:")
            A.hist = []
            A.vmq = [dict(o) for o in save_vm]
            A.lgq = [dict(o) for o in save_lg]
            A.nop(2)
    A.raw(f"L_{name}_e2:")
    if pers:
        phase_begin(A)
        A("s_lshl_b32 s34, s24, 7")
        A("s_lshl_b32 s35, s23, 2")
        A("s_add_u32 s34, s34, s35")
        A(f"s_add_u32 s34, s34, {hex(F1)}")
        publish(A, 12, 34)
        return None
    A.stamp(4)
    A.dump_stamps(STAMP_WG)
    kernel_end(A, name)
    return K1_LDS, 512, 256, 176


K2_K, K2_V, K2_Q = 0, 24576, 49152
K2_X = 57344
K2_LDS = K2_X + 8 * 4096


def k2(A, name, layer, pers=False):
    if pers:
        phase_begin(A)
    else:
        kernel_begin(A, name, 256)
        A.stamp_base = 76
        A.stamp(0)
    A(f"s_load_dwordx2 s[20:21], s[0:1], {KA_WS}")
    if PREFETCH and layer == 0:
        A(f"s_load_dwordx2 s[88:89], s[0:1], {KA_W2}")
        A(f"s_load_dwordx2 s[84:85], s[0:1], {KA_W1}")
    A("v_and_b32 v1, 63, v0")
    A("v_lshrrev_b32 v2, 6, v0")
    A("v_readfirstlane_b32 s22, v2")
    A("s_lshr_b32 s23, s2, 4")
    A("s_and_b32 s24, s2, 15")
    A("s_and_b32 s38, s22, 3")
    A("s_lshr_b32 s39, s22, 2")
    A("v_lshlrev_b32 v2, 4, v1")
    A("s_lshl_b32 s25, s24, 17")
    A("s_lshl_b32 s26, s23, 2")
    A("s_sub_u32 s26, s26, 8")
    A("s_mul_i32 s27, s22, 3")
    for i in range(3):
        A(f"s_add_u32 s34, s27, {i}")
        A("s_lshr_b32 s35, s34, 1")
        A("s_add_i32 s35, s35, s26")
        A("s_lshl_b32 s36, s35, 11")
        A("s_and_b32 s37, s34, 1")
        A("s_lshl_b32 s37, s37, 10")
        A("s_add_u32 s36, s36, s37")
        A("s_cmp_lt_i32 s35, 0")
        A(f"s_cselect_b32 s{72 + i}, 0x40000000, s36")
    A("s_lshl_b32 s29, s27, 10")
    A.wait_all(vm=False)
    for (d, off) in [(4, WS_QF), (8, WS_KF), (12, WS_VF)]:
        A(f"s_add_u32 s28, s25, {hex(off + layer * LB)}")
        A(f"s_add_u32 s{d}, s20, s28")
        A(f"s_addc_u32 s{d + 1}, s21, 0")
        A(f"s_and_b32 s{d + 1}, s{d + 1}, 0xffff")
        A(f"s_mov_b32 s{d + 2}, 0x20000")
        A(f"s_mov_b32 s{d + 3}, 0x00020000")
    srd(A, 92, 20, 21, WSZ)
    if pers and layer == 1:
        A("s_lshl_b32 s34, s24, 7")
        A(f"s_add_u32 s34, s34, {hex(F1)}")
        A("v_add_u32 v10, s23, v1")
        A("v_subrev_u32 v10, 2, v10")
        A("v_max_i32 v10, 0, v10")
        A("v_lshlrev_b32 v10, 2, v10")
        await_cnt(A, 92, 34, 10, 3, 1)
    for i in range(3):
        A(f"s_add_u32 m0, s29, {K2_K + i * 1024}")
        A(f"buffer_load_dwordx4 v2, s[8:11], s{72 + i} offen lds")
    A("s_lshl_b32 s30, s23, 13")
    A("s_lshl_b32 s31, s22, 10")
    A("s_add_u32 s30, s30, s31")
    A(f"s_add_u32 m0, s31, {K2_Q}")
    tokK = A("buffer_load_dwordx4 v2, s[4:7], s30 offen lds")
    for i in range(3):
        A(f"s_add_u32 m0, s29, {K2_V + i * 1024}")
        tokV = A(f"buffer_load_dwordx4 v2, s[12:15], s{72 + i} offen lds")
    srd_off(A, 16, 20, 21, hex(WS_OF + layer * LB), 128 * 14 * 1024)
    K2PF = PREFETCH and layer == 0
    if K2PF:
        A("s_lshl_b32 s34, s2, 3")
        A("s_add_u32 s34, s34, s22")
        A("s_mul_i32 s34, s34, 3584")
        A("v_lshlrev_b32 v40, 7, v1")
        A("v_add_u32 v40, s34, v40")
        srd(A, 88, 88, 89, S * F * 2)
        srd(A, 84, 84, 85, S * F * 2)
    A.stamp(1)
    A("v_and_b32 v4, 31, v1")
    A("v_lshrrev_b32 v5, 5, v1")
    A("v_mov_b32 v18, 0xf14a")
    A("v_mul_lo_u32 v18, v18, v5")
    A("v_add_u32 v19, s29, v2")
    A("v_lshlrev_b32 v6, 2, v5")
    A("v_sub_u32 v6, v4, v6")
    MS = 40
    for r in range(16):
        kk = 8 * (r >> 2) + (r & 3)
        A(f"v_cmp_ge_i32 s[{MS + 2 * r}:{MS + 2 * r + 1}], v6, {kk}")
    PM = 8
    A("v_mov_b32 v7, 0xffff")
    A("v_mov_b32 v16, 0xffff0000")
    for d in range(8):
        A(f"v_cndmask_b32 v{PM + d}, 0, v7, s[{MS + 4 * d}:{MS + 4 * d + 1}]")
        A(f"v_cndmask_b32 v17, 0, v16, s[{MS + 4 * d + 2}:{MS + 4 * d + 3}]")
        A(f"v_or_b32 v{PM + d}, v{PM + d}, v17")
    A.wait_vm(tokK)
    for i in range(3):
        A(f"s_add_u32 s34, s27, {i}")
        A("s_and_b32 s34, s34, 1")
        A(f"s_cmp_eq_u32 s{72 + i}, 0x40000000")
        A("s_cselect_b32 s35, s34, 0")
        A("s_cmp_eq_u32 s35, 0")
        lab = f"L_{name}_np{i}"
        A(f"s_cbranch_scc1 {lab}")
        A(f"ds_write_b32 v19, v18 offset:{K2_K + i * 1024 + 8}")
        A.raw(lab + ":")
    A.force_wait(lg=0)
    A("s_barrier")
    A.stamp(2)
    A("s_lshl_b32 s35, s38, 11")
    A("v_add_u32 v28, s35, v2")
    A(f"ds_read_b128 v[20:23], v28 offset:{K2_Q}")
    A(f"ds_read_b128 v[24:27], v28 offset:{K2_Q + 1024}")
    BW = 14 if "k2both" in OPT else 7
    NBU = 4
    bcount = [0]

    def burst(i=None):
        n = bcount[0]
        if not K2PF or n >= NBU:
            return
        bcount[0] += 1
        if "k2both" in OPT:
            m = ((1 << 14) - 1) << (14 * (n & 1))
            sr = 84 if n < 2 else 88
        else:
            m = ((1 << 7) - 1) << (7 * n)
            sr = 88
        A(f"s_mov_b64 exec, {hex(m)}")
        A.touch(f"buffer_load_dword v42, v40, s[{sr}:{sr + 3}], 0 offen")
        exec_lanes(A, 64)
    A("s_mul_i32 s36, s22, 4096")
    A(f"s_add_u32 s36, s36, {K2_X}")
    A("v_add_u32 v44, s36, v2")
    A("s_xor_b32 s37, s22, 4")
    A("s_mul_i32 s37, s37, 4096")
    A(f"s_add_u32 s37, s37, {K2_X}")
    A("v_add_u32 v45, s37, v2")
    A("s_cmp_eq_u32 s39, 0")
    A(f"s_cbranch_scc0 L_{name}_h1")
    A.vmq_save = [dict(o) for o in A.vmq]
    A.lgq_save = [dict(o) for o in A.lgq]
    SB = [48, 64, 80, 96]
    MX = 30
    CN = 112
    OA = 128
    PB = [144, 152, 160]

    for hf in range(2):
        blocks = [0, 8, 1, 2, 3] if hf == 0 else [4, 5, 6, 7]
        slotk = {b: i for i, b in enumerate(blocks)}
        for b in blocks:
            for st in range(2):
                A(f"ds_read_b128 {a(8 * slotk[b] + 4 * st, 4)}, v28 offset:{K2_K + 2048 * b + 1024 * st}")

        bcount[0] = 0

        def qk(b, buf, cinit):
            k = 8 * slotk[b]
            A(f"v_mfma_f32_32x32x16_bf16 {v(buf, 16)}, {a(k, 4)}, v[20:23], {cinit}")
            A(f"v_mfma_f32_32x32x16_bf16 {v(buf, 16)}, {a(k + 4, 4)}, v[24:27], {v(buf, 16)}")

        def maxblk(buf, first):
            if first:
                A(f"v_max3_f32 v{MX}, v{buf}, v{buf + 1}, v{buf + 2}")
                rest = list(range(3, 16))
            else:
                rest = list(range(16))
            while len(rest) >= 2:
                A(f"v_max3_f32 v{MX}, v{MX}, v{buf + rest[0]}, v{buf + rest[1]}")
                rest = rest[2:]
            if rest:
                A(f"v_max_f32 v{MX}, v{MX}, v{buf + rest[0]}")

        def merge():
            for r in range(16):
                A(f"v_cndmask_b32 v{SB[0] + r}, v{SB[0] + r}, v{SB[1] + r}, s[{MS + 2 * r}:{MS + 2 * r + 1}]")

        if hf == 0:
            qk(0, SB[0], "0"); qk(8, SB[1], "0"); qk(1, SB[2], "0"); qk(2, SB[3], "0")
            merge()
            qk(3, SB[1], "0")
            maxblk(SB[0], True); maxblk(SB[2], False); maxblk(SB[3], False); maxblk(SB[1], False)
        else:
            for i, b in enumerate(blocks):
                qk(b, SB[i], "0")
            maxblk(SB[0], True); maxblk(SB[1], False); maxblk(SB[2], False); maxblk(SB[3], False)
        A(f"v_mov_b32 v31, v{MX}")
        A(f"v_permlane32_swap_b32 v31, v{MX}")
        A(f"v_max_f32 v{MX}, v{MX}, v31")
        A(f"ds_write_b32 v44, v{MX}")
        A.wait_vm(tokV)
        A.wait_all(vm=False)
        A("s_barrier")
        A("ds_read_b32 v31, v45")
        for b in blocks:
            for st in range(2):
                A(f"ds_read_b128 {a(40 + 8 * slotk[b] + 4 * st, 4)}, v28 offset:{K2_V + 2048 * b + 1024 * st}")
        A(f"v_max_f32 v{MX}, v{MX}, v31")
        for r in range(16):
            A(f"v_sub_f32 v{CN + r}, 0, v{MX}")
        cn = v(CN, 16)

        def exppack(buf, pb):
            for r in range(16):
                A(f"v_exp_f32 v{buf + r}, v{buf + r}")
            for d in range(8):
                A(f"v_cvt_pk_bf16_f32 v{pb + d}, v{buf + 2 * d}, v{buf + 2 * d + 1}")
            burst()

        first_pv = [True]

        def pv(b, pb):
            for st in range(2):
                c = "0" if first_pv[0] else v(OA, 16)
                first_pv[0] = False
                A(f"v_mfma_f32_32x32x16_bf16 {v(OA, 16)}, {a(40 + 8 * slotk[b] + 4 * st, 4)}, {v(pb + 4 * st, 4)}, {c}")

        if hf == 0:
            qk(0, SB[0], cn); qk(8, SB[1], cn); qk(1, SB[2], cn); qk(2, SB[3], cn)
            merge()
            qk(3, SB[1], cn)
            exppack(SB[0], PB[0])
            for d in range(8):
                A(f"v_and_b32 v{PB[1] + d}, v{PM + d}, v{PB[0] + d}")
                A(f"v_xor_b32 v{PB[0] + d}, v{PB[0] + d}, v{PB[1] + d}")
            pv(0, PB[0]); pv(8, PB[1])
            exppack(SB[2], PB[2]); pv(1, PB[2])
            exppack(SB[3], PB[0]); pv(2, PB[0])
            exppack(SB[1], PB[1]); pv(3, PB[1])
        else:
            for i, b in enumerate(blocks):
                qk(b, SB[i], cn)
            for i, b in enumerate(blocks):
                exppack(SB[i], PB[i % 3])
                pv(b, PB[i % 3])
        A.stamp(3)
        keep, send = (OA, OA + 8) if hf == 0 else (OA + 8, OA)
        A(f"ds_write_b128 v44, {v(send, 4)} offset:1024")
        A(f"ds_write_b128 v44, {v(send + 4, 4)} offset:2048")
        A(f"ds_write_b32 v44, v{OA + 12} offset:3072")
        A.wait_all(vm=False)
        A("s_barrier")
        A("ds_read_b128 v[144:147], v45 offset:1024")
        A("ds_read_b128 v[148:151], v45 offset:2048")
        A("ds_read_b32 v32, v45 offset:3072")
        A(f"v_add_f32 v32, v32, v{OA + 12}")
        A("v_mov_b32 v33, v32")
        A("v_permlane32_swap_b32 v33, v32")
        A("v_rcp_f32 v33, v32")
        for r in range(8):
            A(f"v_add_f32 v{keep + r}, v{keep + r}, v{144 + r}")
            A(f"v_mul_f32 v{keep + r}, v{keep + r}, v33")
        for d in range(4):
            A(f"v_cvt_pk_bf16_f32 v{152 + d}, v{keep + 2 * d}, v{keep + 2 * d + 1}")
        A("s_mul_i32 s36, s24, 7")
        A("v_add_u32 v34, s36, v5")
        A("s_lshl_b32 s37, s23, 2")
        A("s_add_u32 s37, s37, s38")
        A("s_mul_i32 s37, s37, 28672")
        A("v_bfe_u32 v35, v1, 4, 1")
        A("v_mul_u32_u24 v35, 14336, v35")
        A("v_and_b32 v36, 15, v1")
        A("v_lshl_add_u32 v35, v36, 4, v35")
        A("v_add_u32 v35, s37, v35")
        for jj in range(2):
            j = 2 * hf + jj
            A(f"v_add_u32 v36, {2 * j}, v34")
            A("v_lshrrev_b32 v37, 3, v36")
            A("v_lshl_add_u32 v38, v37, 10, v35")
            A("v_bfe_u32 v37, v36, 2, 1")
            A("v_lshl_add_u32 v38, v37, 9, v38")
            A("v_and_b32 v37, 1, v36")
            A("v_lshl_add_u32 v38, v37, 8, v38")
            A("v_bfe_u32 v37, v36, 1, 1")
            A("v_lshl_add_u32 v38, v37, 3, v38")
            if j == 3:
                exec_lanes(A, 32)
            A(f"buffer_store_dwordx2 {v(152 + 2 * jj, 2)}, v38, s[16:19], 0 offen")
            if j == 3:
                exec_lanes(A, 64)
        if hf == 0:
            A(f"s_branch L_{name}_done")
            A.raw(f"L_{name}_h1:")
            A.hist = []
            A.lgq = [o for o in A.lgq_save] if hasattr(A, "lgq_save") else []
            A.vmq = list(A.vmq_save)
            A.force_wait(lg=0)
    A.raw(f"L_{name}_done:")
    if pers:
        phase_begin(A)
        A("s_lshl_b32 s34, s23, 7")
        A(f"s_add_u32 s34, s34, {hex(C2(layer))}")
        publish(A, 92, 34)
        return None
    A.stamp(4)
    A.dump_stamps(STAMP_WG)
    kernel_end(A, name)
    return K2_LDS, 512, 256, 176


K3_O, K3_W, K3_X, K3_T = 0, 57344, 114688, 122880
K3_LDS = K3_T + 64 * 136


def k3(A, name, layer, pers=False):
    if pers:
        phase_begin(A)
        A("s_cmp_ge_u32 s2, 224")
        A(f"s_cbranch_scc1 L_{name}_skip")
    else:
        kernel_begin(A, name, 224)
        A.stamp_base = 70
        A.stamp(0)
    A(f"s_load_dwordx2 s[20:21], s[0:1], {KA_WS}")
    A(f"s_load_dwordx2 s[8:9], s[0:1], {KA_WO}")
    if layer == 0:
        A(f"s_load_dwordx2 s[12:13], s[0:1], {KA_X}")
    if PREFETCH:
        A(f"s_load_dwordx2 s[48:49], s[0:1], {KA_W1}")
    A("v_and_b32 v1, 63, v0")
    A("v_lshrrev_b32 v2, 6, v0")
    A("v_readfirstlane_b32 s22, v2")
    A("s_lshr_b32 s23, s2, 5")
    A("s_and_b32 s24, s2, 31")
    A("v_lshlrev_b32 v2, 4, v1")
    A("v_lshrrev_b32 v3, 3, v1")
    A("v_bfe_u32 v4, v1, 4, 2")
    A("v_lshlrev_b32 v4, 1, v4")
    A("v_and_b32 v5, 7, v1")
    A("v_xor_b32 v4, v4, v5")
    A("v_mul_u32_u24 v5, 896, v3")
    A("v_lshl_add_u32 v5, v4, 4, v5")
    A("s_lshl_b32 s25, s23, 7")
    A("v_add_u32 v5, s25, v5")
    A.wait_all(vm=False)
    srd_off(A, 4, 20, 21, hex(WS_OF + layer * LB), 128 * 14336)
    srd(A, 8, 8, 9, D * D * 2)
    if layer == 0:
        srd(A, 12, 12, 13, XBYTES)
    else:
        srd_off(A, 12, 20, 21, hex(WS_X2), XBYTES)
    srd(A, 16, 20, 21, WSZ)
    toks = {}
    A("s_mul_i32 s30, s22, 7168")
    A("s_lshl_b32 s32, s22, 10")
    for q in range(7):
        A(f"s_add_u32 m0, s32, {K3_W + q * 8192}")
        A(f"s_add_u32 s31, s30, {q * 64 * 896}")
        A("buffer_load_dwordx4 v5, s[8:11], s31 offen lds")

    def xtile():
        A("s_lshl_b32 s34, s24, 6")
        A("s_lshl_b32 s35, s22, 3")
        A("s_add_u32 s34, s34, s35")
        A("s_mul_i32 s34, s34, 896")
        A("s_lshl_b32 s35, s22, 10")
        A(f"s_add_u32 m0, s35, {K3_X}")
        A("buffer_load_dwordx4 v5, s[12:15], s34 offen lds")
    if layer == 0:
        xtile()
    if pers:
        A("s_lshr_b32 s34, s24, 1")
        A("s_lshl_b32 s34, s34, 7")
        A(f"s_add_u32 s34, s34, {hex(C2(layer))}")
        A("v_mov_b32 v10, 0")
        await_cnt(A, 16, 34, 10, 1, 16)
    A("s_and_b32 s26, s22, 3")
    A("s_lshr_b32 s27, s22, 2")
    A("s_mul_i32 s27, s27, 7168")
    A("s_mul_i32 s28, s26, 14336")
    A("s_add_u32 s32, s28, s27")
    A("s_lshl_b32 s29, s24, 2")
    A("s_mul_i32 s29, s29, 14336")
    A("s_add_u32 s30, s29, s32")
    for q in range(7):
        A(f"s_add_u32 m0, s32, {K3_O + q * 1024}")
        A(f"s_add_u32 s31, s30, {q * 1024}")
        toks[0] = A("buffer_load_dwordx4 v2, s[4:7], s31 offen lds")
    if layer == 1:
        xtile()
        toks[0] = A.vmq[-1]["tok"]
    if PREFETCH and layer == 0:
        w1_prefetch(A, 48, 224, 126)
    A.stamp(1)
    A("s_and_b32 s33, s22, 1")
    A("s_lshr_b32 s34, s22, 1")
    A("s_mul_i32 s35, s33, 28672")
    A("v_add_u32 v6, s35, v2")
    A("v_lshrrev_b32 v7, 4, v1")
    A("v_bfe_u32 v8, v1, 2, 2")
    A("v_and_b32 v9, 3, v1")
    A("v_lshrrev_b32 v10, 1, v7")
    A("v_and_b32 v11, 1, v7")
    A("v_lshlrev_b32 v12, 4, v10")
    A("v_lshl_add_u32 v12, v11, 2, v12")
    A("v_add_u32 v12, v12, v8")
    A("v_lshlrev_b32 v12, 7, v12")
    A("v_lshl_add_u32 v12, v9, 3, v12")
    A("v_lshrrev_b32 v13, 1, v8")
    A("v_lshl_add_u32 v13, v11, 1, v13")
    A("v_xor_b32 v14, s34, v13")
    A("v_lshl_add_u32 v16, v14, 5, v12")
    A(f"v_add_u32 v16, {K3_W}, v16")
    A("v_lshl_add_u32 v14, v7, 2, v8")
    A("v_bfe_u32 v15, v14, 1, 2")
    A("v_lshlrev_b32 v14, 7, v14")
    A("v_lshl_add_u32 v14, v9, 3, v14")
    A("s_lshl_b32 s38, s33, 12")
    A(f"s_add_u32 s38, s38, {K3_X}")
    A("v_add_u32 v14, s38, v14")
    A("v_xor_b32 v20, s34, v15")
    A("v_lshl_add_u32 v18, v20, 5, v14")
    ACC = 32
    AF3, BF3 = 48, 72

    def reads(kp, buf):
        for mt in range(2):
            A(f"ds_read_b128 {v(AF3 + 8 * buf + 4 * mt, 4)}, v6 offset:{mt * 14336 + kp * 1024}")
        for t in range(2):
            A(f"ds_read_b64_tr_b16 {v(BF3 + 4 * buf + 2 * t, 2)}, v16 offset:{kp * 4096 + t * 1024}")

    def mfmas(kp, buf):
        for mt in range(2):
            c = "0" if kp == 0 else v(ACC + 4 * mt, 4)
            A(f"v_mfma_f32_16x16x32_bf16 {v(ACC + 4 * mt, 4)}, {v(AF3 + 8 * buf + 4 * mt, 4)}, {v(BF3 + 4 * buf, 4)}, {c}")

    A.wait_vm(toks[0])
    A("s_barrier")
    A.stamp(2)
    reads(0, 0)
    reads(1, 1)
    for kp in range(14):
        if kp + 2 < 14:
            reads(kp + 2, (kp + 2) % 3)
        if kp == 12:
            for mt in range(2):
                A(f"ds_read_b64_tr_b16 {v(96 + 2 * mt, 2)}, v18 offset:{mt * 2048}")
        mfmas(kp, kp % 3)
    A.stamp(4)
    XR = 96
    PKD = 112
    for mt in range(2):
        for hlf in range(2):
            x = XR + 2 * mt + hlf
            A(f"v_lshlrev_b32 v104, 16, v{x}")
            A(f"v_and_b32 v105, 0xffff0000, v{x}")
            A(f"v_add_f32 v{ACC + 4 * mt + 2 * hlf}, v{ACC + 4 * mt + 2 * hlf}, v104")
            A(f"v_add_f32 v{ACC + 4 * mt + 2 * hlf + 1}, v{ACC + 4 * mt + 2 * hlf + 1}, v105")
            A(f"v_cvt_pk_bf16_f32 v{PKD + 2 * mt + hlf}, v{ACC + 4 * mt + 2 * hlf}, v{ACC + 4 * mt + 2 * hlf + 1}")
    A("s_lshl_b32 s39, s24, 1")
    A("s_add_u32 s39, s39, s33")
    A("s_mul_i32 s39, s39, 28672")
    A("s_lshl_b32 s40, s23, 3")
    A("s_lshl_b32 s41, s34, 1")
    A("s_add_u32 s40, s40, s41")
    A("s_lshl_b32 s40, s40, 9")
    A("s_add_u32 s39, s39, s40")
    A(f"s_add_u32 s39, s39, {hex(WS_X1F + layer * LB)}")
    A("v_bfe_u32 v21, v1, 3, 1")
    A("v_lshlrev_b32 v21, 9, v21")
    A("v_lshl_add_u32 v21, v7, 7, v21")
    A("v_and_b32 v22, 7, v1")
    A("v_lshl_add_u32 v21, v22, 4, v21")
    A(f"buffer_store_dwordx4 {v(PKD, 4)}, v21, s[16:19], s39 offen")
    TP = 136
    A("v_and_b32 v22, 15, v1")
    A(f"v_mul_u32_u24 v23, {TP}, v22")
    A("v_lshl_add_u32 v23, v7, 3, v23")
    A(f"s_mul_i32 s41, s34, {16 * TP}")
    A("s_lshl_b32 s42, s33, 6")
    A("s_add_u32 s41, s41, s42")
    A(f"s_add_u32 s41, s41, {K3_T}")
    A("v_add_u32 v23, s41, v23")
    for mt in range(2):
        A(f"ds_write_b64 v23, {v(PKD + 2 * mt, 2)} offset:{mt * 32}")
    A("v_lshl_add_u32 v24, v7, 2, v8")
    A(f"v_mul_u32_u24 v24, {TP}, v24")
    A("v_lshl_add_u32 v24, v9, 3, v24")
    A("v_add_u32 v24, s41, v24")
    TR = 120
    for mt in range(2):
        A(f"ds_read_b64_tr_b16 {v(TR + 2 * mt, 2)}, v24 offset:{mt * 32}")
    A("s_lshl_b32 s42, s24, 2")
    A("s_lshl_b32 s43, s33, 1")
    A("s_add_u32 s42, s42, s43")
    A("s_mul_i32 s43, s42, 14336")
    A("s_lshl_b32 s44, s23, 4")
    A("s_lshl_b32 s45, s34, 2")
    A("s_add_u32 s44, s44, s45")
    A("s_lshl_b32 s44, s44, 7")
    A("s_add_u32 s43, s43, s44")
    A(f"s_add_u32 s43, s43, {hex(WS_X1T + layer * LB)}")
    A("v_lshlrev_b32 v25, 7, v7")
    A("v_lshl_add_u32 v25, v22, 3, v25")
    A("v_mov_b32 v26, 0x3f803f80")
    for i in range(4):
        A(f"v_mov_b32 v{28 + i}, 0")
    for mt in range(2):
        A(f"s_add_u32 s44, s43, {mt * 14336}")
        A(f"buffer_store_dwordx2 {v(TR + 2 * mt, 2)}, v25, s[16:19], s44 offen")
        for hlf in range(2):
            A(f"v_dot2_f32_bf16 v{28 + 2 * mt}, v{TR + 2 * mt + hlf}, v26, v{28 + 2 * mt}")
            A(f"v_dot2_f32_bf16 v{29 + 2 * mt}, v{TR + 2 * mt + hlf}, v{TR + 2 * mt + hlf}, v{29 + 2 * mt}")
    A("v_cmp_gt_u32 vcc, 16, v1")
    A("v_lshlrev_b32 v27, 2, v1")
    A("s_lshl_b32 s44, s42, 7")
    A(f"s_add_u32 s44, s44, {hex(WS_ST + (0 if layer == 0 else 2) * 16384)}")
    for mt in range(2):
        reduce_groups(A, 28 + 2 * mt, 104)
        reduce_groups(A, 29 + 2 * mt, 105)
        A(f"v_cndmask_b32 v{106 + mt}, v{29 + 2 * mt}, v{28 + 2 * mt}, vcc")
    exec_lanes(A, 32)
    A("buffer_atomic_add_f32 v106, v27, s[16:19], s44 offen")
    A("buffer_atomic_add_f32 v107, v27, s[16:19], s44 offen offset:128")
    exec_lanes(A, 64)
    if pers:
        A("s_and_b32 s34, s2, 7")
        A("s_lshl_b32 s34, s34, 7")
        A(f"s_add_u32 s34, s34, {hex(C3(layer))}")
        publish(A, 16, 34)
        A.raw(f"L_{name}_skip:")
        return None
    A.stamp(5)
    A.dump_stamps(STAMP_WG)
    kernel_end(A, name)
    return K3_LDS, 512, 256, 176


def pfx(A, name, nwg):
    kernel_begin(A, name, nwg)
    A(f"s_load_dwordx2 s[48:49], s[0:1], {KA_W1}")
    A("v_and_b32 v1, 63, v0")
    A("v_lshrrev_b32 v2, 6, v0")
    A("v_readfirstlane_b32 s22, v2")
    A.wait_all(vm=False)
    w1_prefetch(A, 48, nwg, 20)
    kernel_end(A, name)
    return 0, 512, 64, 64


def g12(A, name, layer):
    gk(A, name, layer, 1, fused=True)
    return gk(A, name, layer, 2, fused=True)


def pk(A, name):
    kernel_begin(A, name, 256)
    st = A.stamps
    A.stamps = False
    k2(A, "pk2a", 0, pers=True)
    k3(A, "pk3a", 0, pers=True)
    gk(A, "pg1a", 0, 1, pers=True)
    gk(A, "pg2a", 0, 2, pers=True)
    k1(A, "pk1b", 1, pers=True)
    k2(A, "pk2b", 1, pers=True)
    k3(A, "pk3b", 1, pers=True)
    gk(A, "pg1b", 1, 1, pers=True)
    gk(A, "pg2b", 1, 2, pers=True)
    A.stamps = st
    phase_begin(A)
    kernel_end(A, name)
    return G_LDS, 512, 256, 176


def kd2(name, nv, acc):
    return kd(name, nv=nv, acc=acc)


def build(kernels, path, stamps=False):
    A = Asm()
    A.stamps = stamps
    A.store_mod = "sc0 sc1"
    for o in OPT:
        if o.startswith("st="):
            A.store_mod = o[3:].replace("+", " ")
    launches = []
    kds = []
    for (name, fn, args, grid) in kernels:
        lds, threads, nv, acc = fn(A, name, *args)
        launches.append(f"; @launch kernel={name} grid=({grid},1,1) block=({threads},1,1) lds={lds}")
        kds.append(kd2(name, nv, acc))
    head = open("interleave_layers__sliding_block__mixer_token_mlp__prompt.s.ref").read()
    hdr = [l for l in head.splitlines() if l.startswith(";") and "@launch" not in l][:12]
    txt = "\n".join(hdr) + "\n" + "\n".join(launches) + "\n"
    txt += '.amdgcn_target "amdgcn-amd-amdhsa--gfx950"\n.text\n'
    txt += A.text()
    txt += '.section .rodata,"a"\n' + "\n".join(kds) + "\n"
    open(path, "w").write(txt)
    print(f"wrote {path}: {A.ninstr} instrs, {A.nops_inserted} nop states inserted, {len(txt)} bytes")


if __name__ == "__main__":
    ks = []
    for L, c in enumerate("ab"):
        ks += [(f"k1{c}_kernel", k1, (L,), 256), (f"k2{c}_kernel", k2, (L,), 256), (f"k3{c}_kernel", k3, (L,), 224),
               ] + ([(f"g12{c}_kernel", g12, (L,), 256)] if "fuse" in OPT else
                    [(f"g1{c}_kernel", gk, (L, 1), 224), (f"g2{c}_kernel", gk, (L, 2), 256)])
    if "pers" in OPT:
        ks = [("k1a_kernel", k1, (0,), 256), ("pb_kernel", pk, (), 256)]
    if "pfx" in OPT:
        ks += [("pfx_kernel", pfx, (224,), 224), ("pfy_kernel", pfx, (256,), 256)]
    build(ks, sys.argv[1] if len(sys.argv) > 1 else "dev.s", stamps=("--stamps" in sys.argv))
```

```python
import sys
import struct
sys.path.insert(0, "tools")
OPT = set(sys.argv[1:])
from dsl import Asm, v, a, s

S, D, H, DH, F = 2048, 448, 16, 28, 1792
PREFETCH = 'nopf' not in sys.argv
KA_X, KA_WQKV, KA_WO, KA_BX, KA_W1, KA_B1, KA_W2, KA_B2, KA_OUT, KA_DBG, KA_WS = [8 * i for i in range(11)]
WS_QF = 0x000000
WS_KF = 0x200000
WS_VF = 0x400000
WS_OF = 0x600000
WS_X1T = 0x800000
WS_X1F = 0xA00000
WS_UF = 0xC00000
WS_X2 = 0xE00000
WS_WC = 0x1200000
WS_CS = 0x1380000
WS_CNT = 0x100C000
WS_ST = 0x1000000
XBYTES = S * D * 2
MAIN = "interleave_layers__sliding_block__mixer_token_mlp__prompt_kernel"
LB = 0x2000000
WSZ = 0x4000000


def f32(x):
    return struct.unpack("<I", struct.pack("<f", x))[0]


def hexf(x):
    return "0x%08x" % f32(x)


def srd(A, d, base_lo, base_hi, nbytes):
    if base_lo != d:
        A(f"s_mov_b32 s{d}, s{base_lo}")
    A(f"s_and_b32 s{d + 1}, s{base_hi}, 0xffff")
    A(f"s_mov_b32 s{d + 2}, {hex(nbytes)}")
    A(f"s_mov_b32 s{d + 3}, 0x00020000")


def srd_off(A, d, base_lo, base_hi, off, nbytes):
    A(f"s_add_u32 s{d}, s{base_lo}, {off}")
    A(f"s_addc_u32 s{d + 1}, s{base_hi}, 0")
    A(f"s_and_b32 s{d + 1}, s{d + 1}, 0xffff")
    A(f"s_mov_b32 s{d + 2}, {hex(nbytes)}")
    A(f"s_mov_b32 s{d + 3}, 0x00020000")


def kernel_begin(A, name, nwg):
    A.raw(f".globl {name}")
    A.raw(".p2align 8")
    A.raw(f".type {name},@function")
    A.raw(f"{name}:")
    A.hist = []
    A.vmq = []
    A.lgq = []
    A(f"s_cmp_ge_u32 s2, {nwg}")
    A(f"s_cbranch_scc1 L_{name}_end")
    if "rt" in OPT:
        A("s_memrealtime s[98:99]")


KIDX = [0]


def kernel_end(A, name):
    if "rt" in OPT:
        A.wait_all()
        A("s_memrealtime s[96:97]")
        A(f"s_load_dwordx2 s[60:61], s[0:1], {KA_WS}")
        A.wait_all()
        A("s_mov_b32 s62, 0x2000000")
        A("s_mov_b32 s63, 0x00020000")
        A("v_mov_b32 v2, s98")
        A("v_mov_b32 v3, s96")
        A("s_lshl_b32 s64, s2, 3")
        A(f"s_add_u32 s64, s64, {0x1800000 + KIDX[0] * 4096}")
        A("v_mov_b32 v4, s64")
        A("v_cmp_eq_u32 vcc, 0, v0")
        A("s_and_saveexec_b64 s[66:67], vcc")
        A(f"s_cbranch_execz L_{name}_end")
        A("buffer_store_dwordx2 v[2:3], v4, s[60:63], 0 offen")
        KIDX[0] += 1
    A.raw(f"L_{name}_end:")
    A("s_endpgm")


def kd(name, nv=512, acc=256, ns=102):
    return f"""
.p2align 6
.amdhsa_kernel {name}
  .amdhsa_next_free_vgpr {nv}
  .amdhsa_next_free_sgpr {ns}
  .amdhsa_accum_offset {acc}
  .amdhsa_group_segment_fixed_size 0
  .amdhsa_kernarg_size 88
  .amdhsa_user_sgpr_count 2
  .amdhsa_user_sgpr_kernarg_segment_ptr 1
  .amdhsa_system_sgpr_workgroup_id_x 1
.end_amdhsa_kernel"""


def div_const(A, dst, src, d, tmp_s, rng=4096):
    m = (1 << 20) // d + 1
    for x in range(0, rng):
        assert (x * m) >> 20 == x // d and x * m < (1 << 32), (x, d)
    A(f"s_mov_b32 s{tmp_s}, {m}")
    A(f"v_mul_lo_u32 {dst}, {src}, s{tmp_s}")
    A(f"v_lshrrev_b32 {dst}, 20, {dst}")


def exec_lanes(A, n):
    if n == 64:
        A("s_mov_b64 exec, -1")
    elif n <= 32:
        A(f"s_mov_b64 exec, {hex((1 << n) - 1)}")
    else:
        raise ValueError


STAMP_WG = 37


def interleave(main, fillers):
    n = len(main)
    done = 0
    for i, m in enumerate(main):
        m()
        want = (len(fillers) * (i + 1)) // n
        while done < want:
            fillers[done]()
            done += 1


def sprinkle(base, extra):
    if not base:
        return list(extra)
    out = []
    k = 0
    for i, b in enumerate(base):
        out.append(b)
        while k < (len(extra) * (i + 1)) // len(base):
            out.append(extra[k])
            k += 1
    out += extra[k:]
    return out


def C4(layer): return WS_CNT + layer * 1024
def C2(layer): return WS_CNT + 2048 + layer * 2048
def C3(layer): return WS_CNT + 6144 + layer * 1024
C5 = WS_CNT + 8192
F1 = WS_CNT + 10240
F0 = WS_CNT + 12288
UID = [0]


def publish(A, sr, soff_sgpr):
    UID[0] += 1
    lab = f"L_pub{UID[0]}"
    A.force_wait(vm=0, lg=0)
    A("s_barrier")
    A("v_mov_b32 v10, 0")
    A("v_mov_b32 v11, 1")
    A("v_cmp_eq_u32 vcc, 0, v0")
    A("s_and_saveexec_b64 s[44:45], vcc")
    A(f"s_cbranch_execz {lab}")
    A(f"buffer_atomic_add v11, v10, s[{sr}:{sr + 3}], s{soff_sgpr} offen sc1")
    A.raw(lab + ":")
    A("s_mov_b64 exec, -1")
    rtp(A, "publish")


def await_cnt(A, sr, soff_sgpr, vaddr, nlanes, target):
    UID[0] += 1
    lp, lw, ld = f"L_awp{UID[0]}", f"L_aww{UID[0]}", f"L_awd{UID[0]}"
    A("s_cmp_lg_u32 s22, 0")
    A(f"s_cbranch_scc1 {lw}")
    A(f"s_mov_b64 exec, {hex((1 << nlanes) - 1)}")
    A("s_mov_b32 s45, 0x80000")
    A.raw(lp + ":")
    A.raw(f"    buffer_load_dword v11, v{vaddr}, s[{sr}:{sr + 3}], s{soff_sgpr} offen sc0 sc1")
    A.raw("    s_waitcnt vmcnt(0)")
    A.raw(f"    v_cmp_gt_u32 vcc, {target}, v11")
    A.raw(f"    s_cbranch_vccz {ld}")
    A.raw("    s_sub_u32 s45, s45, 1")
    A.raw("    s_cmp_lg_u32 s45, 0")
    A.raw(f"    s_cbranch_scc1 {lp}")
    A.raw(ld + ":")
    A.raw("    s_mov_b64 exec, -1")
    A.raw(lw + ":")
    A.hist = []
    A.nop(1)
    A("s_barrier")
    rtp(A, "await")


RTP = [0]
RTN = []


def rtp(A, label):
    if "rtp" not in OPT:
        return
    UID[0] += 1
    lab = f"L_rtp{UID[0]}"
    A("s_memrealtime s[96:97]")
    A.force_wait(lg=0)
    A("v_mov_b32 v12, s96")
    A("s_lshl_b32 s97, s2, 2")
    A(f"s_add_u32 s97, s97, {0x1900000 + RTP[0] * 1024}")
    A("v_mov_b32 v13, s97")
    A("v_cmp_eq_u32 vcc, 0, v0")
    A("s_and_saveexec_b64 s[98:99], vcc")
    A(f"s_cbranch_execz {lab}")
    A.raw("    global_store_dword v13, v12, s[20:21]")
    A.raw(lab + ":")
    A("s_mov_b64 exec, s[98:99]")
    RTP[0] += 1
    RTN.append(label)


def phase_begin(A):
    A.hist = []
    A.vmq = []
    A.lgq = []
    A.nop(2)


def reduce_groups(A, reg, tmp):
    A(f"v_mov_b32 v{tmp}, v{reg}")
    A(f"v_permlane16_swap_b32 v{tmp}, v{reg}")
    A(f"v_add_f32 v{reg}, v{reg}, v{tmp}")
    A(f"v_mov_b32 v{tmp}, v{reg}")
    A(f"v_permlane32_swap_b32 v{tmp}, v{reg}")
    A(f"v_add_f32 v{reg}, v{reg}, v{tmp}")


def w1_prefetch(A, sr, nwg, vd, prep_only=False):
    per = 14336 // (nwg // 8) // 8
    A("s_lshr_b32 s34, s2, 3")
    A("s_lshl_b32 s34, s34, 3")
    A("s_add_u32 s34, s34, s22")
    A(f"s_mul_i32 s35, s34, {per}")
    A("v_add_u32 v10, s35, v1")
    A("s_bfe_u32 s36, s2, 0x20001")
    div_const(A, "v11", "v10", 7, 35, rng=14400)
    A("v_mul_u32_u24 v12, 7, v11")
    A("v_sub_u32 v12, v10, v12")
    A("v_mul_u32_u24 v11, 3584, v11")
    A("v_lshl_add_u32 v11, v12, 7, v11")
    A("s_mul_i32 s36, s36, 896")
    srd(A, sr, sr, sr + 1, S * F * 2)
    if prep_only:
        A("s_mov_b32 s33, s36")
        return
    if per < 64:
        A(f"s_mov_b32 exec_hi, {hex((1 << (per - 32)) - 1)}")
    A.touch(f"buffer_load_dword v{vd}, v11, s[{sr}:{sr + 3}], s36 offen")
    if per < 64:
        A("s_mov_b64 exec, -1")


G_RING = 9
G_RB = G_RING * 4096
G_TAB = 4 * G_RB
G_LDS = G_TAB + 16384
G_PRE0 = int(([o[5:] for o in OPT if o.startswith("pre0=")] + ["3"])[0])
G_SP = int(([o[3:] for o in OPT if o.startswith("sp=")] + ["2"])[0])


def gk(A, name, layer, which, fused=False, pers=False):
    g1 = which == 1
    nwg = 224 if g1 else 256
    NK = 16 if g1 else 14
    pitch = 3584 if g1 else 4096
    if pers:
        phase_begin(A)
        if g1:
            A("s_cmp_ge_u32 s2, 224")
            A(f"s_cbranch_scc1 L_{name}_skip")
    elif not fused:
        kernel_begin(A, name, nwg)
    elif g1:
        kernel_begin(A, name, 256)
        A("s_cmp_ge_u32 s2, 224")
        A(f"s_cbranch_scc1 L_{name}_p2")
    else:
        A.raw(f"L_{name}_p2:")
        phase_begin(A)
    A.stamp_base = 70
    if not (fused and not g1) and not pers:
        A.stamp(0)
    A(f"s_load_dwordx2 s[20:21], s[0:1], {KA_WS}")
    A(f"s_load_dwordx2 s[4:5], s[0:1], {KA_W1 if g1 else KA_W2}")
    A(f"s_load_dwordx2 s[12:13], s[0:1], {KA_B1 if g1 else KA_B2}")
    if (not g1) and layer == 1:
        A(f"s_load_dwordx2 s[16:17], s[0:1], {KA_OUT}")
    if g1 and PREFETCH and not fused:
        A(f"s_load_dwordx2 s[92:93], s[0:1], {KA_W2}")
    A("v_and_b32 v1, 63, v0")
    A("v_lshrrev_b32 v2, 6, v0")
    A("v_readfirstlane_b32 s22, v2")
    NI4 = 7 if g1 else 8
    A("s_and_b32 s25, s2, 7")
    A("s_lshr_b32 s26, s2, 3")
    A("s_and_b32 s24, s25, 1")
    A("s_lshl_b32 s24, s24, 2")
    A("s_and_b32 s27, s26, 3")
    A("s_add_u32 s24, s24, s27")
    A("s_lshr_b32 s23, s25, 1")
    A(f"s_mul_i32 s23, s23, {NI4}")
    A("s_lshr_b32 s27, s26, 2")
    A("s_add_u32 s23, s23, s27")
    A("s_and_b32 s47, s22, 3")
    A("s_lshr_b32 s48, s22, 2")
    A("v_lshrrev_b32 v3, 3, v1")
    A("v_bfe_u32 v4, v1, 4, 2")
    A("v_lshlrev_b32 v4, 1, v4")
    A("v_and_b32 v5, 7, v1")
    A("v_xor_b32 v4, v4, v5")
    A(f"v_mul_u32_u24 v5, {pitch}, v3")
    A("v_lshl_add_u32 v5, v4, 4, v5")
    A(f"s_mul_i32 s27, s47, {NK * 32 * pitch}")
    A(f"s_mul_i32 s28, s48, {16 * pitch}")
    A("s_add_u32 s27, s27, s28")
    A("s_lshl_b32 s28, s23, 7")
    A("s_add_u32 s27, s27, s28")
    A("v_add_u32 v5, s27, v5")
    A("v_lshrrev_b32 v7, 4, v1")
    A("v_and_b32 v8, 7, v1")
    A("v_lshlrev_b32 v8, 4, v8")
    A("v_lshl_add_u32 v8, v7, 7, v8")
    A("v_bfe_u32 v9, v1, 3, 1")
    A("v_lshl_add_u32 v6, v9, 9, v8")
    A("s_cmp_eq_u32 s48, 0")
    A("s_cselect_b64 s[50:51], -1, 0")
    A("v_cndmask_b32 v9, v8, v6, s[50:51]")
    A.wait_all(vm=False)
    srd(A, 4, 4, 5, (S * F * 2))
    srd(A, 8, 20, 21, WSZ)
    srd(A, 12, 12, 13, (F if g1 else S) * 2)
    if (not g1) and layer == 1:
        srd(A, 16, 16, 17, XBYTES)
    elif not g1:
        srd_off(A, 16, 20, 21, hex(WS_X2), XBYTES)
    if g1:
        A(f"s_mul_i32 s29, s47, {16 * 28672}")
        A("s_mul_i32 s30, s24, 3584")
        A("s_add_u32 s29, s29, s30")
        A(f"s_add_u32 s29, s29, {hex(WS_X1F + layer * LB)}")
        bstep = 28672
    else:
        A("s_mul_i32 s29, s24, 56")
        A("s_mul_i32 s30, s47, 14")
        A("s_add_u32 s29, s29, s30")
        A("s_mul_i32 s29, s29, 3584")
        A(f"s_add_u32 s29, s29, {hex(WS_UF + layer * LB)}")
        bstep = 3584
    A("s_lshl_b32 s30, s48, 11")
    A("s_add_u32 s29, s29, s30")
    A(f"s_mul_i32 s31, s47, {G_RB}")
    A("s_lshl_b32 s30, s48, 11")
    A("s_add_u32 s49, s31, s30")
    NB = 8
    BR = 112
    toks = {}
    A(f"v_add_u32 v4, {8 * pitch - 1024}, v5")
    USE_ROT = "rotg" in OPT
    ROT = 54
    if USE_ROT:
        A("s_lshr_b32 s34, s2, 3")
        A(f"s_mul_i32 s34, s34, {NK * 2341 if g1 else NK * 2048}")
        A("s_lshr_b32 s34, s34, 16")
        A(f"s_mul_i32 s54, s34, {32 * pitch}")
        A(f"s_mul_i32 s55, s34, {bstep}")
        A("s_add_u32 s55, s55, s29")
        A(f"s_sub_u32 s56, {NK}, s34")
        A(f"s_mov_b32 s57, s34")

    def issue_ops(st, part=None):
        slot = st % G_RING
        b = BR + 8 * (st % NB)

        def fa0():
            A(f"s_add_u32 m0, s49, {slot * 4096}")
            if USE_ROT:
                A(f"s_cmp_le_u32 s56, {st}")
                A(f"s_cselect_b32 s35, {NK * 32 * pitch}, 0")
                A(f"s_add_u32 s32, s54, {st * 32 * pitch}")
                A("s_sub_u32 s32, s32, s35")
            else:
                A(f"s_mov_b32 s32, {st * 32 * pitch}")
            A("buffer_load_dwordx4 v5, s[4:7], s32 offen lds")

        def fb0():
            if USE_ROT:
                A(f"s_cmp_le_u32 s56, {st}")
                A(f"s_cselect_b32 s35, {NK * bstep}, 0")
                A(f"s_add_u32 s33, s55, {st * bstep}")
                A("s_sub_u32 s33, s33, s35")
            else:
                A(f"s_add_u32 s33, s29, {st * bstep}")
            A(f"buffer_load_dwordx4 {v(b, 4)}, v6, s[8:11], s33 offen")

        def fa1():
            A("buffer_load_dwordx4 v4, s[4:7], s32 offen offset:1024 lds")

        def fb1():
            toks[st] = A(f"buffer_load_dwordx4 {v(b + 4, 4)}, v9, s[8:11], s33 offen offset:1024")
        if part == "A":
            return [fa0, fa1]
        if part == "B":
            return [fb0, fb1]
        return [fa0, fa1, fb0, fb1]

    if "notouch" not in OPT:
        A("s_lshr_b32 s34, s2, 3")
        A("s_lshl_b32 s34, s34, 3")
        A("s_add_u32 s34, s34, s22")
        A("s_and_b32 s37, s2, 1")
        if g1:
            A("s_lshl_b32 s35, s34, 5")
        else:
            A("s_mul_i32 s35, s34, 25")
        A("v_add_u32 v10, s35, v1")
        if g1:
            div_const(A, "v12", "v10", 112, 38, rng=7200)
            A("v_mul_u32_u24 v13, 112, v12")
            A("v_sub_u32 v13, v10, v13")
            A("v_mul_u32_u24 v12, 28672, v12")
            A("v_lshl_add_u32 v12, v13, 7, v12")
            A("s_mul_i32 s37, s37, 14336")
            A(f"s_add_u32 s37, s37, {hex(WS_X1F + layer * LB)}")
        else:
            A("v_lshlrev_b32 v12, 7, v10")
            A("s_mul_i32 s37, s37, 802816")
            A(f"s_add_u32 s37, s37, {hex(WS_UF + layer * LB)}")
        exec_lanes(A, 32 if g1 else 25)
        A.touch("buffer_load_dword v99, v12, s[8:11], s37 offen")
        exec_lanes(A, 64)
    def stats_loads():
        A("v_lshrrev_b32 v10, 2, v1")
        A("v_lshlrev_b32 v10, 7, v10")
        A("v_and_b32 v11, 3, v1")
        A("v_lshl_add_u32 v10, v11, 4, v10")
        A("s_lshl_b32 s34, s22, 11")
        A(f"s_add_u32 s34, s34, {hex(WS_ST + (0 if layer == 0 else 2) * 16384)}")
        A("buffer_load_dwordx4 v[16:19], v10, s[8:11], s34 offen")
        A("buffer_load_dwordx4 v[20:23], v10, s[8:11], s34 offen offset:64")

    if g1 and not pers:
        stats_loads()
    PRE0 = G_PRE0
    PRE = 7
    F2 = (fused and not g1) or pers
    if F2:
        PRE0 = PRE
        for st in range(PRE0):
            for f in issue_ops(st, "A"):
                f()
    else:
        for st in range(PRE0):
            for f in issue_ops(st):
                f()
    EP = 100
    if g1:
        A("s_lshr_b32 s36, s47, 1")
        A("s_lshl_b32 s37, s23, 7")
        A("s_lshl_b32 s38, s36, 6")
        A("s_add_u32 s37, s37, s38")
        A("v_lshlrev_b32 v33, 3, v7")
        A(f"buffer_load_dwordx2 {v(EP, 2)}, v33, s[12:15], s37 offen")
        A(f"buffer_load_dwordx2 {v(EP + 2, 2)}, v33, s[12:15], s37 offen offset:32")

    def g2_early():
        A("s_lshl_b32 s36, s23, 2")
        A("s_add_u32 s36, s36, s47")
        A("s_mul_i32 s37, s36, 14336")
        A("s_mul_i32 s38, s24, 1792")
        A("s_add_u32 s37, s37, s38")
        A("s_lshl_b32 s38, s48, 10")
        A("s_add_u32 s37, s37, s38")
        A(f"s_add_u32 s37, s37, {hex(WS_X1T + layer * LB)}")
        A("v_and_b32 v33, 15, v1")
        A("v_lshlrev_b32 v35, 3, v33")
        A("v_lshl_add_u32 v35, v7, 7, v35")
        for k in range(2):
            A(f"buffer_load_dwordx2 {v(EP + 2 * k, 2)}, v35, s[8:11], s37 offen offset:{k * 512}")
        A("s_lshl_b32 s38, s36, 5")
        A("v_lshlrev_b32 v36, 1, v33")
        A(f"buffer_load_ushort v{EP + 4}, v36, s[12:15], s38 offen")
    if (not g1) and not F2:
        g2_early()
    if F2:
        if g1:
            A(f"s_mov_b32 s34, {hex(C3(layer))}")
            A("v_lshlrev_b32 v10, 7, v1")
            await_cnt(A, 8, 34, 10, 8, 28)
            stats_loads()
        else:
            A("s_lshl_b32 s34, s24, 7")
            A(f"s_add_u32 s34, s34, {hex(C4(layer))}")
            A("v_mov_b32 v10, 0")
            await_cnt(A, 8, 34, 10, 1, 28)
        for st in range(PRE0):
            for f in issue_ops(st, "B"):
                f()
        if not g1:
            g2_early()
    A.stamp(1)
    A("v_bfe_u32 v12, v1, 2, 2")
    A("v_and_b32 v13, 3, v1")
    A("v_and_b32 v14, 1, v7")
    A("v_lshlrev_b32 v15, 2, v7")
    A("v_add_u32 v15, v15, v12")
    A("v_lshlrev_b32 v15, 7, v15")
    A("v_lshl_add_u32 v15, v13, 3, v15")
    A("v_add_u32 v15, s31, v15")
    A("v_lshrrev_b32 v32, 1, v12")
    A("v_lshl_add_u32 v32, v14, 1, v32")
    for mt in range(4):
        A(f"v_xor_b32 v33, {mt}, v32")
        A(f"v_lshl_add_u32 v{36 + mt}, v33, 5, v15")
    if g1:
        for i in range(4):
            sm, sq = 16 + i, 20 + i
            A(f"v_mul_f32 v{sm}, {hexf(1.0 / 448)}, v{sm}")
            A(f"v_mul_f32 v{sq}, {hexf(1.0 / 448)}, v{sq}")
            A(f"v_fma_f32 v{sq}, -v{sm}, v{sm}, v{sq}")
            A(f"v_max_f32 v{sq}, 0, v{sq}")
            A(f"v_add_f32 v34, {hexf(1e-5)}, v{sq}")
            A("v_rcp_f32 v34, v34")
            A(f"v_mul_f32 v35, v{sq}, v34")
            A(f"v_add_f32 v35, {hexf(1e-5)}, v35")
            A("v_rcp_f32 v35, v35")
            A("v_mul_f32 v34, v34, v35")
            A(f"v_sqrt_f32 v{sq}, v34")
            A(f"v_mul_f32 v{sm}, -v{sm}, v{sq}")
        A("v_lshlrev_b32 v34, 4, v1")
        A("s_lshl_b32 s34, s22, 10")
        A(f"s_add_u32 s34, s34, {G_TAB}")
        A("v_add_u32 v34, s34, v34")
        A("ds_write_b128 v34, v[20:23]")
        A("ds_write_b128 v34, v[16:19] offset:8192")
        A("v_lshlrev_b32 v35, 4, v7")
        A("s_lshl_b32 s34, s47, 11")
        A(f"s_add_u32 s34, s34, {G_TAB}")
        A("v_add_u32 v35, s34, v35")
    AFR = [0, 16]
    ACC = 32
    BN = [40, 48]
    AB = [56, 72]
    TMP = 88

    def a_reads(st):
        slot = st % G_RING
        buf = st & 1
        if "nolds" in OPT and st > 1:
            return []
        return [(lambda mt=mt, t=t: A(f"ds_read_b64_tr_b16 {a(AFR[buf] + 4 * mt + 2 * t, 2)}, v{36 + mt} "
                                      f"offset:{slot * 4096 + t * 2048}")) for mt in range(4) for t in range(2)]

    def ab_reads(st):
        buf = st & 1
        ops = []
        if "nolds" in OPT and st > 1:
            return []

        if USE_ROT:
            def addr():
                A(f"s_add_u32 s46, s57, {st}")
                A("s_and_b32 s46, s46, 15")
                A("s_lshl_b32 s46, s46, 7")
                A(f"v_add_u32 v{96 + buf}, s46, v35")
            ops.append(addr)
            for t in range(2):
                ops.append(lambda t=t: A(f"ds_read_b128 {v(AB[buf] + 4 * t, 4)}, v{96 + buf} offset:{t * 64}"))
                ops.append(lambda t=t: A(f"ds_read_b128 {v(AB[buf] + 8 + 4 * t, 4)}, v{96 + buf} offset:{8192 + t * 64}"))
            return ops
        for t in range(2):
            ops.append(lambda t=t: A(f"ds_read_b128 {v(AB[buf] + 4 * t, 4)}, v35 offset:{st * 128 + t * 64}"))
            ops.append(lambda t=t: A(f"ds_read_b128 {v(AB[buf] + 8 + 4 * t, 4)}, v35 offset:{8192 + st * 128 + t * 64}"))
        return ops

    def norm_ops(st):
        buf = st & 1
        b = BR + 8 * (st % NB)
        ops = []
        if "nonorm" in OPT:
            return [(lambda d=d: A(f"v_mov_b32 v{BN[buf] + d}, v{b + d}")) for d in range(8)]
        for nt in range(2):
            for dp in range(2):
                d0, d1 = 2 * dp, 2 * dp + 1
                x0, x1 = b + 4 * nt + d0, b + 4 * nt + d1
                tb = TMP + 4 * (dp & 1)
                ops.append(lambda x0=x0, tb=tb: A(f"v_lshlrev_b32 v{tb}, 16, v{x0}"))
                ops.append(lambda x0=x0, tb=tb: A(f"v_and_b32 v{tb + 1}, 0xffff0000, v{x0}"))
                ops.append(lambda x1=x1, tb=tb: A(f"v_lshlrev_b32 v{tb + 2}, 16, v{x1}"))
                ops.append(lambda x1=x1, tb=tb: A(f"v_and_b32 v{tb + 3}, 0xffff0000, v{x1}"))
                for (o, dd) in ((0, d0), (2, d1)):
                    for e in range(2):
                        ops.append(lambda tb=tb, o=o, dd=dd, e=e: A(
                            f"v_fma_f32 v{tb + o + e}, v{tb + o + e}, v{AB[buf] + 2 * dd + e}, v{AB[buf] + 8 + 2 * dd + e}"))
                ops.append(lambda tb=tb, nt=nt, d0=d0: A(f"v_cvt_pk_bf16_f32 v{BN[buf] + 4 * nt + d0}, v{tb}, v{tb + 1}"))
                ops.append(lambda tb=tb, nt=nt, d1=d1: A(f"v_cvt_pk_bf16_f32 v{BN[buf] + 4 * nt + d1}, v{tb + 2}, v{tb + 3}"))
        return ops

    def mfma_ops(st):
        buf = st & 1
        ops = []
        if "nomfma" in OPT and st > 0:
            return [lambda: A("s_nop 0")]
        for nt in range(2):
            for mt in range(4):
                acc = a(ACC + 4 * (2 * mt + nt), 4)
                c = "0" if st == 0 else acc
                if g1:
                    ops.append(lambda acc=acc, c=c, mt=mt, nt=nt: A(
                        f"v_mfma_f32_16x16x32_bf16 {acc}, {a(AFR[buf] + 4 * mt, 4)}, {v(BN[buf] + 4 * nt, 4)}, {c}"))
                else:
                    b = BR + 8 * (st % NB)
                    ops.append(lambda acc=acc, c=c, mt=mt, nt=nt, b=b: A(
                        f"v_mfma_f32_16x16x32_bf16 {acc}, {v(b + 4 * nt, 4)}, {a(AFR[buf] + 4 * mt, 4)}, {c}"))
        return ops

    def sync_op(st):
        def f():
            A.wait_vm(toks[st])
            if "nobar" not in OPT:
                A("s_barrier")
        return f

    def w2_touch_ops():
        def f0():
            A("s_lshr_b32 s44, s2, 3")
            A("s_bfe_u32 s45, s2, 0x20001")
            A("s_lshl_b32 s44, s44, 6")
            A("s_lshl_b32 s46, s22, 3")
            A("s_add_u32 s44, s44, s46")
            A("v_and_b32 v98, 7, v1")
            A("v_add_u32 v98, s44, v98")
            A("v_lshlrev_b32 v98, 12, v98")
            A("v_lshl_add_u32 v98, v3, 7, v98")
            A("s_lshl_b32 s45, s45, 10")
            A("v_add_u32 v98, s45, v98")
            srd(A, 92, 92, 93, S * F * 2)

        def f1():
            A.touch("buffer_load_dword v99, v98, s[92:95], 0 offen")
        return [f0, f1]

    next_issue = PRE0
    A.stamp(5)
    A.wait_vm(toks[0])
    A.wait_all(vm=False)
    A.stamp(6)
    A("s_barrier")
    A.stamp(7)
    for f in a_reads(0):
        f()
    if g1:
        for f in ab_reads(0) + ab_reads(1):
            f()
        for f in norm_ops(0):
            f()
    SPD = G_SP
    synced = 0
    for st in range(NK):
        vm = []
        n_iss = 0
        issued_before = next_issue - 1
        while next_issue < NK and next_issue <= st + PRE and n_iss < 2:
            vm += issue_ops(next_issue)
            next_issue += 1
            n_iss += 1
        lds = []
        if st + 1 < NK:
            if st + 1 > synced:
                tgt = min(NK - 1, st + SPD, issued_before)
                lds += [sync_op(tgt)]
                synced = tgt
            lds += a_reads(st + 1)
        va = norm_ops(st + 1) if (g1 and st + 1 < NK) else []
        ab = ab_reads(st + 2) if (g1 and st + 2 < NK) else []
        if g1 and PREFETCH and (not fused) and st == NK - PRE + 1:
            vm += w2_touch_ops()
        seq = lds + sprinkle(va + ab, vm)
        interleave(mfma_ops(st), seq)
    A.stamp(2)
    PBASE = 0 if g1 else 5 * 4096

    def owner(mt, nt):
        if g1:
            return (2 * (mt >> 1) + nt, mt & 1)
        return (mt, nt)
    A("v_lshlrev_b32 v34, 4, v1")
    A("s_lshl_b32 s35, s48, 13")
    A("s_add_u32 s34, s31, s35")
    A(f"s_add_u32 s34, s34, {PBASE}")
    A("v_add_u32 v33, s34, v34")
    for mt in range(4):
        for nt in range(2):
            o, k = owner(mt, nt)
            A(f"ds_write_b128 v33, {a(ACC + 4 * (2 * mt + nt), 4)} offset:{(o * 2 + k) * 1024}")
    A.wait_all(vm=False)
    A("s_barrier")
    A("s_lshl_b32 s34, s47, 11")
    A("s_add_u32 s34, s34, s35")
    A(f"s_add_u32 s34, s34, {PBASE}")
    A("v_add_u32 v33, s34, v34")
    A(f"v_add_u32 v35, {2 * G_RB}, v33")
    RD = 40
    for k in range(2):
        for src in range(4):
            A(f"ds_read_b128 {v(RD + 8 * src + 4 * k, 4)}, v{33 if src < 2 else 35} offset:{(src & 1) * G_RB + k * 1024}")
    for k in range(2):
        for r in range(4):
            A(f"v_add_f32 v{RD + 4 * k + r}, v{RD + 4 * k + r}, v{RD + 8 + 4 * k + r}")
            A(f"v_add_f32 v{RD + 16 + 4 * k + r}, v{RD + 16 + 4 * k + r}, v{RD + 24 + 4 * k + r}")
        for r in range(4):
            A(f"v_add_f32 v{RD + 4 * k + r}, v{RD + 4 * k + r}, v{RD + 16 + 4 * k + r}")
    A.stamp(3)
    if g1:
        for m in range(2):
            for hlf in range(2):
                A(f"v_lshlrev_b32 v{76 + 4 * m + 2 * hlf}, 16, v{EP + 2 * m + hlf}")
                A(f"v_and_b32 v{77 + 4 * m + 2 * hlf}, 0xffff0000, v{EP + 2 * m + hlf}")
        c1 = -2.0 * 1.4426950408889634 * 0.7978845608028654
        c3 = c1 * 0.044715
        A(f"s_mov_b32 s39, {hexf(c1)}")
        A(f"s_mov_b32 s40, {hexf(c3)}")
        A("v_mov_b32 v84, s39")
        for m in range(2):
            for r in range(4):
                x = RD + 4 * m + r
                t = 85 + (r & 1)
                A(f"v_add_f32 v{x}, v{x}, v{76 + 4 * m + r}")
                A(f"v_mul_f32 v{t}, v{x}, v{x}")
                A(f"v_fma_f32 v{t}, v{t}, s40, v84")
                A(f"v_mul_f32 v{t}, v{t}, v{x}")
                A(f"v_exp_f32 v{t}, v{t}")
                A(f"v_add_f32 v{t}, 1.0, v{t}")
                A(f"v_rcp_f32 v{t}, v{t}")
                A(f"v_mul_f32 v{x}, v{x}, v{t}")
        for m in range(2):
            for hlf in range(2):
                A(f"v_cvt_pk_bf16_f32 v{88 + 2 * m + hlf}, v{RD + 4 * m + 2 * hlf}, v{RD + 4 * m + 2 * hlf + 1}")
        A("s_mul_i32 s41, s24, 56")
        A("s_lshl_b32 s42, s23, 1")
        A("s_add_u32 s41, s41, s42")
        A("s_add_u32 s41, s41, s36")
        A("s_mul_i32 s41, s41, 3584")
        A(f"s_add_u32 s41, s41, {hex(WS_UF + layer * LB)}")
        A("s_and_b32 s42, s47, 1")
        A("s_lshl_b32 s43, s48, 1")
        A("s_add_u32 s42, s42, s43")
        A("s_lshl_b32 s43, s42, 10")
        A("s_add_u32 s41, s41, s43")
        A("s_cmp_eq_u32 s42, 3")
        A("s_cselect_b32 s44, 0x00ff00ff, -1")
        A("s_mov_b32 s45, s44")
        A("s_mov_b64 exec, s[44:45]")
        A("buffer_store_dwordx4 v[88:91], v6, s[8:11], s41 offen")
        A("s_mov_b64 exec, -1")
    else:
        A("v_and_b32 v33, 15, v1")
        A(f"v_lshlrev_b32 v76, 16, v{EP + 4}")
        for k in range(2):
            for hlf in range(2):
                x = EP + 2 * k + hlf
                A(f"v_lshlrev_b32 v77, 16, v{x}")
                A(f"v_and_b32 v78, 0xffff0000, v{x}")
                y = RD + 4 * k + 2 * hlf
                A(f"v_add_f32 v{y}, v{y}, v76")
                A(f"v_add_f32 v{y + 1}, v{y + 1}, v76")
                A(f"v_add_f32 v{y}, v{y}, v77")
                A(f"v_add_f32 v{y + 1}, v{y + 1}, v78")
                A(f"v_cvt_pk_bf16_f32 v{88 + 2 * k + hlf}, v{y}, v{y + 1}")
        if layer == 0:
            A("s_cmp_eq_u32 s48, 0")
            A("s_cselect_b32 s45, -1, 0")
            A("s_mov_b32 s44, -1")
            A("v_cndmask_b32 v92, 0, v90, s[44:45]")
            A("v_cndmask_b32 v93, 0, v91, s[44:45]")
            A("v_mov_b32 v77, 0x3f803f80")
            A("v_mov_b32 v78, 0")
            A("v_mov_b32 v79, 0")
            for x in [88, 89, 92, 93]:
                A(f"v_dot2_f32_bf16 v78, v{x}, v77, v78")
                A(f"v_dot2_f32_bf16 v79, v{x}, v{x}, v79")
            reduce_groups(A, 78, 80)
            reduce_groups(A, 79, 81)
            A("v_cmp_gt_u32 vcc, 16, v1")
            A("v_cndmask_b32 v80, v79, v78, vcc")
            A("v_lshlrev_b32 v81, 2, v1")
            A("s_lshl_b32 s39, s36, 7")
            A(f"s_add_u32 s39, s39, {hex(WS_ST + 16384)}")
            exec_lanes(A, 32)
            A("buffer_atomic_add_f32 v80, v81, s[8:11], s39 offen")
            exec_lanes(A, 64)
        SP = 80
        A("s_lshl_b32 s40, s22, 11")
        A(f"s_add_u32 s40, s40, {G_TAB}")
        A(f"v_mul_u32_u24 v36, {SP}, v33")
        A("v_lshl_add_u32 v36, v7, 3, v36")
        A("v_add_u32 v36, s40, v36")
        for k in range(2):
            A(f"ds_write_b64 v36, {v(88 + 2 * k, 2)} offset:{32 * k}")
        A("v_lshrrev_b32 v37, 2, v1")
        A("v_and_b32 v38, 3, v1")
        A(f"v_mul_u32_u24 v39, {SP}, v37")
        A("v_lshl_add_u32 v39, v38, 4, v39")
        A("v_add_u32 v39, s40, v39")
        A("ds_read_b128 v[92:95], v39")
        A("s_lshl_b32 s39, s36, 4")
        A("s_mul_i32 s39, s39, 896")
        A("s_mul_i32 s41, s24, 112")
        A("s_add_u32 s39, s39, s41")
        A("s_lshl_b32 s41, s48, 6")
        A("s_add_u32 s39, s39, s41")
        A("v_mul_u32_u24 v37, 896, v37")
        A("v_lshl_add_u32 v37, v38, 4, v37")
        A("s_cmp_eq_u32 s48, 0")
        A("s_cselect_b32 s44, -1, 0x77777777")
        A("s_mov_b32 s45, s44")
        A("s_mov_b64 exec, s[44:45]")
        A("buffer_store_dwordx4 v[92:95], v37, s[16:19], s39 offen")
        A("s_mov_b64 exec, -1")
    if (fused or pers) and g1:
        A("s_lshl_b32 s34, s24, 7")
        A(f"s_add_u32 s34, s34, {hex(C4(layer))}")
        publish(A, 8, 34)
        if pers:
            A.raw(f"L_{name}_skip:")
        return None
    if pers:
        if layer == 0:
            A("s_lshr_b32 s34, s23, 1")
            A("s_lshl_b32 s34, s34, 7")
            A(f"s_add_u32 s34, s34, {hex(C5)}")
            publish(A, 8, 34)
        return None
    A.stamp(4)
    A.dump_stamps(STAMP_WG)
    kernel_end(A, name)
    return G_LDS, 512, 256, 176


K1_XP = 16384
K1_WP = 64 * 192
K1_SLOT = K1_XP + K1_WP
K1_NS = 5
K1_MISC = K1_NS * K1_SLOT
K1_CSUM = K1_MISC
K1_TOK = K1_MISC + 1024
K1_LDS = K1_MISC + 1024 + 2048
K1_EX = 2 * K1_SLOT


def k1(A, name, layer, pers=False):
    L0 = layer == 0
    if pers:
        phase_begin(A)
    else:
        kernel_begin(A, name, 256)
        A.stamp_base = 70
        A.stamp(0)
    if L0:
        A(f"s_load_dwordx2 s[4:5], s[0:1], {KA_X}")
        A(f"s_load_dwordx2 s[8:9], s[0:1], {KA_WQKV}")
    A(f"s_load_dwordx2 s[20:21], s[0:1], {KA_WS}")
    A("v_and_b32 v1, 63, v0")
    A("v_lshrrev_b32 v2, 6, v0")
    A("v_readfirstlane_b32 s22, v2")
    A("s_lshr_b32 s23, s2, 4")
    A("s_and_b32 s24, s2, 15")
    A("s_and_b32 s47, s22, 3")
    A("s_lshr_b32 s48, s22, 2")
    A("s_lshl_b32 s25, s23, 7")
    A("s_lshl_b32 s26, s47, 5")
    A("s_add_u32 s49, s25, s26")
    A("s_lshl_b32 s26, s48, 4")
    A("s_add_u32 s25, s49, s26")
    A("s_mul_i32 s25, s25, 896")
    A("v_lshrrev_b32 v16, 3, v1")
    A("v_mul_u32_u24 v16, 896, v16")
    A("v_lshrrev_b32 v17, 4, v1")
    A("v_and_b32 v18, 7, v1")
    A("v_xor_b32 v19, v18, v17")
    A("v_lshl_add_u32 v2, v19, 4, v16")
    A("v_xor_b32 v19, 4, v19")
    A("v_lshl_add_u32 v3, v19, 4, v16")
    A("v_add_u32 v2, s25, v2")
    A("v_add_u32 v3, s25, v3")
    A(f"v_add_u32 v3, {8 * 896 - 1024}, v3")
    if L0:
        A("s_lshl_b32 s26, s22, 3")
        A("s_mul_i32 s26, s26, 2688")
        A("s_mul_i32 s27, s24, 56")
        A("s_add_u32 s26, s26, s27")
        for i in range(2):
            A(f"v_add_u32 v16, {64 * i}, v1")
            div_const(A, "v17", "v16", 12, 27)
            A("v_mul_u32_u24 v18, 12, v17")
            A("v_sub_u32 v18, v16, v18")
            A("v_mul_u32_u24 v17, 2688, v17")
            A("v_lshrrev_b32 v19, 2, v18")
            A("v_mul_u32_u24 v19, 896, v19")
            A("v_and_b32 v18, 3, v18")
            A("v_lshl_add_u32 v17, v18, 4, v17")
            A("v_add_u32 v17, v17, v19")
            A(f"v_add_u32 v{4 + i}, s26, v17")
        A("v_subrev_u32 v5, 1024, v5")
        wstep = 64 * 2688
    else:
        A("s_mul_i32 s26, s24, 86016")
        A("s_mul_i32 s27, s22, 1536")
        A("s_add_u32 s26, s26, s27")
        A("v_lshlrev_b32 v4, 4, v1")
        A("v_add_u32 v4, s26, v4")
        A("v_mov_b32 v5, v4")
        wstep = 12288
    A.wait_all(vm=False)
    if L0:
        srd(A, 4, 4, 5, XBYTES)
        srd(A, 8, 8, 9, D * 3 * D * 2)
    else:
        srd_off(A, 4, 20, 21, hex(WS_X2), XBYTES)
        srd_off(A, 8, 20, 21, hex(WS_WC), 16 * 86016)
    srd(A, 12, 20, 21, WSZ)
    A("s_lshl_b32 s28, s47, 12")
    A("s_lshl_b32 s29, s48, 11")
    A("s_add_u32 s28, s28, s29")
    A("s_mul_i32 s29, s22, 1536")
    A(f"s_add_u32 s29, s29, {K1_XP}")
    tokq = {}
    ROT = 52
    A("s_add_u32 s35, s23, s24")
    A("s_mul_i32 s34, s35, 9363")
    A("s_lshr_b32 s34, s34, 16")
    A("s_mul_i32 s34, s34, 7")
    A("s_sub_u32 s34, s35, s34")
    if "norot" in OPT:
        A("s_mov_b32 s34, 0")
    for q in range(7):
        A(f"s_add_u32 s{ROT + q}, s34, {q}")
        A(f"s_cmp_ge_u32 s{ROT + q}, 7")
        A("s_cselect_b32 s35, 7, 0")
        A(f"s_sub_u32 s{ROT + q}, s{ROT + q}, s35")

    def dma_ops(p):
        slot = (p % K1_NS) * K1_SLOT

        def f0():
            A(f"s_add_u32 m0, s28, {slot}")
            A(f"s_lshl_b32 s30, s{ROT + p}, 7")
            A("buffer_load_dwordx4 v2, s[4:7], s30 offen lds")
            A("buffer_load_dwordx4 v3, s[4:7], s30 offen offset:1024 lds")

        def f1():
            A(f"s_add_u32 m0, s29, {slot}")
            A(f"s_mul_i32 s31, s{ROT + p}, {wstep}")
            A("buffer_load_dwordx4 v4, s[8:11], s31 offen lds")
            exec_lanes(A, 32)
            tokq[p] = A("buffer_load_dwordx4 v5, s[8:11], s31 offen offset:1024 lds")
            exec_lanes(A, 64)
        return [f0, f1]

    PRE = 3
    pers1 = pers and not L0
    if pers1:
        PRE = 4
        for p in range(5):
            dma_ops(p)[1]()
        A("s_lshl_b32 s32, s23, 7")
        A(f"s_add_u32 s32, s32, {hex(C5)}")
        A("v_mov_b32 v10, 0")
        await_cnt(A, 12, 32, 10, 1, 16)
        for p in range(PRE):
            dma_ops(p)[0]()
            tokq[p] = A.vmq[-1]["tok"]
    else:
        for f in dma_ops(0):
            f()
    if L0:
        A("s_lshl_b32 s32, s2, 13")
        A(f"s_add_u32 s32, s32, {hex(WS_ST)}")
        A("s_cmp_lt_u32 s2, 8")
        A("s_cselect_b32 s32, s32, 0x7fff0000")
        A("v_lshlrev_b32 v16, 4, v0")
        for i in range(4):
            A(f"v_mov_b32 v{12 + i}, 0")
        A("buffer_store_dwordx4 v[12:15], v16, s[12:15], s32 offen")
        if pers:
            A(f"s_load_dwordx2 s[60:61], s[0:1], {KA_DBG}")
    else:
        A("v_and_b32 v16, 31, v1")
        A("v_add_u32 v16, s49, v16")
        A("v_lshrrev_b32 v17, 4, v16")
        A("v_lshlrev_b32 v17, 7, v17")
        A("v_and_b32 v16, 15, v16")
        A("v_lshl_add_u32 v17, v16, 2, v17")
        A(f"s_mov_b32 s32, {hex(WS_ST + 16384)}")
        A("buffer_load_dword v52, v17, s[12:15], s32 offen")
        A("buffer_load_dword v48, v17, s[12:15], s32 offen offset:64")
        A("v_lshrrev_b32 v17, 5, v1")
        A("v_lshlrev_b32 v17, 4, v17")
        A("s_mul_i32 s32, s24, 384")
        A("s_lshl_b32 s33, s48, 7")
        A("s_add_u32 s33, s33, s32")
        A(f"s_add_u32 s33, s33, {hex(WS_CS)}")
        for j in range(4):
            A(f"buffer_load_dwordx4 {v(120 + 4 * j, 4)}, v17, s[12:15], s33 offen offset:{32 * j}")
        A("v_and_b32 v16, 31, v1")
        A("v_lshlrev_b32 v16, 2, v16")
        A(f"s_add_u32 s32, s32, {hex(WS_CS + 256)}")
        A("buffer_load_dword v56, v16, s[12:15], s32 offen")
    if not pers1:
        for p in range(1, PRE):
            for f in dma_ops(p):
                f()
    A.stamp(1)
    A("v_and_b32 v16, 31, v1")
    A("v_lshrrev_b32 v17, 5, v1")
    A("v_bfe_u32 v18, v1, 1, 3")
    A("v_xor_b32 v18, v18, v17")
    A("v_lshlrev_b32 v19, 7, v16")
    A("s_lshl_b32 s32, s47, 12")
    A("v_add_u32 v19, s32, v19")
    A("s_lshl_b32 s33, s48, 2")
    for ls in range(2):
        A(f"s_add_u32 s34, s33, {2 * ls}")
        A("v_xor_b32 v20, s34, v18")
        A(f"v_lshl_add_u32 v{8 + ls}, v20, 4, v19")
    A("v_bfe_u32 v18, v1, 2, 2")
    A("v_bfe_u32 v19, v1, 4, 1")
    A("v_and_b32 v20, 3, v1")
    A("v_lshlrev_b32 v22, 5, v19")
    A("v_lshl_add_u32 v22, v20, 3, v22")
    A("v_lshl_add_u32 v21, v17, 3, v18")
    A("v_mul_u32_u24 v21, 192, v21")
    A("v_add_u32 v21, v21, v22")
    A(f"s_mul_i32 s34, s48, {32 * 192}")
    A(f"s_add_u32 s34, s34, {K1_XP}")
    A("v_add_u32 v21, s34, v21")
    ONES = 28
    SS = 36
    if L0:
        A("s_mul_i32 s34, s22, 11")
        A("s_lshr_b32 s34, s34, 5")
        A("s_mul_i32 s35, s34, 3")
        A("s_sub_u32 s35, s22, s35")
        A("s_and_b32 s34, s34, 1")
        A(f"s_mul_i32 s34, s34, {32 * 192}")
        A("s_lshl_b32 s35, s35, 6")
        A("s_add_u32 s34, s34, s35")
        A(f"s_add_u32 s34, s34, {K1_XP}")
        A("v_lshl_add_u32 v23, v17, 3, v18")
        A("v_mul_u32_u24 v23, 192, v23")
        A("v_add_u32 v22, v22, v23")
        A("v_add_u32 v22, s34, v22")
        A("v_mul_u32_u24 v24, 192, v1")
        A("v_add_u32 v24, s29, v24")
        A("v_add_u32 v24, 56, v24")
        A("v_mov_b32 v26, 0x3f80")
        A("v_mov_b32 v27, 0")
        for i in range(4):
            A(f"v_mov_b32 v{ONES + i}, 0x3f803f80")
        for i in range(4):
            A(f"v_mov_b32 v{SS + i}, 0")
        A("v_lshlrev_b32 v33, 4, v1")
        A("v_add_u32 v34, s29, v33")
        A("s_mul_i32 s50, s24, 86016")
        A("s_mul_i32 s51, s22, 1536")
        A("s_add_u32 s50, s50, s51")
        A(f"s_add_u32 s50, s50, {hex(WS_WC)}")
    AQ, AK, AV, AC = 0, 16, 32, 48
    XF = 64
    WF = 76
    CF = 112
    VA = 40

    def token_stats(sumreg, sqreg):
        A(f"v_mul_f32 v{sumreg}, {hexf(1.0 / 448)}, v{sumreg}")
        A(f"v_mul_f32 v{sqreg}, {hexf(1.0 / 448)}, v{sqreg}")
        A(f"v_fma_f32 v{sqreg}, -v{sumreg}, v{sumreg}, v{sqreg}")
        A(f"v_max_f32 v{sqreg}, 0, v{sqreg}")
        A(f"v_add_f32 v{sqreg}, {hexf(1e-5)}, v{sqreg}")
        A(f"v_rsq_f32 v{sqreg}, v{sqreg}")
        A(f"v_mul_f32 v{sumreg}, -v{sumreg}, v{sqreg}")
        A("v_and_b32 v57, 31, v1")
        A("v_lshlrev_b32 v57, 2, v57")
        A("s_lshl_b32 s35, s22, 8")
        A(f"s_add_u32 s35, s35, {K1_TOK}")
        A("v_add_u32 v57, s35, v57")
        exec_lanes(A, 32)
        A(f"ds_write_b32 v57, v{sqreg}")
        A(f"ds_write_b32 v57, v{sumreg} offset:128")
        exec_lanes(A, 64)
        A("v_lshlrev_b32 v58, 4, v17")
        A("s_lshl_b32 s36, s48, 6")
        A("s_add_u32 s36, s36, s35")
        A("v_add_u32 v58, s36, v58")
        for j in range(2):
            A(f"ds_read_b128 {v(TA + 4 * j, 4)}, v58 offset:{32 * j}")
            A(f"ds_read_b128 {v(TB + 4 * j, 4)}, v58 offset:{128 + 32 * j}")

    TA, TB = 152, 160
    CS = 120
    if not L0:
        token_stats(52, 48)

    def set_addr(p):
        slot = (p % K1_NS) * K1_SLOT
        b = VA + 4 * (p & 1)
        A(f"v_add_u32 v{b}, {slot}, v8")
        A(f"v_add_u32 v{b + 1}, {slot}, v9")
        A(f"v_add_u32 v{b + 2}, {slot}, v21")
        if L0:
            A(f"v_add_u32 v{b + 3}, {slot}, v22")

    def sync(p):
        slot = (p % K1_NS) * K1_SLOT
        set_addr(p)
        A.wait_vm(tokq[p])
        if L0:
            A(f"v_add_u32 v49, {slot}, v24")
            if p == 0:
                A(f"v_add_u32 v35, {slot}, v34")
                A("ds_read_b128 v[120:123], v35")
                A("ds_read_b128 v[124:127], v35 offset:1024")
                A(f"s_mul_i32 s51, s{ROT}, 12288")
                A("s_add_u32 s51, s51, s50")
                A("s_cmp_lt_u32 s23, 7")
                A("s_cselect_b32 s51, s51, 0x7fff0000")
                A("buffer_store_dwordx4 v[120:123], v33, s[12:15], s51 offen")
                exec_lanes(A, 32)
                A("buffer_store_dwordx4 v[124:127], v33, s[12:15], s51 offen offset:1024")
            exec_lanes(A, 8)
            A("ds_write_b64 v49, v[26:27]")
            exec_lanes(A, 64)
            A.wait_all(vm=False)
        A("s_barrier")
        if pers and L0 and p == 1:
            srd(A, 60, 60, 61, 256)
            A("s_cmp_ge_u32 s2, 8")
            A(f"s_cbranch_scc1 L_{name}_nz")
            A("v_mov_b32 v10, 0")
            A("v_mov_b32 v11, 1")
            A("v_cmp_eq_u32 vcc, 0, v0")
            A("s_and_saveexec_b64 s[44:45], vcc")
            A(f"s_cbranch_execz L_{name}_nz2")
            A.raw("    buffer_atomic_add v11, v10, s[60:63], 0 offen sc1")
            A.raw(f"L_{name}_nz2:")
            A("s_mov_b64 exec, -1")
            A.raw(f"L_{name}_nz:")

    def read_ops(gs):
        p, ls = gs >> 1, gs & 1
        b = VA + 4 * (p & 1)
        buf = gs % 3
        ops = [lambda: A(f"ds_read_b128 {v(XF + 4 * buf, 4)}, v{b + ls}")]
        for t3 in range(3):
            for t in range(2):
                ops.append(lambda t3=t3, t=t: A(
                    f"ds_read_b64_tr_b16 {v(WF + 12 * buf + 4 * t3 + 2 * t, 2)}, v{b + 2} "
                    f"offset:{(16 * ls + 4 * t) * 192 + 64 * t3}"))
        return ops

    def cread_ops(p):
        b = VA + 4 * (p & 1)
        ops = []
        for f in range(2):
            for t in range(2):
                ops.append(lambda f=f, t=t: A(
                    f"ds_read_b64_tr_b16 {v(CF + 4 * f + 2 * t, 2)}, v{b + 3} offset:{(16 * f + 4 * t) * 192}"))
        return ops

    sync(0)
    for f in read_ops(0) + read_ops(1):
        f()
    A.stamp(2)
    for gs in range(14):
        p, ls = gs >> 1, gs & 1
        b = gs % 3
        xf = v(XF + 4 * b, 4)
        first = gs == 0
        m = [
            lambda: A(f"v_mfma_f32_32x32x16_bf16 {a(AQ, 16)}, {v(WF + 12 * b, 4)}, {xf}, {'0' if first else a(AQ, 16)}"),
            lambda: A(f"v_mfma_f32_32x32x16_bf16 {a(AK, 16)}, {v(WF + 12 * b + 4, 4)}, {xf}, {'0' if first else a(AK, 16)}"),
            lambda: A(f"v_mfma_f32_32x32x16_bf16 {a(AV, 16)}, {xf}, {v(WF + 12 * b + 8, 4)}, {'0' if first else a(AV, 16)}"),
        ]
        if ls == 1 and L0:
            for f in range(2):
                m.append(lambda f=f: A(
                    f"v_mfma_f32_32x32x16_bf16 {a(AC, 16)}, {v(ONES, 4)}, {v(CF + 4 * f, 4)}, "
                    f"{'0' if (p == 0 and f == 0) else a(AC, 16)}"))
        fill = []
        if ls == 0:
            if L0:
                fill += cread_ops(p)
            if p + 1 < 7:
                fill += [lambda p=p: sync(p + 1)]
        if gs + 2 < 14:
            fill += read_ops(gs + 2)
        dots = [(lambda d=d: A(f"v_dot2_f32_bf16 v{SS + d}, v{XF + 4 * b + d}, v{XF + 4 * b + d}, v{SS + d}"))
                for d in range(4)] if L0 else []
        vm = dma_ops(p + PRE) if (ls == 1 and p + PRE < 7) else []
        if pers1 and vm and p + PRE < 5:
            q_ = p + PRE

            def xonly(f=vm[0], q_=q_):
                f()
                tokq[q_] = A.vmq[-1]["tok"]
            vm = [xonly]
        elif pers1 and vm:
            vm = [vm[1], vm[0]]
            q_ = p + PRE
            vm.append(lambda q_=q_: tokq.__setitem__(q_, A.vmq[-1]["tok"]))
        fill = fill + sprinkle(dots, vm)
        interleave(m, fill)
    A.stamp(3)
    A("v_lshlrev_b32 v49, 4, v1")
    A("s_mul_i32 s33, s22, 7168")
    A(f"s_add_u32 s33, s33, {K1_EX}")
    A("v_add_u32 v50, s33, v49")
    A("s_xor_b32 s34, s22, 4")
    A("s_mul_i32 s34, s34, 7168")
    A(f"s_add_u32 s34, s34, {K1_EX}")
    A("v_add_u32 v51, s34, v49")
    if L0:
        A("v_and_b32 v47, 31, v1")
        A("v_lshlrev_b32 v47, 2, v47")
        A(f"v_add_u32 v47, {K1_CSUM}, v47")
        A(f"v_add_f32 v{SS}, v{SS}, v{SS + 1}")
        A(f"v_add_f32 v{SS + 2}, v{SS + 2}, v{SS + 3}")
        A(f"v_add_f32 v{SS}, v{SS}, v{SS + 2}")
        A(f"v_mov_b32 v53, v{SS}")
        A(f"v_permlane32_swap_b32 v53, v{SS}")
        A(f"v_add_f32 v53, v53, v{SS}")
        A("s_lshl_b32 s35, s22, 7")
        A("v_add_u32 v46, s35, v47")
        exec_lanes(A, 32)
        A(f"ds_write_b32 v46, a{AC}")
        exec_lanes(A, 64)
        A(f"v_accvgpr_read_b32 v52, a{AQ + 12}")
    A("s_lshl_b32 s36, s24, 6")
    A("s_lshl_b32 s37, s23, 2")
    A("s_add_u32 s36, s36, s37")
    A("s_add_u32 s36, s36, s47")
    A("s_lshl_b32 s36, s36, 11")
    A("v_add_u32 v59, s36, v49")
    A("v_cmp_eq_u32 s[38:39], 0, v17")
    A("v_and_b32 v62, 31, v1")
    A("v_cmp_gt_u32 s[42:43], 28, v62")
    A("v_cmp_eq_u32 vcc, 28, v62")
    A("v_mov_b32 v63, 0x3f803f80")
    A("v_cndmask_b32 v63, 0, v63, vcc")
    A("s_cmp_eq_u32 s48, 0")
    A(f"s_cbranch_scc0 L_{name}_e1")
    save_vm = [dict(o) for o in A.vmq]
    save_lg = [dict(o) for o in A.lgq]
    RX = 64
    KP = 92
    for kh in range(2):
        keep, send = (AQ, AK) if kh == 0 else (AK, AQ)
        vkeep, vsend = (AV, AV + 8) if kh == 0 else (AV + 8, AV)
        for j in range(4):
            A(f"ds_write_b128 v50, {a(send + 4 * j, 4)} offset:{1024 * j}")
        for j in range(2):
            A(f"ds_write_b128 v50, {a(vsend + 4 * j, 4)} offset:{4096 + 1024 * j}")
        if L0:
            A("ds_write_b64 v50, v[52:53] offset:6144")
        for r in range(16):
            A(f"v_accvgpr_read_b32 v{KP + r}, a{keep + r}")
        for r in range(8):
            A(f"v_accvgpr_read_b32 v{KP + 16 + r}, a{vkeep + r}")
        A.wait_all(vm=False)
        A.stamp(5)
        A("s_barrier")
        A.stamp(6)
        for j in range(6):
            A(f"ds_read_b128 {v(RX + 4 * j, 4)}, v51 offset:{1024 * j}")
        if L0:
            A(f"ds_read_b64 {v(RX + 24, 2)}, v51 offset:6144")
            A("v_lshlrev_b32 v54, 4, v17")
            A(f"v_add_u32 v55, {K1_CSUM}, v54")
            for j in range(4):
                A(f"ds_read_b128 {v(CS + 4 * j, 4)}, v55 offset:{128 * kh + 32 * j}")
                A(f"ds_read_b128 {v(136 + 4 * j, 4)}, v55 offset:{128 * (kh + 3) + 32 * j}")
            A("ds_read_b32 v56, v47 offset:256")
            A("ds_read_b32 v45, v47 offset:640")
            for r in range(16):
                A(f"v_add_f32 v{CS + r}, v{CS + r}, v{136 + r}")
            A("v_add_f32 v56, v56, v45")
            A("s_mul_i32 s40, s24, 384")
            A(f"s_add_u32 s40, s40, {hex(WS_CS + 128 * kh)}")
            A("s_or_b32 s41, s23, s47")
            A("s_cmp_eq_u32 s41, 0")
            A("s_cselect_b32 s40, s40, 0x7fff0000")
            A("v_and_b32 v60, 31, v1")
            A("v_lshlrev_b32 v60, 2, v60")
            A(f"ds_read_b32 v46, v47 offset:{128 * kh}")
            A(f"ds_read_b32 v45, v47 offset:{128 * (kh + 3)}")
            A("v_add_f32 v46, v46, v45")
            A("buffer_store_dword v46, v60, s[12:15], s40 offen")
            if kh == 0:
                A("buffer_store_dword v56, v60, s[12:15], s40 offen offset:256")
            A(f"v_add_f32 v52, v52, v{RX + 24}")
            A(f"v_add_f32 v48, v53, v{RX + 25}")
            A("v_mov_b32 v57, v52")
            A("v_permlane32_swap_b32 v57, v52")
            token_stats(52, 48)
        A.stamp(7)
        cq = (DH ** -0.5) * 1.4426950408889634
        if kh == 0:
            A(f"v_mul_f32 v60, {hexf(cq)}, v48")
            A(f"v_mul_f32 v61, {hexf(cq)}, v52")
            ra, rb_ = 60, 61
        else:
            ra, rb_ = 48, 52
        PK = 168
        for r in range(16):
            A(f"v_mul_f32 v{CS + r}, v{CS + r}, v{rb_}")
        for r in range(16):
            A(f"v_add_f32 v{KP + r}, v{KP + r}, v{RX + r}")
            A(f"v_fma_f32 v{KP + r}, v{KP + r}, v{ra}, v{CS + r}")
        for d in range(8):
            A(f"v_cvt_pk_bf16_f32 v{PK + d}, v{KP + 2 * d}, v{KP + 2 * d + 1}")
        if kh == 0:
            A("v_mov_b32 v62, 0x3f80")
            A(f"v_cndmask_b32 v{PK + 6}, v62, v{PK + 6}, s[38:39]")
        else:
            A(f"v_cndmask_b32 v{PK + 6}, 0, v{PK + 6}, s[38:39]")
        A(f"v_cndmask_b32 v{PK + 7}, 0, v{PK + 7}, s[38:39]")
        A(f"s_mov_b32 s40, {hex((WS_QF if kh == 0 else WS_KF) + layer * LB)}")
        A(f"buffer_store_dwordx4 {v(PK, 4)}, v59, s[12:15], s40 offen")
        A(f"buffer_store_dwordx4 {v(PK + 4, 4)}, v59, s[12:15], s40 offen offset:1024")
        for r in range(8):
            A(f"v_mul_f32 v{TB + r}, v{TB + r}, v56")
        for r in range(8):
            A(f"v_add_f32 v{KP + 16 + r}, v{KP + 16 + r}, v{RX + 16 + r}")
            A(f"v_fma_f32 v{KP + 16 + r}, v{KP + 16 + r}, v{TA + r}, v{TB + r}")
        for d in range(4):
            A(f"v_cvt_pk_bf16_f32 v{RX + d}, v{KP + 16 + 2 * d}, v{KP + 16 + 2 * d + 1}")
            A(f"v_cndmask_b32 v{RX + d}, v63, v{RX + d}, s[42:43]")
        A(f"s_mov_b32 s40, {hex(WS_VF + 1024 * kh + layer * LB)}")
        A(f"buffer_store_dwordx4 {v(RX, 4)}, v59, s[12:15], s40 offen")
        if kh == 0:
            A(f"s_branch L_{name}_e2")
            A.raw(f"L_{name}_e1:")
            A.hist = []
            A.vmq = [dict(o) for o in save_vm]
            A.lgq = [dict(o) for o in save_lg]
            A.nop(2)
    A.raw(f"L_{name}_e2:")
    if pers:
        phase_begin(A)
        if L0:
            A("s_mov_b32 s34, 0")
            A("v_mov_b32 v10, 0")
            await_cnt(A, 60, 34, 10, 1, 8)
        A("s_lshl_b32 s34, s24, 7")
        A("s_lshl_b32 s35, s23, 2")
        A("s_add_u32 s34, s34, s35")
        A(f"s_add_u32 s34, s34, {hex(F0 if L0 else F1)}")
        publish(A, 12, 34)
        return None
    A.stamp(4)
    A.dump_stamps(STAMP_WG)
    kernel_end(A, name)
    return K1_LDS, 512, 256, 176


K2_K, K2_V, K2_Q = 0, 24576, 49152
K2_X = 57344
K2_LDS = K2_X + 8 * 4096


def k2(A, name, layer, pers=False):
    if pers:
        phase_begin(A)
    else:
        kernel_begin(A, name, 256)
        A.stamp_base = 76
        A.stamp(0)
    A(f"s_load_dwordx2 s[20:21], s[0:1], {KA_WS}")
    if PREFETCH and layer == 0:
        A(f"s_load_dwordx2 s[88:89], s[0:1], {KA_W2}")
        A(f"s_load_dwordx2 s[84:85], s[0:1], {KA_W1}")
    A("v_and_b32 v1, 63, v0")
    A("v_lshrrev_b32 v2, 6, v0")
    A("v_readfirstlane_b32 s22, v2")
    A("s_lshr_b32 s23, s2, 4")
    A("s_and_b32 s24, s2, 15")
    A("s_and_b32 s38, s22, 3")
    A("s_lshr_b32 s39, s22, 2")
    A("v_lshlrev_b32 v2, 4, v1")
    A("s_lshl_b32 s25, s24, 17")
    A("s_lshl_b32 s26, s23, 2")
    A("s_sub_u32 s26, s26, 8")
    A("s_mul_i32 s27, s22, 3")
    for i in range(3):
        A(f"s_add_u32 s34, s27, {i}")
        A("s_lshr_b32 s35, s34, 1")
        A("s_add_i32 s35, s35, s26")
        A("s_lshl_b32 s36, s35, 11")
        A("s_and_b32 s37, s34, 1")
        A("s_lshl_b32 s37, s37, 10")
        A("s_add_u32 s36, s36, s37")
        A("s_cmp_lt_i32 s35, 0")
        A(f"s_cselect_b32 s{72 + i}, 0x40000000, s36")
    A("s_lshl_b32 s29, s27, 10")
    A.wait_all(vm=False)
    for (d, off) in [(4, WS_QF), (8, WS_KF), (12, WS_VF)]:
        A(f"s_add_u32 s28, s25, {hex(off + layer * LB)}")
        A(f"s_add_u32 s{d}, s20, s28")
        A(f"s_addc_u32 s{d + 1}, s21, 0")
        A(f"s_and_b32 s{d + 1}, s{d + 1}, 0xffff")
        A(f"s_mov_b32 s{d + 2}, 0x20000")
        A(f"s_mov_b32 s{d + 3}, 0x00020000")
    srd(A, 92, 20, 21, WSZ)
    if pers and (layer == 1 or "one" in OPT):
        A("s_lshl_b32 s34, s24, 7")
        A(f"s_add_u32 s34, s34, {hex(F1 if layer == 1 else F0)}")
        A("v_add_u32 v10, s23, v1")
        A("v_subrev_u32 v10, 2, v10")
        A("v_max_i32 v10, 0, v10")
        A("v_lshlrev_b32 v10, 2, v10")
        await_cnt(A, 92, 34, 10, 3, 1)
    for i in range(3):
        A(f"s_add_u32 m0, s29, {K2_K + i * 1024}")
        A(f"buffer_load_dwordx4 v2, s[8:11], s{72 + i} offen lds")
    A("s_lshl_b32 s30, s23, 13")
    A("s_lshl_b32 s31, s22, 10")
    A("s_add_u32 s30, s30, s31")
    A(f"s_add_u32 m0, s31, {K2_Q}")
    tokK = A("buffer_load_dwordx4 v2, s[4:7], s30 offen lds")
    for i in range(3):
        A(f"s_add_u32 m0, s29, {K2_V + i * 1024}")
        tokV = A(f"buffer_load_dwordx4 v2, s[12:15], s{72 + i} offen lds")
    srd_off(A, 16, 20, 21, hex(WS_OF + layer * LB), 128 * 14 * 1024)
    K2PF = PREFETCH and layer == 0
    if K2PF:
        A("s_lshl_b32 s34, s2, 3")
        A("s_add_u32 s34, s34, s22")
        A("s_mul_i32 s34, s34, 3584")
        A("v_lshlrev_b32 v40, 7, v1")
        A("v_add_u32 v40, s34, v40")
        srd(A, 88, 88, 89, S * F * 2)
        srd(A, 84, 84, 85, S * F * 2)
    A.stamp(1)
    A("v_and_b32 v4, 31, v1")
    A("v_lshrrev_b32 v5, 5, v1")
    A("v_mov_b32 v18, 0xf14a")
    A("v_mul_lo_u32 v18, v18, v5")
    A("v_add_u32 v19, s29, v2")
    A("v_lshlrev_b32 v6, 2, v5")
    A("v_sub_u32 v6, v4, v6")
    MS = 40
    for r in range(16):
        kk = 8 * (r >> 2) + (r & 3)
        A(f"v_cmp_ge_i32 s[{MS + 2 * r}:{MS + 2 * r + 1}], v6, {kk}")
    PM = 8
    A("v_mov_b32 v7, 0xffff")
    A("v_mov_b32 v16, 0xffff0000")
    for d in range(8):
        A(f"v_cndmask_b32 v{PM + d}, 0, v7, s[{MS + 4 * d}:{MS + 4 * d + 1}]")
        A(f"v_cndmask_b32 v17, 0, v16, s[{MS + 4 * d + 2}:{MS + 4 * d + 3}]")
        A(f"v_or_b32 v{PM + d}, v{PM + d}, v17")
    A.wait_vm(tokK)
    for i in range(3):
        A(f"s_add_u32 s34, s27, {i}")
        A("s_and_b32 s34, s34, 1")
        A(f"s_cmp_eq_u32 s{72 + i}, 0x40000000")
        A("s_cselect_b32 s35, s34, 0")
        A("s_cmp_eq_u32 s35, 0")
        lab = f"L_{name}_np{i}"
        A(f"s_cbranch_scc1 {lab}")
        A(f"ds_write_b32 v19, v18 offset:{K2_K + i * 1024 + 8}")
        A.raw(lab + ":")
    A.force_wait(lg=0)
    A("s_barrier")
    A.stamp(2)
    A("s_lshl_b32 s35, s38, 11")
    A("v_add_u32 v28, s35, v2")
    A(f"ds_read_b128 v[20:23], v28 offset:{K2_Q}")
    A(f"ds_read_b128 v[24:27], v28 offset:{K2_Q + 1024}")
    BW = 14 if "k2both" in OPT else 7
    NBU = 4
    bcount = [0]

    def burst(i=None):
        n = bcount[0]
        if not K2PF or n >= NBU:
            return
        bcount[0] += 1
        if "k2both" in OPT:
            m = ((1 << 14) - 1) << (14 * (n & 1))
            sr = 84 if n < 2 else 88
        else:
            m = ((1 << 7) - 1) << (7 * n)
            sr = 84 if pers else 88
        A(f"s_mov_b64 exec, {hex(m)}")
        A.touch(f"buffer_load_dword v42, v40, s[{sr}:{sr + 3}], 0 offen")
        exec_lanes(A, 64)
    A("s_mul_i32 s36, s22, 4096")
    A(f"s_add_u32 s36, s36, {K2_X}")
    A("v_add_u32 v44, s36, v2")
    A("s_xor_b32 s37, s22, 4")
    A("s_mul_i32 s37, s37, 4096")
    A(f"s_add_u32 s37, s37, {K2_X}")
    A("v_add_u32 v45, s37, v2")
    A("s_cmp_eq_u32 s39, 0")
    A(f"s_cbranch_scc0 L_{name}_h1")
    A.vmq_save = [dict(o) for o in A.vmq]
    A.lgq_save = [dict(o) for o in A.lgq]
    SB = [48, 64, 80, 96]
    MX = 30
    CN = 112
    OA = 128
    PB = [144, 152, 160]

    for hf in range(2):
        blocks = [0, 8, 1, 2, 3] if hf == 0 else [4, 5, 6, 7]
        slotk = {b: i for i, b in enumerate(blocks)}
        for b in blocks:
            for st in range(2):
                A(f"ds_read_b128 {a(8 * slotk[b] + 4 * st, 4)}, v28 offset:{K2_K + 2048 * b + 1024 * st}")

        bcount[0] = 0

        def qk(b, buf, cinit):
            k = 8 * slotk[b]
            A(f"v_mfma_f32_32x32x16_bf16 {v(buf, 16)}, {a(k, 4)}, v[20:23], {cinit}")
            A(f"v_mfma_f32_32x32x16_bf16 {v(buf, 16)}, {a(k + 4, 4)}, v[24:27], {v(buf, 16)}")

        def maxblk(buf, first):
            if first:
                A(f"v_max3_f32 v{MX}, v{buf}, v{buf + 1}, v{buf + 2}")
                rest = list(range(3, 16))
            else:
                rest = list(range(16))
            while len(rest) >= 2:
                A(f"v_max3_f32 v{MX}, v{MX}, v{buf + rest[0]}, v{buf + rest[1]}")
                rest = rest[2:]
            if rest:
                A(f"v_max_f32 v{MX}, v{MX}, v{buf + rest[0]}")

        def merge():
            for r in range(16):
                A(f"v_cndmask_b32 v{SB[0] + r}, v{SB[0] + r}, v{SB[1] + r}, s[{MS + 2 * r}:{MS + 2 * r + 1}]")

        if hf == 0:
            qk(0, SB[0], "0"); qk(8, SB[1], "0"); qk(1, SB[2], "0"); qk(2, SB[3], "0")
            merge()
            qk(3, SB[1], "0")
            maxblk(SB[0], True); maxblk(SB[2], False); maxblk(SB[3], False); maxblk(SB[1], False)
        else:
            for i, b in enumerate(blocks):
                qk(b, SB[i], "0")
            maxblk(SB[0], True); maxblk(SB[1], False); maxblk(SB[2], False); maxblk(SB[3], False)
        A(f"v_mov_b32 v31, v{MX}")
        A(f"v_permlane32_swap_b32 v31, v{MX}")
        A(f"v_max_f32 v{MX}, v{MX}, v31")
        A(f"ds_write_b32 v44, v{MX}")
        A.wait_vm(tokV)
        A.wait_all(vm=False)
        A("s_barrier")
        A("ds_read_b32 v31, v45")
        for b in blocks:
            for st in range(2):
                A(f"ds_read_b128 {a(40 + 8 * slotk[b] + 4 * st, 4)}, v28 offset:{K2_V + 2048 * b + 1024 * st}")
        A(f"v_max_f32 v{MX}, v{MX}, v31")
        for r in range(16):
            A(f"v_sub_f32 v{CN + r}, 0, v{MX}")
        cn = v(CN, 16)

        def exppack(buf, pb):
            for r in range(16):
                A(f"v_exp_f32 v{buf + r}, v{buf + r}")
            for d in range(8):
                A(f"v_cvt_pk_bf16_f32 v{pb + d}, v{buf + 2 * d}, v{buf + 2 * d + 1}")
            burst()

        first_pv = [True]

        def pv(b, pb):
            for st in range(2):
                c = "0" if first_pv[0] else v(OA, 16)
                first_pv[0] = False
                A(f"v_mfma_f32_32x32x16_bf16 {v(OA, 16)}, {a(40 + 8 * slotk[b] + 4 * st, 4)}, {v(pb + 4 * st, 4)}, {c}")

        if hf == 0:
            qk(0, SB[0], cn); qk(8, SB[1], cn); qk(1, SB[2], cn); qk(2, SB[3], cn)
            merge()
            qk(3, SB[1], cn)
            exppack(SB[0], PB[0])
            for d in range(8):
                A(f"v_and_b32 v{PB[1] + d}, v{PM + d}, v{PB[0] + d}")
                A(f"v_xor_b32 v{PB[0] + d}, v{PB[0] + d}, v{PB[1] + d}")
            pv(0, PB[0]); pv(8, PB[1])
            exppack(SB[2], PB[2]); pv(1, PB[2])
            exppack(SB[3], PB[0]); pv(2, PB[0])
            exppack(SB[1], PB[1]); pv(3, PB[1])
        else:
            for i, b in enumerate(blocks):
                qk(b, SB[i], cn)
            for i, b in enumerate(blocks):
                exppack(SB[i], PB[i % 3])
                pv(b, PB[i % 3])
        A.stamp(3)
        keep, send = (OA, OA + 8) if hf == 0 else (OA + 8, OA)
        A(f"ds_write_b128 v44, {v(send, 4)} offset:1024")
        A(f"ds_write_b128 v44, {v(send + 4, 4)} offset:2048")
        A(f"ds_write_b32 v44, v{OA + 12} offset:3072")
        A.wait_all(vm=False)
        A("s_barrier")
        A("ds_read_b128 v[144:147], v45 offset:1024")
        A("ds_read_b128 v[148:151], v45 offset:2048")
        A("ds_read_b32 v32, v45 offset:3072")
        A(f"v_add_f32 v32, v32, v{OA + 12}")
        A("v_mov_b32 v33, v32")
        A("v_permlane32_swap_b32 v33, v32")
        A("v_rcp_f32 v33, v32")
        for r in range(8):
            A(f"v_add_f32 v{keep + r}, v{keep + r}, v{144 + r}")
            A(f"v_mul_f32 v{keep + r}, v{keep + r}, v33")
        for d in range(4):
            A(f"v_cvt_pk_bf16_f32 v{152 + d}, v{keep + 2 * d}, v{keep + 2 * d + 1}")
        A("s_mul_i32 s36, s24, 7")
        A("v_add_u32 v34, s36, v5")
        A("s_lshl_b32 s37, s23, 2")
        A("s_add_u32 s37, s37, s38")
        A("s_mul_i32 s37, s37, 28672")
        A("v_bfe_u32 v35, v1, 4, 1")
        A("v_mul_u32_u24 v35, 14336, v35")
        A("v_and_b32 v36, 15, v1")
        A("v_lshl_add_u32 v35, v36, 4, v35")
        A("v_add_u32 v35, s37, v35")
        for jj in range(2):
            j = 2 * hf + jj
            A(f"v_add_u32 v36, {2 * j}, v34")
            A("v_lshrrev_b32 v37, 3, v36")
            A("v_lshl_add_u32 v38, v37, 10, v35")
            A("v_bfe_u32 v37, v36, 2, 1")
            A("v_lshl_add_u32 v38, v37, 9, v38")
            A("v_and_b32 v37, 1, v36")
            A("v_lshl_add_u32 v38, v37, 8, v38")
            A("v_bfe_u32 v37, v36, 1, 1")
            A("v_lshl_add_u32 v38, v37, 3, v38")
            if j == 3:
                exec_lanes(A, 32)
            A(f"buffer_store_dwordx2 {v(152 + 2 * jj, 2)}, v38, s[16:19], 0 offen")
            if j == 3:
                exec_lanes(A, 64)
        if hf == 0:
            A(f"s_branch L_{name}_done")
            A.raw(f"L_{name}_h1:")
            A.hist = []
            A.lgq = [o for o in A.lgq_save] if hasattr(A, "lgq_save") else []
            A.vmq = list(A.vmq_save)
            A.force_wait(lg=0)
    A.raw(f"L_{name}_done:")
    if pers:
        phase_begin(A)
        A("s_lshl_b32 s34, s23, 7")
        A(f"s_add_u32 s34, s34, {hex(C2(layer))}")
        publish(A, 92, 34)
        return None
    A.stamp(4)
    A.dump_stamps(STAMP_WG)
    kernel_end(A, name)
    return K2_LDS, 512, 256, 176


K3_O, K3_W, K3_X, K3_T = 0, 57344, 114688, 122880
K3_LDS = K3_T + 64 * 136


def k3(A, name, layer, pers=False):
    if pers:
        phase_begin(A)
        A("s_cmp_ge_u32 s2, 224")
        A(f"s_cbranch_scc1 L_{name}_{'idle' if PREFETCH else 'skip'}")
    else:
        kernel_begin(A, name, 224)
        A.stamp_base = 70
        A.stamp(0)
    A(f"s_load_dwordx2 s[20:21], s[0:1], {KA_WS}")
    A(f"s_load_dwordx2 s[8:9], s[0:1], {KA_WO}")
    if layer == 0:
        A(f"s_load_dwordx2 s[12:13], s[0:1], {KA_X}")
    if PREFETCH:
        A(f"s_load_dwordx2 s[48:49], s[0:1], {KA_W1}")
    A("v_and_b32 v1, 63, v0")
    A("v_lshrrev_b32 v2, 6, v0")
    A("v_readfirstlane_b32 s22, v2")
    A("s_lshr_b32 s23, s2, 5")
    A("s_and_b32 s24, s2, 31")
    A("v_lshlrev_b32 v2, 4, v1")
    A("v_lshrrev_b32 v3, 3, v1")
    A("v_bfe_u32 v4, v1, 4, 2")
    A("v_lshlrev_b32 v4, 1, v4")
    A("v_and_b32 v5, 7, v1")
    A("v_xor_b32 v4, v4, v5")
    A("v_mul_u32_u24 v5, 896, v3")
    A("v_lshl_add_u32 v5, v4, 4, v5")
    A("s_lshl_b32 s25, s23, 7")
    A("v_add_u32 v5, s25, v5")
    A.wait_all(vm=False)
    srd_off(A, 4, 20, 21, hex(WS_OF + layer * LB), 128 * 14336)
    srd(A, 8, 8, 9, D * D * 2)
    if layer == 0:
        srd(A, 12, 12, 13, XBYTES)
    else:
        srd_off(A, 12, 20, 21, hex(WS_X2), XBYTES)
    srd(A, 16, 20, 21, WSZ)
    toks = {}
    A("s_mul_i32 s30, s22, 7168")
    A("s_lshl_b32 s32, s22, 10")
    for q in range(7):
        A(f"s_add_u32 m0, s32, {K3_W + q * 8192}")
        A(f"s_add_u32 s31, s30, {q * 64 * 896}")
        A("buffer_load_dwordx4 v5, s[8:11], s31 offen lds")

    def xtile():
        A("s_lshl_b32 s34, s24, 6")
        A("s_lshl_b32 s35, s22, 3")
        A("s_add_u32 s34, s34, s35")
        A("s_mul_i32 s34, s34, 896")
        A("s_lshl_b32 s35, s22, 10")
        A(f"s_add_u32 m0, s35, {K3_X}")
        A("buffer_load_dwordx4 v5, s[12:15], s34 offen lds")
    if layer == 0:
        xtile()
    if pers:
        A("s_lshr_b32 s34, s24, 1")
        A("s_lshl_b32 s34, s34, 7")
        A(f"s_add_u32 s34, s34, {hex(C2(layer))}")
        A("v_mov_b32 v10, 0")
        await_cnt(A, 16, 34, 10, 1, 16)
    A("s_and_b32 s26, s22, 3")
    A("s_lshr_b32 s27, s22, 2")
    A("s_mul_i32 s27, s27, 7168")
    A("s_mul_i32 s28, s26, 14336")
    A("s_add_u32 s32, s28, s27")
    A("s_lshl_b32 s29, s24, 2")
    A("s_mul_i32 s29, s29, 14336")
    A("s_add_u32 s30, s29, s32")
    for q in range(7):
        A(f"s_add_u32 m0, s32, {K3_O + q * 1024}")
        A(f"s_add_u32 s31, s30, {q * 1024}")
        toks[0] = A("buffer_load_dwordx4 v2, s[4:7], s31 offen lds")
    if layer == 1:
        xtile()
        toks[0] = A.vmq[-1]["tok"]
    if PREFETCH and layer == 0 and not pers:
        w1_prefetch(A, 48, 224, 126)
    A.stamp(1)
    A("s_and_b32 s33, s22, 1")
    A("s_lshr_b32 s34, s22, 1")
    A("s_mul_i32 s35, s33, 28672")
    A("v_add_u32 v6, s35, v2")
    A("v_lshrrev_b32 v7, 4, v1")
    A("v_bfe_u32 v8, v1, 2, 2")
    A("v_and_b32 v9, 3, v1")
    A("v_lshrrev_b32 v10, 1, v7")
    A("v_and_b32 v11, 1, v7")
    A("v_lshlrev_b32 v12, 4, v10")
    A("v_lshl_add_u32 v12, v11, 2, v12")
    A("v_add_u32 v12, v12, v8")
    A("v_lshlrev_b32 v12, 7, v12")
    A("v_lshl_add_u32 v12, v9, 3, v12")
    A("v_lshrrev_b32 v13, 1, v8")
    A("v_lshl_add_u32 v13, v11, 1, v13")
    A("v_xor_b32 v14, s34, v13")
    A("v_lshl_add_u32 v16, v14, 5, v12")
    A(f"v_add_u32 v16, {K3_W}, v16")
    A("v_lshl_add_u32 v14, v7, 2, v8")
    A("v_bfe_u32 v15, v14, 1, 2")
    A("v_lshlrev_b32 v14, 7, v14")
    A("v_lshl_add_u32 v14, v9, 3, v14")
    A("s_lshl_b32 s38, s33, 12")
    A(f"s_add_u32 s38, s38, {K3_X}")
    A("v_add_u32 v14, s38, v14")
    A("v_xor_b32 v20, s34, v15")
    A("v_lshl_add_u32 v18, v20, 5, v14")
    ACC = 32
    AF3, BF3 = 48, 72

    def reads(kp, buf):
        for mt in range(2):
            A(f"ds_read_b128 {v(AF3 + 8 * buf + 4 * mt, 4)}, v6 offset:{mt * 14336 + kp * 1024}")
        for t in range(2):
            A(f"ds_read_b64_tr_b16 {v(BF3 + 4 * buf + 2 * t, 2)}, v16 offset:{kp * 4096 + t * 1024}")

    def mfmas(kp, buf):
        for mt in range(2):
            c = "0" if kp == 0 else v(ACC + 4 * mt, 4)
            A(f"v_mfma_f32_16x16x32_bf16 {v(ACC + 4 * mt, 4)}, {v(AF3 + 8 * buf + 4 * mt, 4)}, {v(BF3 + 4 * buf, 4)}, {c}")

    A.wait_vm(toks[0])
    A("s_barrier")
    A.stamp(2)
    reads(0, 0)
    reads(1, 1)
    for kp in range(14):
        if kp + 2 < 14:
            reads(kp + 2, (kp + 2) % 3)
        if kp == 12:
            for mt in range(2):
                A(f"ds_read_b64_tr_b16 {v(96 + 2 * mt, 2)}, v18 offset:{mt * 2048}")
        mfmas(kp, kp % 3)
    A.stamp(4)
    XR = 96
    PKD = 112
    for mt in range(2):
        for hlf in range(2):
            x = XR + 2 * mt + hlf
            A(f"v_lshlrev_b32 v104, 16, v{x}")
            A(f"v_and_b32 v105, 0xffff0000, v{x}")
            A(f"v_add_f32 v{ACC + 4 * mt + 2 * hlf}, v{ACC + 4 * mt + 2 * hlf}, v104")
            A(f"v_add_f32 v{ACC + 4 * mt + 2 * hlf + 1}, v{ACC + 4 * mt + 2 * hlf + 1}, v105")
            A(f"v_cvt_pk_bf16_f32 v{PKD + 2 * mt + hlf}, v{ACC + 4 * mt + 2 * hlf}, v{ACC + 4 * mt + 2 * hlf + 1}")
    A("s_lshl_b32 s39, s24, 1")
    A("s_add_u32 s39, s39, s33")
    A("s_mul_i32 s39, s39, 28672")
    A("s_lshl_b32 s40, s23, 3")
    A("s_lshl_b32 s41, s34, 1")
    A("s_add_u32 s40, s40, s41")
    A("s_lshl_b32 s40, s40, 9")
    A("s_add_u32 s39, s39, s40")
    A(f"s_add_u32 s39, s39, {hex(WS_X1F + layer * LB)}")
    A("v_bfe_u32 v21, v1, 3, 1")
    A("v_lshlrev_b32 v21, 9, v21")
    A("v_lshl_add_u32 v21, v7, 7, v21")
    A("v_and_b32 v22, 7, v1")
    A("v_lshl_add_u32 v21, v22, 4, v21")
    A(f"buffer_store_dwordx4 {v(PKD, 4)}, v21, s[16:19], s39 offen")
    TP = 136
    A("v_and_b32 v22, 15, v1")
    A(f"v_mul_u32_u24 v23, {TP}, v22")
    A("v_lshl_add_u32 v23, v7, 3, v23")
    A(f"s_mul_i32 s41, s34, {16 * TP}")
    A("s_lshl_b32 s42, s33, 6")
    A("s_add_u32 s41, s41, s42")
    A(f"s_add_u32 s41, s41, {K3_T}")
    A("v_add_u32 v23, s41, v23")
    for mt in range(2):
        A(f"ds_write_b64 v23, {v(PKD + 2 * mt, 2)} offset:{mt * 32}")
    A("v_lshl_add_u32 v24, v7, 2, v8")
    A(f"v_mul_u32_u24 v24, {TP}, v24")
    A("v_lshl_add_u32 v24, v9, 3, v24")
    A("v_add_u32 v24, s41, v24")
    TR = 120
    for mt in range(2):
        A(f"ds_read_b64_tr_b16 {v(TR + 2 * mt, 2)}, v24 offset:{mt * 32}")
    A("s_lshl_b32 s42, s24, 2")
    A("s_lshl_b32 s43, s33, 1")
    A("s_add_u32 s42, s42, s43")
    A("s_mul_i32 s43, s42, 14336")
    A("s_lshl_b32 s44, s23, 4")
    A("s_lshl_b32 s45, s34, 2")
    A("s_add_u32 s44, s44, s45")
    A("s_lshl_b32 s44, s44, 7")
    A("s_add_u32 s43, s43, s44")
    A(f"s_add_u32 s43, s43, {hex(WS_X1T + layer * LB)}")
    A("v_lshlrev_b32 v25, 7, v7")
    A("v_lshl_add_u32 v25, v22, 3, v25")
    A("v_mov_b32 v26, 0x3f803f80")
    for i in range(4):
        A(f"v_mov_b32 v{28 + i}, 0")
    for mt in range(2):
        A(f"s_add_u32 s44, s43, {mt * 14336}")
        A(f"buffer_store_dwordx2 {v(TR + 2 * mt, 2)}, v25, s[16:19], s44 offen")
        for hlf in range(2):
            A(f"v_dot2_f32_bf16 v{28 + 2 * mt}, v{TR + 2 * mt + hlf}, v26, v{28 + 2 * mt}")
            A(f"v_dot2_f32_bf16 v{29 + 2 * mt}, v{TR + 2 * mt + hlf}, v{TR + 2 * mt + hlf}, v{29 + 2 * mt}")
    A("v_cmp_gt_u32 vcc, 16, v1")
    A("v_lshlrev_b32 v27, 2, v1")
    A("s_lshl_b32 s44, s42, 7")
    A(f"s_add_u32 s44, s44, {hex(WS_ST + (0 if layer == 0 else 2) * 16384)}")
    for mt in range(2):
        reduce_groups(A, 28 + 2 * mt, 104)
        reduce_groups(A, 29 + 2 * mt, 105)
        A(f"v_cndmask_b32 v{106 + mt}, v{29 + 2 * mt}, v{28 + 2 * mt}, vcc")
    exec_lanes(A, 32)
    A("buffer_atomic_add_f32 v106, v27, s[16:19], s44 offen")
    A("buffer_atomic_add_f32 v107, v27, s[16:19], s44 offen offset:128")
    exec_lanes(A, 64)
    if pers:
        A("s_and_b32 s34, s2, 7")
        A("s_lshl_b32 s34, s34, 7")
        A(f"s_add_u32 s34, s34, {hex(C3(layer))}")
        publish(A, 16, 34)
        A.raw(f"L_{name}_skip:")
        return None
    A.stamp(5)
    A.dump_stamps(STAMP_WG)
    kernel_end(A, name)
    return K3_LDS, 512, 256, 176


def pfx(A, name, nwg):
    kernel_begin(A, name, nwg)
    A(f"s_load_dwordx2 s[48:49], s[0:1], {KA_W1}")
    A("v_and_b32 v1, 63, v0")
    A("v_lshrrev_b32 v2, 6, v0")
    A("v_readfirstlane_b32 s22, v2")
    A.wait_all(vm=False)
    w1_prefetch(A, 48, nwg, 20)
    kernel_end(A, name)
    return 0, 512, 64, 64


def g12(A, name, layer):
    gk(A, name, layer, 1, fused=True)
    return gk(A, name, layer, 2, fused=True)


def idle_prefetch(A, layer):
    phase_begin(A)
    A(f"s_load_dwordx2 s[48:49], s[0:1], {KA_W1}")
    A(f"s_load_dwordx2 s[52:53], s[0:1], {KA_W2}")
    A("v_and_b32 v1, 63, v0")
    A("v_lshrrev_b32 v2, 6, v0")
    A("v_readfirstlane_b32 s22, v2")
    A("s_lshr_b32 s34, s2, 3")
    A("s_sub_u32 s34, s34, 28")
    A("s_lshl_b32 s34, s34, 3")
    A("s_add_u32 s34, s34, s22")
    A("s_bfe_u32 s36, s2, 0x20001")
    A.wait_all(vm=False)
    srd(A, 48, 48, 49, S * F * 2)
    srd(A, 52, 52, 53, S * F * 2)
    A("s_mul_i32 s35, s34, 448")
    A("s_mul_i32 s37, s36, 896")
    for q in range(7):
        A(f"s_add_u32 s38, s35, {64 * q}")
        A("v_add_u32 v10, s38, v1")
        div_const(A, "v11", "v10", 7, 39, rng=14400)
        A("v_mul_u32_u24 v12, 7, v11")
        A("v_sub_u32 v12, v10, v12")
        A("v_mul_u32_u24 v11, 3584, v11")
        A("v_lshl_add_u32 v11, v12, 7, v11")
        A.touch("buffer_load_dword v13, v11, s[48:51], s37 offen")
    if layer == 0:
        A("s_sub_u32 s35, s2, 224")
        A("s_lshl_b32 s35, s35, 3")
        A("s_add_u32 s35, s35, s22")
        A("s_mul_i32 s35, s35, 28672")
        A("v_lshlrev_b32 v10, 7, v1")
        for q in range(4):
            A(f"s_add_u32 s38, s35, {8192 * q}")
            if q == 3:
                exec_lanes(A, 32)
            A.touch("buffer_load_dword v13, v10, s[52:55], s38 offen")
        exec_lanes(A, 64)
    else:
        A("s_mul_i32 s35, s34, 448")
        A("s_lshl_b32 s37, s36, 10")
        for q in range(7):
            A(f"s_add_u32 s38, s35, {64 * q}")
            A("v_add_u32 v10, s38, v1")
            A("v_lshrrev_b32 v11, 3, v10")
            A("v_lshlrev_b32 v11, 12, v11")
            A("v_and_b32 v12, 7, v10")
            A("v_lshl_add_u32 v11, v12, 7, v11")
            A.touch("buffer_load_dword v13, v11, s[52:55], s37 offen")


def pk(A, name):
    kernel_begin(A, name, 256)
    st = A.stamps
    A.stamps = False
    if "one" in OPT:
        k1(A, "pk1a", 0, pers=True)
    k2(A, "pk2a", 0, pers=True)
    k3(A, "pk3a", 0, pers=True)
    gk(A, "pg1a", 0, 1, pers=True)
    if PREFETCH:
        A("s_branch L_pg1a_go")
        A.raw("L_pk3a_idle:")
        idle_prefetch(A, 0)
        A.raw("L_pg1a_go:")
    gk(A, "pg2a", 0, 2, pers=True)
    k1(A, "pk1b", 1, pers=True)
    k2(A, "pk2b", 1, pers=True)
    k3(A, "pk3b", 1, pers=True)
    gk(A, "pg1b", 1, 1, pers=True)
    if PREFETCH:
        A("s_branch L_pg1b_go")
        A.raw("L_pk3b_idle:")
        idle_prefetch(A, 1)
        A.raw("L_pg1b_go:")
    gk(A, "pg2b", 1, 2, pers=True)
    A.stamps = st
    phase_begin(A)
    kernel_end(A, name)
    return G_LDS, 512, 256, 176


def kd2(name, nv, acc):
    return kd(name, nv=nv, acc=acc)


def build(kernels, path, stamps=False):
    A = Asm()
    A.stamps = stamps
    A.store_mod = "sc0 sc1"
    for o in OPT:
        if o.startswith("st="):
            A.store_mod = o[3:].replace("+", " ")
    launches = []
    kds = []
    for (name, fn, args, grid) in kernels:
        lds, threads, nv, acc = fn(A, name, *args)
        if name == MAIN:
            launches.append(f"; @launch grid=({grid},1,1) block=({threads},1,1) lds={lds}")
        else:
            launches.append(f"; @launch kernel={name} grid=({grid},1,1) block=({threads},1,1) lds={lds}")
        kds.append(kd2(name, nv, acc))
    head = open("interleave_layers__sliding_block__mixer_token_mlp__prompt.s.ref").read()
    hdr = [l for l in head.splitlines() if l.startswith(";") and "@launch" not in l][:12]
    txt = "\n".join(hdr) + "\n" + "\n".join(launches) + "\n"
    txt += '.amdgcn_target "amdgcn-amd-amdhsa--gfx950"\n.text\n'
    txt += A.text()
    txt += '.section .rodata,"a"\n' + "\n".join(kds) + "\n"
    open(path, "w").write(txt)
    if RTN:
        open("rtn.txt", "w").write(repr(RTN))
    print(f"wrote {path}: {A.ninstr} instrs, {A.nops_inserted} nop states inserted, {len(txt)} bytes")


if __name__ == "__main__":
    ks = []
    for L, c in enumerate("ab"):
        ks += [(f"k1{c}_kernel", k1, (L,), 256), (f"k2{c}_kernel", k2, (L,), 256), (f"k3{c}_kernel", k3, (L,), 224),
               ] + ([(f"g12{c}_kernel", g12, (L,), 256)] if "fuse" in OPT else
                    [(f"g1{c}_kernel", gk, (L, 1), 224), (f"g2{c}_kernel", gk, (L, 2), 256)])
    if "pers" in OPT:
        ks = [("k1a_kernel", k1, (0,), 256), ("pb_kernel", pk, (), 256)]
        if "one" in OPT:
            ks = [(MAIN, pk, (), 256)]
    if "pfx" in OPT:
        ks += [("pfx_kernel", pfx, (224,), 224), ("pfy_kernel", pfx, (256,), 256)]
    build(ks, sys.argv[1] if len(sys.argv) > 1 else "dev.s", stamps=("--stamps" in sys.argv))
```

```python
import sys
import struct
sys.path.insert(0, "tools")
OPT = set(sys.argv[1:])
from dsl import Asm, v, a, s

S, D, H, DH, F = 2048, 448, 16, 28, 1792
PREFETCH = 'nopf' not in sys.argv
KA_X, KA_WQKV, KA_WO, KA_BX, KA_W1, KA_B1, KA_W2, KA_B2, KA_OUT, KA_DBG, KA_WS = [8 * i for i in range(11)]
WS_QF = 0x000000
WS_KF = 0x200000
WS_VF = 0x400000
WS_OF = 0x600000
WS_X1T = 0x800000
WS_X1F = 0xA00000
WS_UF = 0xC00000
WS_X2 = 0xE00000
WS_WC = 0x1200000
WS_CS = 0x1380000
WS_CNT = 0x100C000
WS_ST = 0x1000000
XBYTES = S * D * 2
MAIN = "interleave_layers__sliding_block__mixer_token_mlp__prompt_kernel"
LB = 0x2000000
WSZ = 0x4000000


def f32(x):
    return struct.unpack("<I", struct.pack("<f", x))[0]


def hexf(x):
    return "0x%08x" % f32(x)


def srd(A, d, base_lo, base_hi, nbytes):
    if base_lo != d:
        A(f"s_mov_b32 s{d}, s{base_lo}")
    A(f"s_and_b32 s{d + 1}, s{base_hi}, 0xffff")
    A(f"s_mov_b32 s{d + 2}, {hex(nbytes)}")
    A(f"s_mov_b32 s{d + 3}, 0x00020000")


def srd_off(A, d, base_lo, base_hi, off, nbytes):
    A(f"s_add_u32 s{d}, s{base_lo}, {off}")
    A(f"s_addc_u32 s{d + 1}, s{base_hi}, 0")
    A(f"s_and_b32 s{d + 1}, s{d + 1}, 0xffff")
    A(f"s_mov_b32 s{d + 2}, {hex(nbytes)}")
    A(f"s_mov_b32 s{d + 3}, 0x00020000")


def kernel_begin(A, name, nwg):
    A.raw(f".globl {name}")
    A.raw(".p2align 8")
    A.raw(f".type {name},@function")
    A.raw(f"{name}:")
    A.hist = []
    A.vmq = []
    A.lgq = []
    A(f"s_cmp_ge_u32 s2, {nwg}")
    A(f"s_cbranch_scc1 L_{name}_end")
    if "rt" in OPT:
        A("s_memrealtime s[98:99]")


KIDX = [0]


def kernel_end(A, name):
    if "rt" in OPT:
        A.wait_all()
        A("s_memrealtime s[96:97]")
        A(f"s_load_dwordx2 s[60:61], s[0:1], {KA_WS}")
        A.wait_all()
        A("s_mov_b32 s62, 0x2000000")
        A("s_mov_b32 s63, 0x00020000")
        A("v_mov_b32 v2, s98")
        A("v_mov_b32 v3, s96")
        A("s_lshl_b32 s64, s2, 3")
        A(f"s_add_u32 s64, s64, {0x1800000 + KIDX[0] * 4096}")
        A("v_mov_b32 v4, s64")
        A("v_cmp_eq_u32 vcc, 0, v0")
        A("s_and_saveexec_b64 s[66:67], vcc")
        A(f"s_cbranch_execz L_{name}_end")
        A("buffer_store_dwordx2 v[2:3], v4, s[60:63], 0 offen")
        KIDX[0] += 1
    A.raw(f"L_{name}_end:")
    A("s_endpgm")


def kd(name, nv=512, acc=256, ns=102):
    return f"""
.p2align 6
.amdhsa_kernel {name}
  .amdhsa_next_free_vgpr {nv}
  .amdhsa_next_free_sgpr {ns}
  .amdhsa_accum_offset {acc}
  .amdhsa_group_segment_fixed_size 0
  .amdhsa_kernarg_size 88
  .amdhsa_user_sgpr_count 2
  .amdhsa_user_sgpr_kernarg_segment_ptr 1
  .amdhsa_system_sgpr_workgroup_id_x 1
.end_amdhsa_kernel"""


def div_const(A, dst, src, d, tmp_s, rng=4096):
    m = (1 << 20) // d + 1
    for x in range(0, rng):
        assert (x * m) >> 20 == x // d and x * m < (1 << 32), (x, d)
    A(f"s_mov_b32 s{tmp_s}, {m}")
    A(f"v_mul_lo_u32 {dst}, {src}, s{tmp_s}")
    A(f"v_lshrrev_b32 {dst}, 20, {dst}")


def exec_lanes(A, n):
    if n == 64:
        A("s_mov_b64 exec, -1")
    elif n <= 32:
        A(f"s_mov_b64 exec, {hex((1 << n) - 1)}")
    else:
        raise ValueError


STAMP_WG = 37


def interleave(main, fillers):
    n = len(main)
    done = 0
    for i, m in enumerate(main):
        m()
        want = (len(fillers) * (i + 1)) // n
        while done < want:
            fillers[done]()
            done += 1


def sprinkle(base, extra):
    if not base:
        return list(extra)
    out = []
    k = 0
    for i, b in enumerate(base):
        out.append(b)
        while k < (len(extra) * (i + 1)) // len(base):
            out.append(extra[k])
            k += 1
    out += extra[k:]
    return out


def C4(layer): return WS_CNT + layer * 1024
def C2(layer): return WS_CNT + 2048 + layer * 2048
def C3(layer): return WS_CNT + 6144 + layer * 1024
C5 = WS_CNT + 8192
F1 = WS_CNT + 10240
F0 = WS_CNT + 12288
UID = [0]
POLL_SLEEP = int(([o[6:] for o in OPT if o.startswith('sleep=')] + ['2'])[0])
NPOLL = int(([o[6:] for o in OPT if o.startswith('npoll=')] + ['1'])[0])
PV = 168


def publish(A, sr, soff_sgpr):
    UID[0] += 1
    lab = f"L_pub{UID[0]}"
    A.force_wait(vm=0, lg=0)
    A("s_barrier")
    A("v_mov_b32 v10, 0")
    A("v_mov_b32 v11, 1")
    A("v_cmp_eq_u32 vcc, 0, v0")
    A("s_and_saveexec_b64 s[44:45], vcc")
    A(f"s_cbranch_execz {lab}")
    A(f"buffer_atomic_add v11, v10, s[{sr}:{sr + 3}], s{soff_sgpr} offen sc1")
    A.raw(lab + ":")
    A("s_mov_b64 exec, -1")
    rtp(A, "publish")


def await_cnt(A, sr, soff_sgpr, vaddr, nlanes, target):
    UID[0] += 1
    lp, lw, ld = f"L_awp{UID[0]}", f"L_aww{UID[0]}", f"L_awd{UID[0]}"
    A("s_cmp_lg_u32 s22, 0")
    A(f"s_cbranch_scc1 {lw}")
    A(f"s_mov_b64 exec, {hex((1 << nlanes) - 1)}")
    A("s_mov_b32 s45, 0x40000")
    ld_ = f"    buffer_load_dword v{{}}, v{vaddr}, s[{sr}:{sr + 3}], s{soff_sgpr} offen sc0 sc1"
    if NPOLL == 1:
        A.raw(lp + ":")
        A.raw(ld_.format(PV))
        A.raw("    s_waitcnt vmcnt(0)")
        A.raw(f"    v_cmp_gt_u32 vcc, {target}, v{PV}")
        A.raw(f"    s_cbranch_vccz {ld}")
        A.raw("    s_sub_u32 s45, s45, 1")
        A.raw("    s_cmp_lg_u32 s45, 0")
        A.raw(f"    s_cbranch_scc1 {lp}")
    else:
        A.raw("    s_waitcnt vmcnt(0)")
        for i in range(NPOLL):
            A.raw(ld_.format(PV + i))
            A.raw(f"    s_sleep {POLL_SLEEP}")
        A.raw(lp + ":")
        for i in range(NPOLL):
            A.raw(f"    s_waitcnt vmcnt({NPOLL - 1})")
            A.raw(f"    v_cmp_gt_u32 vcc, {target}, v{PV + i}")
            A.raw(f"    s_cbranch_vccz {ld}")
            A.raw(ld_.format(PV + i))
            A.raw(f"    s_sleep {POLL_SLEEP}")
        A.raw("    s_sub_u32 s45, s45, 1")
        A.raw("    s_cmp_lg_u32 s45, 0")
        A.raw(f"    s_cbranch_scc1 {lp}")
    A.raw(ld + ":")
    A.raw("    s_mov_b64 exec, -1")
    A.raw(lw + ":")
    A.hist = []
    A.nop(1)
    A("s_barrier")
    rtp(A, "await")


RTP = [0]
RTN = []


def rtp(A, label, r0=12):
    if "rtp" not in OPT:
        return
    UID[0] += 1
    lab = f"L_rtp{UID[0]}"
    A("s_memrealtime s[96:97]")
    A.force_wait(lg=0)
    A(f"v_mov_b32 v{r0}, s96")
    A("s_lshl_b32 s97, s2, 2")
    A(f"s_add_u32 s97, s97, {0x1900000 + RTP[0] * 1024}")
    A(f"v_mov_b32 v{r0 + 1}, s97")
    A("v_cmp_eq_u32 vcc, 0, v0")
    A("s_and_saveexec_b64 s[98:99], vcc")
    A(f"s_cbranch_execz {lab}")
    A.raw(f"    global_store_dword v{r0 + 1}, v{r0}, s[20:21]")
    A.raw(lab + ":")
    A("s_mov_b64 exec, s[98:99]")
    RTP[0] += 1
    RTN.append(label)


def phase_begin(A):
    A.hist = []
    A.vmq = []
    A.lgq = []
    A.nop(2)


def reduce_groups(A, reg, tmp):
    A(f"v_mov_b32 v{tmp}, v{reg}")
    A(f"v_permlane16_swap_b32 v{tmp}, v{reg}")
    A(f"v_add_f32 v{reg}, v{reg}, v{tmp}")
    A(f"v_mov_b32 v{tmp}, v{reg}")
    A(f"v_permlane32_swap_b32 v{tmp}, v{reg}")
    A(f"v_add_f32 v{reg}, v{reg}, v{tmp}")


def w1_prefetch(A, sr, nwg, vd, prep_only=False):
    per = 14336 // (nwg // 8) // 8
    A("s_lshr_b32 s34, s2, 3")
    A("s_lshl_b32 s34, s34, 3")
    A("s_add_u32 s34, s34, s22")
    A(f"s_mul_i32 s35, s34, {per}")
    A("v_add_u32 v10, s35, v1")
    A("s_bfe_u32 s36, s2, 0x20001")
    div_const(A, "v11", "v10", 7, 35, rng=14400)
    A("v_mul_u32_u24 v12, 7, v11")
    A("v_sub_u32 v12, v10, v12")
    A("v_mul_u32_u24 v11, 3584, v11")
    A("v_lshl_add_u32 v11, v12, 7, v11")
    A("s_mul_i32 s36, s36, 896")
    srd(A, sr, sr, sr + 1, S * F * 2)
    if prep_only:
        A("s_mov_b32 s33, s36")
        return
    if per < 64:
        A(f"s_mov_b32 exec_hi, {hex((1 << (per - 32)) - 1)}")
    A.touch(f"buffer_load_dword v{vd}, v11, s[{sr}:{sr + 3}], s36 offen")
    if per < 64:
        A("s_mov_b64 exec, -1")


G_RING = 9
G_RB = G_RING * 4096
G_TAB = 4 * G_RB
G_LDS = G_TAB + 16384
G_PRE0 = int(([o[5:] for o in OPT if o.startswith("pre0=")] + ["3"])[0])
G_PREA = int(([o[5:] for o in OPT if o.startswith("prea=")] + ["5"])[0])
G_SP = int(([o[3:] for o in OPT if o.startswith("sp=")] + ["2"])[0])


def gk(A, name, layer, which, fused=False, pers=False):
    g1 = which == 1
    nwg = 224 if g1 else 256
    NK = 16 if g1 else 14
    pitch = 3584 if g1 else 4096
    if pers:
        phase_begin(A)
        if g1:
            A("s_cmp_ge_u32 s2, 224")
            A(f"s_cbranch_scc1 L_{name}_skip")
    elif not fused:
        kernel_begin(A, name, nwg)
    elif g1:
        kernel_begin(A, name, 256)
        A("s_cmp_ge_u32 s2, 224")
        A(f"s_cbranch_scc1 L_{name}_p2")
    else:
        A.raw(f"L_{name}_p2:")
        phase_begin(A)
    A.stamp_base = 70
    if not (fused and not g1) and not pers:
        A.stamp(0)
    A(f"s_load_dwordx2 s[20:21], s[0:1], {KA_WS}")
    A(f"s_load_dwordx2 s[4:5], s[0:1], {KA_W1 if g1 else KA_W2}")
    A(f"s_load_dwordx2 s[12:13], s[0:1], {KA_B1 if g1 else KA_B2}")
    if (not g1) and layer == 1:
        A(f"s_load_dwordx2 s[16:17], s[0:1], {KA_OUT}")
    if g1 and PREFETCH and not fused:
        A(f"s_load_dwordx2 s[92:93], s[0:1], {KA_W2}")
    A("v_and_b32 v1, 63, v0")
    A("v_lshrrev_b32 v2, 6, v0")
    A("v_readfirstlane_b32 s22, v2")
    NI4 = 7 if g1 else 8
    A("s_and_b32 s25, s2, 7")
    A("s_lshr_b32 s26, s2, 3")
    A("s_and_b32 s24, s25, 1")
    A("s_lshl_b32 s24, s24, 2")
    A("s_and_b32 s27, s26, 3")
    A("s_add_u32 s24, s24, s27")
    A("s_lshr_b32 s23, s25, 1")
    A(f"s_mul_i32 s23, s23, {NI4}")
    A("s_lshr_b32 s27, s26, 2")
    A("s_add_u32 s23, s23, s27")
    A("s_and_b32 s47, s22, 3")
    A("s_lshr_b32 s48, s22, 2")
    A("v_lshrrev_b32 v3, 3, v1")
    A("v_bfe_u32 v4, v1, 4, 2")
    A("v_lshlrev_b32 v4, 1, v4")
    A("v_and_b32 v5, 7, v1")
    A("v_xor_b32 v4, v4, v5")
    A(f"v_mul_u32_u24 v5, {pitch}, v3")
    A("v_lshl_add_u32 v5, v4, 4, v5")
    A(f"s_mul_i32 s27, s47, {NK * 32 * pitch}")
    A(f"s_mul_i32 s28, s48, {16 * pitch}")
    A("s_add_u32 s27, s27, s28")
    A("s_lshl_b32 s28, s23, 7")
    A("s_add_u32 s27, s27, s28")
    A("v_add_u32 v5, s27, v5")
    A("v_lshrrev_b32 v7, 4, v1")
    A("v_and_b32 v8, 7, v1")
    A("v_lshlrev_b32 v8, 4, v8")
    A("v_lshl_add_u32 v8, v7, 7, v8")
    A("v_bfe_u32 v9, v1, 3, 1")
    A("v_lshl_add_u32 v6, v9, 9, v8")
    A("s_cmp_eq_u32 s48, 0")
    A("s_cselect_b64 s[50:51], -1, 0")
    A("v_cndmask_b32 v9, v8, v6, s[50:51]")
    A.wait_all(vm=False)
    srd(A, 4, 4, 5, (S * F * 2))
    srd(A, 8, 20, 21, WSZ)
    srd(A, 12, 12, 13, (F if g1 else S) * 2)
    if (not g1) and layer == 1:
        srd(A, 16, 16, 17, XBYTES)
    elif not g1:
        srd_off(A, 16, 20, 21, hex(WS_X2), XBYTES)
    if g1:
        A(f"s_mul_i32 s29, s47, {16 * 28672}")
        A("s_mul_i32 s30, s24, 3584")
        A("s_add_u32 s29, s29, s30")
        A(f"s_add_u32 s29, s29, {hex(WS_X1F + layer * LB)}")
        bstep = 28672
    else:
        A("s_mul_i32 s29, s24, 56")
        A("s_mul_i32 s30, s47, 14")
        A("s_add_u32 s29, s29, s30")
        A("s_mul_i32 s29, s29, 3584")
        A(f"s_add_u32 s29, s29, {hex(WS_UF + layer * LB)}")
        bstep = 3584
    A("s_lshl_b32 s30, s48, 11")
    A("s_add_u32 s29, s29, s30")
    A(f"s_mul_i32 s31, s47, {G_RB}")
    A("s_lshl_b32 s30, s48, 11")
    A("s_add_u32 s49, s31, s30")
    NB = 8
    BR = 112
    toks = {}
    A(f"v_add_u32 v4, {8 * pitch - 1024}, v5")
    USE_ROT = "rotg" in OPT
    ROT = 54
    if USE_ROT:
        A("s_lshr_b32 s34, s2, 3")
        A(f"s_mul_i32 s34, s34, {NK * 2341 if g1 else NK * 2048}")
        A("s_lshr_b32 s34, s34, 16")
        A(f"s_mul_i32 s54, s34, {32 * pitch}")
        A(f"s_mul_i32 s55, s34, {bstep}")
        A("s_add_u32 s55, s55, s29")
        A(f"s_sub_u32 s56, {NK}, s34")
        A(f"s_mov_b32 s57, s34")

    def issue_ops(st, part=None):
        slot = st % G_RING
        b = BR + 8 * (st % NB)

        def fa0():
            A(f"s_add_u32 m0, s49, {slot * 4096}")
            if USE_ROT:
                A(f"s_cmp_le_u32 s56, {st}")
                A(f"s_cselect_b32 s35, {NK * 32 * pitch}, 0")
                A(f"s_add_u32 s32, s54, {st * 32 * pitch}")
                A("s_sub_u32 s32, s32, s35")
            else:
                A(f"s_mov_b32 s32, {st * 32 * pitch}")
            A("buffer_load_dwordx4 v5, s[4:7], s32 offen lds")

        def fb0():
            if USE_ROT:
                A(f"s_cmp_le_u32 s56, {st}")
                A(f"s_cselect_b32 s35, {NK * bstep}, 0")
                A(f"s_add_u32 s33, s55, {st * bstep}")
                A("s_sub_u32 s33, s33, s35")
            else:
                A(f"s_add_u32 s33, s29, {st * bstep}")
            A(f"buffer_load_dwordx4 {v(b, 4)}, v6, s[8:11], s33 offen")

        def fa1():
            A("buffer_load_dwordx4 v4, s[4:7], s32 offen offset:1024 lds")

        def fb1():
            toks[st] = A(f"buffer_load_dwordx4 {v(b + 4, 4)}, v9, s[8:11], s33 offen offset:1024")
        if part == "A":
            return [fa0, fa1]
        if part == "B":
            return [fb0, fb1]
        return [fa0, fa1, fb0, fb1]

    if "notouch" not in OPT:
        A("s_lshr_b32 s34, s2, 3")
        A("s_lshl_b32 s34, s34, 3")
        A("s_add_u32 s34, s34, s22")
        A("s_and_b32 s37, s2, 1")
        if g1:
            A("s_lshl_b32 s35, s34, 5")
        else:
            A("s_mul_i32 s35, s34, 25")
        A("v_add_u32 v10, s35, v1")
        if g1:
            div_const(A, "v12", "v10", 112, 38, rng=7200)
            A("v_mul_u32_u24 v13, 112, v12")
            A("v_sub_u32 v13, v10, v13")
            A("v_mul_u32_u24 v12, 28672, v12")
            A("v_lshl_add_u32 v12, v13, 7, v12")
            A("s_mul_i32 s37, s37, 14336")
            A(f"s_add_u32 s37, s37, {hex(WS_X1F + layer * LB)}")
        else:
            A("v_lshlrev_b32 v12, 7, v10")
            A("s_mul_i32 s37, s37, 802816")
            A(f"s_add_u32 s37, s37, {hex(WS_UF + layer * LB)}")
        exec_lanes(A, 32 if g1 else 25)
        A.touch("buffer_load_dword v99, v12, s[8:11], s37 offen")
        exec_lanes(A, 64)
    def stats_loads():
        A("v_lshrrev_b32 v10, 2, v1")
        A("v_lshlrev_b32 v10, 7, v10")
        A("v_and_b32 v11, 3, v1")
        A("v_lshl_add_u32 v10, v11, 4, v10")
        A("s_lshl_b32 s34, s22, 11")
        A(f"s_add_u32 s34, s34, {hex(WS_ST + (0 if layer == 0 else 2) * 16384)}")
        A("buffer_load_dwordx4 v[16:19], v10, s[8:11], s34 offen")
        A("buffer_load_dwordx4 v[20:23], v10, s[8:11], s34 offen offset:64")

    if g1 and not pers:
        stats_loads()
    PRE0 = G_PRE0
    PRE = 7
    F2 = (fused and not g1) or pers
    if F2:
        PRE0 = PRE
        PREA = G_PREA
        for st in range(PREA):
            for f in issue_ops(st, "A"):
                f()
    else:
        for st in range(PRE0):
            for f in issue_ops(st):
                f()
    EP = 100
    if g1:
        A("s_lshr_b32 s36, s47, 1")
        A("s_lshl_b32 s37, s23, 7")
        A("s_lshl_b32 s38, s36, 6")
        A("s_add_u32 s37, s37, s38")
        A("v_lshlrev_b32 v33, 3, v7")
        A(f"buffer_load_dwordx2 {v(EP, 2)}, v33, s[12:15], s37 offen")
        A(f"buffer_load_dwordx2 {v(EP + 2, 2)}, v33, s[12:15], s37 offen offset:32")

    def g2_early():
        A("s_lshl_b32 s36, s23, 2")
        A("s_add_u32 s36, s36, s47")
        A("s_mul_i32 s37, s36, 14336")
        A("s_mul_i32 s38, s24, 1792")
        A("s_add_u32 s37, s37, s38")
        A("s_lshl_b32 s38, s48, 10")
        A("s_add_u32 s37, s37, s38")
        A(f"s_add_u32 s37, s37, {hex(WS_X1T + layer * LB)}")
        A("v_and_b32 v33, 15, v1")
        A("v_lshlrev_b32 v35, 3, v33")
        A("v_lshl_add_u32 v35, v7, 7, v35")
        for k in range(2):
            A(f"buffer_load_dwordx2 {v(EP + 2 * k, 2)}, v35, s[8:11], s37 offen offset:{k * 512}")
        A("s_lshl_b32 s38, s36, 5")
        A("v_lshlrev_b32 v36, 1, v33")
        A(f"buffer_load_ushort v{EP + 4}, v36, s[12:15], s38 offen")
    if (not g1) and not F2:
        g2_early()
    if F2:
        if g1:
            A(f"s_mov_b32 s34, {hex(C3(layer))}")
            A("v_lshlrev_b32 v10, 7, v1")
            await_cnt(A, 8, 34, 10, 8, 28)
            stats_loads()
        else:
            A("s_lshl_b32 s34, s24, 7")
            A(f"s_add_u32 s34, s34, {hex(C4(layer))}")
            A("v_mov_b32 v10, 0")
            await_cnt(A, 8, 34, 10, 1, 28)
        for st in range(PRE0):
            for f in issue_ops(st, "B" if st < PREA else None):
                f()
        if not g1:
            g2_early()
    A.stamp(1)
    A("v_bfe_u32 v12, v1, 2, 2")
    A("v_and_b32 v13, 3, v1")
    A("v_and_b32 v14, 1, v7")
    A("v_lshlrev_b32 v15, 2, v7")
    A("v_add_u32 v15, v15, v12")
    A("v_lshlrev_b32 v15, 7, v15")
    A("v_lshl_add_u32 v15, v13, 3, v15")
    A("v_add_u32 v15, s31, v15")
    A("v_lshrrev_b32 v32, 1, v12")
    A("v_lshl_add_u32 v32, v14, 1, v32")
    for mt in range(4):
        A(f"v_xor_b32 v33, {mt}, v32")
        A(f"v_lshl_add_u32 v{36 + mt}, v33, 5, v15")
    if g1:
        for i in range(4):
            sm, sq = 16 + i, 20 + i
            A(f"v_mul_f32 v{sm}, {hexf(1.0 / 448)}, v{sm}")
            A(f"v_mul_f32 v{sq}, {hexf(1.0 / 448)}, v{sq}")
            A(f"v_fma_f32 v{sq}, -v{sm}, v{sm}, v{sq}")
            A(f"v_max_f32 v{sq}, 0, v{sq}")
            A(f"v_add_f32 v34, {hexf(1e-5)}, v{sq}")
            A("v_rcp_f32 v34, v34")
            A(f"v_mul_f32 v35, v{sq}, v34")
            A(f"v_add_f32 v35, {hexf(1e-5)}, v35")
            A("v_rcp_f32 v35, v35")
            A("v_mul_f32 v34, v34, v35")
            A(f"v_sqrt_f32 v{sq}, v34")
            A(f"v_mul_f32 v{sm}, -v{sm}, v{sq}")
        A("v_lshlrev_b32 v34, 4, v1")
        A("s_lshl_b32 s34, s22, 10")
        A(f"s_add_u32 s34, s34, {G_TAB}")
        A("v_add_u32 v34, s34, v34")
        A("ds_write_b128 v34, v[20:23]")
        A("ds_write_b128 v34, v[16:19] offset:8192")
        A("v_lshlrev_b32 v35, 4, v7")
        A("s_lshl_b32 s34, s47, 11")
        A(f"s_add_u32 s34, s34, {G_TAB}")
        A("v_add_u32 v35, s34, v35")
    AFR = [0, 16]
    ACC = 32
    BN = [40, 48]
    AB = [56, 72]
    TMP = 88

    def a_reads(st):
        slot = st % G_RING
        buf = st & 1
        if "nolds" in OPT and st > 1:
            return []
        return [(lambda mt=mt, t=t: A(f"ds_read_b64_tr_b16 {a(AFR[buf] + 4 * mt + 2 * t, 2)}, v{36 + mt} "
                                      f"offset:{slot * 4096 + t * 2048}")) for mt in range(4) for t in range(2)]

    def ab_reads(st):
        buf = st & 1
        ops = []
        if "nolds" in OPT and st > 1:
            return []

        if USE_ROT:
            def addr():
                A(f"s_add_u32 s46, s57, {st}")
                A("s_and_b32 s46, s46, 15")
                A("s_lshl_b32 s46, s46, 7")
                A(f"v_add_u32 v{96 + buf}, s46, v35")
            ops.append(addr)
            for t in range(2):
                ops.append(lambda t=t: A(f"ds_read_b128 {v(AB[buf] + 4 * t, 4)}, v{96 + buf} offset:{t * 64}"))
                ops.append(lambda t=t: A(f"ds_read_b128 {v(AB[buf] + 8 + 4 * t, 4)}, v{96 + buf} offset:{8192 + t * 64}"))
            return ops
        for t in range(2):
            ops.append(lambda t=t: A(f"ds_read_b128 {v(AB[buf] + 4 * t, 4)}, v35 offset:{st * 128 + t * 64}"))
            ops.append(lambda t=t: A(f"ds_read_b128 {v(AB[buf] + 8 + 4 * t, 4)}, v35 offset:{8192 + st * 128 + t * 64}"))
        return ops

    def norm_ops(st):
        buf = st & 1
        b = BR + 8 * (st % NB)
        ops = []
        if "nonorm" in OPT:
            return [(lambda d=d: A(f"v_mov_b32 v{BN[buf] + d}, v{b + d}")) for d in range(8)]
        for nt in range(2):
            for dp in range(2):
                d0, d1 = 2 * dp, 2 * dp + 1
                x0, x1 = b + 4 * nt + d0, b + 4 * nt + d1
                tb = TMP + 4 * (dp & 1)
                ops.append(lambda x0=x0, tb=tb: A(f"v_lshlrev_b32 v{tb}, 16, v{x0}"))
                ops.append(lambda x0=x0, tb=tb: A(f"v_and_b32 v{tb + 1}, 0xffff0000, v{x0}"))
                ops.append(lambda x1=x1, tb=tb: A(f"v_lshlrev_b32 v{tb + 2}, 16, v{x1}"))
                ops.append(lambda x1=x1, tb=tb: A(f"v_and_b32 v{tb + 3}, 0xffff0000, v{x1}"))
                for (o, dd) in ((0, d0), (2, d1)):
                    for e in range(2):
                        ops.append(lambda tb=tb, o=o, dd=dd, e=e: A(
                            f"v_fma_f32 v{tb + o + e}, v{tb + o + e}, v{AB[buf] + 2 * dd + e}, v{AB[buf] + 8 + 2 * dd + e}"))
                ops.append(lambda tb=tb, nt=nt, d0=d0: A(f"v_cvt_pk_bf16_f32 v{BN[buf] + 4 * nt + d0}, v{tb}, v{tb + 1}"))
                ops.append(lambda tb=tb, nt=nt, d1=d1: A(f"v_cvt_pk_bf16_f32 v{BN[buf] + 4 * nt + d1}, v{tb + 2}, v{tb + 3}"))
        return ops

    def mfma_ops(st):
        buf = st & 1
        ops = []
        if "nomfma" in OPT and st > 0:
            return [lambda: A("s_nop 0")]
        for nt in range(2):
            for mt in range(4):
                acc = a(ACC + 4 * (2 * mt + nt), 4)
                c = "0" if st == 0 else acc
                if g1:
                    ops.append(lambda acc=acc, c=c, mt=mt, nt=nt: A(
                        f"v_mfma_f32_16x16x32_bf16 {acc}, {a(AFR[buf] + 4 * mt, 4)}, {v(BN[buf] + 4 * nt, 4)}, {c}"))
                else:
                    b = BR + 8 * (st % NB)
                    ops.append(lambda acc=acc, c=c, mt=mt, nt=nt, b=b: A(
                        f"v_mfma_f32_16x16x32_bf16 {acc}, {v(b + 4 * nt, 4)}, {a(AFR[buf] + 4 * mt, 4)}, {c}"))
        return ops

    def sync_op(st):
        def f():
            A.wait_vm(toks[st])
            if "nobar" not in OPT:
                A("s_barrier")
        return f

    def w2_touch_ops():
        def f0():
            A("s_lshr_b32 s44, s2, 3")
            A("s_bfe_u32 s45, s2, 0x20001")
            A("s_lshl_b32 s44, s44, 6")
            A("s_lshl_b32 s46, s22, 3")
            A("s_add_u32 s44, s44, s46")
            A("v_and_b32 v98, 7, v1")
            A("v_add_u32 v98, s44, v98")
            A("v_lshlrev_b32 v98, 12, v98")
            A("v_lshl_add_u32 v98, v3, 7, v98")
            A("s_lshl_b32 s45, s45, 10")
            A("v_add_u32 v98, s45, v98")
            srd(A, 92, 92, 93, S * F * 2)

        def f1():
            A.touch("buffer_load_dword v99, v98, s[92:95], 0 offen")
        return [f0, f1]

    next_issue = PRE0
    A.stamp(5)
    A.wait_vm(toks[0])
    A.wait_all(vm=False)
    A.stamp(6)
    A("s_barrier")
    A.stamp(7)
    if "rtg" in OPT:
        rtp(A, f"g{which}loop0")
    for f in a_reads(0):
        f()
    if g1:
        for f in ab_reads(0) + ab_reads(1):
            f()
        for f in norm_ops(0):
            f()
    SPD = G_SP
    synced = 0
    for st in range(NK):
        vm = []
        n_iss = 0
        issued_before = next_issue - 1
        while next_issue < NK and next_issue <= st + PRE and n_iss < 2:
            if F2 and next_issue < PREA:
                vm += issue_ops(next_issue, "B")
            else:
                vm += issue_ops(next_issue)
            next_issue += 1
            n_iss += 1
        lds = []
        if st + 1 < NK:
            if st + 1 > synced:
                tgt = min(NK - 1, st + SPD, issued_before)
                lds += [sync_op(tgt)]
                synced = tgt
            lds += a_reads(st + 1)
        va = norm_ops(st + 1) if (g1 and st + 1 < NK) else []
        ab = ab_reads(st + 2) if (g1 and st + 2 < NK) else []
        if g1 and PREFETCH and (not fused) and st == NK - PRE + 1:
            vm += w2_touch_ops()
        seq = lds + sprinkle(va + ab, vm)
        interleave(mfma_ops(st), seq)
    A.stamp(2)
    PBASE = 0 if g1 else 5 * 4096

    def owner(mt, nt):
        if g1:
            return (2 * (mt >> 1) + nt, mt & 1)
        return (mt, nt)
    A("v_lshlrev_b32 v34, 4, v1")
    A("s_lshl_b32 s35, s48, 13")
    A("s_add_u32 s34, s31, s35")
    A(f"s_add_u32 s34, s34, {PBASE}")
    A("v_add_u32 v33, s34, v34")
    for mt in range(4):
        for nt in range(2):
            o, k = owner(mt, nt)
            A(f"ds_write_b128 v33, {a(ACC + 4 * (2 * mt + nt), 4)} offset:{(o * 2 + k) * 1024}")
    A.wait_all(vm=False)
    A("s_barrier")
    A("s_lshl_b32 s34, s47, 11")
    A("s_add_u32 s34, s34, s35")
    A(f"s_add_u32 s34, s34, {PBASE}")
    A("v_add_u32 v33, s34, v34")
    A(f"v_add_u32 v35, {2 * G_RB}, v33")
    RD = 40
    for k in range(2):
        for src in range(4):
            A(f"ds_read_b128 {v(RD + 8 * src + 4 * k, 4)}, v{33 if src < 2 else 35} offset:{(src & 1) * G_RB + k * 1024}")
    for k in range(2):
        for r in range(4):
            A(f"v_add_f32 v{RD + 4 * k + r}, v{RD + 4 * k + r}, v{RD + 8 + 4 * k + r}")
            A(f"v_add_f32 v{RD + 16 + 4 * k + r}, v{RD + 16 + 4 * k + r}, v{RD + 24 + 4 * k + r}")
        for r in range(4):
            A(f"v_add_f32 v{RD + 4 * k + r}, v{RD + 4 * k + r}, v{RD + 16 + 4 * k + r}")
    A.stamp(3)
    if "rtg" in OPT:
        rtp(A, f"g{which}red")
    if g1:
        for m in range(2):
            for hlf in range(2):
                A(f"v_lshlrev_b32 v{76 + 4 * m + 2 * hlf}, 16, v{EP + 2 * m + hlf}")
                A(f"v_and_b32 v{77 + 4 * m + 2 * hlf}, 0xffff0000, v{EP + 2 * m + hlf}")
        c1 = -2.0 * 1.4426950408889634 * 0.7978845608028654
        c3 = c1 * 0.044715
        A(f"s_mov_b32 s39, {hexf(c1)}")
        A(f"s_mov_b32 s40, {hexf(c3)}")
        A("v_mov_b32 v84, s39")
        for m in range(2):
            for r in range(4):
                x = RD + 4 * m + r
                t = 85 + (r & 1)
                A(f"v_add_f32 v{x}, v{x}, v{76 + 4 * m + r}")
                A(f"v_mul_f32 v{t}, v{x}, v{x}")
                A(f"v_fma_f32 v{t}, v{t}, s40, v84")
                A(f"v_mul_f32 v{t}, v{t}, v{x}")
                A(f"v_exp_f32 v{t}, v{t}")
                A(f"v_add_f32 v{t}, 1.0, v{t}")
                A(f"v_rcp_f32 v{t}, v{t}")
                A(f"v_mul_f32 v{x}, v{x}, v{t}")
        for m in range(2):
            for hlf in range(2):
                A(f"v_cvt_pk_bf16_f32 v{88 + 2 * m + hlf}, v{RD + 4 * m + 2 * hlf}, v{RD + 4 * m + 2 * hlf + 1}")
        A("s_mul_i32 s41, s24, 56")
        A("s_lshl_b32 s42, s23, 1")
        A("s_add_u32 s41, s41, s42")
        A("s_add_u32 s41, s41, s36")
        A("s_mul_i32 s41, s41, 3584")
        A(f"s_add_u32 s41, s41, {hex(WS_UF + layer * LB)}")
        A("s_and_b32 s42, s47, 1")
        A("s_lshl_b32 s43, s48, 1")
        A("s_add_u32 s42, s42, s43")
        A("s_lshl_b32 s43, s42, 10")
        A("s_add_u32 s41, s41, s43")
        A("s_cmp_eq_u32 s42, 3")
        A("s_cselect_b32 s44, 0x00ff00ff, -1")
        A("s_mov_b32 s45, s44")
        A("s_mov_b64 exec, s[44:45]")
        A("buffer_store_dwordx4 v[88:91], v6, s[8:11], s41 offen")
        A("s_mov_b64 exec, -1")
    else:
        A("v_and_b32 v33, 15, v1")
        A(f"v_lshlrev_b32 v76, 16, v{EP + 4}")
        for k in range(2):
            for hlf in range(2):
                x = EP + 2 * k + hlf
                A(f"v_lshlrev_b32 v77, 16, v{x}")
                A(f"v_and_b32 v78, 0xffff0000, v{x}")
                y = RD + 4 * k + 2 * hlf
                A(f"v_add_f32 v{y}, v{y}, v76")
                A(f"v_add_f32 v{y + 1}, v{y + 1}, v76")
                A(f"v_add_f32 v{y}, v{y}, v77")
                A(f"v_add_f32 v{y + 1}, v{y + 1}, v78")
                A(f"v_cvt_pk_bf16_f32 v{88 + 2 * k + hlf}, v{y}, v{y + 1}")
        if layer == 0:
            A("s_cmp_eq_u32 s48, 0")
            A("s_cselect_b32 s45, -1, 0")
            A("s_mov_b32 s44, -1")
            A("v_cndmask_b32 v92, 0, v90, s[44:45]")
            A("v_cndmask_b32 v93, 0, v91, s[44:45]")
            A("v_mov_b32 v77, 0x3f803f80")
            A("v_mov_b32 v78, 0")
            A("v_mov_b32 v79, 0")
            for x in [88, 89, 92, 93]:
                A(f"v_dot2_f32_bf16 v78, v{x}, v77, v78")
                A(f"v_dot2_f32_bf16 v79, v{x}, v{x}, v79")
            reduce_groups(A, 78, 80)
            reduce_groups(A, 79, 81)
            A("v_cmp_gt_u32 vcc, 16, v1")
            A("v_cndmask_b32 v80, v79, v78, vcc")
            A("v_lshlrev_b32 v81, 2, v1")
            A("s_lshl_b32 s39, s36, 7")
            A(f"s_add_u32 s39, s39, {hex(WS_ST + 16384)}")
            exec_lanes(A, 32)
            A("buffer_atomic_add_f32 v80, v81, s[8:11], s39 offen")
            exec_lanes(A, 64)
        SP = 80
        A("s_lshl_b32 s40, s22, 11")
        A(f"s_add_u32 s40, s40, {G_TAB}")
        A(f"v_mul_u32_u24 v36, {SP}, v33")
        A("v_lshl_add_u32 v36, v7, 3, v36")
        A("v_add_u32 v36, s40, v36")
        for k in range(2):
            A(f"ds_write_b64 v36, {v(88 + 2 * k, 2)} offset:{32 * k}")
        A("v_lshrrev_b32 v37, 2, v1")
        A("v_and_b32 v38, 3, v1")
        A(f"v_mul_u32_u24 v39, {SP}, v37")
        A("v_lshl_add_u32 v39, v38, 4, v39")
        A("v_add_u32 v39, s40, v39")
        A("ds_read_b128 v[92:95], v39")
        A("s_lshl_b32 s39, s36, 4")
        A("s_mul_i32 s39, s39, 896")
        A("s_mul_i32 s41, s24, 112")
        A("s_add_u32 s39, s39, s41")
        A("s_lshl_b32 s41, s48, 6")
        A("s_add_u32 s39, s39, s41")
        A("v_mul_u32_u24 v37, 896, v37")
        A("v_lshl_add_u32 v37, v38, 4, v37")
        A("s_cmp_eq_u32 s48, 0")
        A("s_cselect_b32 s44, -1, 0x77777777")
        A("s_mov_b32 s45, s44")
        A("s_mov_b64 exec, s[44:45]")
        A("buffer_store_dwordx4 v[92:95], v37, s[16:19], s39 offen")
        A("s_mov_b64 exec, -1")
    if (fused or pers) and g1:
        A("s_lshl_b32 s34, s24, 7")
        A(f"s_add_u32 s34, s34, {hex(C4(layer))}")
        publish(A, 8, 34)
        if pers:
            A.raw(f"L_{name}_skip:")
        return None
    if pers:
        if layer == 0:
            A("s_lshr_b32 s34, s23, 1")
            A("s_lshl_b32 s34, s34, 7")
            A(f"s_add_u32 s34, s34, {hex(C5)}")
            publish(A, 8, 34)
        return None
    A.stamp(4)
    A.dump_stamps(STAMP_WG)
    kernel_end(A, name)
    return G_LDS, 512, 256, 176


def g1v2(A, name, layer, pers=False):
    NK = 8
    pitch = 3584
    R = 4
    if pers:
        phase_begin(A)
        A("s_cmp_ge_u32 s2, 224")
        A(f"s_cbranch_scc1 L_{name}_skip")
    else:
        kernel_begin(A, name, 224)
    A(f"s_load_dwordx2 s[20:21], s[0:1], {KA_WS}")
    A(f"s_load_dwordx2 s[4:5], s[0:1], {KA_W1}")
    A(f"s_load_dwordx2 s[12:13], s[0:1], {KA_B1}")
    A("v_and_b32 v1, 63, v0")
    A("v_lshrrev_b32 v2, 6, v0")
    A("v_readfirstlane_b32 s22, v2")
    A("s_and_b32 s25, s2, 7")
    A("s_lshr_b32 s26, s2, 3")
    A("s_and_b32 s24, s25, 1")
    A("s_lshl_b32 s24, s24, 2")
    A("s_and_b32 s27, s26, 3")
    A("s_add_u32 s24, s24, s27")
    A("s_lshr_b32 s23, s25, 1")
    A("s_mul_i32 s23, s23, 7")
    A("s_lshr_b32 s27, s26, 2")
    A("s_add_u32 s23, s23, s27")
    A("v_lshrrev_b32 v3, 3, v1")
    A("v_bfe_u32 v4, v1, 4, 2")
    A("v_lshlrev_b32 v4, 1, v4")
    A("v_and_b32 v5, 7, v1")
    A("v_xor_b32 v4, v4, v5")
    A(f"v_mul_u32_u24 v5, {pitch}, v3")
    A("v_lshl_add_u32 v5, v4, 4, v5")
    A(f"s_mul_i32 s27, s22, {NK * 32 * pitch}")
    A("s_lshl_b32 s28, s23, 7")
    A("s_add_u32 s27, s27, s28")
    A("v_add_u32 v5, s27, v5")
    for q in range(1, 4):
        A(f"v_add_u32 v{23 + q}, {q * (8 * pitch - 1024)}, v5")
    A("v_lshrrev_b32 v7, 4, v1")
    A("v_and_b32 v8, 7, v1")
    A("v_lshlrev_b32 v8, 4, v8")
    A("v_lshl_add_u32 v8, v7, 7, v8")
    A("v_bfe_u32 v9, v1, 3, 1")
    A("v_lshl_add_u32 v6, v9, 9, v8")
    A.wait_all(vm=False)
    srd(A, 4, 4, 5, S * F * 2)
    srd(A, 8, 20, 21, WSZ)
    srd(A, 12, 12, 13, F * 2)
    A(f"s_mul_i32 s29, s22, {NK * 28672}")
    A("s_mul_i32 s30, s24, 3584")
    A("s_add_u32 s29, s29, s30")
    A(f"s_add_u32 s29, s29, {hex(WS_X1F + layer * LB)}")
    A("s_lshl_b32 s31, s22, 14")
    NB = 4
    BR = 112
    toks = {}
    tokA = {}

    def a_ops(st):
        slot = st % R

        def f0():
            A(f"s_add_u32 m0, s31, {slot * 4096}")
            A(f"s_mov_b32 s32, {st * 32 * pitch}")
            A("buffer_load_dwordx4 v5, s[4:7], s32 offen lds")
        ops = [f0]
        for q in range(1, 4):
            def fq(q=q):
                tokA[st] = A(f"buffer_load_dwordx4 v{23 + q}, s[4:7], s32 offen offset:{1024 * q} lds")
            ops.append(fq)
        return ops

    def b_ops(st):
        b = BR + 16 * (st % NB)

        def f0():
            A(f"s_add_u32 s33, s29, {st * 28672}")
            A(f"buffer_load_dwordx4 {v(b, 4)}, v6, s[8:11], s33 offen")
        ops = [f0]
        for nt in range(1, 3):
            ops.append(lambda nt=nt: A(f"buffer_load_dwordx4 {v(b + 4 * nt, 4)}, v6, s[8:11], s33 offen offset:{1024 * nt}"))

        def f3():
            toks[st] = A(f"buffer_load_dwordx4 {v(b + 12, 4)}, v8, s[8:11], s33 offen offset:3072")
        ops.append(f3)
        return ops

    PRE = 4
    PA = 3
    for st in range(R):
        for f in a_ops(st):
            f()
    EP = 28
    A("s_lshr_b32 s36, s22, 2")
    A("s_lshl_b32 s37, s23, 7")
    A("s_lshl_b32 s38, s36, 6")
    A("s_add_u32 s37, s37, s38")
    A("v_lshlrev_b32 v33, 3, v7")
    A(f"buffer_load_dwordx2 {v(EP, 2)}, v33, s[12:15], s37 offen")
    A(f"buffer_load_dwordx2 {v(EP + 2, 2)}, v33, s[12:15], s37 offen offset:32")
    if pers:
        A(f"s_mov_b32 s34, {hex(C3(layer))}")
        A("v_lshlrev_b32 v10, 7, v1")
        await_cnt(A, 8, 34, 10, 8, 28)
    A("v_lshrrev_b32 v10, 2, v1")
    A("v_lshlrev_b32 v10, 7, v10")
    A("v_and_b32 v11, 3, v1")
    A("v_lshl_add_u32 v10, v11, 4, v10")
    A("s_lshl_b32 s34, s22, 11")
    A(f"s_add_u32 s34, s34, {hex(WS_ST + (0 if layer == 0 else 2) * 16384)}")
    A("buffer_load_dwordx4 v[16:19], v10, s[8:11], s34 offen")
    A("buffer_load_dwordx4 v[20:23], v10, s[8:11], s34 offen offset:64")
    for st in range(PRE):
        for f in b_ops(st):
            f()
    A("v_bfe_u32 v12, v1, 2, 2")
    A("v_and_b32 v13, 3, v1")
    A("v_and_b32 v14, 1, v7")
    A("v_lshlrev_b32 v15, 2, v7")
    A("v_add_u32 v15, v15, v12")
    A("v_lshlrev_b32 v15, 7, v15")
    A("v_lshl_add_u32 v15, v13, 3, v15")
    A("v_add_u32 v15, s31, v15")
    A("v_lshrrev_b32 v32, 1, v12")
    A("v_lshl_add_u32 v32, v14, 1, v32")
    for mt in range(4):
        A(f"v_xor_b32 v33, {mt}, v32")
        A(f"v_lshl_add_u32 v{36 + mt}, v33, 5, v15")
    for i in range(4):
        sm, sq = 16 + i, 20 + i
        A(f"v_mul_f32 v{sm}, {hexf(1.0 / 448)}, v{sm}")
        A(f"v_mul_f32 v{sq}, {hexf(1.0 / 448)}, v{sq}")
        A(f"v_fma_f32 v{sq}, -v{sm}, v{sm}, v{sq}")
        A(f"v_max_f32 v{sq}, 0, v{sq}")
        A(f"v_add_f32 v34, {hexf(1e-5)}, v{sq}")
        A("v_rcp_f32 v34, v34")
        A(f"v_mul_f32 v35, v{sq}, v34")
        A(f"v_add_f32 v35, {hexf(1e-5)}, v35")
        A("v_rcp_f32 v35, v35")
        A("v_mul_f32 v34, v34, v35")
        A(f"v_sqrt_f32 v{sq}, v34")
        A(f"v_mul_f32 v{sm}, -v{sm}, v{sq}")
    TABW = 8 * 16384
    A("v_lshlrev_b32 v34, 4, v1")
    A("s_lshl_b32 s34, s22, 11")
    A(f"s_add_u32 s34, s34, {TABW}")
    A("v_add_u32 v34, s34, v34")
    A("ds_write_b128 v34, v[20:23]")
    A("ds_write_b128 v34, v[16:19] offset:1024")
    A("v_lshlrev_b32 v35, 4, v7")
    A("v_add_u32 v35, s34, v35")
    AF = 0
    ACC = 16
    BN = [40, 56]
    AB = [72, 88]
    AB = [72, 176 - 0]
    AB = [72, 16]
    AB = [72, 88]
    EP2 = 104
    for r in range(4):
        pass
    TMP = 104

    def a_reads(st, mt):
        slot = st % R
        return [(lambda t=t: A(f"ds_read_b64_tr_b16 {a(AF + 4 * mt + 2 * t, 2)}, v{36 + mt} offset:{slot * 4096 + t * 2048}"))
                for t in range(2)]

    def ab_reads(st):
        buf = st & 1
        ops = []
        for t in range(2):
            ops.append(lambda t=t: A(f"ds_read_b128 {v(AB[buf] + 4 * t, 4)}, v35 offset:{st * 128 + t * 64}"))
            ops.append(lambda t=t: A(f"ds_read_b128 {v(AB[buf] + 8 + 4 * t, 4)}, v35 offset:{1024 + st * 128 + t * 64}"))
        return ops

    def norm_ops(st):
        buf = st & 1
        b = BR + 16 * (st % NB)
        ops = []
        for nt in range(4):
            for dp in range(2):
                d0, d1 = 2 * dp, 2 * dp + 1
                x0, x1 = b + 4 * nt + d0, b + 4 * nt + d1
                tb = TMP + 4 * (dp & 1)
                ops.append(lambda x0=x0, tb=tb: A(f"v_lshlrev_b32 v{tb}, 16, v{x0}"))
                ops.append(lambda x0=x0, tb=tb: A(f"v_and_b32 v{tb + 1}, 0xffff0000, v{x0}"))
                ops.append(lambda x1=x1, tb=tb: A(f"v_lshlrev_b32 v{tb + 2}, 16, v{x1}"))
                ops.append(lambda x1=x1, tb=tb: A(f"v_and_b32 v{tb + 3}, 0xffff0000, v{x1}"))
                for (o, dd) in ((0, d0), (2, d1)):
                    for e in range(2):
                        ops.append(lambda tb=tb, o=o, dd=dd, e=e: A(
                            f"v_fma_f32 v{tb + o + e}, v{tb + o + e}, v{AB[buf] + 2 * dd + e}, v{AB[buf] + 8 + 2 * dd + e}"))
                ops.append(lambda tb=tb, nt=nt, d0=d0: A(f"v_cvt_pk_bf16_f32 v{BN[buf] + 4 * nt + d0}, v{tb}, v{tb + 1}"))
                ops.append(lambda tb=tb, nt=nt, d1=d1: A(f"v_cvt_pk_bf16_f32 v{BN[buf] + 4 * nt + d1}, v{tb + 2}, v{tb + 3}"))
        return ops

    def mfma(st, mt, nt):
        buf = st & 1
        acc = a(ACC + 4 * (4 * mt + nt), 4)
        c = "0" if st == 0 else acc
        A(f"v_mfma_f32_16x16x32_bf16 {acc}, {a(AF + 4 * mt, 4)}, {v(BN[buf] + 4 * nt, 4)}, {c}")

    A.wait_vm(tokA[0])
    for mt in range(4):
        for f in a_reads(0, mt):
            f()
    for f in ab_reads(0) + ab_reads(1):
        f()
    for f in norm_ops(0):
        f()
    nextA, nextB = R, PRE
    for st in range(NK):
        va = norm_ops(st + 1) if st + 1 < NK else []
        ab = ab_reads(st + 2) if st + 2 < NK else []
        vm = []
        if nextB < NK and nextB <= st + PRE - 0 and nextB - NB <= st:
            vm += b_ops(nextB)
            nextB += 1
        fill = sprinkle(va + ab, vm)
        k = 0
        tot = len(fill)
        n = 0
        if st + 1 < NK:
            A.wait_vm(tokA[st + 1])
        for mt in range(4):
            for nt in range(4):
                mfma(st, mt, nt)
                n += 1
                while k < (tot * n) // 16:
                    fill[k]()
                    k += 1
            if st + 1 < NK:
                for f in a_reads(st + 1, mt):
                    f()
        if nextA < NK:
            for f in a_ops(nextA):
                f()
            nextA += 1
    A("v_lshlrev_b32 v34, 4, v1")
    A("v_add_u32 v33, s31, v34")
    for mt in range(4):
        for nt in range(4):
            o, kk = 4 * (mt >> 1) + nt, mt & 1
            A(f"ds_write_b128 v33, {a(ACC + 4 * (4 * mt + nt), 4)} offset:{(o * 2 + kk) * 1024}")
    A.wait_all(vm=False)
    A("s_barrier")
    A("s_lshl_b32 s34, s22, 11")
    A("v_add_u32 v33, s34, v34")
    A(f"v_add_u32 v35, {4 * 16384}, v33")
    RD = 40
    for r in range(4):
        A(f"v_mov_b32 v{108 + r}, v{EP + r}")
    for kk in range(2):
        for src in range(8):
            A(f"ds_read_b128 {v(RD + 8 * src + 4 * kk, 4)}, v{33 if src < 4 else 35} offset:{(src & 3) * 16384 + kk * 1024}")
    for kk in range(2):
        for step in (1, 2, 4):
            for base in range(0, 8, 2 * step):
                for r in range(4):
                    x, y = RD + 8 * base + 4 * kk + r, RD + 8 * (base + step) + 4 * kk + r
                    A(f"v_add_f32 v{x}, v{x}, v{y}")
    for m in range(2):
        for hlf in range(2):
            A(f"v_lshlrev_b32 v{112 + 4 * m + 2 * hlf}, 16, v{108 + 2 * m + hlf}")
            A(f"v_and_b32 v{113 + 4 * m + 2 * hlf}, 0xffff0000, v{108 + 2 * m + hlf}")
    c1 = -2.0 * 1.4426950408889634 * 0.7978845608028654
    c3 = c1 * 0.044715
    A(f"s_mov_b32 s39, {hexf(c1)}")
    A(f"s_mov_b32 s40, {hexf(c3)}")
    A("v_mov_b32 v120, s39")
    for m in range(2):
        for r in range(4):
            x = RD + 4 * m + r
            t = 121 + (r & 1)
            A(f"v_add_f32 v{x}, v{x}, v{112 + 4 * m + r}")
            A(f"v_mul_f32 v{t}, v{x}, v{x}")
            A(f"v_fma_f32 v{t}, v{t}, s40, v120")
            A(f"v_mul_f32 v{t}, v{t}, v{x}")
            A(f"v_exp_f32 v{t}, v{t}")
            A(f"v_add_f32 v{t}, 1.0, v{t}")
            A(f"v_rcp_f32 v{t}, v{t}")
            A(f"v_mul_f32 v{x}, v{x}, v{t}")
    for m in range(2):
        for hlf in range(2):
            A(f"v_cvt_pk_bf16_f32 v{124 + 2 * m + hlf}, v{RD + 4 * m + 2 * hlf}, v{RD + 4 * m + 2 * hlf + 1}")
    A("s_mul_i32 s41, s24, 56")
    A("s_lshl_b32 s42, s23, 1")
    A("s_add_u32 s41, s41, s42")
    A("s_add_u32 s41, s41, s36")
    A("s_mul_i32 s41, s41, 3584")
    A(f"s_add_u32 s41, s41, {hex(WS_UF + layer * LB)}")
    A("s_and_b32 s42, s22, 3")
    A("s_lshl_b32 s43, s42, 10")
    A("s_add_u32 s41, s41, s43")
    A("s_cmp_eq_u32 s42, 3")
    A("s_cselect_b32 s44, 0x00ff00ff, -1")
    A("s_mov_b32 s45, s44")
    A("s_mov_b64 exec, s[44:45]")
    A("buffer_store_dwordx4 v[124:127], v6, s[8:11], s41 offen")
    A("s_mov_b64 exec, -1")
    if pers:
        A("s_lshl_b32 s34, s24, 7")
        A(f"s_add_u32 s34, s34, {hex(C4(layer))}")
        publish(A, 8, 34)
        A.raw(f"L_{name}_skip:")
        return None
    kernel_end(A, name)
    return G_LDS, 512, 256, 176


K1_XP = 16384
K1_WP = 64 * 192
K1_SLOT = K1_XP + K1_WP
K1_NS = 5
K1_MISC = K1_NS * K1_SLOT
K1_CSUM = K1_MISC
K1_TOK = K1_MISC + 1024
K1_LDS = K1_MISC + 1024 + 2048
K1_EX = 2 * K1_SLOT


def k1(A, name, layer, pers=False):
    L0 = layer == 0
    if pers:
        phase_begin(A)
    else:
        kernel_begin(A, name, 256)
        A.stamp_base = 70
        A.stamp(0)
    if L0:
        A(f"s_load_dwordx2 s[4:5], s[0:1], {KA_X}")
        A(f"s_load_dwordx2 s[8:9], s[0:1], {KA_WQKV}")
    A(f"s_load_dwordx2 s[20:21], s[0:1], {KA_WS}")
    A("v_and_b32 v1, 63, v0")
    A("v_lshrrev_b32 v2, 6, v0")
    A("v_readfirstlane_b32 s22, v2")
    A("s_lshr_b32 s23, s2, 4")
    A("s_and_b32 s24, s2, 15")
    A("s_and_b32 s47, s22, 3")
    A("s_lshr_b32 s48, s22, 2")
    A("s_lshl_b32 s25, s23, 7")
    A("s_lshl_b32 s26, s47, 5")
    A("s_add_u32 s49, s25, s26")
    A("s_lshl_b32 s26, s48, 4")
    A("s_add_u32 s25, s49, s26")
    A("s_mul_i32 s25, s25, 896")
    A("v_lshrrev_b32 v16, 3, v1")
    A("v_mul_u32_u24 v16, 896, v16")
    A("v_lshrrev_b32 v17, 4, v1")
    A("v_and_b32 v18, 7, v1")
    A("v_xor_b32 v19, v18, v17")
    A("v_lshl_add_u32 v2, v19, 4, v16")
    A("v_xor_b32 v19, 4, v19")
    A("v_lshl_add_u32 v3, v19, 4, v16")
    A("v_add_u32 v2, s25, v2")
    A("v_add_u32 v3, s25, v3")
    A(f"v_add_u32 v3, {8 * 896 - 1024}, v3")
    if L0:
        A("s_lshl_b32 s26, s22, 3")
        A("s_mul_i32 s26, s26, 2688")
        A("s_mul_i32 s27, s24, 56")
        A("s_add_u32 s26, s26, s27")
        for i in range(2):
            A(f"v_add_u32 v16, {64 * i}, v1")
            div_const(A, "v17", "v16", 12, 27)
            A("v_mul_u32_u24 v18, 12, v17")
            A("v_sub_u32 v18, v16, v18")
            A("v_mul_u32_u24 v17, 2688, v17")
            A("v_lshrrev_b32 v19, 2, v18")
            A("v_mul_u32_u24 v19, 896, v19")
            A("v_and_b32 v18, 3, v18")
            A("v_lshl_add_u32 v17, v18, 4, v17")
            A("v_add_u32 v17, v17, v19")
            A(f"v_add_u32 v{4 + i}, s26, v17")
        A("v_subrev_u32 v5, 1024, v5")
        wstep = 64 * 2688
    else:
        A("s_mul_i32 s26, s24, 86016")
        A("s_mul_i32 s27, s22, 1536")
        A("s_add_u32 s26, s26, s27")
        A("v_lshlrev_b32 v4, 4, v1")
        A("v_add_u32 v4, s26, v4")
        A("v_mov_b32 v5, v4")
        wstep = 12288
    A.wait_all(vm=False)
    if L0:
        srd(A, 4, 4, 5, XBYTES)
        srd(A, 8, 8, 9, D * 3 * D * 2)
    else:
        srd_off(A, 4, 20, 21, hex(WS_X2), XBYTES)
        srd_off(A, 8, 20, 21, hex(WS_WC), 16 * 86016)
    srd(A, 12, 20, 21, WSZ)
    A("s_lshl_b32 s28, s47, 12")
    A("s_lshl_b32 s29, s48, 11")
    A("s_add_u32 s28, s28, s29")
    A("s_mul_i32 s29, s22, 1536")
    A(f"s_add_u32 s29, s29, {K1_XP}")
    tokq = {}
    ROT = 52
    A("s_add_u32 s35, s23, s24")
    A("s_mul_i32 s34, s35, 9363")
    A("s_lshr_b32 s34, s34, 16")
    A("s_mul_i32 s34, s34, 7")
    A("s_sub_u32 s34, s35, s34")
    if "norot" in OPT:
        A("s_mov_b32 s34, 0")
    for q in range(7):
        A(f"s_add_u32 s{ROT + q}, s34, {q}")
        A(f"s_cmp_ge_u32 s{ROT + q}, 7")
        A("s_cselect_b32 s35, 7, 0")
        A(f"s_sub_u32 s{ROT + q}, s{ROT + q}, s35")

    def dma_ops(p):
        slot = (p % K1_NS) * K1_SLOT

        def f0():
            A(f"s_add_u32 m0, s28, {slot}")
            A(f"s_lshl_b32 s30, s{ROT + p}, 7")
            A("buffer_load_dwordx4 v2, s[4:7], s30 offen lds")
            A("buffer_load_dwordx4 v3, s[4:7], s30 offen offset:1024 lds")

        def f1():
            A(f"s_add_u32 m0, s29, {slot}")
            A(f"s_mul_i32 s31, s{ROT + p}, {wstep}")
            A("buffer_load_dwordx4 v4, s[8:11], s31 offen lds")
            exec_lanes(A, 32)
            tokq[p] = A("buffer_load_dwordx4 v5, s[8:11], s31 offen offset:1024 lds")
            exec_lanes(A, 64)
        return [f0, f1]

    def l1_stats():
        A("v_and_b32 v16, 31, v1")
        A("v_add_u32 v16, s49, v16")
        A("v_lshrrev_b32 v17, 4, v16")
        A("v_lshlrev_b32 v17, 7, v17")
        A("v_and_b32 v16, 15, v16")
        A("v_lshl_add_u32 v17, v16, 2, v17")
        A(f"s_mov_b32 s32, {hex(WS_ST + 16384)}")
        A("buffer_load_dword v52, v17, s[12:15], s32 offen")
        A("buffer_load_dword v48, v17, s[12:15], s32 offen offset:64")

    def l1_csum():
        A("v_lshrrev_b32 v17, 5, v1")
        A("v_lshlrev_b32 v17, 4, v17")
        A("s_mul_i32 s32, s24, 384")
        A("s_lshl_b32 s33, s48, 7")
        A("s_add_u32 s33, s33, s32")
        A(f"s_add_u32 s33, s33, {hex(WS_CS)}")
        for j in range(4):
            A(f"buffer_load_dwordx4 {v(120 + 4 * j, 4)}, v17, s[12:15], s33 offen offset:{32 * j}")
        A("v_and_b32 v16, 31, v1")
        A("v_lshlrev_b32 v16, 2, v16")
        A(f"s_add_u32 s32, s32, {hex(WS_CS + 256)}")
        A("buffer_load_dword v56, v16, s[12:15], s32 offen")

    PRE = 3
    pers1 = pers and not L0
    if pers1:
        PRE = 4
        for p in range(5):
            dma_ops(p)[1]()
        l1_csum()
        A("s_lshl_b32 s32, s23, 7")
        A(f"s_add_u32 s32, s32, {hex(C5)}")
        A("v_mov_b32 v10, 0")
        await_cnt(A, 12, 32, 10, 1, 16)
        l1_stats()
        for p in range(PRE):
            dma_ops(p)[0]()
            tokq[p] = A.vmq[-1]["tok"]
    else:
        for f in dma_ops(0):
            f()
    if L0:
        A("s_lshl_b32 s32, s2, 13")
        A(f"s_add_u32 s32, s32, {hex(WS_ST)}")
        A("s_cmp_lt_u32 s2, 8")
        A("s_cselect_b32 s32, s32, 0x7fff0000")
        A("v_lshlrev_b32 v16, 4, v0")
        for i in range(4):
            A(f"v_mov_b32 v{12 + i}, 0")
        A("buffer_store_dwordx4 v[12:15], v16, s[12:15], s32 offen")
        if pers:
            A(f"s_load_dwordx2 s[60:61], s[0:1], {KA_DBG}")
    elif not pers1:
        l1_stats()
        l1_csum()
    if not pers1:
        for p in range(1, PRE):
            for f in dma_ops(p):
                f()
    A.stamp(1)
    A("v_and_b32 v16, 31, v1")
    A("v_lshrrev_b32 v17, 5, v1")
    A("v_bfe_u32 v18, v1, 1, 3")
    A("v_xor_b32 v18, v18, v17")
    A("v_lshlrev_b32 v19, 7, v16")
    A("s_lshl_b32 s32, s47, 12")
    A("v_add_u32 v19, s32, v19")
    A("s_lshl_b32 s33, s48, 2")
    for ls in range(2):
        A(f"s_add_u32 s34, s33, {2 * ls}")
        A("v_xor_b32 v20, s34, v18")
        A(f"v_lshl_add_u32 v{8 + ls}, v20, 4, v19")
    A("v_bfe_u32 v18, v1, 2, 2")
    A("v_bfe_u32 v19, v1, 4, 1")
    A("v_and_b32 v20, 3, v1")
    A("v_lshlrev_b32 v22, 5, v19")
    A("v_lshl_add_u32 v22, v20, 3, v22")
    A("v_lshl_add_u32 v21, v17, 3, v18")
    A("v_mul_u32_u24 v21, 192, v21")
    A("v_add_u32 v21, v21, v22")
    A(f"s_mul_i32 s34, s48, {32 * 192}")
    A(f"s_add_u32 s34, s34, {K1_XP}")
    A("v_add_u32 v21, s34, v21")
    ONES = 28
    SS = 36
    if L0:
        A("s_mul_i32 s34, s22, 11")
        A("s_lshr_b32 s34, s34, 5")
        A("s_mul_i32 s35, s34, 3")
        A("s_sub_u32 s35, s22, s35")
        A("s_and_b32 s34, s34, 1")
        A(f"s_mul_i32 s34, s34, {32 * 192}")
        A("s_lshl_b32 s35, s35, 6")
        A("s_add_u32 s34, s34, s35")
        A(f"s_add_u32 s34, s34, {K1_XP}")
        A("v_lshl_add_u32 v23, v17, 3, v18")
        A("v_mul_u32_u24 v23, 192, v23")
        A("v_add_u32 v22, v22, v23")
        A("v_add_u32 v22, s34, v22")
        A("v_mul_u32_u24 v24, 192, v1")
        A("v_add_u32 v24, s29, v24")
        A("v_add_u32 v24, 56, v24")
        A("v_mov_b32 v26, 0x3f80")
        A("v_mov_b32 v27, 0")
        for i in range(4):
            A(f"v_mov_b32 v{ONES + i}, 0x3f803f80")
        for i in range(4):
            A(f"v_mov_b32 v{SS + i}, 0")
        A("v_lshlrev_b32 v33, 4, v1")
        A("v_add_u32 v34, s29, v33")
        A("s_mul_i32 s50, s24, 86016")
        A("s_mul_i32 s51, s22, 1536")
        A("s_add_u32 s50, s50, s51")
        A(f"s_add_u32 s50, s50, {hex(WS_WC)}")
    AQ, AK, AV, AC = 0, 16, 32, 48
    XF = 64
    WF = 76
    CF = 112
    VA = 40

    def token_stats(sumreg, sqreg):
        A(f"v_mul_f32 v{sumreg}, {hexf(1.0 / 448)}, v{sumreg}")
        A(f"v_mul_f32 v{sqreg}, {hexf(1.0 / 448)}, v{sqreg}")
        A(f"v_fma_f32 v{sqreg}, -v{sumreg}, v{sumreg}, v{sqreg}")
        A(f"v_max_f32 v{sqreg}, 0, v{sqreg}")
        A(f"v_add_f32 v{sqreg}, {hexf(1e-5)}, v{sqreg}")
        A(f"v_rsq_f32 v{sqreg}, v{sqreg}")
        A(f"v_mul_f32 v{sumreg}, -v{sumreg}, v{sqreg}")
        A("v_and_b32 v57, 31, v1")
        A("v_lshlrev_b32 v57, 2, v57")
        A("s_lshl_b32 s35, s22, 8")
        A(f"s_add_u32 s35, s35, {K1_TOK}")
        A("v_add_u32 v57, s35, v57")
        exec_lanes(A, 32)
        A(f"ds_write_b32 v57, v{sqreg}")
        A(f"ds_write_b32 v57, v{sumreg} offset:128")
        exec_lanes(A, 64)
        A("v_lshlrev_b32 v58, 4, v17")
        A("s_lshl_b32 s36, s48, 6")
        A("s_add_u32 s36, s36, s35")
        A("v_add_u32 v58, s36, v58")
        for j in range(2):
            A(f"ds_read_b128 {v(TA + 4 * j, 4)}, v58 offset:{32 * j}")
            A(f"ds_read_b128 {v(TB + 4 * j, 4)}, v58 offset:{128 + 32 * j}")

    TA, TB = 152, 160
    CS = 120
    if not L0:
        token_stats(52, 48)

    def set_addr(p):
        slot = (p % K1_NS) * K1_SLOT
        b = VA + 4 * (p & 1)
        A(f"v_add_u32 v{b}, {slot}, v8")
        A(f"v_add_u32 v{b + 1}, {slot}, v9")
        A(f"v_add_u32 v{b + 2}, {slot}, v21")
        if L0:
            A(f"v_add_u32 v{b + 3}, {slot}, v22")

    def sync(p):
        slot = (p % K1_NS) * K1_SLOT
        set_addr(p)
        A.wait_vm(tokq[p])
        if L0:
            A(f"v_add_u32 v49, {slot}, v24")
            if p == 0:
                A(f"v_add_u32 v35, {slot}, v34")
                A("ds_read_b128 v[120:123], v35")
                A("ds_read_b128 v[124:127], v35 offset:1024")
                A(f"s_mul_i32 s51, s{ROT}, 12288")
                A("s_add_u32 s51, s51, s50")
                A("s_cmp_lt_u32 s23, 7")
                A("s_cselect_b32 s51, s51, 0x7fff0000")
                A("buffer_store_dwordx4 v[120:123], v33, s[12:15], s51 offen")
                exec_lanes(A, 32)
                A("buffer_store_dwordx4 v[124:127], v33, s[12:15], s51 offen offset:1024")
            exec_lanes(A, 8)
            A("ds_write_b64 v49, v[26:27]")
            exec_lanes(A, 64)
            A.wait_all(vm=False)
        A("s_barrier")
        if pers and L0 and p == 1:
            srd(A, 60, 60, 61, 256)
            A("s_cmp_ge_u32 s2, 8")
            A(f"s_cbranch_scc1 L_{name}_nz")
            A("v_mov_b32 v10, 0")
            A("v_mov_b32 v11, 1")
            A("v_cmp_eq_u32 vcc, 0, v0")
            A("s_and_saveexec_b64 s[44:45], vcc")
            A(f"s_cbranch_execz L_{name}_nz2")
            A.raw("    buffer_atomic_add v11, v10, s[60:63], 0 offen sc1")
            A.raw(f"L_{name}_nz2:")
            A("s_mov_b64 exec, -1")
            A.raw(f"L_{name}_nz:")

    def read_ops(gs):
        p, ls = gs >> 1, gs & 1
        b = VA + 4 * (p & 1)
        buf = gs % 3
        ops = [lambda: A(f"ds_read_b128 {v(XF + 4 * buf, 4)}, v{b + ls}")]
        for t3 in range(3):
            for t in range(2):
                ops.append(lambda t3=t3, t=t: A(
                    f"ds_read_b64_tr_b16 {v(WF + 12 * buf + 4 * t3 + 2 * t, 2)}, v{b + 2} "
                    f"offset:{(16 * ls + 4 * t) * 192 + 64 * t3}"))
        return ops

    def cread_ops(p):
        b = VA + 4 * (p & 1)
        ops = []
        for f in range(2):
            for t in range(2):
                ops.append(lambda f=f, t=t: A(
                    f"ds_read_b64_tr_b16 {v(CF + 4 * f + 2 * t, 2)}, v{b + 3} offset:{(16 * f + 4 * t) * 192}"))
        return ops

    sync(0)
    for f in read_ops(0) + read_ops(1):
        f()
    A.stamp(2)
    if "rtg" in OPT:
        rtp(A, "k1loop0")
    for gs in range(14):
        p, ls = gs >> 1, gs & 1
        b = gs % 3
        xf = v(XF + 4 * b, 4)
        first = gs == 0
        m = [
            lambda: A(f"v_mfma_f32_32x32x16_bf16 {a(AQ, 16)}, {v(WF + 12 * b, 4)}, {xf}, {'0' if first else a(AQ, 16)}"),
            lambda: A(f"v_mfma_f32_32x32x16_bf16 {a(AK, 16)}, {v(WF + 12 * b + 4, 4)}, {xf}, {'0' if first else a(AK, 16)}"),
            lambda: A(f"v_mfma_f32_32x32x16_bf16 {a(AV, 16)}, {xf}, {v(WF + 12 * b + 8, 4)}, {'0' if first else a(AV, 16)}"),
        ]
        if ls == 1 and L0:
            for f in range(2):
                m.append(lambda f=f: A(
                    f"v_mfma_f32_32x32x16_bf16 {a(AC, 16)}, {v(ONES, 4)}, {v(CF + 4 * f, 4)}, "
                    f"{'0' if (p == 0 and f == 0) else a(AC, 16)}"))
        fill = []
        if ls == 0:
            if L0:
                fill += cread_ops(p)
            if p + 1 < 7:
                fill += [lambda p=p: sync(p + 1)]
        if gs + 2 < 14:
            fill += read_ops(gs + 2)
        dots = [(lambda d=d: A(f"v_dot2_f32_bf16 v{SS + d}, v{XF + 4 * b + d}, v{XF + 4 * b + d}, v{SS + d}"))
                for d in range(4)] if L0 else []
        vm = dma_ops(p + PRE) if (ls == 1 and p + PRE < 7) else []
        if pers1 and vm and p + PRE < 5:
            q_ = p + PRE

            def xonly(f=vm[0], q_=q_):
                f()
                tokq[q_] = A.vmq[-1]["tok"]
            vm = [xonly]
        elif pers1 and vm:
            vm = [vm[1], vm[0]]
            q_ = p + PRE
            vm.append(lambda q_=q_: tokq.__setitem__(q_, A.vmq[-1]["tok"]))
        fill = fill + sprinkle(dots, vm)
        interleave(m, fill)
    A.stamp(3)
    if "rtg" in OPT:
        rtp(A, "k1loopE")
    A("v_lshlrev_b32 v49, 4, v1")
    A("s_mul_i32 s33, s22, 7168")
    A(f"s_add_u32 s33, s33, {K1_EX}")
    A("v_add_u32 v50, s33, v49")
    A("s_xor_b32 s34, s22, 4")
    A("s_mul_i32 s34, s34, 7168")
    A(f"s_add_u32 s34, s34, {K1_EX}")
    A("v_add_u32 v51, s34, v49")
    if L0:
        A("v_and_b32 v47, 31, v1")
        A("v_lshlrev_b32 v47, 2, v47")
        A(f"v_add_u32 v47, {K1_CSUM}, v47")
        A(f"v_add_f32 v{SS}, v{SS}, v{SS + 1}")
        A(f"v_add_f32 v{SS + 2}, v{SS + 2}, v{SS + 3}")
        A(f"v_add_f32 v{SS}, v{SS}, v{SS + 2}")
        A(f"v_mov_b32 v53, v{SS}")
        A(f"v_permlane32_swap_b32 v53, v{SS}")
        A(f"v_add_f32 v53, v53, v{SS}")
        A("s_lshl_b32 s35, s22, 7")
        A("v_add_u32 v46, s35, v47")
        exec_lanes(A, 32)
        A(f"ds_write_b32 v46, a{AC}")
        exec_lanes(A, 64)
        A(f"v_accvgpr_read_b32 v52, a{AQ + 12}")
    A("s_lshl_b32 s36, s24, 6")
    A("s_lshl_b32 s37, s23, 2")
    A("s_add_u32 s36, s36, s37")
    A("s_add_u32 s36, s36, s47")
    A("s_lshl_b32 s36, s36, 11")
    A("v_add_u32 v59, s36, v49")
    A("v_cmp_eq_u32 s[38:39], 0, v17")
    A("v_and_b32 v62, 31, v1")
    A("v_cmp_gt_u32 s[42:43], 28, v62")
    A("v_cmp_eq_u32 vcc, 28, v62")
    A("v_mov_b32 v63, 0x3f803f80")
    A("v_cndmask_b32 v63, 0, v63, vcc")
    A("s_cmp_eq_u32 s48, 0")
    A(f"s_cbranch_scc0 L_{name}_e1")
    save_vm = [dict(o) for o in A.vmq]
    save_lg = [dict(o) for o in A.lgq]
    RX = 64
    KP = 92
    for kh in range(2):
        keep, send = (AQ, AK) if kh == 0 else (AK, AQ)
        vkeep, vsend = (AV, AV + 8) if kh == 0 else (AV + 8, AV)
        for j in range(4):
            A(f"ds_write_b128 v50, {a(send + 4 * j, 4)} offset:{1024 * j}")
        for j in range(2):
            A(f"ds_write_b128 v50, {a(vsend + 4 * j, 4)} offset:{4096 + 1024 * j}")
        if L0:
            A("ds_write_b64 v50, v[52:53] offset:6144")
        for r in range(16):
            A(f"v_accvgpr_read_b32 v{KP + r}, a{keep + r}")
        for r in range(8):
            A(f"v_accvgpr_read_b32 v{KP + 16 + r}, a{vkeep + r}")
        A.wait_all(vm=False)
        A.stamp(5)
        A("s_barrier")
        A.stamp(6)
        for j in range(6):
            A(f"ds_read_b128 {v(RX + 4 * j, 4)}, v51 offset:{1024 * j}")
        if L0:
            A(f"ds_read_b64 {v(RX + 24, 2)}, v51 offset:6144")
            A("v_lshlrev_b32 v54, 4, v17")
            A(f"v_add_u32 v55, {K1_CSUM}, v54")
            for j in range(4):
                A(f"ds_read_b128 {v(CS + 4 * j, 4)}, v55 offset:{128 * kh + 32 * j}")
                A(f"ds_read_b128 {v(136 + 4 * j, 4)}, v55 offset:{128 * (kh + 3) + 32 * j}")
            A("ds_read_b32 v56, v47 offset:256")
            A("ds_read_b32 v45, v47 offset:640")
            for r in range(16):
                A(f"v_add_f32 v{CS + r}, v{CS + r}, v{136 + r}")
            A("v_add_f32 v56, v56, v45")
            A("s_mul_i32 s40, s24, 384")
            A(f"s_add_u32 s40, s40, {hex(WS_CS + 128 * kh)}")
            A("s_or_b32 s41, s23, s47")
            A("s_cmp_eq_u32 s41, 0")
            A("s_cselect_b32 s40, s40, 0x7fff0000")
            A("v_and_b32 v60, 31, v1")
            A("v_lshlrev_b32 v60, 2, v60")
            A(f"ds_read_b32 v46, v47 offset:{128 * kh}")
            A(f"ds_read_b32 v45, v47 offset:{128 * (kh + 3)}")
            A("v_add_f32 v46, v46, v45")
            A("buffer_store_dword v46, v60, s[12:15], s40 offen")
            if kh == 0:
                A("buffer_store_dword v56, v60, s[12:15], s40 offen offset:256")
            A(f"v_add_f32 v52, v52, v{RX + 24}")
            A(f"v_add_f32 v48, v53, v{RX + 25}")
            A("v_mov_b32 v57, v52")
            A("v_permlane32_swap_b32 v57, v52")
            token_stats(52, 48)
        A.stamp(7)
        cq = (DH ** -0.5) * 1.4426950408889634
        if kh == 0:
            A(f"v_mul_f32 v60, {hexf(cq)}, v48")
            A(f"v_mul_f32 v61, {hexf(cq)}, v52")
            ra, rb_ = 60, 61
        else:
            ra, rb_ = 48, 52
        PK = 168
        for r in range(16):
            A(f"v_mul_f32 v{CS + r}, v{CS + r}, v{rb_}")
        for r in range(16):
            A(f"v_add_f32 v{KP + r}, v{KP + r}, v{RX + r}")
            A(f"v_fma_f32 v{KP + r}, v{KP + r}, v{ra}, v{CS + r}")
        for d in range(8):
            A(f"v_cvt_pk_bf16_f32 v{PK + d}, v{KP + 2 * d}, v{KP + 2 * d + 1}")
        if kh == 0:
            A("v_mov_b32 v62, 0x3f80")
            A(f"v_cndmask_b32 v{PK + 6}, v62, v{PK + 6}, s[38:39]")
        else:
            A(f"v_cndmask_b32 v{PK + 6}, 0, v{PK + 6}, s[38:39]")
        A(f"v_cndmask_b32 v{PK + 7}, 0, v{PK + 7}, s[38:39]")
        A(f"s_mov_b32 s40, {hex((WS_QF if kh == 0 else WS_KF) + layer * LB)}")
        A(f"buffer_store_dwordx4 {v(PK, 4)}, v59, s[12:15], s40 offen")
        A(f"buffer_store_dwordx4 {v(PK + 4, 4)}, v59, s[12:15], s40 offen offset:1024")
        for r in range(8):
            A(f"v_mul_f32 v{TB + r}, v{TB + r}, v56")
        for r in range(8):
            A(f"v_add_f32 v{KP + 16 + r}, v{KP + 16 + r}, v{RX + 16 + r}")
            A(f"v_fma_f32 v{KP + 16 + r}, v{KP + 16 + r}, v{TA + r}, v{TB + r}")
        for d in range(4):
            A(f"v_cvt_pk_bf16_f32 v{RX + d}, v{KP + 16 + 2 * d}, v{KP + 16 + 2 * d + 1}")
            A(f"v_cndmask_b32 v{RX + d}, v63, v{RX + d}, s[42:43]")
        A(f"s_mov_b32 s40, {hex(WS_VF + 1024 * kh + layer * LB)}")
        A(f"buffer_store_dwordx4 {v(RX, 4)}, v59, s[12:15], s40 offen")
        if kh == 0:
            A(f"s_branch L_{name}_e2")
            A.raw(f"L_{name}_e1:")
            A.hist = []
            A.vmq = [dict(o) for o in save_vm]
            A.lgq = [dict(o) for o in save_lg]
            A.nop(2)
    A.raw(f"L_{name}_e2:")
    if pers:
        phase_begin(A)
        if L0:
            A("s_mov_b32 s34, 0")
            A("v_mov_b32 v10, 0")
            await_cnt(A, 60, 34, 10, 1, 8)
        A("s_lshl_b32 s34, s24, 7")
        A("s_lshl_b32 s35, s23, 2")
        A("s_add_u32 s34, s34, s35")
        A(f"s_add_u32 s34, s34, {hex(F0 if L0 else F1)}")
        publish(A, 12, 34)
        return None
    A.stamp(4)
    A.dump_stamps(STAMP_WG)
    kernel_end(A, name)
    return K1_LDS, 512, 256, 176


K2_K, K2_V, K2_Q = 0, 24576, 49152
K2_X = 57344
K2_LDS = K2_X + 8 * 4096


def k2(A, name, layer, pers=False):
    if pers:
        phase_begin(A)
    else:
        kernel_begin(A, name, 256)
        A.stamp_base = 76
        A.stamp(0)
    A(f"s_load_dwordx2 s[20:21], s[0:1], {KA_WS}")
    if PREFETCH and layer == 0:
        A(f"s_load_dwordx2 s[88:89], s[0:1], {KA_W2}")
        A(f"s_load_dwordx2 s[84:85], s[0:1], {KA_W1}")
    A("v_and_b32 v1, 63, v0")
    A("v_lshrrev_b32 v2, 6, v0")
    A("v_readfirstlane_b32 s22, v2")
    A("s_lshr_b32 s23, s2, 4")
    A("s_and_b32 s24, s2, 15")
    A("s_and_b32 s38, s22, 3")
    A("s_lshr_b32 s39, s22, 2")
    A("v_lshlrev_b32 v2, 4, v1")
    A("s_lshl_b32 s25, s24, 17")
    A("s_lshl_b32 s26, s23, 2")
    A("s_sub_u32 s26, s26, 8")
    A("s_mul_i32 s27, s22, 3")
    for i in range(3):
        A(f"s_add_u32 s34, s27, {i}")
        A("s_lshr_b32 s35, s34, 1")
        A("s_add_i32 s35, s35, s26")
        A("s_lshl_b32 s36, s35, 11")
        A("s_and_b32 s37, s34, 1")
        A("s_lshl_b32 s37, s37, 10")
        A("s_add_u32 s36, s36, s37")
        A("s_cmp_lt_i32 s35, 0")
        A(f"s_cselect_b32 s{72 + i}, 0x40000000, s36")
    A("s_lshl_b32 s29, s27, 10")
    A.wait_all(vm=False)
    for (d, off) in [(4, WS_QF), (8, WS_KF), (12, WS_VF)]:
        A(f"s_add_u32 s28, s25, {hex(off + layer * LB)}")
        A(f"s_add_u32 s{d}, s20, s28")
        A(f"s_addc_u32 s{d + 1}, s21, 0")
        A(f"s_and_b32 s{d + 1}, s{d + 1}, 0xffff")
        A(f"s_mov_b32 s{d + 2}, 0x20000")
        A(f"s_mov_b32 s{d + 3}, 0x00020000")
    srd(A, 92, 20, 21, WSZ)
    if pers and (layer == 1 or "one" in OPT):
        A("s_lshl_b32 s34, s24, 7")
        A(f"s_add_u32 s34, s34, {hex(F1 if layer == 1 else F0)}")
        A("v_add_u32 v10, s23, v1")
        A("v_subrev_u32 v10, 2, v10")
        A("v_max_i32 v10, 0, v10")
        A("v_lshlrev_b32 v10, 2, v10")
        await_cnt(A, 92, 34, 10, 3, 1)
    for i in range(3):
        A(f"s_add_u32 m0, s29, {K2_K + i * 1024}")
        A(f"buffer_load_dwordx4 v2, s[8:11], s{72 + i} offen lds")
    A("s_lshl_b32 s30, s23, 13")
    A("s_lshl_b32 s31, s22, 10")
    A("s_add_u32 s30, s30, s31")
    A(f"s_add_u32 m0, s31, {K2_Q}")
    tokK = A("buffer_load_dwordx4 v2, s[4:7], s30 offen lds")
    for i in range(3):
        A(f"s_add_u32 m0, s29, {K2_V + i * 1024}")
        tokV = A(f"buffer_load_dwordx4 v2, s[12:15], s{72 + i} offen lds")
    srd_off(A, 16, 20, 21, hex(WS_OF + layer * LB), 128 * 14 * 1024)
    K2PF = PREFETCH and layer == 0
    if K2PF:
        A("s_lshl_b32 s34, s2, 3")
        A("s_add_u32 s34, s34, s22")
        A("s_mul_i32 s34, s34, 3584")
        A("v_lshlrev_b32 v40, 7, v1")
        A("v_add_u32 v40, s34, v40")
        srd(A, 88, 88, 89, S * F * 2)
        srd(A, 84, 84, 85, S * F * 2)
    A.stamp(1)
    A("v_and_b32 v4, 31, v1")
    A("v_lshrrev_b32 v5, 5, v1")
    A("v_mov_b32 v18, 0xf14a")
    A("v_mul_lo_u32 v18, v18, v5")
    A("v_add_u32 v19, s29, v2")
    A("v_lshlrev_b32 v6, 2, v5")
    A("v_sub_u32 v6, v4, v6")
    MS = 40
    for r in range(16):
        kk = 8 * (r >> 2) + (r & 3)
        A(f"v_cmp_ge_i32 s[{MS + 2 * r}:{MS + 2 * r + 1}], v6, {kk}")
    PM = 8
    A("v_mov_b32 v7, 0xffff")
    A("v_mov_b32 v16, 0xffff0000")
    for d in range(8):
        A(f"v_cndmask_b32 v{PM + d}, 0, v7, s[{MS + 4 * d}:{MS + 4 * d + 1}]")
        A(f"v_cndmask_b32 v17, 0, v16, s[{MS + 4 * d + 2}:{MS + 4 * d + 3}]")
        A(f"v_or_b32 v{PM + d}, v{PM + d}, v17")
    A.wait_vm(tokK)
    for i in range(3):
        A(f"s_add_u32 s34, s27, {i}")
        A("s_and_b32 s34, s34, 1")
        A(f"s_cmp_eq_u32 s{72 + i}, 0x40000000")
        A("s_cselect_b32 s35, s34, 0")
        A("s_cmp_eq_u32 s35, 0")
        lab = f"L_{name}_np{i}"
        A(f"s_cbranch_scc1 {lab}")
        A(f"ds_write_b32 v19, v18 offset:{K2_K + i * 1024 + 8}")
        A.raw(lab + ":")
    A.force_wait(lg=0)
    A("s_barrier")
    A.stamp(2)
    if "rtg" in OPT:
        rtp(A, "k2bar1", 172)
    A("s_lshl_b32 s35, s38, 11")
    A("v_add_u32 v28, s35, v2")
    A(f"ds_read_b128 v[20:23], v28 offset:{K2_Q}")
    A(f"ds_read_b128 v[24:27], v28 offset:{K2_Q + 1024}")
    BW = 14 if "k2both" in OPT else 7
    NBU = 4
    bcount = [0]

    def burst(i=None):
        n = bcount[0]
        if not K2PF or n >= NBU:
            return
        bcount[0] += 1
        if "k2both" in OPT:
            m = ((1 << 14) - 1) << (14 * (n & 1))
            sr = 84 if n < 2 else 88
        else:
            m = ((1 << 7) - 1) << (7 * n)
            sr = 84 if pers else 88
        A(f"s_mov_b64 exec, {hex(m)}")
        A.touch(f"buffer_load_dword v42, v40, s[{sr}:{sr + 3}], 0 offen")
        exec_lanes(A, 64)
    A("s_mul_i32 s36, s22, 4096")
    A(f"s_add_u32 s36, s36, {K2_X}")
    A("v_add_u32 v44, s36, v2")
    A("s_xor_b32 s37, s22, 4")
    A("s_mul_i32 s37, s37, 4096")
    A(f"s_add_u32 s37, s37, {K2_X}")
    A("v_add_u32 v45, s37, v2")
    A("s_cmp_eq_u32 s39, 0")
    A(f"s_cbranch_scc0 L_{name}_h1")
    A.vmq_save = [dict(o) for o in A.vmq]
    A.lgq_save = [dict(o) for o in A.lgq]
    SB = [48, 64, 80, 96]
    MX = 30
    CN = 112
    OA = 128
    PB = [144, 152, 160]

    for hf in range(2):
        blocks = [0, 8, 1, 2, 3] if hf == 0 else [4, 5, 6, 7]
        slotk = {b: i for i, b in enumerate(blocks)}
        for b in blocks:
            for st in range(2):
                A(f"ds_read_b128 {a(8 * slotk[b] + 4 * st, 4)}, v28 offset:{K2_K + 2048 * b + 1024 * st}")

        bcount[0] = 0

        def qk(b, buf, cinit):
            k = 8 * slotk[b]
            A(f"v_mfma_f32_32x32x16_bf16 {v(buf, 16)}, {a(k, 4)}, v[20:23], {cinit}")
            A(f"v_mfma_f32_32x32x16_bf16 {v(buf, 16)}, {a(k + 4, 4)}, v[24:27], {v(buf, 16)}")

        def maxblk(buf, first):
            if first:
                A(f"v_max3_f32 v{MX}, v{buf}, v{buf + 1}, v{buf + 2}")
                rest = list(range(3, 16))
            else:
                rest = list(range(16))
            while len(rest) >= 2:
                A(f"v_max3_f32 v{MX}, v{MX}, v{buf + rest[0]}, v{buf + rest[1]}")
                rest = rest[2:]
            if rest:
                A(f"v_max_f32 v{MX}, v{MX}, v{buf + rest[0]}")

        def merge():
            for r in range(16):
                A(f"v_cndmask_b32 v{SB[0] + r}, v{SB[0] + r}, v{SB[1] + r}, s[{MS + 2 * r}:{MS + 2 * r + 1}]")

        if hf == 0:
            qk(0, SB[0], "0"); qk(8, SB[1], "0"); qk(1, SB[2], "0"); qk(2, SB[3], "0")
            merge()
            qk(3, SB[1], "0")
            maxblk(SB[0], True); maxblk(SB[2], False); maxblk(SB[3], False); maxblk(SB[1], False)
        else:
            for i, b in enumerate(blocks):
                qk(b, SB[i], "0")
            maxblk(SB[0], True); maxblk(SB[1], False); maxblk(SB[2], False); maxblk(SB[3], False)
        A(f"v_mov_b32 v31, v{MX}")
        A(f"v_permlane32_swap_b32 v31, v{MX}")
        A(f"v_max_f32 v{MX}, v{MX}, v31")
        A(f"ds_write_b32 v44, v{MX}")
        A.wait_vm(tokV)
        A.wait_all(vm=False)
        A("s_barrier")
        A("ds_read_b32 v31, v45")
        for b in blocks:
            for st in range(2):
                A(f"ds_read_b128 {a(40 + 8 * slotk[b] + 4 * st, 4)}, v28 offset:{K2_V + 2048 * b + 1024 * st}")
        A(f"v_max_f32 v{MX}, v{MX}, v31")
        for r in range(16):
            A(f"v_sub_f32 v{CN + r}, 0, v{MX}")
        cn = v(CN, 16)

        def exppack(buf, pb):
            for r in range(16):
                A(f"v_exp_f32 v{buf + r}, v{buf + r}")
            for d in range(8):
                A(f"v_cvt_pk_bf16_f32 v{pb + d}, v{buf + 2 * d}, v{buf + 2 * d + 1}")
            burst()

        first_pv = [True]

        def pv(b, pb):
            for st in range(2):
                c = "0" if first_pv[0] else v(OA, 16)
                first_pv[0] = False
                A(f"v_mfma_f32_32x32x16_bf16 {v(OA, 16)}, {a(40 + 8 * slotk[b] + 4 * st, 4)}, {v(pb + 4 * st, 4)}, {c}")

        if hf == 0:
            qk(0, SB[0], cn); qk(8, SB[1], cn); qk(1, SB[2], cn); qk(2, SB[3], cn)
            merge()
            qk(3, SB[1], cn)
            exppack(SB[0], PB[0])
            for d in range(8):
                A(f"v_and_b32 v{PB[1] + d}, v{PM + d}, v{PB[0] + d}")
                A(f"v_xor_b32 v{PB[0] + d}, v{PB[0] + d}, v{PB[1] + d}")
            pv(0, PB[0]); pv(8, PB[1])
            exppack(SB[2], PB[2]); pv(1, PB[2])
            exppack(SB[3], PB[0]); pv(2, PB[0])
            exppack(SB[1], PB[1]); pv(3, PB[1])
        else:
            for i, b in enumerate(blocks):
                qk(b, SB[i], cn)
            for i, b in enumerate(blocks):
                exppack(SB[i], PB[i % 3])
                pv(b, PB[i % 3])
        A.stamp(3)
        keep, send = (OA, OA + 8) if hf == 0 else (OA + 8, OA)
        A(f"ds_write_b128 v44, {v(send, 4)} offset:1024")
        A(f"ds_write_b128 v44, {v(send + 4, 4)} offset:2048")
        A(f"ds_write_b32 v44, v{OA + 12} offset:3072")
        A.wait_all(vm=False)
        A("s_barrier")
        A("ds_read_b128 v[144:147], v45 offset:1024")
        A("ds_read_b128 v[148:151], v45 offset:2048")
        A("ds_read_b32 v32, v45 offset:3072")
        A(f"v_add_f32 v32, v32, v{OA + 12}")
        A("v_mov_b32 v33, v32")
        A("v_permlane32_swap_b32 v33, v32")
        A("v_rcp_f32 v33, v32")
        for r in range(8):
            A(f"v_add_f32 v{keep + r}, v{keep + r}, v{144 + r}")
            A(f"v_mul_f32 v{keep + r}, v{keep + r}, v33")
        for d in range(4):
            A(f"v_cvt_pk_bf16_f32 v{152 + d}, v{keep + 2 * d}, v{keep + 2 * d + 1}")
        A("s_mul_i32 s36, s24, 7")
        A("v_add_u32 v34, s36, v5")
        A("s_lshl_b32 s37, s23, 2")
        A("s_add_u32 s37, s37, s38")
        A("s_mul_i32 s37, s37, 28672")
        A("v_bfe_u32 v35, v1, 4, 1")
        A("v_mul_u32_u24 v35, 14336, v35")
        A("v_and_b32 v36, 15, v1")
        A("v_lshl_add_u32 v35, v36, 4, v35")
        A("v_add_u32 v35, s37, v35")
        for jj in range(2):
            j = 2 * hf + jj
            A(f"v_add_u32 v36, {2 * j}, v34")
            A("v_lshrrev_b32 v37, 3, v36")
            A("v_lshl_add_u32 v38, v37, 10, v35")
            A("v_bfe_u32 v37, v36, 2, 1")
            A("v_lshl_add_u32 v38, v37, 9, v38")
            A("v_and_b32 v37, 1, v36")
            A("v_lshl_add_u32 v38, v37, 8, v38")
            A("v_bfe_u32 v37, v36, 1, 1")
            A("v_lshl_add_u32 v38, v37, 3, v38")
            if j == 3:
                exec_lanes(A, 32)
            A(f"buffer_store_dwordx2 {v(152 + 2 * jj, 2)}, v38, s[16:19], 0 offen")
            if j == 3:
                exec_lanes(A, 64)
        if hf == 0:
            A(f"s_branch L_{name}_done")
            A.raw(f"L_{name}_h1:")
            A.hist = []
            A.lgq = [o for o in A.lgq_save] if hasattr(A, "lgq_save") else []
            A.vmq = list(A.vmq_save)
            A.force_wait(lg=0)
    A.raw(f"L_{name}_done:")
    if pers:
        phase_begin(A)
        A("s_lshl_b32 s34, s23, 7")
        A(f"s_add_u32 s34, s34, {hex(C2(layer))}")
        publish(A, 92, 34)
        return None
    A.stamp(4)
    A.dump_stamps(STAMP_WG)
    kernel_end(A, name)
    return K2_LDS, 512, 256, 176


K3_O, K3_W, K3_X, K3_T = 0, 57344, 114688, 122880
K3_LDS = K3_T + 64 * 136


def k3(A, name, layer, pers=False):
    if pers:
        phase_begin(A)
        A("s_cmp_ge_u32 s2, 224")
        A(f"s_cbranch_scc1 L_{name}_{'idle' if PREFETCH else 'skip'}")
    else:
        kernel_begin(A, name, 224)
        A.stamp_base = 70
        A.stamp(0)
    A(f"s_load_dwordx2 s[20:21], s[0:1], {KA_WS}")
    A(f"s_load_dwordx2 s[8:9], s[0:1], {KA_WO}")
    if layer == 0:
        A(f"s_load_dwordx2 s[12:13], s[0:1], {KA_X}")
    if PREFETCH:
        A(f"s_load_dwordx2 s[48:49], s[0:1], {KA_W1}")
    A("v_and_b32 v1, 63, v0")
    A("v_lshrrev_b32 v2, 6, v0")
    A("v_readfirstlane_b32 s22, v2")
    A("s_lshr_b32 s23, s2, 5")
    A("s_and_b32 s24, s2, 31")
    A("v_lshlrev_b32 v2, 4, v1")
    A("v_lshrrev_b32 v3, 3, v1")
    A("v_bfe_u32 v4, v1, 4, 2")
    A("v_lshlrev_b32 v4, 1, v4")
    A("v_and_b32 v5, 7, v1")
    A("v_xor_b32 v4, v4, v5")
    A("v_mul_u32_u24 v5, 896, v3")
    A("v_lshl_add_u32 v5, v4, 4, v5")
    A("s_lshl_b32 s25, s23, 7")
    A("v_add_u32 v5, s25, v5")
    A.wait_all(vm=False)
    srd_off(A, 4, 20, 21, hex(WS_OF + layer * LB), 128 * 14336)
    srd(A, 8, 8, 9, D * D * 2)
    if layer == 0:
        srd(A, 12, 12, 13, XBYTES)
    else:
        srd_off(A, 12, 20, 21, hex(WS_X2), XBYTES)
    srd(A, 16, 20, 21, WSZ)
    toks = {}
    A("s_mul_i32 s30, s22, 7168")
    A("s_lshl_b32 s32, s22, 10")
    for q in range(7):
        A(f"s_add_u32 m0, s32, {K3_W + q * 8192}")
        A(f"s_add_u32 s31, s30, {q * 64 * 896}")
        A("buffer_load_dwordx4 v5, s[8:11], s31 offen lds")

    def xtile():
        A("s_lshl_b32 s34, s24, 6")
        A("s_lshl_b32 s35, s22, 3")
        A("s_add_u32 s34, s34, s35")
        A("s_mul_i32 s34, s34, 896")
        A("s_lshl_b32 s35, s22, 10")
        A(f"s_add_u32 m0, s35, {K3_X}")
        A("buffer_load_dwordx4 v5, s[12:15], s34 offen lds")
    if layer == 0:
        xtile()
    if pers:
        A("s_lshr_b32 s34, s24, 1")
        A("s_lshl_b32 s34, s34, 7")
        A(f"s_add_u32 s34, s34, {hex(C2(layer))}")
        A("v_mov_b32 v10, 0")
        await_cnt(A, 16, 34, 10, 1, 16)
    A("s_and_b32 s26, s22, 3")
    A("s_lshr_b32 s27, s22, 2")
    A("s_mul_i32 s27, s27, 7168")
    A("s_mul_i32 s28, s26, 14336")
    A("s_add_u32 s32, s28, s27")
    A("s_lshl_b32 s29, s24, 2")
    A("s_mul_i32 s29, s29, 14336")
    A("s_add_u32 s30, s29, s32")
    for q in range(7):
        A(f"s_add_u32 m0, s32, {K3_O + q * 1024}")
        A(f"s_add_u32 s31, s30, {q * 1024}")
        toks[0] = A("buffer_load_dwordx4 v2, s[4:7], s31 offen lds")
    if layer == 1:
        xtile()
        toks[0] = A.vmq[-1]["tok"]
    if PREFETCH and layer == 0 and not pers:
        w1_prefetch(A, 48, 224, 126)
    A.stamp(1)
    A("s_and_b32 s33, s22, 1")
    A("s_lshr_b32 s34, s22, 1")
    A("s_mul_i32 s35, s33, 28672")
    A("v_add_u32 v6, s35, v2")
    A("v_lshrrev_b32 v7, 4, v1")
    A("v_bfe_u32 v8, v1, 2, 2")
    A("v_and_b32 v9, 3, v1")
    A("v_lshrrev_b32 v10, 1, v7")
    A("v_and_b32 v11, 1, v7")
    A("v_lshlrev_b32 v12, 4, v10")
    A("v_lshl_add_u32 v12, v11, 2, v12")
    A("v_add_u32 v12, v12, v8")
    A("v_lshlrev_b32 v12, 7, v12")
    A("v_lshl_add_u32 v12, v9, 3, v12")
    A("v_lshrrev_b32 v13, 1, v8")
    A("v_lshl_add_u32 v13, v11, 1, v13")
    A("v_xor_b32 v14, s34, v13")
    A("v_lshl_add_u32 v16, v14, 5, v12")
    A(f"v_add_u32 v16, {K3_W}, v16")
    A("v_lshl_add_u32 v14, v7, 2, v8")
    A("v_bfe_u32 v15, v14, 1, 2")
    A("v_lshlrev_b32 v14, 7, v14")
    A("v_lshl_add_u32 v14, v9, 3, v14")
    A("s_lshl_b32 s38, s33, 12")
    A(f"s_add_u32 s38, s38, {K3_X}")
    A("v_add_u32 v14, s38, v14")
    A("v_xor_b32 v20, s34, v15")
    A("v_lshl_add_u32 v18, v20, 5, v14")
    ACC = 32
    AF3, BF3 = 48, 72

    def reads(kp, buf):
        for mt in range(2):
            A(f"ds_read_b128 {v(AF3 + 8 * buf + 4 * mt, 4)}, v6 offset:{mt * 14336 + kp * 1024}")
        for t in range(2):
            A(f"ds_read_b64_tr_b16 {v(BF3 + 4 * buf + 2 * t, 2)}, v16 offset:{kp * 4096 + t * 1024}")

    def mfmas(kp, buf):
        for mt in range(2):
            c = "0" if kp == 0 else v(ACC + 4 * mt, 4)
            A(f"v_mfma_f32_16x16x32_bf16 {v(ACC + 4 * mt, 4)}, {v(AF3 + 8 * buf + 4 * mt, 4)}, {v(BF3 + 4 * buf, 4)}, {c}")

    A.wait_vm(toks[0])
    A("s_barrier")
    A.stamp(2)
    if "rtg" in OPT:
        rtp(A, "k3bar1")
    reads(0, 0)
    reads(1, 1)
    for kp in range(14):
        if kp + 2 < 14:
            reads(kp + 2, (kp + 2) % 3)
        if kp == 12:
            for mt in range(2):
                A(f"ds_read_b64_tr_b16 {v(96 + 2 * mt, 2)}, v18 offset:{mt * 2048}")
        mfmas(kp, kp % 3)
    A.stamp(4)
    XR = 96
    PKD = 112
    for mt in range(2):
        for hlf in range(2):
            x = XR + 2 * mt + hlf
            A(f"v_lshlrev_b32 v104, 16, v{x}")
            A(f"v_and_b32 v105, 0xffff0000, v{x}")
            A(f"v_add_f32 v{ACC + 4 * mt + 2 * hlf}, v{ACC + 4 * mt + 2 * hlf}, v104")
            A(f"v_add_f32 v{ACC + 4 * mt + 2 * hlf + 1}, v{ACC + 4 * mt + 2 * hlf + 1}, v105")
            A(f"v_cvt_pk_bf16_f32 v{PKD + 2 * mt + hlf}, v{ACC + 4 * mt + 2 * hlf}, v{ACC + 4 * mt + 2 * hlf + 1}")
    A("s_lshl_b32 s39, s24, 1")
    A("s_add_u32 s39, s39, s33")
    A("s_mul_i32 s39, s39, 28672")
    A("s_lshl_b32 s40, s23, 3")
    A("s_lshl_b32 s41, s34, 1")
    A("s_add_u32 s40, s40, s41")
    A("s_lshl_b32 s40, s40, 9")
    A("s_add_u32 s39, s39, s40")
    A(f"s_add_u32 s39, s39, {hex(WS_X1F + layer * LB)}")
    A("v_bfe_u32 v21, v1, 3, 1")
    A("v_lshlrev_b32 v21, 9, v21")
    A("v_lshl_add_u32 v21, v7, 7, v21")
    A("v_and_b32 v22, 7, v1")
    A("v_lshl_add_u32 v21, v22, 4, v21")
    A(f"buffer_store_dwordx4 {v(PKD, 4)}, v21, s[16:19], s39 offen")
    TP = 136
    A("v_and_b32 v22, 15, v1")
    A(f"v_mul_u32_u24 v23, {TP}, v22")
    A("v_lshl_add_u32 v23, v7, 3, v23")
    A(f"s_mul_i32 s41, s34, {16 * TP}")
    A("s_lshl_b32 s42, s33, 6")
    A("s_add_u32 s41, s41, s42")
    A(f"s_add_u32 s41, s41, {K3_T}")
    A("v_add_u32 v23, s41, v23")
    for mt in range(2):
        A(f"ds_write_b64 v23, {v(PKD + 2 * mt, 2)} offset:{mt * 32}")
    A("v_lshl_add_u32 v24, v7, 2, v8")
    A(f"v_mul_u32_u24 v24, {TP}, v24")
    A("v_lshl_add_u32 v24, v9, 3, v24")
    A("v_add_u32 v24, s41, v24")
    TR = 120
    for mt in range(2):
        A(f"ds_read_b64_tr_b16 {v(TR + 2 * mt, 2)}, v24 offset:{mt * 32}")
    A("s_lshl_b32 s42, s24, 2")
    A("s_lshl_b32 s43, s33, 1")
    A("s_add_u32 s42, s42, s43")
    A("s_mul_i32 s43, s42, 14336")
    A("s_lshl_b32 s44, s23, 4")
    A("s_lshl_b32 s45, s34, 2")
    A("s_add_u32 s44, s44, s45")
    A("s_lshl_b32 s44, s44, 7")
    A("s_add_u32 s43, s43, s44")
    A(f"s_add_u32 s43, s43, {hex(WS_X1T + layer * LB)}")
    A("v_lshlrev_b32 v25, 7, v7")
    A("v_lshl_add_u32 v25, v22, 3, v25")
    A("v_mov_b32 v26, 0x3f803f80")
    for i in range(4):
        A(f"v_mov_b32 v{28 + i}, 0")
    for mt in range(2):
        A(f"s_add_u32 s44, s43, {mt * 14336}")
        A(f"buffer_store_dwordx2 {v(TR + 2 * mt, 2)}, v25, s[16:19], s44 offen")
        for hlf in range(2):
            A(f"v_dot2_f32_bf16 v{28 + 2 * mt}, v{TR + 2 * mt + hlf}, v26, v{28 + 2 * mt}")
            A(f"v_dot2_f32_bf16 v{29 + 2 * mt}, v{TR + 2 * mt + hlf}, v{TR + 2 * mt + hlf}, v{29 + 2 * mt}")
    A("v_cmp_gt_u32 vcc, 16, v1")
    A("v_lshlrev_b32 v27, 2, v1")
    A("s_lshl_b32 s44, s42, 7")
    A(f"s_add_u32 s44, s44, {hex(WS_ST + (0 if layer == 0 else 2) * 16384)}")
    for mt in range(2):
        reduce_groups(A, 28 + 2 * mt, 104)
        reduce_groups(A, 29 + 2 * mt, 105)
        A(f"v_cndmask_b32 v{106 + mt}, v{29 + 2 * mt}, v{28 + 2 * mt}, vcc")
    exec_lanes(A, 32)
    A("buffer_atomic_add_f32 v106, v27, s[16:19], s44 offen")
    A("buffer_atomic_add_f32 v107, v27, s[16:19], s44 offen offset:128")
    exec_lanes(A, 64)
    if pers:
        A("s_and_b32 s34, s2, 7")
        A("s_lshl_b32 s34, s34, 7")
        A(f"s_add_u32 s34, s34, {hex(C3(layer))}")
        publish(A, 16, 34)
        A.raw(f"L_{name}_skip:")
        return None
    A.stamp(5)
    A.dump_stamps(STAMP_WG)
    kernel_end(A, name)
    return K3_LDS, 512, 256, 176


def pfx(A, name, nwg):
    kernel_begin(A, name, nwg)
    A(f"s_load_dwordx2 s[48:49], s[0:1], {KA_W1}")
    A("v_and_b32 v1, 63, v0")
    A("v_lshrrev_b32 v2, 6, v0")
    A("v_readfirstlane_b32 s22, v2")
    A.wait_all(vm=False)
    w1_prefetch(A, 48, nwg, 20)
    kernel_end(A, name)
    return 0, 512, 64, 64


def g12(A, name, layer):
    gk(A, name, layer, 1, fused=True)
    return gk(A, name, layer, 2, fused=True)


def idle_prefetch(A, layer):
    phase_begin(A)
    A(f"s_load_dwordx2 s[48:49], s[0:1], {KA_W1}")
    A(f"s_load_dwordx2 s[52:53], s[0:1], {KA_W2}")
    A("v_and_b32 v1, 63, v0")
    A("v_lshrrev_b32 v2, 6, v0")
    A("v_readfirstlane_b32 s22, v2")
    A("s_lshr_b32 s34, s2, 3")
    A("s_sub_u32 s34, s34, 28")
    A("s_lshl_b32 s34, s34, 3")
    A("s_add_u32 s34, s34, s22")
    A("s_bfe_u32 s36, s2, 0x20001")
    A.wait_all(vm=False)
    srd(A, 48, 48, 49, S * F * 2)
    srd(A, 52, 52, 53, S * F * 2)
    A("s_mul_i32 s35, s34, 448")
    A("s_mul_i32 s37, s36, 896")
    for q in range(7):
        A(f"s_add_u32 s38, s35, {64 * q}")
        A("v_add_u32 v10, s38, v1")
        div_const(A, "v11", "v10", 7, 39, rng=14400)
        A("v_mul_u32_u24 v12, 7, v11")
        A("v_sub_u32 v12, v10, v12")
        A("v_mul_u32_u24 v11, 3584, v11")
        A("v_lshl_add_u32 v11, v12, 7, v11")
        A.touch("buffer_load_dword v13, v11, s[48:51], s37 offen")
    if layer == 0:
        A("s_sub_u32 s35, s2, 224")
        A("s_lshl_b32 s35, s35, 3")
        A("s_add_u32 s35, s35, s22")
        A("s_mul_i32 s35, s35, 28672")
        A("v_lshlrev_b32 v10, 7, v1")
        for q in range(4):
            A(f"s_add_u32 s38, s35, {8192 * q}")
            if q == 3:
                exec_lanes(A, 32)
            A.touch("buffer_load_dword v13, v10, s[52:55], s38 offen")
        exec_lanes(A, 64)
    else:
        A("s_mul_i32 s35, s34, 448")
        A("s_lshl_b32 s37, s36, 10")
        for q in range(7):
            A(f"s_add_u32 s38, s35, {64 * q}")
            A("v_add_u32 v10, s38, v1")
            A("v_lshrrev_b32 v11, 3, v10")
            A("v_lshlrev_b32 v11, 12, v11")
            A("v_and_b32 v12, 7, v10")
            A("v_lshl_add_u32 v11, v12, 7, v11")
            A.touch("buffer_load_dword v13, v11, s[52:55], s37 offen")


def pk(A, name):
    kernel_begin(A, name, 256)
    st = A.stamps
    A.stamps = False
    if "one" in OPT:
        k1(A, "pk1a", 0, pers=True)
    k2(A, "pk2a", 0, pers=True)
    k3(A, "pk3a", 0, pers=True)
    if "g1old" in OPT:
        gk(A, "pg1a", 0, 1, pers=True)
    else:
        g1v2(A, "pg1a", 0, pers=True)
    if PREFETCH:
        A("s_branch L_pg1a_go")
        A.raw("L_pk3a_idle:")
        idle_prefetch(A, 0)
        A.raw("L_pg1a_go:")
    gk(A, "pg2a", 0, 2, pers=True)
    k1(A, "pk1b", 1, pers=True)
    k2(A, "pk2b", 1, pers=True)
    k3(A, "pk3b", 1, pers=True)
    if "g1old" in OPT:
        gk(A, "pg1b", 1, 1, pers=True)
    else:
        g1v2(A, "pg1b", 1, pers=True)
    if PREFETCH:
        A("s_branch L_pg1b_go")
        A.raw("L_pk3b_idle:")
        idle_prefetch(A, 1)
        A.raw("L_pg1b_go:")
    gk(A, "pg2b", 1, 2, pers=True)
    A.stamps = st
    phase_begin(A)
    kernel_end(A, name)
    return G_LDS, 512, 256, 176


def kd2(name, nv, acc):
    return kd(name, nv=nv, acc=acc)


def build(kernels, path, stamps=False):
    A = Asm()
    A.stamps = stamps
    A.store_mod = "sc0 sc1"
    for o in OPT:
        if o.startswith("st="):
            A.store_mod = o[3:].replace("+", " ")
    launches = []
    kds = []
    for (name, fn, args, grid) in kernels:
        lds, threads, nv, acc = fn(A, name, *args)
        if name == MAIN:
            launches.append(f"; @launch grid=({grid},1,1) block=({threads},1,1) lds={lds}")
        else:
            launches.append(f"; @launch kernel={name} grid=({grid},1,1) block=({threads},1,1) lds={lds}")
        kds.append(kd2(name, nv, acc))
    head = open("interleave_layers__sliding_block__mixer_token_mlp__prompt.s.ref").read()
    hdr = [l for l in head.splitlines() if l.startswith(";") and "@launch" not in l][:12]
    txt = "\n".join(hdr) + "\n" + "\n".join(launches) + "\n"
    txt += '.amdgcn_target "amdgcn-amd-amdhsa--gfx950"\n.text\n'
    txt += A.text()
    txt += '.section .rodata,"a"\n' + "\n".join(kds) + "\n"
    open(path, "w").write(txt)
    if RTN:
        open("rtn.txt", "w").write(repr(RTN))
    print(f"wrote {path}: {A.ninstr} instrs, {A.nops_inserted} nop states inserted, {len(txt)} bytes")


if __name__ == "__main__":
    ks = []
    for L, c in enumerate("ab"):
        ks += [(f"k1{c}_kernel", k1, (L,), 256), (f"k2{c}_kernel", k2, (L,), 256), (f"k3{c}_kernel", k3, (L,), 224),
               ] + ([(f"g12{c}_kernel", g12, (L,), 256)] if "fuse" in OPT else
                    [(f"g1{c}_kernel", gk, (L, 1), 224), (f"g2{c}_kernel", gk, (L, 2), 256)])
    if "pers" in OPT:
        ks = [("k1a_kernel", k1, (0,), 256), ("pb_kernel", pk, (), 256)]
        if "one" in OPT:
            ks = [(MAIN, pk, (), 256)]
    if "pfx" in OPT:
        ks += [("pfx_kernel", pfx, (224,), 224), ("pfy_kernel", pfx, (256,), 256)]
    build(ks, sys.argv[1] if len(sys.argv) > 1 else "dev.s", stamps=("--stamps" in sys.argv))
```

```python
import sys
import struct
sys.path.insert(0, "tools")
OPT = set(sys.argv[1:])
from dsl import Asm, v, a, s

S, D, H, DH, F = 2048, 448, 16, 28, 1792
PREFETCH = 'nopf' not in sys.argv
KA_X, KA_WQKV, KA_WO, KA_BX, KA_W1, KA_B1, KA_W2, KA_B2, KA_OUT, KA_DBG, KA_WS = [8 * i for i in range(11)]
WS_QF = 0x000000
WS_KF = 0x200000
WS_VF = 0x400000
WS_OF = 0x600000
WS_X1T = 0x800000
WS_X1F = 0xA00000
WS_UF = 0xC00000
WS_X2 = 0xE00000
WS_WC = 0x1200000
WS_CS = 0x1380000
WS_CNT = 0x100C000
WS_ST = 0x1000000
XBYTES = S * D * 2
MAIN = "interleave_layers__sliding_block__mixer_token_mlp__prompt_kernel"
LB = 0x2000000
WSZ = 0x4000000


def f32(x):
    return struct.unpack("<I", struct.pack("<f", x))[0]


def hexf(x):
    return "0x%08x" % f32(x)


def srd(A, d, base_lo, base_hi, nbytes):
    if base_lo != d:
        A(f"s_mov_b32 s{d}, s{base_lo}")
    A(f"s_and_b32 s{d + 1}, s{base_hi}, 0xffff")
    A(f"s_mov_b32 s{d + 2}, {hex(nbytes)}")
    A(f"s_mov_b32 s{d + 3}, 0x00020000")


def srd_off(A, d, base_lo, base_hi, off, nbytes):
    A(f"s_add_u32 s{d}, s{base_lo}, {off}")
    A(f"s_addc_u32 s{d + 1}, s{base_hi}, 0")
    A(f"s_and_b32 s{d + 1}, s{d + 1}, 0xffff")
    A(f"s_mov_b32 s{d + 2}, {hex(nbytes)}")
    A(f"s_mov_b32 s{d + 3}, 0x00020000")


def kernel_begin(A, name, nwg):
    A.raw(f".globl {name}")
    A.raw(".p2align 8")
    A.raw(f".type {name},@function")
    A.raw(f"{name}:")
    A.hist = []
    A.vmq = []
    A.lgq = []
    A(f"s_cmp_ge_u32 s2, {nwg}")
    A(f"s_cbranch_scc1 L_{name}_end")
    if "rt" in OPT:
        A("s_memrealtime s[98:99]")


KIDX = [0]


def kernel_end(A, name):
    if "rt" in OPT:
        A.wait_all()
        A("s_memrealtime s[96:97]")
        A(f"s_load_dwordx2 s[60:61], s[0:1], {KA_WS}")
        A.wait_all()
        A("s_mov_b32 s62, 0x2000000")
        A("s_mov_b32 s63, 0x00020000")
        A("v_mov_b32 v2, s98")
        A("v_mov_b32 v3, s96")
        A("s_lshl_b32 s64, s2, 3")
        A(f"s_add_u32 s64, s64, {0x1800000 + KIDX[0] * 4096}")
        A("v_mov_b32 v4, s64")
        A("v_cmp_eq_u32 vcc, 0, v0")
        A("s_and_saveexec_b64 s[66:67], vcc")
        A(f"s_cbranch_execz L_{name}_end")
        A("buffer_store_dwordx2 v[2:3], v4, s[60:63], 0 offen")
        KIDX[0] += 1
    A.raw(f"L_{name}_end:")
    A("s_endpgm")


def kd(name, nv=512, acc=256, ns=102):
    return f"""
.p2align 6
.amdhsa_kernel {name}
  .amdhsa_next_free_vgpr {nv}
  .amdhsa_next_free_sgpr {ns}
  .amdhsa_accum_offset {acc}
  .amdhsa_group_segment_fixed_size 0
  .amdhsa_kernarg_size 88
  .amdhsa_user_sgpr_count 2
  .amdhsa_user_sgpr_kernarg_segment_ptr 1
  .amdhsa_system_sgpr_workgroup_id_x 1
.end_amdhsa_kernel"""


def div_const(A, dst, src, d, tmp_s, rng=4096):
    m = (1 << 20) // d + 1
    for x in range(0, rng):
        assert (x * m) >> 20 == x // d and x * m < (1 << 32), (x, d)
    A(f"s_mov_b32 s{tmp_s}, {m}")
    A(f"v_mul_lo_u32 {dst}, {src}, s{tmp_s}")
    A(f"v_lshrrev_b32 {dst}, 20, {dst}")


def exec_lanes(A, n):
    if n == 64:
        A("s_mov_b64 exec, -1")
    elif n <= 32:
        A(f"s_mov_b64 exec, {hex((1 << n) - 1)}")
    else:
        raise ValueError


STAMP_WG = 37


def interleave(main, fillers):
    n = len(main)
    done = 0
    for i, m in enumerate(main):
        m()
        want = (len(fillers) * (i + 1)) // n
        while done < want:
            fillers[done]()
            done += 1


def sprinkle(base, extra):
    if not base:
        return list(extra)
    out = []
    k = 0
    for i, b in enumerate(base):
        out.append(b)
        while k < (len(extra) * (i + 1)) // len(base):
            out.append(extra[k])
            k += 1
    out += extra[k:]
    return out


def C4(layer): return WS_CNT + layer * 1024
def C2(layer): return WS_CNT + 2048 + layer * 2048
def C3(layer): return WS_CNT + 6144 + layer * 1024
C5 = WS_CNT + 8192
F1 = WS_CNT + 10240
F0 = WS_CNT + 12288
UID = [0]
POLL_SLEEP = int(([o[6:] for o in OPT if o.startswith('sleep=')] + ['2'])[0])
NPOLL = int(([o[6:] for o in OPT if o.startswith('npoll=')] + ['1'])[0])
PV = 168


def publish(A, sr, soff_sgpr):
    UID[0] += 1
    lab = f"L_pub{UID[0]}"
    A.force_wait(vm=0, lg=0)
    A("s_barrier")
    A("v_mov_b32 v10, 0")
    A("v_mov_b32 v11, 1")
    A("v_cmp_eq_u32 vcc, 0, v0")
    A("s_and_saveexec_b64 s[44:45], vcc")
    A(f"s_cbranch_execz {lab}")
    A(f"buffer_atomic_add v11, v10, s[{sr}:{sr + 3}], s{soff_sgpr} offen sc1")
    A.raw(lab + ":")
    A("s_mov_b64 exec, -1")
    rtp(A, "publish")


def await_cnt(A, sr, soff_sgpr, vaddr, nlanes, target):
    UID[0] += 1
    lp, lw, ld = f"L_awp{UID[0]}", f"L_aww{UID[0]}", f"L_awd{UID[0]}"
    A("s_cmp_lg_u32 s22, 0")
    A(f"s_cbranch_scc1 {lw}")
    A(f"s_mov_b64 exec, {hex((1 << nlanes) - 1)}")
    A("s_mov_b32 s45, 0x40000")
    ld_ = f"    buffer_load_dword v{{}}, v{vaddr}, s[{sr}:{sr + 3}], s{soff_sgpr} offen sc0 sc1"
    if NPOLL == 1:
        A.raw(lp + ":")
        A.raw(ld_.format(PV))
        A.raw("    s_waitcnt vmcnt(0)")
        A.raw(f"    v_cmp_gt_u32 vcc, {target}, v{PV}")
        A.raw(f"    s_cbranch_vccz {ld}")
        A.raw("    s_sub_u32 s45, s45, 1")
        A.raw("    s_cmp_lg_u32 s45, 0")
        A.raw(f"    s_cbranch_scc1 {lp}")
    else:
        A.raw("    s_waitcnt vmcnt(0)")
        for i in range(NPOLL):
            A.raw(ld_.format(PV + i))
            A.raw(f"    s_sleep {POLL_SLEEP}")
        A.raw(lp + ":")
        for i in range(NPOLL):
            A.raw(f"    s_waitcnt vmcnt({NPOLL - 1})")
            A.raw(f"    v_cmp_gt_u32 vcc, {target}, v{PV + i}")
            A.raw(f"    s_cbranch_vccz {ld}")
            A.raw(ld_.format(PV + i))
            A.raw(f"    s_sleep {POLL_SLEEP}")
        A.raw("    s_sub_u32 s45, s45, 1")
        A.raw("    s_cmp_lg_u32 s45, 0")
        A.raw(f"    s_cbranch_scc1 {lp}")
    A.raw(ld + ":")
    A.raw("    s_mov_b64 exec, -1")
    A.raw(lw + ":")
    A.hist = []
    A.nop(1)
    A("s_barrier")
    rtp(A, "await")


RTP = [0]
RTN = []


def rtp(A, label, r0=12):
    if "rtp" not in OPT:
        return
    UID[0] += 1
    lab = f"L_rtp{UID[0]}"
    A("s_memrealtime s[96:97]")
    A.force_wait(lg=0)
    A(f"v_mov_b32 v{r0}, s96")
    A("s_lshl_b32 s97, s2, 2")
    A(f"s_add_u32 s97, s97, {0x1900000 + RTP[0] * 1024}")
    A(f"v_mov_b32 v{r0 + 1}, s97")
    A("v_cmp_eq_u32 vcc, 0, v0")
    A("s_and_saveexec_b64 s[98:99], vcc")
    A(f"s_cbranch_execz {lab}")
    A.raw(f"    global_store_dword v{r0 + 1}, v{r0}, s[20:21]")
    A.raw(lab + ":")
    A("s_mov_b64 exec, s[98:99]")
    RTP[0] += 1
    RTN.append(label)


def phase_begin(A):
    A.hist = []
    A.vmq = []
    A.lgq = []
    A.nop(2)


def reduce_groups(A, reg, tmp):
    A(f"v_mov_b32 v{tmp}, v{reg}")
    A(f"v_permlane16_swap_b32 v{tmp}, v{reg}")
    A(f"v_add_f32 v{reg}, v{reg}, v{tmp}")
    A(f"v_mov_b32 v{tmp}, v{reg}")
    A(f"v_permlane32_swap_b32 v{tmp}, v{reg}")
    A(f"v_add_f32 v{reg}, v{reg}, v{tmp}")


def w1_prefetch(A, sr, nwg, vd, prep_only=False):
    per = 14336 // (nwg // 8) // 8
    A("s_lshr_b32 s34, s2, 3")
    A("s_lshl_b32 s34, s34, 3")
    A("s_add_u32 s34, s34, s22")
    A(f"s_mul_i32 s35, s34, {per}")
    A("v_add_u32 v10, s35, v1")
    A("s_bfe_u32 s36, s2, 0x20001")
    div_const(A, "v11", "v10", 7, 35, rng=14400)
    A("v_mul_u32_u24 v12, 7, v11")
    A("v_sub_u32 v12, v10, v12")
    A("v_mul_u32_u24 v11, 3584, v11")
    A("v_lshl_add_u32 v11, v12, 7, v11")
    A("s_mul_i32 s36, s36, 896")
    srd(A, sr, sr, sr + 1, S * F * 2)
    if prep_only:
        A("s_mov_b32 s33, s36")
        return
    if per < 64:
        A(f"s_mov_b32 exec_hi, {hex((1 << (per - 32)) - 1)}")
    A.touch(f"buffer_load_dword v{vd}, v11, s[{sr}:{sr + 3}], s36 offen")
    if per < 64:
        A("s_mov_b64 exec, -1")


G_RING = 9
G_RB = G_RING * 4096
G_TAB = 4 * G_RB
G_LDS = G_TAB + 16384
G_PRE0 = int(([o[5:] for o in OPT if o.startswith("pre0=")] + ["3"])[0])
G_PREA = int(([o[5:] for o in OPT if o.startswith("prea=")] + ["5"])[0])
G_SP = int(([o[3:] for o in OPT if o.startswith("sp=")] + ["2"])[0])


def gk(A, name, layer, which, fused=False, pers=False):
    g1 = which == 1
    nwg = 224 if g1 else 256
    NK = 16 if g1 else 14
    pitch = 3584 if g1 else 4096
    if pers:
        phase_begin(A)
        if g1:
            A("s_cmp_ge_u32 s2, 224")
            A(f"s_cbranch_scc1 L_{name}_skip")
    elif not fused:
        kernel_begin(A, name, nwg)
    elif g1:
        kernel_begin(A, name, 256)
        A("s_cmp_ge_u32 s2, 224")
        A(f"s_cbranch_scc1 L_{name}_p2")
    else:
        A.raw(f"L_{name}_p2:")
        phase_begin(A)
    A.stamp_base = 70
    if not (fused and not g1) and not pers:
        A.stamp(0)
    A(f"s_load_dwordx2 s[20:21], s[0:1], {KA_WS}")
    A(f"s_load_dwordx2 s[4:5], s[0:1], {KA_W1 if g1 else KA_W2}")
    A(f"s_load_dwordx2 s[12:13], s[0:1], {KA_B1 if g1 else KA_B2}")
    if (not g1) and layer == 1:
        A(f"s_load_dwordx2 s[16:17], s[0:1], {KA_OUT}")
    if g1 and PREFETCH and not fused:
        A(f"s_load_dwordx2 s[92:93], s[0:1], {KA_W2}")
    A("v_and_b32 v1, 63, v0")
    A("v_lshrrev_b32 v2, 6, v0")
    A("v_readfirstlane_b32 s22, v2")
    NI4 = 7 if g1 else 8
    A("s_and_b32 s25, s2, 7")
    A("s_lshr_b32 s26, s2, 3")
    A("s_and_b32 s24, s25, 1")
    A("s_lshl_b32 s24, s24, 2")
    A("s_and_b32 s27, s26, 3")
    A("s_add_u32 s24, s24, s27")
    A("s_lshr_b32 s23, s25, 1")
    A(f"s_mul_i32 s23, s23, {NI4}")
    A("s_lshr_b32 s27, s26, 2")
    A("s_add_u32 s23, s23, s27")
    A("s_and_b32 s47, s22, 3")
    A("s_lshr_b32 s48, s22, 2")
    A("v_lshrrev_b32 v3, 3, v1")
    A("v_bfe_u32 v4, v1, 4, 2")
    A("v_lshlrev_b32 v4, 1, v4")
    A("v_and_b32 v5, 7, v1")
    A("v_xor_b32 v4, v4, v5")
    A(f"v_mul_u32_u24 v5, {pitch}, v3")
    A("v_lshl_add_u32 v5, v4, 4, v5")
    A(f"s_mul_i32 s27, s47, {NK * 32 * pitch}")
    A(f"s_mul_i32 s28, s48, {16 * pitch}")
    A("s_add_u32 s27, s27, s28")
    A("s_lshl_b32 s28, s23, 7")
    A("s_add_u32 s27, s27, s28")
    A("v_add_u32 v5, s27, v5")
    A("v_lshrrev_b32 v7, 4, v1")
    A("v_and_b32 v8, 7, v1")
    A("v_lshlrev_b32 v8, 4, v8")
    A("v_lshl_add_u32 v8, v7, 7, v8")
    A("v_bfe_u32 v9, v1, 3, 1")
    A("v_lshl_add_u32 v6, v9, 9, v8")
    A("s_cmp_eq_u32 s48, 0")
    A("s_cselect_b64 s[50:51], -1, 0")
    A("v_cndmask_b32 v9, v8, v6, s[50:51]")
    A.wait_all(vm=False)
    srd(A, 4, 4, 5, (S * F * 2))
    srd(A, 8, 20, 21, WSZ)
    srd(A, 12, 12, 13, (F if g1 else S) * 2)
    if (not g1) and layer == 1:
        srd(A, 16, 16, 17, XBYTES)
    elif not g1:
        srd_off(A, 16, 20, 21, hex(WS_X2), XBYTES)
    if g1:
        A(f"s_mul_i32 s29, s47, {16 * 28672}")
        A("s_mul_i32 s30, s24, 3584")
        A("s_add_u32 s29, s29, s30")
        A(f"s_add_u32 s29, s29, {hex(WS_X1F + layer * LB)}")
        bstep = 28672
    else:
        A("s_mul_i32 s29, s24, 56")
        A("s_mul_i32 s30, s47, 14")
        A("s_add_u32 s29, s29, s30")
        A("s_mul_i32 s29, s29, 3584")
        A(f"s_add_u32 s29, s29, {hex(WS_UF + layer * LB)}")
        bstep = 3584
    A("s_lshl_b32 s30, s48, 11")
    A("s_add_u32 s29, s29, s30")
    A(f"s_mul_i32 s31, s47, {G_RB}")
    A("s_lshl_b32 s30, s48, 11")
    A("s_add_u32 s49, s31, s30")
    NB = 8
    BR = 112
    toks = {}
    A(f"v_add_u32 v4, {8 * pitch - 1024}, v5")
    USE_ROT = "rotg" in OPT
    ROT = 54
    if USE_ROT:
        A("s_lshr_b32 s34, s2, 3")
        A(f"s_mul_i32 s34, s34, {NK * 2341 if g1 else NK * 2048}")
        A("s_lshr_b32 s34, s34, 16")
        A(f"s_mul_i32 s54, s34, {32 * pitch}")
        A(f"s_mul_i32 s55, s34, {bstep}")
        A("s_add_u32 s55, s55, s29")
        A(f"s_sub_u32 s56, {NK}, s34")
        A(f"s_mov_b32 s57, s34")

    def issue_ops(st, part=None):
        slot = st % G_RING
        b = BR + 8 * (st % NB)

        def fa0():
            A(f"s_add_u32 m0, s49, {slot * 4096}")
            if USE_ROT:
                A(f"s_cmp_le_u32 s56, {st}")
                A(f"s_cselect_b32 s35, {NK * 32 * pitch}, 0")
                A(f"s_add_u32 s32, s54, {st * 32 * pitch}")
                A("s_sub_u32 s32, s32, s35")
            else:
                A(f"s_mov_b32 s32, {st * 32 * pitch}")
            A("buffer_load_dwordx4 v5, s[4:7], s32 offen lds")

        def fb0():
            if USE_ROT:
                A(f"s_cmp_le_u32 s56, {st}")
                A(f"s_cselect_b32 s35, {NK * bstep}, 0")
                A(f"s_add_u32 s33, s55, {st * bstep}")
                A("s_sub_u32 s33, s33, s35")
            else:
                A(f"s_add_u32 s33, s29, {st * bstep}")
            A(f"buffer_load_dwordx4 {v(b, 4)}, v6, s[8:11], s33 offen")

        def fa1():
            A("buffer_load_dwordx4 v4, s[4:7], s32 offen offset:1024 lds")

        def fb1():
            toks[st] = A(f"buffer_load_dwordx4 {v(b + 4, 4)}, v9, s[8:11], s33 offen offset:1024")
        if part == "A":
            return [fa0, fa1]
        if part == "B":
            return [fb0, fb1]
        return [fa0, fa1, fb0, fb1]

    if "notouch" not in OPT:
        A("s_lshr_b32 s34, s2, 3")
        A("s_lshl_b32 s34, s34, 3")
        A("s_add_u32 s34, s34, s22")
        A("s_and_b32 s37, s2, 1")
        if g1:
            A("s_lshl_b32 s35, s34, 5")
        else:
            A("s_mul_i32 s35, s34, 25")
        A("v_add_u32 v10, s35, v1")
        if g1:
            div_const(A, "v12", "v10", 112, 38, rng=7200)
            A("v_mul_u32_u24 v13, 112, v12")
            A("v_sub_u32 v13, v10, v13")
            A("v_mul_u32_u24 v12, 28672, v12")
            A("v_lshl_add_u32 v12, v13, 7, v12")
            A("s_mul_i32 s37, s37, 14336")
            A(f"s_add_u32 s37, s37, {hex(WS_X1F + layer * LB)}")
        else:
            A("v_lshlrev_b32 v12, 7, v10")
            A("s_mul_i32 s37, s37, 802816")
            A(f"s_add_u32 s37, s37, {hex(WS_UF + layer * LB)}")
        exec_lanes(A, 32 if g1 else 25)
        A.touch("buffer_load_dword v99, v12, s[8:11], s37 offen")
        exec_lanes(A, 64)
    def stats_loads():
        A("v_lshrrev_b32 v10, 2, v1")
        A("v_lshlrev_b32 v10, 7, v10")
        A("v_and_b32 v11, 3, v1")
        A("v_lshl_add_u32 v10, v11, 4, v10")
        A("s_lshl_b32 s34, s22, 11")
        A(f"s_add_u32 s34, s34, {hex(WS_ST + (0 if layer == 0 else 2) * 16384)}")
        A("buffer_load_dwordx4 v[16:19], v10, s[8:11], s34 offen")
        A("buffer_load_dwordx4 v[20:23], v10, s[8:11], s34 offen offset:64")

    if g1 and not pers:
        stats_loads()
    PRE0 = G_PRE0
    PRE = 7
    F2 = (fused and not g1) or pers
    if F2:
        PRE0 = PRE
        PREA = G_PREA
        for st in range(PREA):
            for f in issue_ops(st, "A"):
                f()
    else:
        for st in range(PRE0):
            for f in issue_ops(st):
                f()
    EP = 100
    if g1:
        A("s_lshr_b32 s36, s47, 1")
        A("s_lshl_b32 s37, s23, 7")
        A("s_lshl_b32 s38, s36, 6")
        A("s_add_u32 s37, s37, s38")
        A("v_lshlrev_b32 v33, 3, v7")
        A(f"buffer_load_dwordx2 {v(EP, 2)}, v33, s[12:15], s37 offen")
        A(f"buffer_load_dwordx2 {v(EP + 2, 2)}, v33, s[12:15], s37 offen offset:32")

    def g2_early():
        A("s_lshl_b32 s36, s23, 2")
        A("s_add_u32 s36, s36, s47")
        A("s_mul_i32 s37, s36, 14336")
        A("s_mul_i32 s38, s24, 1792")
        A("s_add_u32 s37, s37, s38")
        A("s_lshl_b32 s38, s48, 10")
        A("s_add_u32 s37, s37, s38")
        A(f"s_add_u32 s37, s37, {hex(WS_X1T + layer * LB)}")
        A("v_and_b32 v33, 15, v1")
        A("v_lshlrev_b32 v35, 3, v33")
        A("v_lshl_add_u32 v35, v7, 7, v35")
        for k in range(2):
            A(f"buffer_load_dwordx2 {v(EP + 2 * k, 2)}, v35, s[8:11], s37 offen offset:{k * 512}")
        A("s_lshl_b32 s38, s36, 5")
        A("v_lshlrev_b32 v36, 1, v33")
        A(f"buffer_load_ushort v{EP + 4}, v36, s[12:15], s38 offen")
    if (not g1) and not F2:
        g2_early()
    if F2:
        if g1:
            A(f"s_mov_b32 s34, {hex(C3(layer))}")
            A("v_lshlrev_b32 v10, 7, v1")
            await_cnt(A, 8, 34, 10, 8, 28)
            stats_loads()
        else:
            A("s_lshl_b32 s34, s24, 7")
            A(f"s_add_u32 s34, s34, {hex(C4(layer))}")
            A("v_mov_b32 v10, 0")
            await_cnt(A, 8, 34, 10, 1, 28)
        for st in range(PRE0):
            for f in issue_ops(st, "B" if st < PREA else None):
                f()
        if not g1:
            g2_early()
    A.stamp(1)
    A("v_bfe_u32 v12, v1, 2, 2")
    A("v_and_b32 v13, 3, v1")
    A("v_and_b32 v14, 1, v7")
    A("v_lshlrev_b32 v15, 2, v7")
    A("v_add_u32 v15, v15, v12")
    A("v_lshlrev_b32 v15, 7, v15")
    A("v_lshl_add_u32 v15, v13, 3, v15")
    A("v_add_u32 v15, s31, v15")
    A("v_lshrrev_b32 v32, 1, v12")
    A("v_lshl_add_u32 v32, v14, 1, v32")
    for mt in range(4):
        A(f"v_xor_b32 v33, {mt}, v32")
        A(f"v_lshl_add_u32 v{36 + mt}, v33, 5, v15")
    if g1:
        for i in range(4):
            sm, sq = 16 + i, 20 + i
            A(f"v_mul_f32 v{sm}, {hexf(1.0 / 448)}, v{sm}")
            A(f"v_mul_f32 v{sq}, {hexf(1.0 / 448)}, v{sq}")
            A(f"v_fma_f32 v{sq}, -v{sm}, v{sm}, v{sq}")
            A(f"v_max_f32 v{sq}, 0, v{sq}")
            A(f"v_add_f32 v34, {hexf(1e-5)}, v{sq}")
            A("v_rcp_f32 v34, v34")
            A(f"v_mul_f32 v35, v{sq}, v34")
            A(f"v_add_f32 v35, {hexf(1e-5)}, v35")
            A("v_rcp_f32 v35, v35")
            A("v_mul_f32 v34, v34, v35")
            A(f"v_sqrt_f32 v{sq}, v34")
            A(f"v_mul_f32 v{sm}, -v{sm}, v{sq}")
        A("v_lshlrev_b32 v34, 4, v1")
        A("s_lshl_b32 s34, s22, 10")
        A(f"s_add_u32 s34, s34, {G_TAB}")
        A("v_add_u32 v34, s34, v34")
        A("ds_write_b128 v34, v[20:23]")
        A("ds_write_b128 v34, v[16:19] offset:8192")
        A("v_lshlrev_b32 v35, 4, v7")
        A("s_lshl_b32 s34, s47, 11")
        A(f"s_add_u32 s34, s34, {G_TAB}")
        A("v_add_u32 v35, s34, v35")
    AFR = [0, 16]
    ACC = 32
    BN = [40, 48]
    AB = [56, 72]
    TMP = 88

    def a_reads(st):
        slot = st % G_RING
        buf = st & 1
        if "nolds" in OPT and st > 1:
            return []
        return [(lambda mt=mt, t=t: A(f"ds_read_b64_tr_b16 {a(AFR[buf] + 4 * mt + 2 * t, 2)}, v{36 + mt} "
                                      f"offset:{slot * 4096 + t * 2048}")) for mt in range(4) for t in range(2)]

    def ab_reads(st):
        buf = st & 1
        ops = []
        if "nolds" in OPT and st > 1:
            return []

        if USE_ROT:
            def addr():
                A(f"s_add_u32 s46, s57, {st}")
                A("s_and_b32 s46, s46, 15")
                A("s_lshl_b32 s46, s46, 7")
                A(f"v_add_u32 v{96 + buf}, s46, v35")
            ops.append(addr)
            for t in range(2):
                ops.append(lambda t=t: A(f"ds_read_b128 {v(AB[buf] + 4 * t, 4)}, v{96 + buf} offset:{t * 64}"))
                ops.append(lambda t=t: A(f"ds_read_b128 {v(AB[buf] + 8 + 4 * t, 4)}, v{96 + buf} offset:{8192 + t * 64}"))
            return ops
        for t in range(2):
            ops.append(lambda t=t: A(f"ds_read_b128 {v(AB[buf] + 4 * t, 4)}, v35 offset:{st * 128 + t * 64}"))
            ops.append(lambda t=t: A(f"ds_read_b128 {v(AB[buf] + 8 + 4 * t, 4)}, v35 offset:{8192 + st * 128 + t * 64}"))
        return ops

    def norm_ops(st):
        buf = st & 1
        b = BR + 8 * (st % NB)
        ops = []
        if "nonorm" in OPT:
            return [(lambda d=d: A(f"v_mov_b32 v{BN[buf] + d}, v{b + d}")) for d in range(8)]
        for nt in range(2):
            for dp in range(2):
                d0, d1 = 2 * dp, 2 * dp + 1
                x0, x1 = b + 4 * nt + d0, b + 4 * nt + d1
                tb = TMP + 4 * (dp & 1)
                ops.append(lambda x0=x0, tb=tb: A(f"v_lshlrev_b32 v{tb}, 16, v{x0}"))
                ops.append(lambda x0=x0, tb=tb: A(f"v_and_b32 v{tb + 1}, 0xffff0000, v{x0}"))
                ops.append(lambda x1=x1, tb=tb: A(f"v_lshlrev_b32 v{tb + 2}, 16, v{x1}"))
                ops.append(lambda x1=x1, tb=tb: A(f"v_and_b32 v{tb + 3}, 0xffff0000, v{x1}"))
                for (o, dd) in ((0, d0), (2, d1)):
                    for e in range(2):
                        ops.append(lambda tb=tb, o=o, dd=dd, e=e: A(
                            f"v_fma_f32 v{tb + o + e}, v{tb + o + e}, v{AB[buf] + 2 * dd + e}, v{AB[buf] + 8 + 2 * dd + e}"))
                ops.append(lambda tb=tb, nt=nt, d0=d0: A(f"v_cvt_pk_bf16_f32 v{BN[buf] + 4 * nt + d0}, v{tb}, v{tb + 1}"))
                ops.append(lambda tb=tb, nt=nt, d1=d1: A(f"v_cvt_pk_bf16_f32 v{BN[buf] + 4 * nt + d1}, v{tb + 2}, v{tb + 3}"))
        return ops

    def mfma_ops(st):
        buf = st & 1
        ops = []
        if "nomfma" in OPT and st > 0:
            return [lambda: A("s_nop 0")]
        for nt in range(2):
            for mt in range(4):
                acc = a(ACC + 4 * (2 * mt + nt), 4)
                c = "0" if st == 0 else acc
                if g1:
                    ops.append(lambda acc=acc, c=c, mt=mt, nt=nt: A(
                        f"v_mfma_f32_16x16x32_bf16 {acc}, {a(AFR[buf] + 4 * mt, 4)}, {v(BN[buf] + 4 * nt, 4)}, {c}"))
                else:
                    b = BR + 8 * (st % NB)
                    ops.append(lambda acc=acc, c=c, mt=mt, nt=nt, b=b: A(
                        f"v_mfma_f32_16x16x32_bf16 {acc}, {v(b + 4 * nt, 4)}, {a(AFR[buf] + 4 * mt, 4)}, {c}"))
        return ops

    def sync_op(st):
        def f():
            A.wait_vm(toks[st])
            if "nobar" not in OPT:
                A("s_barrier")
        return f

    def w2_touch_ops():
        def f0():
            A("s_lshr_b32 s44, s2, 3")
            A("s_bfe_u32 s45, s2, 0x20001")
            A("s_lshl_b32 s44, s44, 6")
            A("s_lshl_b32 s46, s22, 3")
            A("s_add_u32 s44, s44, s46")
            A("v_and_b32 v98, 7, v1")
            A("v_add_u32 v98, s44, v98")
            A("v_lshlrev_b32 v98, 12, v98")
            A("v_lshl_add_u32 v98, v3, 7, v98")
            A("s_lshl_b32 s45, s45, 10")
            A("v_add_u32 v98, s45, v98")
            srd(A, 92, 92, 93, S * F * 2)

        def f1():
            A.touch("buffer_load_dword v99, v98, s[92:95], 0 offen")
        return [f0, f1]

    next_issue = PRE0
    A.stamp(5)
    A.wait_vm(toks[0])
    A.wait_all(vm=False)
    A.stamp(6)
    A("s_barrier")
    A.stamp(7)
    if "rtg" in OPT:
        rtp(A, f"g{which}loop0")
    for f in a_reads(0):
        f()
    if g1:
        for f in ab_reads(0) + ab_reads(1):
            f()
        for f in norm_ops(0):
            f()
    SPD = G_SP
    synced = 0
    for st in range(NK):
        vm = []
        n_iss = 0
        issued_before = next_issue - 1
        while next_issue < NK and next_issue <= st + PRE and n_iss < 2:
            if F2 and next_issue < PREA:
                vm += issue_ops(next_issue, "B")
            else:
                vm += issue_ops(next_issue)
            next_issue += 1
            n_iss += 1
        lds = []
        if st + 1 < NK:
            if st + 1 > synced:
                tgt = min(NK - 1, st + SPD, issued_before)
                lds += [sync_op(tgt)]
                synced = tgt
            lds += a_reads(st + 1)
        va = norm_ops(st + 1) if (g1 and st + 1 < NK) else []
        ab = ab_reads(st + 2) if (g1 and st + 2 < NK) else []
        if g1 and PREFETCH and (not fused) and st == NK - PRE + 1:
            vm += w2_touch_ops()
        seq = lds + sprinkle(va + ab, vm)
        interleave(mfma_ops(st), seq)
    A.stamp(2)
    PBASE = 0 if g1 else 5 * 4096

    def owner(mt, nt):
        if g1:
            return (2 * (mt >> 1) + nt, mt & 1)
        return (mt, nt)
    A("v_lshlrev_b32 v34, 4, v1")
    A("s_lshl_b32 s35, s48, 13")
    A("s_add_u32 s34, s31, s35")
    A(f"s_add_u32 s34, s34, {PBASE}")
    A("v_add_u32 v33, s34, v34")
    for mt in range(4):
        for nt in range(2):
            o, k = owner(mt, nt)
            A(f"ds_write_b128 v33, {a(ACC + 4 * (2 * mt + nt), 4)} offset:{(o * 2 + k) * 1024}")
    A.wait_all(vm=False)
    A("s_barrier")
    A("s_lshl_b32 s34, s47, 11")
    A("s_add_u32 s34, s34, s35")
    A(f"s_add_u32 s34, s34, {PBASE}")
    A("v_add_u32 v33, s34, v34")
    A(f"v_add_u32 v35, {2 * G_RB}, v33")
    RD = 40
    for k in range(2):
        for src in range(4):
            A(f"ds_read_b128 {v(RD + 8 * src + 4 * k, 4)}, v{33 if src < 2 else 35} offset:{(src & 1) * G_RB + k * 1024}")
    for k in range(2):
        for r in range(4):
            A(f"v_add_f32 v{RD + 4 * k + r}, v{RD + 4 * k + r}, v{RD + 8 + 4 * k + r}")
            A(f"v_add_f32 v{RD + 16 + 4 * k + r}, v{RD + 16 + 4 * k + r}, v{RD + 24 + 4 * k + r}")
        for r in range(4):
            A(f"v_add_f32 v{RD + 4 * k + r}, v{RD + 4 * k + r}, v{RD + 16 + 4 * k + r}")
    A.stamp(3)
    if "rtg" in OPT:
        rtp(A, f"g{which}red")
    if g1:
        for m in range(2):
            for hlf in range(2):
                A(f"v_lshlrev_b32 v{76 + 4 * m + 2 * hlf}, 16, v{EP + 2 * m + hlf}")
                A(f"v_and_b32 v{77 + 4 * m + 2 * hlf}, 0xffff0000, v{EP + 2 * m + hlf}")
        c1 = -2.0 * 1.4426950408889634 * 0.7978845608028654
        c3 = c1 * 0.044715
        A(f"s_mov_b32 s39, {hexf(c1)}")
        A(f"s_mov_b32 s40, {hexf(c3)}")
        A("v_mov_b32 v84, s39")
        for m in range(2):
            for r in range(4):
                x = RD + 4 * m + r
                t = 85 + (r & 1)
                A(f"v_add_f32 v{x}, v{x}, v{76 + 4 * m + r}")
                A(f"v_mul_f32 v{t}, v{x}, v{x}")
                A(f"v_fma_f32 v{t}, v{t}, s40, v84")
                A(f"v_mul_f32 v{t}, v{t}, v{x}")
                A(f"v_exp_f32 v{t}, v{t}")
                A(f"v_add_f32 v{t}, 1.0, v{t}")
                A(f"v_rcp_f32 v{t}, v{t}")
                A(f"v_mul_f32 v{x}, v{x}, v{t}")
        for m in range(2):
            for hlf in range(2):
                A(f"v_cvt_pk_bf16_f32 v{88 + 2 * m + hlf}, v{RD + 4 * m + 2 * hlf}, v{RD + 4 * m + 2 * hlf + 1}")
        A("s_mul_i32 s41, s24, 56")
        A("s_lshl_b32 s42, s23, 1")
        A("s_add_u32 s41, s41, s42")
        A("s_add_u32 s41, s41, s36")
        A("s_mul_i32 s41, s41, 3584")
        A(f"s_add_u32 s41, s41, {hex(WS_UF + layer * LB)}")
        A("s_and_b32 s42, s47, 1")
        A("s_lshl_b32 s43, s48, 1")
        A("s_add_u32 s42, s42, s43")
        A("s_lshl_b32 s43, s42, 10")
        A("s_add_u32 s41, s41, s43")
        A("s_cmp_eq_u32 s42, 3")
        A("s_cselect_b32 s44, 0x00ff00ff, -1")
        A("s_mov_b32 s45, s44")
        A("s_mov_b64 exec, s[44:45]")
        A("buffer_store_dwordx4 v[88:91], v6, s[8:11], s41 offen")
        A("s_mov_b64 exec, -1")
    else:
        A("v_and_b32 v33, 15, v1")
        A(f"v_lshlrev_b32 v76, 16, v{EP + 4}")
        for k in range(2):
            for hlf in range(2):
                x = EP + 2 * k + hlf
                A(f"v_lshlrev_b32 v77, 16, v{x}")
                A(f"v_and_b32 v78, 0xffff0000, v{x}")
                y = RD + 4 * k + 2 * hlf
                A(f"v_add_f32 v{y}, v{y}, v76")
                A(f"v_add_f32 v{y + 1}, v{y + 1}, v76")
                A(f"v_add_f32 v{y}, v{y}, v77")
                A(f"v_add_f32 v{y + 1}, v{y + 1}, v78")
                A(f"v_cvt_pk_bf16_f32 v{88 + 2 * k + hlf}, v{y}, v{y + 1}")
        if layer == 0:
            A("s_cmp_eq_u32 s48, 0")
            A("s_cselect_b32 s45, -1, 0")
            A("s_mov_b32 s44, -1")
            A("v_cndmask_b32 v92, 0, v90, s[44:45]")
            A("v_cndmask_b32 v93, 0, v91, s[44:45]")
            A("v_mov_b32 v77, 0x3f803f80")
            A("v_mov_b32 v78, 0")
            A("v_mov_b32 v79, 0")
            for x in [88, 89, 92, 93]:
                A(f"v_dot2_f32_bf16 v78, v{x}, v77, v78")
                A(f"v_dot2_f32_bf16 v79, v{x}, v{x}, v79")
            reduce_groups(A, 78, 80)
            reduce_groups(A, 79, 81)
            A("v_cmp_gt_u32 vcc, 16, v1")
            A("v_cndmask_b32 v80, v79, v78, vcc")
            A("v_lshlrev_b32 v81, 2, v1")
            A("s_lshl_b32 s39, s36, 7")
            A(f"s_add_u32 s39, s39, {hex(WS_ST + 16384)}")
            exec_lanes(A, 32)
            A("buffer_atomic_add_f32 v80, v81, s[8:11], s39 offen")
            exec_lanes(A, 64)
        SP = 80
        A("s_lshl_b32 s40, s22, 11")
        A(f"s_add_u32 s40, s40, {G_TAB}")
        A(f"v_mul_u32_u24 v36, {SP}, v33")
        A("v_lshl_add_u32 v36, v7, 3, v36")
        A("v_add_u32 v36, s40, v36")
        for k in range(2):
            A(f"ds_write_b64 v36, {v(88 + 2 * k, 2)} offset:{32 * k}")
        A("v_lshrrev_b32 v37, 2, v1")
        A("v_and_b32 v38, 3, v1")
        A(f"v_mul_u32_u24 v39, {SP}, v37")
        A("v_lshl_add_u32 v39, v38, 4, v39")
        A("v_add_u32 v39, s40, v39")
        A("ds_read_b128 v[92:95], v39")
        A("s_lshl_b32 s39, s36, 4")
        A("s_mul_i32 s39, s39, 896")
        A("s_mul_i32 s41, s24, 112")
        A("s_add_u32 s39, s39, s41")
        A("s_lshl_b32 s41, s48, 6")
        A("s_add_u32 s39, s39, s41")
        A("v_mul_u32_u24 v37, 896, v37")
        A("v_lshl_add_u32 v37, v38, 4, v37")
        A("s_cmp_eq_u32 s48, 0")
        A("s_cselect_b32 s44, -1, 0x77777777")
        A("s_mov_b32 s45, s44")
        A("s_mov_b64 exec, s[44:45]")
        A("buffer_store_dwordx4 v[92:95], v37, s[16:19], s39 offen")
        A("s_mov_b64 exec, -1")
    if (fused or pers) and g1:
        A("s_lshl_b32 s34, s24, 7")
        A(f"s_add_u32 s34, s34, {hex(C4(layer))}")
        publish(A, 8, 34)
        if pers:
            A.raw(f"L_{name}_skip:")
        return None
    if pers:
        if layer == 0:
            A("s_lshr_b32 s34, s23, 1")
            A("s_lshl_b32 s34, s34, 7")
            A(f"s_add_u32 s34, s34, {hex(C5)}")
            publish(A, 8, 34)
        return None
    A.stamp(4)
    A.dump_stamps(STAMP_WG)
    kernel_end(A, name)
    return G_LDS, 512, 256, 176


def g1v2(A, name, layer, pers=False):
    NK = 8
    pitch = 3584
    R = 4
    if pers:
        phase_begin(A)
        A("s_cmp_ge_u32 s2, 224")
        A(f"s_cbranch_scc1 L_{name}_skip")
    else:
        kernel_begin(A, name, 224)
    A(f"s_load_dwordx2 s[20:21], s[0:1], {KA_WS}")
    A(f"s_load_dwordx2 s[4:5], s[0:1], {KA_W1}")
    A(f"s_load_dwordx2 s[12:13], s[0:1], {KA_B1}")
    A("v_and_b32 v1, 63, v0")
    A("v_lshrrev_b32 v2, 6, v0")
    A("v_readfirstlane_b32 s22, v2")
    A("s_and_b32 s25, s2, 7")
    A("s_lshr_b32 s26, s2, 3")
    A("s_and_b32 s24, s25, 1")
    A("s_lshl_b32 s24, s24, 2")
    A("s_and_b32 s27, s26, 3")
    A("s_add_u32 s24, s24, s27")
    A("s_lshr_b32 s23, s25, 1")
    A("s_mul_i32 s23, s23, 7")
    A("s_lshr_b32 s27, s26, 2")
    A("s_add_u32 s23, s23, s27")
    A("v_lshrrev_b32 v3, 3, v1")
    A("v_bfe_u32 v4, v1, 4, 2")
    A("v_lshlrev_b32 v4, 1, v4")
    A("v_and_b32 v5, 7, v1")
    A("v_xor_b32 v4, v4, v5")
    A(f"v_mul_u32_u24 v5, {pitch}, v3")
    A("v_lshl_add_u32 v5, v4, 4, v5")
    A(f"s_mul_i32 s27, s22, {NK * 32 * pitch}")
    A("s_lshl_b32 s28, s23, 7")
    A("s_add_u32 s27, s27, s28")
    A("v_add_u32 v5, s27, v5")
    for q in range(1, 4):
        A(f"v_add_u32 v{23 + q}, {q * (8 * pitch - 1024)}, v5")
    A("v_lshrrev_b32 v7, 4, v1")
    A("v_and_b32 v8, 7, v1")
    A("v_lshlrev_b32 v8, 4, v8")
    A("v_lshl_add_u32 v8, v7, 7, v8")
    A("v_bfe_u32 v9, v1, 3, 1")
    A("v_lshl_add_u32 v6, v9, 9, v8")
    A.wait_all(vm=False)
    srd(A, 4, 4, 5, S * F * 2)
    srd(A, 8, 20, 21, WSZ)
    srd(A, 12, 12, 13, F * 2)
    A(f"s_mul_i32 s29, s22, {NK * 28672}")
    A("s_mul_i32 s30, s24, 3584")
    A("s_add_u32 s29, s29, s30")
    A(f"s_add_u32 s29, s29, {hex(WS_X1F + layer * LB)}")
    A("s_lshl_b32 s31, s22, 14")
    NB = 4
    BR = 112
    toks = {}
    tokA = {}

    def a_ops(st):
        slot = st % R

        def f0():
            A(f"s_add_u32 m0, s31, {slot * 4096}")
            A(f"s_mov_b32 s32, {st * 32 * pitch}")
            A("buffer_load_dwordx4 v5, s[4:7], s32 offen lds")
        ops = [f0]
        for q in range(1, 4):
            def fq(q=q):
                tokA[st] = A(f"buffer_load_dwordx4 v{23 + q}, s[4:7], s32 offen offset:{1024 * q} lds")
            ops.append(fq)
        return ops

    def b_ops(st):
        b = BR + 16 * (st % NB)

        def f0():
            A(f"s_add_u32 s33, s29, {st * 28672}")
            A(f"buffer_load_dwordx4 {v(b, 4)}, v6, s[8:11], s33 offen")
        ops = [f0]
        for nt in range(1, 3):
            ops.append(lambda nt=nt: A(f"buffer_load_dwordx4 {v(b + 4 * nt, 4)}, v6, s[8:11], s33 offen offset:{1024 * nt}"))

        def f3():
            toks[st] = A(f"buffer_load_dwordx4 {v(b + 12, 4)}, v8, s[8:11], s33 offen offset:3072")
        ops.append(f3)
        return ops

    PRE = 4
    PA = 3
    for st in range(R):
        for f in a_ops(st):
            f()
    EP = 28
    A("s_lshr_b32 s36, s22, 2")
    A("s_lshl_b32 s37, s23, 7")
    A("s_lshl_b32 s38, s36, 6")
    A("s_add_u32 s37, s37, s38")
    A("v_lshlrev_b32 v33, 3, v7")
    A(f"buffer_load_dwordx2 {v(EP, 2)}, v33, s[12:15], s37 offen")
    A(f"buffer_load_dwordx2 {v(EP + 2, 2)}, v33, s[12:15], s37 offen offset:32")
    if pers:
        A(f"s_mov_b32 s34, {hex(C3(layer))}")
        A("v_lshlrev_b32 v10, 7, v1")
        await_cnt(A, 8, 34, 10, 8, 28)
    A("v_lshrrev_b32 v10, 2, v1")
    A("v_lshlrev_b32 v10, 7, v10")
    A("v_and_b32 v11, 3, v1")
    A("v_lshl_add_u32 v10, v11, 4, v10")
    A("s_lshl_b32 s34, s22, 11")
    A(f"s_add_u32 s34, s34, {hex(WS_ST + (0 if layer == 0 else 2) * 16384)}")
    A("buffer_load_dwordx4 v[16:19], v10, s[8:11], s34 offen")
    A("buffer_load_dwordx4 v[20:23], v10, s[8:11], s34 offen offset:64")
    for st in range(PRE):
        for f in b_ops(st):
            f()
    A("v_bfe_u32 v12, v1, 2, 2")
    A("v_and_b32 v13, 3, v1")
    A("v_and_b32 v14, 1, v7")
    A("v_lshlrev_b32 v15, 2, v7")
    A("v_add_u32 v15, v15, v12")
    A("v_lshlrev_b32 v15, 7, v15")
    A("v_lshl_add_u32 v15, v13, 3, v15")
    A("v_add_u32 v15, s31, v15")
    A("v_lshrrev_b32 v32, 1, v12")
    A("v_lshl_add_u32 v32, v14, 1, v32")
    for mt in range(4):
        A(f"v_xor_b32 v33, {mt}, v32")
        A(f"v_lshl_add_u32 v{36 + mt}, v33, 5, v15")
    for i in range(4):
        sm, sq = 16 + i, 20 + i
        A(f"v_mul_f32 v{sm}, {hexf(1.0 / 448)}, v{sm}")
        A(f"v_mul_f32 v{sq}, {hexf(1.0 / 448)}, v{sq}")
        A(f"v_fma_f32 v{sq}, -v{sm}, v{sm}, v{sq}")
        A(f"v_max_f32 v{sq}, 0, v{sq}")
        A(f"v_add_f32 v34, {hexf(1e-5)}, v{sq}")
        A("v_rcp_f32 v34, v34")
        A(f"v_mul_f32 v35, v{sq}, v34")
        A(f"v_add_f32 v35, {hexf(1e-5)}, v35")
        A("v_rcp_f32 v35, v35")
        A("v_mul_f32 v34, v34, v35")
        A(f"v_sqrt_f32 v{sq}, v34")
        A(f"v_mul_f32 v{sm}, -v{sm}, v{sq}")
    TABW = 8 * 16384
    A("v_lshlrev_b32 v34, 4, v1")
    A("s_lshl_b32 s34, s22, 11")
    A(f"s_add_u32 s34, s34, {TABW}")
    A("v_add_u32 v34, s34, v34")
    A("ds_write_b128 v34, v[20:23]")
    A("ds_write_b128 v34, v[16:19] offset:1024")
    A("v_lshlrev_b32 v35, 4, v7")
    A("v_add_u32 v35, s34, v35")
    AF = 0
    ACC = 16
    BN = [40, 56]
    AB = [72, 88]
    AB = [72, 176 - 0]
    AB = [72, 16]
    AB = [72, 88]
    EP2 = 104
    for r in range(4):
        pass
    TMP = 104

    def a_reads(st, mt):
        slot = st % R
        return [(lambda t=t: A(f"ds_read_b64_tr_b16 {a(AF + 4 * mt + 2 * t, 2)}, v{36 + mt} offset:{slot * 4096 + t * 2048}"))
                for t in range(2)]

    def ab_reads(st):
        buf = st & 1
        ops = []
        for t in range(2):
            ops.append(lambda t=t: A(f"ds_read_b128 {v(AB[buf] + 4 * t, 4)}, v35 offset:{st * 128 + t * 64}"))
            ops.append(lambda t=t: A(f"ds_read_b128 {v(AB[buf] + 8 + 4 * t, 4)}, v35 offset:{1024 + st * 128 + t * 64}"))
        return ops

    def norm_ops(st):
        buf = st & 1
        b = BR + 16 * (st % NB)
        ops = []
        for nt in range(4):
            for dp in range(2):
                d0, d1 = 2 * dp, 2 * dp + 1
                x0, x1 = b + 4 * nt + d0, b + 4 * nt + d1
                tb = TMP + 4 * (dp & 1)
                ops.append(lambda x0=x0, tb=tb: A(f"v_lshlrev_b32 v{tb}, 16, v{x0}"))
                ops.append(lambda x0=x0, tb=tb: A(f"v_and_b32 v{tb + 1}, 0xffff0000, v{x0}"))
                ops.append(lambda x1=x1, tb=tb: A(f"v_lshlrev_b32 v{tb + 2}, 16, v{x1}"))
                ops.append(lambda x1=x1, tb=tb: A(f"v_and_b32 v{tb + 3}, 0xffff0000, v{x1}"))
                for (o, dd) in ((0, d0), (2, d1)):
                    for e in range(2):
                        ops.append(lambda tb=tb, o=o, dd=dd, e=e: A(
                            f"v_fma_f32 v{tb + o + e}, v{tb + o + e}, v{AB[buf] + 2 * dd + e}, v{AB[buf] + 8 + 2 * dd + e}"))
                ops.append(lambda tb=tb, nt=nt, d0=d0: A(f"v_cvt_pk_bf16_f32 v{BN[buf] + 4 * nt + d0}, v{tb}, v{tb + 1}"))
                ops.append(lambda tb=tb, nt=nt, d1=d1: A(f"v_cvt_pk_bf16_f32 v{BN[buf] + 4 * nt + d1}, v{tb + 2}, v{tb + 3}"))
        return ops

    def mfma(st, mt, nt):
        buf = st & 1
        acc = a(ACC + 4 * (4 * mt + nt), 4)
        c = "0" if st == 0 else acc
        A(f"v_mfma_f32_16x16x32_bf16 {acc}, {a(AF + 4 * mt, 4)}, {v(BN[buf] + 4 * nt, 4)}, {c}")

    A.wait_vm(tokA[0])
    for mt in range(4):
        for f in a_reads(0, mt):
            f()
    for f in ab_reads(0) + ab_reads(1):
        f()
    for f in norm_ops(0):
        f()
    nextA, nextB = R, PRE
    for st in range(NK):
        va = norm_ops(st + 1) if st + 1 < NK else []
        ab = ab_reads(st + 2) if st + 2 < NK else []
        vm = []
        if nextB < NK and nextB <= st + PRE - 0 and nextB - NB <= st:
            vm += b_ops(nextB)
            nextB += 1
        fill = sprinkle(va + ab, vm)
        k = 0
        tot = len(fill)
        n = 0
        if st + 1 < NK:
            A.wait_vm(tokA[st + 1])
        for mt in range(4):
            for nt in range(4):
                mfma(st, mt, nt)
                n += 1
                while k < (tot * n) // 16:
                    fill[k]()
                    k += 1
            if st + 1 < NK:
                for f in a_reads(st + 1, mt):
                    f()
        if nextA < NK:
            for f in a_ops(nextA):
                f()
            nextA += 1
    A("v_lshlrev_b32 v34, 4, v1")
    A("v_add_u32 v33, s31, v34")
    for mt in range(4):
        for nt in range(4):
            o, kk = 4 * (mt >> 1) + nt, mt & 1
            A(f"ds_write_b128 v33, {a(ACC + 4 * (4 * mt + nt), 4)} offset:{(o * 2 + kk) * 1024}")
    A.wait_all(vm=False)
    A("s_barrier")
    A("s_lshl_b32 s34, s22, 11")
    A("v_add_u32 v33, s34, v34")
    A(f"v_add_u32 v35, {4 * 16384}, v33")
    RD = 40
    for r in range(4):
        A(f"v_mov_b32 v{108 + r}, v{EP + r}")
    for kk in range(2):
        for src in range(8):
            A(f"ds_read_b128 {v(RD + 8 * src + 4 * kk, 4)}, v{33 if src < 4 else 35} offset:{(src & 3) * 16384 + kk * 1024}")
    for kk in range(2):
        for step in (1, 2, 4):
            for base in range(0, 8, 2 * step):
                for r in range(4):
                    x, y = RD + 8 * base + 4 * kk + r, RD + 8 * (base + step) + 4 * kk + r
                    A(f"v_add_f32 v{x}, v{x}, v{y}")
    for m in range(2):
        for hlf in range(2):
            A(f"v_lshlrev_b32 v{112 + 4 * m + 2 * hlf}, 16, v{108 + 2 * m + hlf}")
            A(f"v_and_b32 v{113 + 4 * m + 2 * hlf}, 0xffff0000, v{108 + 2 * m + hlf}")
    c1 = -2.0 * 1.4426950408889634 * 0.7978845608028654
    c3 = c1 * 0.044715
    A(f"s_mov_b32 s39, {hexf(c1)}")
    A(f"s_mov_b32 s40, {hexf(c3)}")
    A("v_mov_b32 v120, s39")
    for m in range(2):
        for r in range(4):
            x = RD + 4 * m + r
            t = 121 + (r & 1)
            A(f"v_add_f32 v{x}, v{x}, v{112 + 4 * m + r}")
            A(f"v_mul_f32 v{t}, v{x}, v{x}")
            A(f"v_fma_f32 v{t}, v{t}, s40, v120")
            A(f"v_mul_f32 v{t}, v{t}, v{x}")
            A(f"v_exp_f32 v{t}, v{t}")
            A(f"v_add_f32 v{t}, 1.0, v{t}")
            A(f"v_rcp_f32 v{t}, v{t}")
            A(f"v_mul_f32 v{x}, v{x}, v{t}")
    for m in range(2):
        for hlf in range(2):
            A(f"v_cvt_pk_bf16_f32 v{124 + 2 * m + hlf}, v{RD + 4 * m + 2 * hlf}, v{RD + 4 * m + 2 * hlf + 1}")
    A("s_mul_i32 s41, s24, 56")
    A("s_lshl_b32 s42, s23, 1")
    A("s_add_u32 s41, s41, s42")
    A("s_add_u32 s41, s41, s36")
    A("s_mul_i32 s41, s41, 3584")
    A(f"s_add_u32 s41, s41, {hex(WS_UF + layer * LB)}")
    A("s_and_b32 s42, s22, 3")
    A("s_lshl_b32 s43, s42, 10")
    A("s_add_u32 s41, s41, s43")
    A("s_cmp_eq_u32 s42, 3")
    A("s_cselect_b32 s44, 0x00ff00ff, -1")
    A("s_mov_b32 s45, s44")
    A("s_mov_b64 exec, s[44:45]")
    A("buffer_store_dwordx4 v[124:127], v6, s[8:11], s41 offen")
    A("s_mov_b64 exec, -1")
    if pers:
        A("s_lshl_b32 s34, s24, 7")
        A(f"s_add_u32 s34, s34, {hex(C4(layer))}")
        publish(A, 8, 34)
        A.raw(f"L_{name}_skip:")
        return None
    kernel_end(A, name)
    return G_LDS, 512, 256, 176


K1_XP = 16384
K1_WP = 64 * 192
K1_SLOT = K1_XP + K1_WP
K1_NS = 5
K1_MISC = K1_NS * K1_SLOT
K1_CSUM = K1_MISC
K1_TOK = K1_MISC + 1024
K1_LDS = K1_MISC + 1024 + 2048
K1_EX = 2 * K1_SLOT


def k1(A, name, layer, pers=False):
    L0 = layer == 0
    if pers:
        phase_begin(A)
    else:
        kernel_begin(A, name, 256)
        A.stamp_base = 70
        A.stamp(0)
    if L0:
        A(f"s_load_dwordx2 s[4:5], s[0:1], {KA_X}")
        A(f"s_load_dwordx2 s[8:9], s[0:1], {KA_WQKV}")
    A(f"s_load_dwordx2 s[20:21], s[0:1], {KA_WS}")
    A("v_and_b32 v1, 63, v0")
    A("v_lshrrev_b32 v2, 6, v0")
    A("v_readfirstlane_b32 s22, v2")
    A("s_lshr_b32 s23, s2, 4")
    A("s_and_b32 s24, s2, 15")
    A("s_and_b32 s47, s22, 3")
    A("s_lshr_b32 s48, s22, 2")
    A("s_lshl_b32 s25, s23, 7")
    A("s_lshl_b32 s26, s47, 5")
    A("s_add_u32 s49, s25, s26")
    A("s_lshl_b32 s26, s48, 4")
    A("s_add_u32 s25, s49, s26")
    A("s_mul_i32 s25, s25, 896")
    A("v_lshrrev_b32 v16, 3, v1")
    A("v_mul_u32_u24 v16, 896, v16")
    A("v_lshrrev_b32 v17, 4, v1")
    A("v_and_b32 v18, 7, v1")
    A("v_xor_b32 v19, v18, v17")
    A("v_lshl_add_u32 v2, v19, 4, v16")
    A("v_xor_b32 v19, 4, v19")
    A("v_lshl_add_u32 v3, v19, 4, v16")
    A("v_add_u32 v2, s25, v2")
    A("v_add_u32 v3, s25, v3")
    A(f"v_add_u32 v3, {8 * 896 - 1024}, v3")
    if L0:
        A("s_lshl_b32 s26, s22, 3")
        A("s_mul_i32 s26, s26, 2688")
        A("s_mul_i32 s27, s24, 56")
        A("s_add_u32 s26, s26, s27")
        for i in range(2):
            A(f"v_add_u32 v16, {64 * i}, v1")
            div_const(A, "v17", "v16", 12, 27)
            A("v_mul_u32_u24 v18, 12, v17")
            A("v_sub_u32 v18, v16, v18")
            A("v_mul_u32_u24 v17, 2688, v17")
            A("v_lshrrev_b32 v19, 2, v18")
            A("v_mul_u32_u24 v19, 896, v19")
            A("v_and_b32 v18, 3, v18")
            A("v_lshl_add_u32 v17, v18, 4, v17")
            A("v_add_u32 v17, v17, v19")
            A(f"v_add_u32 v{4 + i}, s26, v17")
        A("v_subrev_u32 v5, 1024, v5")
        wstep = 64 * 2688
    else:
        A("s_mul_i32 s26, s24, 86016")
        A("s_mul_i32 s27, s22, 1536")
        A("s_add_u32 s26, s26, s27")
        A("v_lshlrev_b32 v4, 4, v1")
        A("v_add_u32 v4, s26, v4")
        A("v_mov_b32 v5, v4")
        wstep = 12288
    A.wait_all(vm=False)
    if L0:
        srd(A, 4, 4, 5, XBYTES)
        srd(A, 8, 8, 9, D * 3 * D * 2)
    else:
        srd_off(A, 4, 20, 21, hex(WS_X2), XBYTES)
        srd_off(A, 8, 20, 21, hex(WS_WC), 16 * 86016)
    srd(A, 12, 20, 21, WSZ)
    A("s_lshl_b32 s28, s47, 12")
    A("s_lshl_b32 s29, s48, 11")
    A("s_add_u32 s28, s28, s29")
    A("s_mul_i32 s29, s22, 1536")
    A(f"s_add_u32 s29, s29, {K1_XP}")
    tokq = {}
    ROT = 52
    A("s_add_u32 s35, s23, s24")
    A("s_mul_i32 s34, s35, 9363")
    A("s_lshr_b32 s34, s34, 16")
    A("s_mul_i32 s34, s34, 7")
    A("s_sub_u32 s34, s35, s34")
    if "norot" in OPT:
        A("s_mov_b32 s34, 0")
    for q in range(7):
        A(f"s_add_u32 s{ROT + q}, s34, {q}")
        A(f"s_cmp_ge_u32 s{ROT + q}, 7")
        A("s_cselect_b32 s35, 7, 0")
        A(f"s_sub_u32 s{ROT + q}, s{ROT + q}, s35")

    def dma_ops(p):
        slot = (p % K1_NS) * K1_SLOT

        def f0():
            A(f"s_add_u32 m0, s28, {slot}")
            A(f"s_lshl_b32 s30, s{ROT + p}, 7")
            A("buffer_load_dwordx4 v2, s[4:7], s30 offen lds")
            A("buffer_load_dwordx4 v3, s[4:7], s30 offen offset:1024 lds")

        def f1():
            A(f"s_add_u32 m0, s29, {slot}")
            A(f"s_mul_i32 s31, s{ROT + p}, {wstep}")
            A("buffer_load_dwordx4 v4, s[8:11], s31 offen lds")
            exec_lanes(A, 32)
            tokq[p] = A("buffer_load_dwordx4 v5, s[8:11], s31 offen offset:1024 lds")
            exec_lanes(A, 64)
        return [f0, f1]

    def l1_stats():
        A("v_and_b32 v16, 31, v1")
        A("v_add_u32 v16, s49, v16")
        A("v_lshrrev_b32 v17, 4, v16")
        A("v_lshlrev_b32 v17, 7, v17")
        A("v_and_b32 v16, 15, v16")
        A("v_lshl_add_u32 v17, v16, 2, v17")
        A(f"s_mov_b32 s32, {hex(WS_ST + 16384)}")
        A("buffer_load_dword v52, v17, s[12:15], s32 offen")
        A("buffer_load_dword v48, v17, s[12:15], s32 offen offset:64")

    def l1_csum():
        A("v_lshrrev_b32 v17, 5, v1")
        A("v_lshlrev_b32 v17, 4, v17")
        A("s_mul_i32 s32, s24, 384")
        A("s_lshl_b32 s33, s48, 7")
        A("s_add_u32 s33, s33, s32")
        A(f"s_add_u32 s33, s33, {hex(WS_CS)}")
        for j in range(4):
            A(f"buffer_load_dwordx4 {v(120 + 4 * j, 4)}, v17, s[12:15], s33 offen offset:{32 * j}")
        A("v_and_b32 v16, 31, v1")
        A("v_lshlrev_b32 v16, 2, v16")
        A(f"s_add_u32 s32, s32, {hex(WS_CS + 256)}")
        A("buffer_load_dword v56, v16, s[12:15], s32 offen")

    PRE = 3
    pers1 = pers and not L0
    if pers1:
        PRE = 4
        for p in range(5):
            dma_ops(p)[1]()
        l1_csum()
        A("s_lshl_b32 s32, s23, 7")
        A(f"s_add_u32 s32, s32, {hex(C5)}")
        A("v_mov_b32 v10, 0")
        await_cnt(A, 12, 32, 10, 1, 16)
        l1_stats()
        for p in range(PRE):
            dma_ops(p)[0]()
            tokq[p] = A.vmq[-1]["tok"]
    else:
        for f in dma_ops(0):
            f()
    if L0:
        A("s_lshl_b32 s32, s2, 13")
        A(f"s_add_u32 s32, s32, {hex(WS_ST)}")
        A("s_cmp_lt_u32 s2, 8")
        A("s_cselect_b32 s32, s32, 0x7fff0000")
        A("v_lshlrev_b32 v16, 4, v0")
        for i in range(4):
            A(f"v_mov_b32 v{12 + i}, 0")
        A("buffer_store_dwordx4 v[12:15], v16, s[12:15], s32 offen")
        if pers:
            A(f"s_load_dwordx2 s[60:61], s[0:1], {KA_DBG}")
    elif not pers1:
        l1_stats()
        l1_csum()
    if not pers1:
        for p in range(1, PRE):
            for f in dma_ops(p):
                f()
    if pers and L0 and "tlb" in OPT:
        tlb_warm(A)
    A.stamp(1)
    A("v_and_b32 v16, 31, v1")
    A("v_lshrrev_b32 v17, 5, v1")
    A("v_bfe_u32 v18, v1, 1, 3")
    A("v_xor_b32 v18, v18, v17")
    A("v_lshlrev_b32 v19, 7, v16")
    A("s_lshl_b32 s32, s47, 12")
    A("v_add_u32 v19, s32, v19")
    A("s_lshl_b32 s33, s48, 2")
    for ls in range(2):
        A(f"s_add_u32 s34, s33, {2 * ls}")
        A("v_xor_b32 v20, s34, v18")
        A(f"v_lshl_add_u32 v{8 + ls}, v20, 4, v19")
    A("v_bfe_u32 v18, v1, 2, 2")
    A("v_bfe_u32 v19, v1, 4, 1")
    A("v_and_b32 v20, 3, v1")
    A("v_lshlrev_b32 v22, 5, v19")
    A("v_lshl_add_u32 v22, v20, 3, v22")
    A("v_lshl_add_u32 v21, v17, 3, v18")
    A("v_mul_u32_u24 v21, 192, v21")
    A("v_add_u32 v21, v21, v22")
    A(f"s_mul_i32 s34, s48, {32 * 192}")
    A(f"s_add_u32 s34, s34, {K1_XP}")
    A("v_add_u32 v21, s34, v21")
    ONES = 28
    SS = 36
    if L0:
        A("s_mul_i32 s34, s22, 11")
        A("s_lshr_b32 s34, s34, 5")
        A("s_mul_i32 s35, s34, 3")
        A("s_sub_u32 s35, s22, s35")
        A("s_and_b32 s34, s34, 1")
        A(f"s_mul_i32 s34, s34, {32 * 192}")
        A("s_lshl_b32 s35, s35, 6")
        A("s_add_u32 s34, s34, s35")
        A(f"s_add_u32 s34, s34, {K1_XP}")
        A("v_lshl_add_u32 v23, v17, 3, v18")
        A("v_mul_u32_u24 v23, 192, v23")
        A("v_add_u32 v22, v22, v23")
        A("v_add_u32 v22, s34, v22")
        A("v_mul_u32_u24 v24, 192, v1")
        A("v_add_u32 v24, s29, v24")
        A("v_add_u32 v24, 56, v24")
        A("v_mov_b32 v26, 0x3f80")
        A("v_mov_b32 v27, 0")
        for i in range(4):
            A(f"v_mov_b32 v{ONES + i}, 0x3f803f80")
        for i in range(4):
            A(f"v_mov_b32 v{SS + i}, 0")
        A("v_lshlrev_b32 v33, 4, v1")
        A("v_add_u32 v34, s29, v33")
        A("s_mul_i32 s50, s24, 86016")
        A("s_mul_i32 s51, s22, 1536")
        A("s_add_u32 s50, s50, s51")
        A(f"s_add_u32 s50, s50, {hex(WS_WC)}")
    AQ, AK, AV, AC = 0, 16, 32, 48
    XF = 64
    WF = 76
    CF = 112
    VA = 40

    def token_stats(sumreg, sqreg):
        A(f"v_mul_f32 v{sumreg}, {hexf(1.0 / 448)}, v{sumreg}")
        A(f"v_mul_f32 v{sqreg}, {hexf(1.0 / 448)}, v{sqreg}")
        A(f"v_fma_f32 v{sqreg}, -v{sumreg}, v{sumreg}, v{sqreg}")
        A(f"v_max_f32 v{sqreg}, 0, v{sqreg}")
        A(f"v_add_f32 v{sqreg}, {hexf(1e-5)}, v{sqreg}")
        A(f"v_rsq_f32 v{sqreg}, v{sqreg}")
        A(f"v_mul_f32 v{sumreg}, -v{sumreg}, v{sqreg}")
        A("v_and_b32 v57, 31, v1")
        A("v_lshlrev_b32 v57, 2, v57")
        A("s_lshl_b32 s35, s22, 8")
        A(f"s_add_u32 s35, s35, {K1_TOK}")
        A("v_add_u32 v57, s35, v57")
        exec_lanes(A, 32)
        A(f"ds_write_b32 v57, v{sqreg}")
        A(f"ds_write_b32 v57, v{sumreg} offset:128")
        exec_lanes(A, 64)
        A("v_lshlrev_b32 v58, 4, v17")
        A("s_lshl_b32 s36, s48, 6")
        A("s_add_u32 s36, s36, s35")
        A("v_add_u32 v58, s36, v58")
        for j in range(2):
            A(f"ds_read_b128 {v(TA + 4 * j, 4)}, v58 offset:{32 * j}")
            A(f"ds_read_b128 {v(TB + 4 * j, 4)}, v58 offset:{128 + 32 * j}")

    TA, TB = 152, 160
    CS = 120
    if not L0:
        token_stats(52, 48)

    def set_addr(p):
        slot = (p % K1_NS) * K1_SLOT
        b = VA + 4 * (p & 1)
        A(f"v_add_u32 v{b}, {slot}, v8")
        A(f"v_add_u32 v{b + 1}, {slot}, v9")
        A(f"v_add_u32 v{b + 2}, {slot}, v21")
        if L0:
            A(f"v_add_u32 v{b + 3}, {slot}, v22")

    def sync(p):
        slot = (p % K1_NS) * K1_SLOT
        set_addr(p)
        A.wait_vm(tokq[p])
        if L0:
            A(f"v_add_u32 v49, {slot}, v24")
            if p == 0:
                A(f"v_add_u32 v35, {slot}, v34")
                A("ds_read_b128 v[120:123], v35")
                A("ds_read_b128 v[124:127], v35 offset:1024")
                A(f"s_mul_i32 s51, s{ROT}, 12288")
                A("s_add_u32 s51, s51, s50")
                A("s_cmp_lt_u32 s23, 7")
                A("s_cselect_b32 s51, s51, 0x7fff0000")
                A("buffer_store_dwordx4 v[120:123], v33, s[12:15], s51 offen")
                exec_lanes(A, 32)
                A("buffer_store_dwordx4 v[124:127], v33, s[12:15], s51 offen offset:1024")
            exec_lanes(A, 8)
            A("ds_write_b64 v49, v[26:27]")
            exec_lanes(A, 64)
            A.wait_all(vm=False)
        A("s_barrier")
        if pers and L0 and p == 1:
            srd(A, 60, 60, 61, 256)
            A("s_cmp_ge_u32 s2, 8")
            A(f"s_cbranch_scc1 L_{name}_nz")
            A("v_mov_b32 v10, 0")
            A("v_mov_b32 v11, 1")
            A("v_cmp_eq_u32 vcc, 0, v0")
            A("s_and_saveexec_b64 s[44:45], vcc")
            A(f"s_cbranch_execz L_{name}_nz2")
            A.raw("    buffer_atomic_add v11, v10, s[60:63], 0 offen sc1")
            A.raw(f"L_{name}_nz2:")
            A("s_mov_b64 exec, -1")
            A.raw(f"L_{name}_nz:")

    def read_ops(gs):
        p, ls = gs >> 1, gs & 1
        b = VA + 4 * (p & 1)
        buf = gs % 3
        ops = [lambda: A(f"ds_read_b128 {v(XF + 4 * buf, 4)}, v{b + ls}")]
        for t3 in range(3):
            for t in range(2):
                ops.append(lambda t3=t3, t=t: A(
                    f"ds_read_b64_tr_b16 {v(WF + 12 * buf + 4 * t3 + 2 * t, 2)}, v{b + 2} "
                    f"offset:{(16 * ls + 4 * t) * 192 + 64 * t3}"))
        return ops

    def cread_ops(p):
        b = VA + 4 * (p & 1)
        ops = []
        for f in range(2):
            for t in range(2):
                ops.append(lambda f=f, t=t: A(
                    f"ds_read_b64_tr_b16 {v(CF + 4 * f + 2 * t, 2)}, v{b + 3} offset:{(16 * f + 4 * t) * 192}"))
        return ops

    sync(0)
    for f in read_ops(0) + read_ops(1):
        f()
    A.stamp(2)
    if "rtg" in OPT:
        rtp(A, "k1loop0")
    for gs in range(14):
        p, ls = gs >> 1, gs & 1
        b = gs % 3
        xf = v(XF + 4 * b, 4)
        first = gs == 0
        m = [
            lambda: A(f"v_mfma_f32_32x32x16_bf16 {a(AQ, 16)}, {v(WF + 12 * b, 4)}, {xf}, {'0' if first else a(AQ, 16)}"),
            lambda: A(f"v_mfma_f32_32x32x16_bf16 {a(AK, 16)}, {v(WF + 12 * b + 4, 4)}, {xf}, {'0' if first else a(AK, 16)}"),
            lambda: A(f"v_mfma_f32_32x32x16_bf16 {a(AV, 16)}, {xf}, {v(WF + 12 * b + 8, 4)}, {'0' if first else a(AV, 16)}"),
        ]
        if ls == 1 and L0:
            for f in range(2):
                m.append(lambda f=f: A(
                    f"v_mfma_f32_32x32x16_bf16 {a(AC, 16)}, {v(ONES, 4)}, {v(CF + 4 * f, 4)}, "
                    f"{'0' if (p == 0 and f == 0) else a(AC, 16)}"))
        fill = []
        if ls == 0:
            if L0:
                fill += cread_ops(p)
            if p + 1 < 7:
                fill += [lambda p=p: sync(p + 1)]
        if gs + 2 < 14:
            fill += read_ops(gs + 2)
        dots = [(lambda d=d: A(f"v_dot2_f32_bf16 v{SS + d}, v{XF + 4 * b + d}, v{XF + 4 * b + d}, v{SS + d}"))
                for d in range(4)] if L0 else []
        vm = dma_ops(p + PRE) if (ls == 1 and p + PRE < 7) else []
        if pers1 and vm and p + PRE < 5:
            q_ = p + PRE

            def xonly(f=vm[0], q_=q_):
                f()
                tokq[q_] = A.vmq[-1]["tok"]
            vm = [xonly]
        elif pers1 and vm:
            vm = [vm[1], vm[0]]
            q_ = p + PRE
            vm.append(lambda q_=q_: tokq.__setitem__(q_, A.vmq[-1]["tok"]))
        fill = fill + sprinkle(dots, vm)
        interleave(m, fill)
    A.stamp(3)
    if "rtg" in OPT:
        rtp(A, "k1loopE")
    A("v_lshlrev_b32 v49, 4, v1")
    A("s_mul_i32 s33, s22, 7168")
    A(f"s_add_u32 s33, s33, {K1_EX}")
    A("v_add_u32 v50, s33, v49")
    A("s_xor_b32 s34, s22, 4")
    A("s_mul_i32 s34, s34, 7168")
    A(f"s_add_u32 s34, s34, {K1_EX}")
    A("v_add_u32 v51, s34, v49")
    if L0:
        A("v_and_b32 v47, 31, v1")
        A("v_lshlrev_b32 v47, 2, v47")
        A(f"v_add_u32 v47, {K1_CSUM}, v47")
        A(f"v_add_f32 v{SS}, v{SS}, v{SS + 1}")
        A(f"v_add_f32 v{SS + 2}, v{SS + 2}, v{SS + 3}")
        A(f"v_add_f32 v{SS}, v{SS}, v{SS + 2}")
        A(f"v_mov_b32 v53, v{SS}")
        A(f"v_permlane32_swap_b32 v53, v{SS}")
        A(f"v_add_f32 v53, v53, v{SS}")
        A("s_lshl_b32 s35, s22, 7")
        A("v_add_u32 v46, s35, v47")
        exec_lanes(A, 32)
        A(f"ds_write_b32 v46, a{AC}")
        exec_lanes(A, 64)
        A(f"v_accvgpr_read_b32 v52, a{AQ + 12}")
    A("s_lshl_b32 s36, s24, 6")
    A("s_lshl_b32 s37, s23, 2")
    A("s_add_u32 s36, s36, s37")
    A("s_add_u32 s36, s36, s47")
    A("s_lshl_b32 s36, s36, 11")
    A("v_add_u32 v59, s36, v49")
    A("v_cmp_eq_u32 s[38:39], 0, v17")
    A("v_and_b32 v62, 31, v1")
    A("v_cmp_gt_u32 s[42:43], 28, v62")
    A("v_cmp_eq_u32 vcc, 28, v62")
    A("v_mov_b32 v63, 0x3f803f80")
    A("v_cndmask_b32 v63, 0, v63, vcc")
    A("s_cmp_eq_u32 s48, 0")
    A(f"s_cbranch_scc0 L_{name}_e1")
    save_vm = [dict(o) for o in A.vmq]
    save_lg = [dict(o) for o in A.lgq]
    RX = 64
    KP = 92
    for kh in range(2):
        keep, send = (AQ, AK) if kh == 0 else (AK, AQ)
        vkeep, vsend = (AV, AV + 8) if kh == 0 else (AV + 8, AV)
        for j in range(4):
            A(f"ds_write_b128 v50, {a(send + 4 * j, 4)} offset:{1024 * j}")
        for j in range(2):
            A(f"ds_write_b128 v50, {a(vsend + 4 * j, 4)} offset:{4096 + 1024 * j}")
        if L0:
            A("ds_write_b64 v50, v[52:53] offset:6144")
        for r in range(16):
            A(f"v_accvgpr_read_b32 v{KP + r}, a{keep + r}")
        for r in range(8):
            A(f"v_accvgpr_read_b32 v{KP + 16 + r}, a{vkeep + r}")
        A.wait_all(vm=False)
        A.stamp(5)
        A("s_barrier")
        A.stamp(6)
        for j in range(6):
            A(f"ds_read_b128 {v(RX + 4 * j, 4)}, v51 offset:{1024 * j}")
        if L0:
            A(f"ds_read_b64 {v(RX + 24, 2)}, v51 offset:6144")
            A("v_lshlrev_b32 v54, 4, v17")
            A(f"v_add_u32 v55, {K1_CSUM}, v54")
            for j in range(4):
                A(f"ds_read_b128 {v(CS + 4 * j, 4)}, v55 offset:{128 * kh + 32 * j}")
                A(f"ds_read_b128 {v(136 + 4 * j, 4)}, v55 offset:{128 * (kh + 3) + 32 * j}")
            A("ds_read_b32 v56, v47 offset:256")
            A("ds_read_b32 v45, v47 offset:640")
            for r in range(16):
                A(f"v_add_f32 v{CS + r}, v{CS + r}, v{136 + r}")
            A("v_add_f32 v56, v56, v45")
            A("s_mul_i32 s40, s24, 384")
            A(f"s_add_u32 s40, s40, {hex(WS_CS + 128 * kh)}")
            A("s_or_b32 s41, s23, s47")
            A("s_cmp_eq_u32 s41, 0")
            A("s_cselect_b32 s40, s40, 0x7fff0000")
            A("v_and_b32 v60, 31, v1")
            A("v_lshlrev_b32 v60, 2, v60")
            A(f"ds_read_b32 v46, v47 offset:{128 * kh}")
            A(f"ds_read_b32 v45, v47 offset:{128 * (kh + 3)}")
            A("v_add_f32 v46, v46, v45")
            A("buffer_store_dword v46, v60, s[12:15], s40 offen")
            if kh == 0:
                A("buffer_store_dword v56, v60, s[12:15], s40 offen offset:256")
            A(f"v_add_f32 v52, v52, v{RX + 24}")
            A(f"v_add_f32 v48, v53, v{RX + 25}")
            A("v_mov_b32 v57, v52")
            A("v_permlane32_swap_b32 v57, v52")
            token_stats(52, 48)
        A.stamp(7)
        cq = (DH ** -0.5) * 1.4426950408889634
        if kh == 0:
            A(f"v_mul_f32 v60, {hexf(cq)}, v48")
            A(f"v_mul_f32 v61, {hexf(cq)}, v52")
            ra, rb_ = 60, 61
        else:
            ra, rb_ = 48, 52
        PK = 168
        for r in range(16):
            A(f"v_mul_f32 v{CS + r}, v{CS + r}, v{rb_}")
        for r in range(16):
            A(f"v_add_f32 v{KP + r}, v{KP + r}, v{RX + r}")
            A(f"v_fma_f32 v{KP + r}, v{KP + r}, v{ra}, v{CS + r}")
        for d in range(8):
            A(f"v_cvt_pk_bf16_f32 v{PK + d}, v{KP + 2 * d}, v{KP + 2 * d + 1}")
        if kh == 0:
            A("v_mov_b32 v62, 0x3f80")
            A(f"v_cndmask_b32 v{PK + 6}, v62, v{PK + 6}, s[38:39]")
        else:
            A(f"v_cndmask_b32 v{PK + 6}, 0, v{PK + 6}, s[38:39]")
        A(f"v_cndmask_b32 v{PK + 7}, 0, v{PK + 7}, s[38:39]")
        A(f"s_mov_b32 s40, {hex((WS_QF if kh == 0 else WS_KF) + layer * LB)}")
        A(f"buffer_store_dwordx4 {v(PK, 4)}, v59, s[12:15], s40 offen")
        A(f"buffer_store_dwordx4 {v(PK + 4, 4)}, v59, s[12:15], s40 offen offset:1024")
        for r in range(8):
            A(f"v_mul_f32 v{TB + r}, v{TB + r}, v56")
        for r in range(8):
            A(f"v_add_f32 v{KP + 16 + r}, v{KP + 16 + r}, v{RX + 16 + r}")
            A(f"v_fma_f32 v{KP + 16 + r}, v{KP + 16 + r}, v{TA + r}, v{TB + r}")
        for d in range(4):
            A(f"v_cvt_pk_bf16_f32 v{RX + d}, v{KP + 16 + 2 * d}, v{KP + 16 + 2 * d + 1}")
            A(f"v_cndmask_b32 v{RX + d}, v63, v{RX + d}, s[42:43]")
        A(f"s_mov_b32 s40, {hex(WS_VF + 1024 * kh + layer * LB)}")
        A(f"buffer_store_dwordx4 {v(RX, 4)}, v59, s[12:15], s40 offen")
        if kh == 0:
            A(f"s_branch L_{name}_e2")
            A.raw(f"L_{name}_e1:")
            A.hist = []
            A.vmq = [dict(o) for o in save_vm]
            A.lgq = [dict(o) for o in save_lg]
            A.nop(2)
    A.raw(f"L_{name}_e2:")
    if pers:
        phase_begin(A)
        if L0:
            A("s_mov_b32 s34, 0")
            A("v_mov_b32 v10, 0")
            await_cnt(A, 60, 34, 10, 1, 8)
        A("s_lshl_b32 s34, s24, 7")
        A("s_lshl_b32 s35, s23, 2")
        A("s_add_u32 s34, s34, s35")
        A(f"s_add_u32 s34, s34, {hex(F0 if L0 else F1)}")
        publish(A, 12, 34)
        return None
    A.stamp(4)
    A.dump_stamps(STAMP_WG)
    kernel_end(A, name)
    return K1_LDS, 512, 256, 176


K2_K, K2_V, K2_Q = 0, 24576, 49152
K2_X = 57344
K2_LDS = K2_X + 8 * 4096


def k2(A, name, layer, pers=False):
    if pers:
        phase_begin(A)
    else:
        kernel_begin(A, name, 256)
        A.stamp_base = 76
        A.stamp(0)
    A(f"s_load_dwordx2 s[20:21], s[0:1], {KA_WS}")
    if PREFETCH and layer == 0:
        A(f"s_load_dwordx2 s[88:89], s[0:1], {KA_W2}")
        A(f"s_load_dwordx2 s[84:85], s[0:1], {KA_W1}")
    A("v_and_b32 v1, 63, v0")
    A("v_lshrrev_b32 v2, 6, v0")
    A("v_readfirstlane_b32 s22, v2")
    A("s_lshr_b32 s23, s2, 4")
    A("s_and_b32 s24, s2, 15")
    A("s_and_b32 s38, s22, 3")
    A("s_lshr_b32 s39, s22, 2")
    A("v_lshlrev_b32 v2, 4, v1")
    A("s_lshl_b32 s25, s24, 17")
    A("s_lshl_b32 s26, s23, 2")
    A("s_sub_u32 s26, s26, 8")
    A("s_mul_i32 s27, s22, 3")
    for i in range(3):
        A(f"s_add_u32 s34, s27, {i}")
        A("s_lshr_b32 s35, s34, 1")
        A("s_add_i32 s35, s35, s26")
        A("s_lshl_b32 s36, s35, 11")
        A("s_and_b32 s37, s34, 1")
        A("s_lshl_b32 s37, s37, 10")
        A("s_add_u32 s36, s36, s37")
        A("s_cmp_lt_i32 s35, 0")
        A(f"s_cselect_b32 s{72 + i}, 0x40000000, s36")
    A("s_lshl_b32 s29, s27, 10")
    A.wait_all(vm=False)
    for (d, off) in [(4, WS_QF), (8, WS_KF), (12, WS_VF)]:
        A(f"s_add_u32 s28, s25, {hex(off + layer * LB)}")
        A(f"s_add_u32 s{d}, s20, s28")
        A(f"s_addc_u32 s{d + 1}, s21, 0")
        A(f"s_and_b32 s{d + 1}, s{d + 1}, 0xffff")
        A(f"s_mov_b32 s{d + 2}, 0x20000")
        A(f"s_mov_b32 s{d + 3}, 0x00020000")
    srd(A, 92, 20, 21, WSZ)
    if pers and (layer == 1 or "one" in OPT):
        A("s_lshl_b32 s34, s24, 7")
        A(f"s_add_u32 s34, s34, {hex(F1 if layer == 1 else F0)}")
        A("v_add_u32 v10, s23, v1")
        A("v_subrev_u32 v10, 2, v10")
        A("v_max_i32 v10, 0, v10")
        A("v_lshlrev_b32 v10, 2, v10")
        await_cnt(A, 92, 34, 10, 3, 1)
    for i in range(3):
        A(f"s_add_u32 m0, s29, {K2_K + i * 1024}")
        A(f"buffer_load_dwordx4 v2, s[8:11], s{72 + i} offen lds")
    A("s_lshl_b32 s30, s23, 13")
    A("s_lshl_b32 s31, s22, 10")
    A("s_add_u32 s30, s30, s31")
    A(f"s_add_u32 m0, s31, {K2_Q}")
    tokK = A("buffer_load_dwordx4 v2, s[4:7], s30 offen lds")
    for i in range(3):
        A(f"s_add_u32 m0, s29, {K2_V + i * 1024}")
        tokV = A(f"buffer_load_dwordx4 v2, s[12:15], s{72 + i} offen lds")
    srd_off(A, 16, 20, 21, hex(WS_OF + layer * LB), 128 * 14 * 1024)
    K2PF = PREFETCH and layer == 0
    if K2PF:
        A("s_lshl_b32 s34, s2, 3")
        A("s_add_u32 s34, s34, s22")
        A("s_mul_i32 s34, s34, 3584")
        A("v_lshlrev_b32 v40, 7, v1")
        A("v_add_u32 v40, s34, v40")
        srd(A, 88, 88, 89, S * F * 2)
        srd(A, 84, 84, 85, S * F * 2)
    A.stamp(1)
    A("v_and_b32 v4, 31, v1")
    A("v_lshrrev_b32 v5, 5, v1")
    A("v_mov_b32 v18, 0xf14a")
    A("v_mul_lo_u32 v18, v18, v5")
    A("v_add_u32 v19, s29, v2")
    A("v_lshlrev_b32 v6, 2, v5")
    A("v_sub_u32 v6, v4, v6")
    MS = 40
    for r in range(16):
        kk = 8 * (r >> 2) + (r & 3)
        A(f"v_cmp_ge_i32 s[{MS + 2 * r}:{MS + 2 * r + 1}], v6, {kk}")
    PM = 8
    A("v_mov_b32 v7, 0xffff")
    A("v_mov_b32 v16, 0xffff0000")
    for d in range(8):
        A(f"v_cndmask_b32 v{PM + d}, 0, v7, s[{MS + 4 * d}:{MS + 4 * d + 1}]")
        A(f"v_cndmask_b32 v17, 0, v16, s[{MS + 4 * d + 2}:{MS + 4 * d + 3}]")
        A(f"v_or_b32 v{PM + d}, v{PM + d}, v17")
    A.wait_vm(tokK)
    for i in range(3):
        A(f"s_add_u32 s34, s27, {i}")
        A("s_and_b32 s34, s34, 1")
        A(f"s_cmp_eq_u32 s{72 + i}, 0x40000000")
        A("s_cselect_b32 s35, s34, 0")
        A("s_cmp_eq_u32 s35, 0")
        lab = f"L_{name}_np{i}"
        A(f"s_cbranch_scc1 {lab}")
        A(f"ds_write_b32 v19, v18 offset:{K2_K + i * 1024 + 8}")
        A.raw(lab + ":")
    A.force_wait(lg=0)
    A("s_barrier")
    A.stamp(2)
    if "rtg" in OPT:
        rtp(A, "k2bar1", 172)
    A("s_lshl_b32 s35, s38, 11")
    A("v_add_u32 v28, s35, v2")
    A(f"ds_read_b128 v[20:23], v28 offset:{K2_Q}")
    A(f"ds_read_b128 v[24:27], v28 offset:{K2_Q + 1024}")
    BW = 14 if "k2both" in OPT else 7
    NBU = 4
    bcount = [0]

    def burst(i=None):
        n = bcount[0]
        if not K2PF or n >= NBU:
            return
        bcount[0] += 1
        if "k2both" in OPT:
            m = ((1 << 14) - 1) << (14 * (n & 1))
            sr = 84 if n < 2 else 88
        else:
            m = ((1 << 7) - 1) << (7 * n)
            sr = 84 if pers else 88
        A(f"s_mov_b64 exec, {hex(m)}")
        A.touch(f"buffer_load_dword v42, v40, s[{sr}:{sr + 3}], 0 offen")
        exec_lanes(A, 64)
    A("s_mul_i32 s36, s22, 4096")
    A(f"s_add_u32 s36, s36, {K2_X}")
    A("v_add_u32 v44, s36, v2")
    A("s_xor_b32 s37, s22, 4")
    A("s_mul_i32 s37, s37, 4096")
    A(f"s_add_u32 s37, s37, {K2_X}")
    A("v_add_u32 v45, s37, v2")
    A("s_cmp_eq_u32 s39, 0")
    A(f"s_cbranch_scc0 L_{name}_h1")
    A.vmq_save = [dict(o) for o in A.vmq]
    A.lgq_save = [dict(o) for o in A.lgq]
    SB = [48, 64, 80, 96]
    MX = 30
    CN = 112
    OA = 128
    PB = [144, 152, 160]

    for hf in range(2):
        blocks = [0, 8, 1, 2, 3] if hf == 0 else [4, 5, 6, 7]
        slotk = {b: i for i, b in enumerate(blocks)}
        for b in blocks:
            for st in range(2):
                A(f"ds_read_b128 {a(8 * slotk[b] + 4 * st, 4)}, v28 offset:{K2_K + 2048 * b + 1024 * st}")

        bcount[0] = 0

        def qk(b, buf, cinit):
            k = 8 * slotk[b]
            A(f"v_mfma_f32_32x32x16_bf16 {v(buf, 16)}, {a(k, 4)}, v[20:23], {cinit}")
            A(f"v_mfma_f32_32x32x16_bf16 {v(buf, 16)}, {a(k + 4, 4)}, v[24:27], {v(buf, 16)}")

        def maxblk(buf, first):
            if first:
                A(f"v_max3_f32 v{MX}, v{buf}, v{buf + 1}, v{buf + 2}")
                rest = list(range(3, 16))
            else:
                rest = list(range(16))
            while len(rest) >= 2:
                A(f"v_max3_f32 v{MX}, v{MX}, v{buf + rest[0]}, v{buf + rest[1]}")
                rest = rest[2:]
            if rest:
                A(f"v_max_f32 v{MX}, v{MX}, v{buf + rest[0]}")

        def merge():
            for r in range(16):
                A(f"v_cndmask_b32 v{SB[0] + r}, v{SB[0] + r}, v{SB[1] + r}, s[{MS + 2 * r}:{MS + 2 * r + 1}]")

        if hf == 0:
            qk(0, SB[0], "0"); qk(8, SB[1], "0"); qk(1, SB[2], "0"); qk(2, SB[3], "0")
            merge()
            qk(3, SB[1], "0")
            maxblk(SB[0], True); maxblk(SB[2], False); maxblk(SB[3], False); maxblk(SB[1], False)
        else:
            for i, b in enumerate(blocks):
                qk(b, SB[i], "0")
            maxblk(SB[0], True); maxblk(SB[1], False); maxblk(SB[2], False); maxblk(SB[3], False)
        A(f"v_mov_b32 v31, v{MX}")
        A(f"v_permlane32_swap_b32 v31, v{MX}")
        A(f"v_max_f32 v{MX}, v{MX}, v31")
        A(f"ds_write_b32 v44, v{MX}")
        A.wait_vm(tokV)
        A.wait_all(vm=False)
        A("s_barrier")
        A("ds_read_b32 v31, v45")
        for b in blocks:
            for st in range(2):
                A(f"ds_read_b128 {a(40 + 8 * slotk[b] + 4 * st, 4)}, v28 offset:{K2_V + 2048 * b + 1024 * st}")
        A(f"v_max_f32 v{MX}, v{MX}, v31")
        for r in range(16):
            A(f"v_sub_f32 v{CN + r}, 0, v{MX}")
        cn = v(CN, 16)

        def exppack(buf, pb):
            for r in range(16):
                A(f"v_exp_f32 v{buf + r}, v{buf + r}")
            for d in range(8):
                A(f"v_cvt_pk_bf16_f32 v{pb + d}, v{buf + 2 * d}, v{buf + 2 * d + 1}")
            burst()

        first_pv = [True]

        def pv(b, pb):
            for st in range(2):
                c = "0" if first_pv[0] else v(OA, 16)
                first_pv[0] = False
                A(f"v_mfma_f32_32x32x16_bf16 {v(OA, 16)}, {a(40 + 8 * slotk[b] + 4 * st, 4)}, {v(pb + 4 * st, 4)}, {c}")

        if hf == 0:
            qk(0, SB[0], cn); qk(8, SB[1], cn); qk(1, SB[2], cn); qk(2, SB[3], cn)
            merge()
            qk(3, SB[1], cn)
            exppack(SB[0], PB[0])
            for d in range(8):
                A(f"v_and_b32 v{PB[1] + d}, v{PM + d}, v{PB[0] + d}")
                A(f"v_xor_b32 v{PB[0] + d}, v{PB[0] + d}, v{PB[1] + d}")
            pv(0, PB[0]); pv(8, PB[1])
            exppack(SB[2], PB[2]); pv(1, PB[2])
            exppack(SB[3], PB[0]); pv(2, PB[0])
            exppack(SB[1], PB[1]); pv(3, PB[1])
        else:
            for i, b in enumerate(blocks):
                qk(b, SB[i], cn)
            for i, b in enumerate(blocks):
                exppack(SB[i], PB[i % 3])
                pv(b, PB[i % 3])
        A.stamp(3)
        keep, send = (OA, OA + 8) if hf == 0 else (OA + 8, OA)
        A(f"ds_write_b128 v44, {v(send, 4)} offset:1024")
        A(f"ds_write_b128 v44, {v(send + 4, 4)} offset:2048")
        A(f"ds_write_b32 v44, v{OA + 12} offset:3072")
        A.wait_all(vm=False)
        A("s_barrier")
        A("ds_read_b128 v[144:147], v45 offset:1024")
        A("ds_read_b128 v[148:151], v45 offset:2048")
        A("ds_read_b32 v32, v45 offset:3072")
        A(f"v_add_f32 v32, v32, v{OA + 12}")
        A("v_mov_b32 v33, v32")
        A("v_permlane32_swap_b32 v33, v32")
        A("v_rcp_f32 v33, v32")
        for r in range(8):
            A(f"v_add_f32 v{keep + r}, v{keep + r}, v{144 + r}")
            A(f"v_mul_f32 v{keep + r}, v{keep + r}, v33")
        for d in range(4):
            A(f"v_cvt_pk_bf16_f32 v{152 + d}, v{keep + 2 * d}, v{keep + 2 * d + 1}")
        A("s_mul_i32 s36, s24, 7")
        A("v_add_u32 v34, s36, v5")
        A("s_lshl_b32 s37, s23, 2")
        A("s_add_u32 s37, s37, s38")
        A("s_mul_i32 s37, s37, 28672")
        A("v_bfe_u32 v35, v1, 4, 1")
        A("v_mul_u32_u24 v35, 14336, v35")
        A("v_and_b32 v36, 15, v1")
        A("v_lshl_add_u32 v35, v36, 4, v35")
        A("v_add_u32 v35, s37, v35")
        for jj in range(2):
            j = 2 * hf + jj
            A(f"v_add_u32 v36, {2 * j}, v34")
            A("v_lshrrev_b32 v37, 3, v36")
            A("v_lshl_add_u32 v38, v37, 10, v35")
            A("v_bfe_u32 v37, v36, 2, 1")
            A("v_lshl_add_u32 v38, v37, 9, v38")
            A("v_and_b32 v37, 1, v36")
            A("v_lshl_add_u32 v38, v37, 8, v38")
            A("v_bfe_u32 v37, v36, 1, 1")
            A("v_lshl_add_u32 v38, v37, 3, v38")
            if j == 3:
                exec_lanes(A, 32)
            A(f"buffer_store_dwordx2 {v(152 + 2 * jj, 2)}, v38, s[16:19], 0 offen")
            if j == 3:
                exec_lanes(A, 64)
        if hf == 0:
            A(f"s_branch L_{name}_done")
            A.raw(f"L_{name}_h1:")
            A.hist = []
            A.lgq = [o for o in A.lgq_save] if hasattr(A, "lgq_save") else []
            A.vmq = list(A.vmq_save)
            A.force_wait(lg=0)
    A.raw(f"L_{name}_done:")
    if pers:
        phase_begin(A)
        A("s_lshl_b32 s34, s23, 7")
        A(f"s_add_u32 s34, s34, {hex(C2(layer))}")
        publish(A, 92, 34)
        return None
    A.stamp(4)
    A.dump_stamps(STAMP_WG)
    kernel_end(A, name)
    return K2_LDS, 512, 256, 176


K3_O, K3_W, K3_X, K3_T = 0, 57344, 114688, 122880
K3_LDS = K3_T + 64 * 136


def k3(A, name, layer, pers=False):
    if pers:
        phase_begin(A)
        A("s_cmp_ge_u32 s2, 224")
        A(f"s_cbranch_scc1 L_{name}_{'idle' if PREFETCH else 'skip'}")
    else:
        kernel_begin(A, name, 224)
        A.stamp_base = 70
        A.stamp(0)
    A(f"s_load_dwordx2 s[20:21], s[0:1], {KA_WS}")
    A(f"s_load_dwordx2 s[8:9], s[0:1], {KA_WO}")
    if layer == 0:
        A(f"s_load_dwordx2 s[12:13], s[0:1], {KA_X}")
    if PREFETCH:
        A(f"s_load_dwordx2 s[48:49], s[0:1], {KA_W1}")
    A("v_and_b32 v1, 63, v0")
    A("v_lshrrev_b32 v2, 6, v0")
    A("v_readfirstlane_b32 s22, v2")
    A("s_lshr_b32 s23, s2, 5")
    A("s_and_b32 s24, s2, 31")
    A("v_lshlrev_b32 v2, 4, v1")
    A("v_lshrrev_b32 v3, 3, v1")
    A("v_bfe_u32 v4, v1, 4, 2")
    A("v_lshlrev_b32 v4, 1, v4")
    A("v_and_b32 v5, 7, v1")
    A("v_xor_b32 v4, v4, v5")
    A("v_mul_u32_u24 v5, 896, v3")
    A("v_lshl_add_u32 v5, v4, 4, v5")
    A("s_lshl_b32 s25, s23, 7")
    A("v_add_u32 v5, s25, v5")
    A.wait_all(vm=False)
    srd_off(A, 4, 20, 21, hex(WS_OF + layer * LB), 128 * 14336)
    srd(A, 8, 8, 9, D * D * 2)
    if layer == 0:
        srd(A, 12, 12, 13, XBYTES)
    else:
        srd_off(A, 12, 20, 21, hex(WS_X2), XBYTES)
    srd(A, 16, 20, 21, WSZ)
    toks = {}
    A("s_mul_i32 s30, s22, 7168")
    A("s_lshl_b32 s32, s22, 10")
    for q in range(7):
        A(f"s_add_u32 m0, s32, {K3_W + q * 8192}")
        A(f"s_add_u32 s31, s30, {q * 64 * 896}")
        A("buffer_load_dwordx4 v5, s[8:11], s31 offen lds")

    def xtile():
        A("s_lshl_b32 s34, s24, 6")
        A("s_lshl_b32 s35, s22, 3")
        A("s_add_u32 s34, s34, s35")
        A("s_mul_i32 s34, s34, 896")
        A("s_lshl_b32 s35, s22, 10")
        A(f"s_add_u32 m0, s35, {K3_X}")
        A("buffer_load_dwordx4 v5, s[12:15], s34 offen lds")
    if layer == 0:
        xtile()
    if pers:
        A("s_lshr_b32 s34, s24, 1")
        A("s_lshl_b32 s34, s34, 7")
        A(f"s_add_u32 s34, s34, {hex(C2(layer))}")
        A("v_mov_b32 v10, 0")
        await_cnt(A, 16, 34, 10, 1, 16)
    A("s_and_b32 s26, s22, 3")
    A("s_lshr_b32 s27, s22, 2")
    A("s_mul_i32 s27, s27, 7168")
    A("s_mul_i32 s28, s26, 14336")
    A("s_add_u32 s32, s28, s27")
    A("s_lshl_b32 s29, s24, 2")
    A("s_mul_i32 s29, s29, 14336")
    A("s_add_u32 s30, s29, s32")
    for q in range(7):
        A(f"s_add_u32 m0, s32, {K3_O + q * 1024}")
        A(f"s_add_u32 s31, s30, {q * 1024}")
        toks[0] = A("buffer_load_dwordx4 v2, s[4:7], s31 offen lds")
    if layer == 1:
        xtile()
        toks[0] = A.vmq[-1]["tok"]
    if PREFETCH and layer == 0 and not pers:
        w1_prefetch(A, 48, 224, 126)
    A.stamp(1)
    A("s_and_b32 s33, s22, 1")
    A("s_lshr_b32 s34, s22, 1")
    A("s_mul_i32 s35, s33, 28672")
    A("v_add_u32 v6, s35, v2")
    A("v_lshrrev_b32 v7, 4, v1")
    A("v_bfe_u32 v8, v1, 2, 2")
    A("v_and_b32 v9, 3, v1")
    A("v_lshrrev_b32 v10, 1, v7")
    A("v_and_b32 v11, 1, v7")
    A("v_lshlrev_b32 v12, 4, v10")
    A("v_lshl_add_u32 v12, v11, 2, v12")
    A("v_add_u32 v12, v12, v8")
    A("v_lshlrev_b32 v12, 7, v12")
    A("v_lshl_add_u32 v12, v9, 3, v12")
    A("v_lshrrev_b32 v13, 1, v8")
    A("v_lshl_add_u32 v13, v11, 1, v13")
    A("v_xor_b32 v14, s34, v13")
    A("v_lshl_add_u32 v16, v14, 5, v12")
    A(f"v_add_u32 v16, {K3_W}, v16")
    A("v_lshl_add_u32 v14, v7, 2, v8")
    A("v_bfe_u32 v15, v14, 1, 2")
    A("v_lshlrev_b32 v14, 7, v14")
    A("v_lshl_add_u32 v14, v9, 3, v14")
    A("s_lshl_b32 s38, s33, 12")
    A(f"s_add_u32 s38, s38, {K3_X}")
    A("v_add_u32 v14, s38, v14")
    A("v_xor_b32 v20, s34, v15")
    A("v_lshl_add_u32 v18, v20, 5, v14")
    ACC = 32
    AF3, BF3 = 48, 72

    def reads(kp, buf):
        for mt in range(2):
            A(f"ds_read_b128 {v(AF3 + 8 * buf + 4 * mt, 4)}, v6 offset:{mt * 14336 + kp * 1024}")
        for t in range(2):
            A(f"ds_read_b64_tr_b16 {v(BF3 + 4 * buf + 2 * t, 2)}, v16 offset:{kp * 4096 + t * 1024}")

    def mfmas(kp, buf):
        for mt in range(2):
            c = "0" if kp == 0 else v(ACC + 4 * mt, 4)
            A(f"v_mfma_f32_16x16x32_bf16 {v(ACC + 4 * mt, 4)}, {v(AF3 + 8 * buf + 4 * mt, 4)}, {v(BF3 + 4 * buf, 4)}, {c}")

    A.wait_vm(toks[0])
    A("s_barrier")
    A.stamp(2)
    if "rtg" in OPT:
        rtp(A, "k3bar1")
    reads(0, 0)
    reads(1, 1)
    for kp in range(14):
        if kp + 2 < 14:
            reads(kp + 2, (kp + 2) % 3)
        if kp == 12:
            for mt in range(2):
                A(f"ds_read_b64_tr_b16 {v(96 + 2 * mt, 2)}, v18 offset:{mt * 2048}")
        mfmas(kp, kp % 3)
    A.stamp(4)
    XR = 96
    PKD = 112
    for mt in range(2):
        for hlf in range(2):
            x = XR + 2 * mt + hlf
            A(f"v_lshlrev_b32 v104, 16, v{x}")
            A(f"v_and_b32 v105, 0xffff0000, v{x}")
            A(f"v_add_f32 v{ACC + 4 * mt + 2 * hlf}, v{ACC + 4 * mt + 2 * hlf}, v104")
            A(f"v_add_f32 v{ACC + 4 * mt + 2 * hlf + 1}, v{ACC + 4 * mt + 2 * hlf + 1}, v105")
            A(f"v_cvt_pk_bf16_f32 v{PKD + 2 * mt + hlf}, v{ACC + 4 * mt + 2 * hlf}, v{ACC + 4 * mt + 2 * hlf + 1}")
    A("s_lshl_b32 s39, s24, 1")
    A("s_add_u32 s39, s39, s33")
    A("s_mul_i32 s39, s39, 28672")
    A("s_lshl_b32 s40, s23, 3")
    A("s_lshl_b32 s41, s34, 1")
    A("s_add_u32 s40, s40, s41")
    A("s_lshl_b32 s40, s40, 9")
    A("s_add_u32 s39, s39, s40")
    A(f"s_add_u32 s39, s39, {hex(WS_X1F + layer * LB)}")
    A("v_bfe_u32 v21, v1, 3, 1")
    A("v_lshlrev_b32 v21, 9, v21")
    A("v_lshl_add_u32 v21, v7, 7, v21")
    A("v_and_b32 v22, 7, v1")
    A("v_lshl_add_u32 v21, v22, 4, v21")
    A(f"buffer_store_dwordx4 {v(PKD, 4)}, v21, s[16:19], s39 offen")
    TP = 136
    A("v_and_b32 v22, 15, v1")
    A(f"v_mul_u32_u24 v23, {TP}, v22")
    A("v_lshl_add_u32 v23, v7, 3, v23")
    A(f"s_mul_i32 s41, s34, {16 * TP}")
    A("s_lshl_b32 s42, s33, 6")
    A("s_add_u32 s41, s41, s42")
    A(f"s_add_u32 s41, s41, {K3_T}")
    A("v_add_u32 v23, s41, v23")
    for mt in range(2):
        A(f"ds_write_b64 v23, {v(PKD + 2 * mt, 2)} offset:{mt * 32}")
    A("v_lshl_add_u32 v24, v7, 2, v8")
    A(f"v_mul_u32_u24 v24, {TP}, v24")
    A("v_lshl_add_u32 v24, v9, 3, v24")
    A("v_add_u32 v24, s41, v24")
    TR = 120
    for mt in range(2):
        A(f"ds_read_b64_tr_b16 {v(TR + 2 * mt, 2)}, v24 offset:{mt * 32}")
    A("s_lshl_b32 s42, s24, 2")
    A("s_lshl_b32 s43, s33, 1")
    A("s_add_u32 s42, s42, s43")
    A("s_mul_i32 s43, s42, 14336")
    A("s_lshl_b32 s44, s23, 4")
    A("s_lshl_b32 s45, s34, 2")
    A("s_add_u32 s44, s44, s45")
    A("s_lshl_b32 s44, s44, 7")
    A("s_add_u32 s43, s43, s44")
    A(f"s_add_u32 s43, s43, {hex(WS_X1T + layer * LB)}")
    A("v_lshlrev_b32 v25, 7, v7")
    A("v_lshl_add_u32 v25, v22, 3, v25")
    A("v_mov_b32 v26, 0x3f803f80")
    for i in range(4):
        A(f"v_mov_b32 v{28 + i}, 0")
    for mt in range(2):
        A(f"s_add_u32 s44, s43, {mt * 14336}")
        A(f"buffer_store_dwordx2 {v(TR + 2 * mt, 2)}, v25, s[16:19], s44 offen")
        for hlf in range(2):
            A(f"v_dot2_f32_bf16 v{28 + 2 * mt}, v{TR + 2 * mt + hlf}, v26, v{28 + 2 * mt}")
            A(f"v_dot2_f32_bf16 v{29 + 2 * mt}, v{TR + 2 * mt + hlf}, v{TR + 2 * mt + hlf}, v{29 + 2 * mt}")
    A("v_cmp_gt_u32 vcc, 16, v1")
    A("v_lshlrev_b32 v27, 2, v1")
    A("s_lshl_b32 s44, s42, 7")
    A(f"s_add_u32 s44, s44, {hex(WS_ST + (0 if layer == 0 else 2) * 16384)}")
    for mt in range(2):
        reduce_groups(A, 28 + 2 * mt, 104)
        reduce_groups(A, 29 + 2 * mt, 105)
        A(f"v_cndmask_b32 v{106 + mt}, v{29 + 2 * mt}, v{28 + 2 * mt}, vcc")
    exec_lanes(A, 32)
    A("buffer_atomic_add_f32 v106, v27, s[16:19], s44 offen")
    A("buffer_atomic_add_f32 v107, v27, s[16:19], s44 offen offset:128")
    exec_lanes(A, 64)
    if pers:
        A("s_and_b32 s34, s2, 7")
        A("s_lshl_b32 s34, s34, 7")
        A(f"s_add_u32 s34, s34, {hex(C3(layer))}")
        publish(A, 16, 34)
        A.raw(f"L_{name}_skip:")
        return None
    A.stamp(5)
    A.dump_stamps(STAMP_WG)
    kernel_end(A, name)
    return K3_LDS, 512, 256, 176


def pfx(A, name, nwg):
    kernel_begin(A, name, nwg)
    A(f"s_load_dwordx2 s[48:49], s[0:1], {KA_W1}")
    A("v_and_b32 v1, 63, v0")
    A("v_lshrrev_b32 v2, 6, v0")
    A("v_readfirstlane_b32 s22, v2")
    A.wait_all(vm=False)
    w1_prefetch(A, 48, nwg, 20)
    kernel_end(A, name)
    return 0, 512, 64, 64


def g12(A, name, layer):
    gk(A, name, layer, 1, fused=True)
    return gk(A, name, layer, 2, fused=True)


def idle_prefetch(A, layer):
    phase_begin(A)
    A(f"s_load_dwordx2 s[48:49], s[0:1], {KA_W1}")
    A(f"s_load_dwordx2 s[52:53], s[0:1], {KA_W2}")
    A("v_and_b32 v1, 63, v0")
    A("v_lshrrev_b32 v2, 6, v0")
    A("v_readfirstlane_b32 s22, v2")
    A("s_lshr_b32 s34, s2, 3")
    A("s_sub_u32 s34, s34, 28")
    A("s_lshl_b32 s34, s34, 3")
    A("s_add_u32 s34, s34, s22")
    A("s_bfe_u32 s36, s2, 0x20001")
    A.wait_all(vm=False)
    srd(A, 48, 48, 49, S * F * 2)
    srd(A, 52, 52, 53, S * F * 2)
    A("s_mul_i32 s35, s34, 448")
    A("s_mul_i32 s37, s36, 896")
    for q in range(7):
        A(f"s_add_u32 s38, s35, {64 * q}")
        A("v_add_u32 v10, s38, v1")
        div_const(A, "v11", "v10", 7, 39, rng=14400)
        A("v_mul_u32_u24 v12, 7, v11")
        A("v_sub_u32 v12, v10, v12")
        A("v_mul_u32_u24 v11, 3584, v11")
        A("v_lshl_add_u32 v11, v12, 7, v11")
        A.touch("buffer_load_dword v13, v11, s[48:51], s37 offen")
    if layer == 0:
        A("s_sub_u32 s35, s2, 224")
        A("s_lshl_b32 s35, s35, 3")
        A("s_add_u32 s35, s35, s22")
        A("s_mul_i32 s35, s35, 28672")
        A("v_lshlrev_b32 v10, 7, v1")
        for q in range(4):
            A(f"s_add_u32 s38, s35, {8192 * q}")
            if q == 3:
                exec_lanes(A, 32)
            A.touch("buffer_load_dword v13, v10, s[52:55], s38 offen")
        exec_lanes(A, 64)
    else:
        A("s_mul_i32 s35, s34, 448")
        A("s_lshl_b32 s37, s36, 10")
        for q in range(7):
            A(f"s_add_u32 s38, s35, {64 * q}")
            A("v_add_u32 v10, s38, v1")
            A("v_lshrrev_b32 v11, 3, v10")
            A("v_lshlrev_b32 v11, 12, v11")
            A("v_and_b32 v12, 7, v10")
            A("v_lshl_add_u32 v11, v12, 7, v11")
            A.touch("buffer_load_dword v13, v11, s[52:55], s37 offen")


def tlb_warm(A):
    A(f"s_load_dwordx2 s[60:61], s[0:1], {KA_WS}")
    A(f"s_load_dwordx2 s[64:65], s[0:1], {KA_W1}")
    A(f"s_load_dwordx2 s[68:69], s[0:1], {KA_W2}")
    A(f"s_load_dwordx2 s[72:73], s[0:1], {KA_OUT}")
    A(f"s_load_dwordx2 s[76:77], s[0:1], {KA_WO}")
    A("v_and_b32 v1, 63, v0")
    A("v_lshlrev_b32 v2, 21, v1")
    A.wait_all(vm=False)
    srd(A, 60, 60, 61, WSZ)
    srd(A, 64, 64, 65, S * F * 2)
    srd(A, 68, 68, 69, S * F * 2)
    srd(A, 72, 72, 73, XBYTES)
    srd(A, 76, 76, 77, D * D * 2)
    exec_lanes(A, 24)
    A.touch("buffer_load_dword v3, v2, s[60:63], 0 offen")
    exec_lanes(A, 4)
    A.touch("buffer_load_dword v3, v2, s[64:67], 0 offen")
    A.touch("buffer_load_dword v3, v2, s[68:71], 0 offen")
    exec_lanes(A, 1)
    A.touch("buffer_load_dword v3, v2, s[72:75], 0 offen")
    A.touch("buffer_load_dword v3, v2, s[76:79], 0 offen")
    exec_lanes(A, 64)


def pk(A, name):
    kernel_begin(A, name, 256)
    st = A.stamps
    A.stamps = False
    if "one" in OPT:
        k1(A, "pk1a", 0, pers=True)
    k2(A, "pk2a", 0, pers=True)
    k3(A, "pk3a", 0, pers=True)
    if "g1old" in OPT:
        gk(A, "pg1a", 0, 1, pers=True)
    else:
        g1v2(A, "pg1a", 0, pers=True)
    if PREFETCH:
        A("s_branch L_pg1a_go")
        A.raw("L_pk3a_idle:")
        idle_prefetch(A, 0)
        A.raw("L_pg1a_go:")
    gk(A, "pg2a", 0, 2, pers=True)
    k1(A, "pk1b", 1, pers=True)
    k2(A, "pk2b", 1, pers=True)
    k3(A, "pk3b", 1, pers=True)
    if "g1old" in OPT:
        gk(A, "pg1b", 1, 1, pers=True)
    else:
        g1v2(A, "pg1b", 1, pers=True)
    if PREFETCH:
        A("s_branch L_pg1b_go")
        A.raw("L_pk3b_idle:")
        idle_prefetch(A, 1)
        A.raw("L_pg1b_go:")
    gk(A, "pg2b", 1, 2, pers=True)
    A.stamps = st
    phase_begin(A)
    kernel_end(A, name)
    return G_LDS, 512, 256, 176


def kd2(name, nv, acc):
    return kd(name, nv=nv, acc=acc)


def build(kernels, path, stamps=False):
    A = Asm()
    A.stamps = stamps
    A.store_mod = "sc0 sc1"
    for o in OPT:
        if o.startswith("st="):
            A.store_mod = o[3:].replace("+", " ")
    launches = []
    kds = []
    for (name, fn, args, grid) in kernels:
        lds, threads, nv, acc = fn(A, name, *args)
        if name == MAIN:
            launches.append(f"; @launch grid=({grid},1,1) block=({threads},1,1) lds={lds}")
        else:
            launches.append(f"; @launch kernel={name} grid=({grid},1,1) block=({threads},1,1) lds={lds}")
        kds.append(kd2(name, nv, acc))
    head = open("interleave_layers__sliding_block__mixer_token_mlp__prompt.s.ref").read()
    hdr = [l for l in head.splitlines() if l.startswith(";") and "@launch" not in l][:12]
    txt = "\n".join(hdr) + "\n" + "\n".join(launches) + "\n"
    txt += '.amdgcn_target "amdgcn-amd-amdhsa--gfx950"\n.text\n'
    txt += A.text()
    txt += '.section .rodata,"a"\n' + "\n".join(kds) + "\n"
    open(path, "w").write(txt)
    if RTN:
        open("rtn.txt", "w").write(repr(RTN))
    print(f"wrote {path}: {A.ninstr} instrs, {A.nops_inserted} nop states inserted, {len(txt)} bytes")


if __name__ == "__main__":
    ks = []
    for L, c in enumerate("ab"):
        ks += [(f"k1{c}_kernel", k1, (L,), 256), (f"k2{c}_kernel", k2, (L,), 256), (f"k3{c}_kernel", k3, (L,), 224),
               ] + ([(f"g12{c}_kernel", g12, (L,), 256)] if "fuse" in OPT else
                    [(f"g1{c}_kernel", gk, (L, 1), 224), (f"g2{c}_kernel", gk, (L, 2), 256)])
    if "pers" in OPT:
        ks = [("k1a_kernel", k1, (0,), 256), ("pb_kernel", pk, (), 256)]
        if "one" in OPT:
            ks = [(MAIN, pk, (), 256)]
    if "pfx" in OPT:
        ks += [("pfx_kernel", pfx, (224,), 224), ("pfy_kernel", pfx, (256,), 256)]
    build(ks, sys.argv[1] if len(sys.argv) > 1 else "dev.s", stamps=("--stamps" in sys.argv))
```

```python
import sys
import struct
sys.path.insert(0, "tools")
OPT = set(sys.argv[1:])
from dsl import Asm, v, a, s

S, D, H, DH, F = 2048, 448, 16, 28, 1792
PREFETCH = 'nopf' not in sys.argv
KA_X, KA_WQKV, KA_WO, KA_BX, KA_W1, KA_B1, KA_W2, KA_B2, KA_OUT, KA_DBG, KA_WS = [8 * i for i in range(11)]
WS_QF = 0x000000
WS_KF = 0x200000
WS_VF = 0x400000
WS_OF = 0x600000
WS_X1T = 0x800000
WS_X1F = 0xA00000
WS_UF = 0xC00000
WS_X2 = 0xE00000
WS_WC = 0x1200000
WS_CS = 0x1380000
WS_CNT = 0x100C000
WS_ST = 0x1000000
XBYTES = S * D * 2
MAIN = "interleave_layers__sliding_block__mixer_token_mlp__prompt_kernel"
LB = 0x2000000
WSZ = 0x4000000


def f32(x):
    return struct.unpack("<I", struct.pack("<f", x))[0]


def hexf(x):
    return "0x%08x" % f32(x)


def srd(A, d, base_lo, base_hi, nbytes):
    if base_lo != d:
        A(f"s_mov_b32 s{d}, s{base_lo}")
    A(f"s_and_b32 s{d + 1}, s{base_hi}, 0xffff")
    A(f"s_mov_b32 s{d + 2}, {hex(nbytes)}")
    A(f"s_mov_b32 s{d + 3}, 0x00020000")


def srd_off(A, d, base_lo, base_hi, off, nbytes):
    A(f"s_add_u32 s{d}, s{base_lo}, {off}")
    A(f"s_addc_u32 s{d + 1}, s{base_hi}, 0")
    A(f"s_and_b32 s{d + 1}, s{d + 1}, 0xffff")
    A(f"s_mov_b32 s{d + 2}, {hex(nbytes)}")
    A(f"s_mov_b32 s{d + 3}, 0x00020000")


def kernel_begin(A, name, nwg):
    A.raw(f".globl {name}")
    A.raw(".p2align 8")
    A.raw(f".type {name},@function")
    A.raw(f"{name}:")
    A.hist = []
    A.vmq = []
    A.lgq = []
    A(f"s_cmp_ge_u32 s2, {nwg}")
    A(f"s_cbranch_scc1 L_{name}_end")
    if "rt" in OPT:
        A("s_memrealtime s[98:99]")


KIDX = [0]


def kernel_end(A, name):
    if "rt" in OPT:
        A.wait_all()
        A("s_memrealtime s[96:97]")
        A(f"s_load_dwordx2 s[60:61], s[0:1], {KA_WS}")
        A.wait_all()
        A("s_mov_b32 s62, 0x2000000")
        A("s_mov_b32 s63, 0x00020000")
        A("v_mov_b32 v2, s98")
        A("v_mov_b32 v3, s96")
        A("s_lshl_b32 s64, s2, 3")
        A(f"s_add_u32 s64, s64, {0x1800000 + KIDX[0] * 4096}")
        A("v_mov_b32 v4, s64")
        A("v_cmp_eq_u32 vcc, 0, v0")
        A("s_and_saveexec_b64 s[66:67], vcc")
        A(f"s_cbranch_execz L_{name}_end")
        A("buffer_store_dwordx2 v[2:3], v4, s[60:63], 0 offen")
        KIDX[0] += 1
    A.raw(f"L_{name}_end:")
    A("s_endpgm")


def kd(name, nv=512, acc=256, ns=102):
    return f"""
.p2align 6
.amdhsa_kernel {name}
  .amdhsa_next_free_vgpr {nv}
  .amdhsa_next_free_sgpr {ns}
  .amdhsa_accum_offset {acc}
  .amdhsa_group_segment_fixed_size 0
  .amdhsa_kernarg_size 88
  .amdhsa_user_sgpr_count 2
  .amdhsa_user_sgpr_kernarg_segment_ptr 1
  .amdhsa_system_sgpr_workgroup_id_x 1
.end_amdhsa_kernel"""


def div_const(A, dst, src, d, tmp_s, rng=4096):
    m = (1 << 20) // d + 1
    for x in range(0, rng):
        assert (x * m) >> 20 == x // d and x * m < (1 << 32), (x, d)
    A(f"s_mov_b32 s{tmp_s}, {m}")
    A(f"v_mul_lo_u32 {dst}, {src}, s{tmp_s}")
    A(f"v_lshrrev_b32 {dst}, 20, {dst}")


def exec_lanes(A, n):
    if n == 64:
        A("s_mov_b64 exec, -1")
    elif n <= 32:
        A(f"s_mov_b64 exec, {hex((1 << n) - 1)}")
    else:
        raise ValueError


STAMP_WG = 37


def interleave(main, fillers):
    n = len(main)
    done = 0
    for i, m in enumerate(main):
        m()
        want = (len(fillers) * (i + 1)) // n
        while done < want:
            fillers[done]()
            done += 1


def sprinkle(base, extra):
    if not base:
        return list(extra)
    out = []
    k = 0
    for i, b in enumerate(base):
        out.append(b)
        while k < (len(extra) * (i + 1)) // len(base):
            out.append(extra[k])
            k += 1
    out += extra[k:]
    return out


def C4(layer): return WS_CNT + layer * 1024
def C2(layer): return WS_CNT + 2048 + layer * 2048
def C3(layer): return WS_CNT + 6144 + layer * 1024
C5 = WS_CNT + 8192
F1 = WS_CNT + 10240
F0 = WS_CNT + 12288
UID = [0]
POLL_SLEEP = int(([o[6:] for o in OPT if o.startswith('sleep=')] + ['2'])[0])
NPOLL = int(([o[6:] for o in OPT if o.startswith('npoll=')] + ['1'])[0])
PV = 168


def publish(A, sr, soff_sgpr):
    UID[0] += 1
    lab = f"L_pub{UID[0]}"
    A.force_wait(vm=0, lg=0)
    A("s_barrier")
    A("v_mov_b32 v10, 0")
    A("v_mov_b32 v11, 1")
    A("v_cmp_eq_u32 vcc, 0, v0")
    A("s_and_saveexec_b64 s[44:45], vcc")
    A(f"s_cbranch_execz {lab}")
    A(f"buffer_atomic_add v11, v10, s[{sr}:{sr + 3}], s{soff_sgpr} offen sc1")
    A.raw(lab + ":")
    A("s_mov_b64 exec, -1")
    rtp(A, "publish")


def await_cnt(A, sr, soff_sgpr, vaddr, nlanes, target):
    UID[0] += 1
    lp, lw, ld = f"L_awp{UID[0]}", f"L_aww{UID[0]}", f"L_awd{UID[0]}"
    A("s_cmp_lg_u32 s22, 0")
    A(f"s_cbranch_scc1 {lw}")
    A(f"s_mov_b64 exec, {hex((1 << nlanes) - 1)}")
    A("s_mov_b32 s45, 0x40000")
    ld_ = f"    buffer_load_dword v{{}}, v{vaddr}, s[{sr}:{sr + 3}], s{soff_sgpr} offen sc0 sc1"
    if NPOLL == 1:
        A.raw(lp + ":")
        A.raw(ld_.format(PV))
        A.raw("    s_waitcnt vmcnt(0)")
        A.raw(f"    v_cmp_gt_u32 vcc, {target}, v{PV}")
        A.raw(f"    s_cbranch_vccz {ld}")
        A.raw("    s_sub_u32 s45, s45, 1")
        A.raw("    s_cmp_lg_u32 s45, 0")
        A.raw(f"    s_cbranch_scc1 {lp}")
    else:
        A.raw("    s_waitcnt vmcnt(0)")
        for i in range(NPOLL):
            A.raw(ld_.format(PV + i))
            A.raw(f"    s_sleep {POLL_SLEEP}")
        A.raw(lp + ":")
        for i in range(NPOLL):
            A.raw(f"    s_waitcnt vmcnt({NPOLL - 1})")
            A.raw(f"    v_cmp_gt_u32 vcc, {target}, v{PV + i}")
            A.raw(f"    s_cbranch_vccz {ld}")
            A.raw(ld_.format(PV + i))
            A.raw(f"    s_sleep {POLL_SLEEP}")
        A.raw("    s_sub_u32 s45, s45, 1")
        A.raw("    s_cmp_lg_u32 s45, 0")
        A.raw(f"    s_cbranch_scc1 {lp}")
    A.raw(ld + ":")
    A.raw("    s_mov_b64 exec, -1")
    A.raw(lw + ":")
    A.hist = []
    A.nop(1)
    A("s_barrier")
    rtp(A, "await")


RTP = [0]
RTN = []


def rtp(A, label, r0=12):
    if "rtp" not in OPT:
        return
    UID[0] += 1
    lab = f"L_rtp{UID[0]}"
    A("s_memrealtime s[96:97]")
    A.force_wait(lg=0)
    A(f"v_mov_b32 v{r0}, s96")
    A("s_lshl_b32 s97, s2, 2")
    A(f"s_add_u32 s97, s97, {0x1900000 + RTP[0] * 1024}")
    A(f"v_mov_b32 v{r0 + 1}, s97")
    A("v_cmp_eq_u32 vcc, 0, v0")
    A("s_and_saveexec_b64 s[98:99], vcc")
    A(f"s_cbranch_execz {lab}")
    A.raw(f"    global_store_dword v{r0 + 1}, v{r0}, s[20:21]")
    A.raw(lab + ":")
    A("s_mov_b64 exec, s[98:99]")
    RTP[0] += 1
    RTN.append(label)


def phase_begin(A):
    A.hist = []
    A.vmq = []
    A.lgq = []
    A.nop(2)


def reduce_groups(A, reg, tmp):
    A(f"v_mov_b32 v{tmp}, v{reg}")
    A(f"v_permlane16_swap_b32 v{tmp}, v{reg}")
    A(f"v_add_f32 v{reg}, v{reg}, v{tmp}")
    A(f"v_mov_b32 v{tmp}, v{reg}")
    A(f"v_permlane32_swap_b32 v{tmp}, v{reg}")
    A(f"v_add_f32 v{reg}, v{reg}, v{tmp}")


def w1_prefetch(A, sr, nwg, vd, prep_only=False):
    per = 14336 // (nwg // 8) // 8
    A("s_lshr_b32 s34, s2, 3")
    A("s_lshl_b32 s34, s34, 3")
    A("s_add_u32 s34, s34, s22")
    A(f"s_mul_i32 s35, s34, {per}")
    A("v_add_u32 v10, s35, v1")
    A("s_bfe_u32 s36, s2, 0x20001")
    div_const(A, "v11", "v10", 7, 35, rng=14400)
    A("v_mul_u32_u24 v12, 7, v11")
    A("v_sub_u32 v12, v10, v12")
    A("v_mul_u32_u24 v11, 3584, v11")
    A("v_lshl_add_u32 v11, v12, 7, v11")
    A("s_mul_i32 s36, s36, 896")
    srd(A, sr, sr, sr + 1, S * F * 2)
    if prep_only:
        A("s_mov_b32 s33, s36")
        return
    if per < 64:
        A(f"s_mov_b32 exec_hi, {hex((1 << (per - 32)) - 1)}")
    A.touch(f"buffer_load_dword v{vd}, v11, s[{sr}:{sr + 3}], s36 offen")
    if per < 64:
        A("s_mov_b64 exec, -1")


G_RING = 9
G_RB = G_RING * 4096
G_TAB = 4 * G_RB
G_LDS = G_TAB + 16384
G_PRE0 = int(([o[5:] for o in OPT if o.startswith("pre0=")] + ["3"])[0])
G_PREA = int(([o[5:] for o in OPT if o.startswith("prea=")] + ["5"])[0])
G_SP = int(([o[3:] for o in OPT if o.startswith("sp=")] + ["2"])[0])


def gk(A, name, layer, which, fused=False, pers=False):
    g1 = which == 1
    nwg = 224 if g1 else 256
    NK = 16 if g1 else 14
    pitch = 3584 if g1 else 4096
    if pers:
        phase_begin(A)
        if g1:
            A("s_cmp_ge_u32 s2, 224")
            A(f"s_cbranch_scc1 L_{name}_skip")
    elif not fused:
        kernel_begin(A, name, nwg)
    elif g1:
        kernel_begin(A, name, 256)
        A("s_cmp_ge_u32 s2, 224")
        A(f"s_cbranch_scc1 L_{name}_p2")
    else:
        A.raw(f"L_{name}_p2:")
        phase_begin(A)
    A.stamp_base = 70
    if not (fused and not g1) and not pers:
        A.stamp(0)
    A(f"s_load_dwordx2 s[20:21], s[0:1], {KA_WS}")
    A(f"s_load_dwordx2 s[4:5], s[0:1], {KA_W1 if g1 else KA_W2}")
    A(f"s_load_dwordx2 s[12:13], s[0:1], {KA_B1 if g1 else KA_B2}")
    if (not g1) and layer == 1:
        A(f"s_load_dwordx2 s[16:17], s[0:1], {KA_OUT}")
    if g1 and PREFETCH and not fused:
        A(f"s_load_dwordx2 s[92:93], s[0:1], {KA_W2}")
    A("v_and_b32 v1, 63, v0")
    A("v_lshrrev_b32 v2, 6, v0")
    A("v_readfirstlane_b32 s22, v2")
    NI4 = 7 if g1 else 8
    A("s_and_b32 s25, s2, 7")
    A("s_lshr_b32 s26, s2, 3")
    A("s_and_b32 s24, s25, 1")
    A("s_lshl_b32 s24, s24, 2")
    A("s_and_b32 s27, s26, 3")
    A("s_add_u32 s24, s24, s27")
    A("s_lshr_b32 s23, s25, 1")
    A(f"s_mul_i32 s23, s23, {NI4}")
    A("s_lshr_b32 s27, s26, 2")
    A("s_add_u32 s23, s23, s27")
    A("s_and_b32 s47, s22, 3")
    A("s_lshr_b32 s48, s22, 2")
    A("v_lshrrev_b32 v3, 3, v1")
    A("v_bfe_u32 v4, v1, 4, 2")
    A("v_lshlrev_b32 v4, 1, v4")
    A("v_and_b32 v5, 7, v1")
    A("v_xor_b32 v4, v4, v5")
    A(f"v_mul_u32_u24 v5, {pitch}, v3")
    A("v_lshl_add_u32 v5, v4, 4, v5")
    A(f"s_mul_i32 s27, s47, {NK * 32 * pitch}")
    A(f"s_mul_i32 s28, s48, {16 * pitch}")
    A("s_add_u32 s27, s27, s28")
    A("s_lshl_b32 s28, s23, 7")
    A("s_add_u32 s27, s27, s28")
    A("v_add_u32 v5, s27, v5")
    A("v_lshrrev_b32 v7, 4, v1")
    A("v_and_b32 v8, 7, v1")
    A("v_lshlrev_b32 v8, 4, v8")
    A("v_lshl_add_u32 v8, v7, 7, v8")
    A("v_bfe_u32 v9, v1, 3, 1")
    A("v_lshl_add_u32 v6, v9, 9, v8")
    A("s_cmp_eq_u32 s48, 0")
    A("s_cselect_b64 s[50:51], -1, 0")
    A("v_cndmask_b32 v9, v8, v6, s[50:51]")
    A.wait_all(vm=False)
    srd(A, 4, 4, 5, (S * F * 2))
    srd(A, 8, 20, 21, WSZ)
    srd(A, 12, 12, 13, (F if g1 else S) * 2)
    if (not g1) and layer == 1:
        srd(A, 16, 16, 17, XBYTES)
    elif not g1:
        srd_off(A, 16, 20, 21, hex(WS_X2), XBYTES)
    if g1:
        A(f"s_mul_i32 s29, s47, {16 * 28672}")
        A("s_mul_i32 s30, s24, 3584")
        A("s_add_u32 s29, s29, s30")
        A(f"s_add_u32 s29, s29, {hex(WS_X1F + layer * LB)}")
        bstep = 28672
    else:
        A("s_mul_i32 s29, s24, 56")
        A("s_mul_i32 s30, s47, 14")
        A("s_add_u32 s29, s29, s30")
        A("s_mul_i32 s29, s29, 3584")
        A(f"s_add_u32 s29, s29, {hex(WS_UF + layer * LB)}")
        bstep = 3584
    A("s_lshl_b32 s30, s48, 11")
    A("s_add_u32 s29, s29, s30")
    A(f"s_mul_i32 s31, s47, {G_RB}")
    A("s_lshl_b32 s30, s48, 11")
    A("s_add_u32 s49, s31, s30")
    NB = 8
    BR = 112
    toks = {}
    A(f"v_add_u32 v4, {8 * pitch - 1024}, v5")
    USE_ROT = "rotg" in OPT
    ROT = 54
    if USE_ROT:
        A("s_lshr_b32 s34, s2, 3")
        A(f"s_mul_i32 s34, s34, {NK * 2341 if g1 else NK * 2048}")
        A("s_lshr_b32 s34, s34, 16")
        A(f"s_mul_i32 s54, s34, {32 * pitch}")
        A(f"s_mul_i32 s55, s34, {bstep}")
        A("s_add_u32 s55, s55, s29")
        A(f"s_sub_u32 s56, {NK}, s34")
        A(f"s_mov_b32 s57, s34")

    def issue_ops(st, part=None):
        slot = st % G_RING
        b = BR + 8 * (st % NB)

        def fa0():
            A(f"s_add_u32 m0, s49, {slot * 4096}")
            if USE_ROT:
                A(f"s_cmp_le_u32 s56, {st}")
                A(f"s_cselect_b32 s35, {NK * 32 * pitch}, 0")
                A(f"s_add_u32 s32, s54, {st * 32 * pitch}")
                A("s_sub_u32 s32, s32, s35")
            else:
                A(f"s_mov_b32 s32, {st * 32 * pitch}")
            A("buffer_load_dwordx4 v5, s[4:7], s32 offen lds")

        def fb0():
            if USE_ROT:
                A(f"s_cmp_le_u32 s56, {st}")
                A(f"s_cselect_b32 s35, {NK * bstep}, 0")
                A(f"s_add_u32 s33, s55, {st * bstep}")
                A("s_sub_u32 s33, s33, s35")
            else:
                A(f"s_add_u32 s33, s29, {st * bstep}")
            A(f"buffer_load_dwordx4 {v(b, 4)}, v6, s[8:11], s33 offen")

        def fa1():
            A("buffer_load_dwordx4 v4, s[4:7], s32 offen offset:1024 lds")

        def fb1():
            toks[st] = A(f"buffer_load_dwordx4 {v(b + 4, 4)}, v9, s[8:11], s33 offen offset:1024")
        if part == "A":
            return [fa0, fa1]
        if part == "B":
            return [fb0, fb1]
        return [fa0, fa1, fb0, fb1]

    if "notouch" not in OPT:
        A("s_lshr_b32 s34, s2, 3")
        A("s_lshl_b32 s34, s34, 3")
        A("s_add_u32 s34, s34, s22")
        A("s_and_b32 s37, s2, 1")
        if g1:
            A("s_lshl_b32 s35, s34, 5")
        else:
            A("s_mul_i32 s35, s34, 25")
        A("v_add_u32 v10, s35, v1")
        if g1:
            div_const(A, "v12", "v10", 112, 38, rng=7200)
            A("v_mul_u32_u24 v13, 112, v12")
            A("v_sub_u32 v13, v10, v13")
            A("v_mul_u32_u24 v12, 28672, v12")
            A("v_lshl_add_u32 v12, v13, 7, v12")
            A("s_mul_i32 s37, s37, 14336")
            A(f"s_add_u32 s37, s37, {hex(WS_X1F + layer * LB)}")
        else:
            A("v_lshlrev_b32 v12, 7, v10")
            A("s_mul_i32 s37, s37, 802816")
            A(f"s_add_u32 s37, s37, {hex(WS_UF + layer * LB)}")
        exec_lanes(A, 32 if g1 else 25)
        A.touch("buffer_load_dword v99, v12, s[8:11], s37 offen")
        exec_lanes(A, 64)
    def stats_loads():
        A("v_lshrrev_b32 v10, 2, v1")
        A("v_lshlrev_b32 v10, 7, v10")
        A("v_and_b32 v11, 3, v1")
        A("v_lshl_add_u32 v10, v11, 4, v10")
        A("s_lshl_b32 s34, s22, 11")
        A(f"s_add_u32 s34, s34, {hex(WS_ST + (0 if layer == 0 else 2) * 16384)}")
        A("buffer_load_dwordx4 v[16:19], v10, s[8:11], s34 offen")
        A("buffer_load_dwordx4 v[20:23], v10, s[8:11], s34 offen offset:64")

    if g1 and not pers:
        stats_loads()
    PRE0 = G_PRE0
    PRE = 7
    F2 = (fused and not g1) or pers
    if F2:
        PRE0 = PRE
        PREA = G_PREA
        for st in range(PREA):
            for f in issue_ops(st, "A"):
                f()
    else:
        for st in range(PRE0):
            for f in issue_ops(st):
                f()
    EP = 100
    if g1:
        A("s_lshr_b32 s36, s47, 1")
        A("s_lshl_b32 s37, s23, 7")
        A("s_lshl_b32 s38, s36, 6")
        A("s_add_u32 s37, s37, s38")
        A("v_lshlrev_b32 v33, 3, v7")
        A(f"buffer_load_dwordx2 {v(EP, 2)}, v33, s[12:15], s37 offen")
        A(f"buffer_load_dwordx2 {v(EP + 2, 2)}, v33, s[12:15], s37 offen offset:32")

    def g2_early():
        A("s_lshl_b32 s36, s23, 2")
        A("s_add_u32 s36, s36, s47")
        A("s_mul_i32 s37, s36, 14336")
        A("s_mul_i32 s38, s24, 1792")
        A("s_add_u32 s37, s37, s38")
        A("s_lshl_b32 s38, s48, 10")
        A("s_add_u32 s37, s37, s38")
        A(f"s_add_u32 s37, s37, {hex(WS_X1T + layer * LB)}")
        A("v_and_b32 v33, 15, v1")
        A("v_lshlrev_b32 v35, 3, v33")
        A("v_lshl_add_u32 v35, v7, 7, v35")
        for k in range(2):
            A(f"buffer_load_dwordx2 {v(EP + 2 * k, 2)}, v35, s[8:11], s37 offen offset:{k * 512}")
        A("s_lshl_b32 s38, s36, 5")
        A("v_lshlrev_b32 v36, 1, v33")
        A(f"buffer_load_ushort v{EP + 4}, v36, s[12:15], s38 offen")
    if (not g1) and not F2:
        g2_early()
    if F2:
        if g1:
            A(f"s_mov_b32 s34, {hex(C3(layer))}")
            A("v_lshlrev_b32 v10, 7, v1")
            await_cnt(A, 8, 34, 10, 8, 28)
            stats_loads()
        else:
            A("s_lshl_b32 s34, s24, 7")
            A(f"s_add_u32 s34, s34, {hex(C4(layer))}")
            A("v_mov_b32 v10, 0")
            await_cnt(A, 8, 34, 10, 1, 28)
        for st in range(PRE0):
            for f in issue_ops(st, "B" if st < PREA else None):
                f()
            if st == 0 and "nofb" not in OPT:
                A("s_barrier")
        if not g1:
            g2_early()
    A.stamp(1)
    A("v_bfe_u32 v12, v1, 2, 2")
    A("v_and_b32 v13, 3, v1")
    A("v_and_b32 v14, 1, v7")
    A("v_lshlrev_b32 v15, 2, v7")
    A("v_add_u32 v15, v15, v12")
    A("v_lshlrev_b32 v15, 7, v15")
    A("v_lshl_add_u32 v15, v13, 3, v15")
    A("v_add_u32 v15, s31, v15")
    A("v_lshrrev_b32 v32, 1, v12")
    A("v_lshl_add_u32 v32, v14, 1, v32")
    for mt in range(4):
        A(f"v_xor_b32 v33, {mt}, v32")
        A(f"v_lshl_add_u32 v{36 + mt}, v33, 5, v15")
    if g1:
        for i in range(4):
            sm, sq = 16 + i, 20 + i
            A(f"v_mul_f32 v{sm}, {hexf(1.0 / 448)}, v{sm}")
            A(f"v_mul_f32 v{sq}, {hexf(1.0 / 448)}, v{sq}")
            A(f"v_fma_f32 v{sq}, -v{sm}, v{sm}, v{sq}")
            A(f"v_max_f32 v{sq}, 0, v{sq}")
            A(f"v_add_f32 v34, {hexf(1e-5)}, v{sq}")
            A("v_rcp_f32 v34, v34")
            A(f"v_mul_f32 v35, v{sq}, v34")
            A(f"v_add_f32 v35, {hexf(1e-5)}, v35")
            A("v_rcp_f32 v35, v35")
            A("v_mul_f32 v34, v34, v35")
            A(f"v_sqrt_f32 v{sq}, v34")
            A(f"v_mul_f32 v{sm}, -v{sm}, v{sq}")
        A("v_lshlrev_b32 v34, 4, v1")
        A("s_lshl_b32 s34, s22, 10")
        A(f"s_add_u32 s34, s34, {G_TAB}")
        A("v_add_u32 v34, s34, v34")
        A("ds_write_b128 v34, v[20:23]")
        A("ds_write_b128 v34, v[16:19] offset:8192")
        A("v_lshlrev_b32 v35, 4, v7")
        A("s_lshl_b32 s34, s47, 11")
        A(f"s_add_u32 s34, s34, {G_TAB}")
        A("v_add_u32 v35, s34, v35")
    AFR = [0, 16]
    ACC = 32
    BN = [40, 48]
    AB = [56, 72]
    TMP = 88

    def a_reads(st):
        slot = st % G_RING
        buf = st & 1
        if "nolds" in OPT and st > 1:
            return []
        return [(lambda mt=mt, t=t: A(f"ds_read_b64_tr_b16 {a(AFR[buf] + 4 * mt + 2 * t, 2)}, v{36 + mt} "
                                      f"offset:{slot * 4096 + t * 2048}")) for mt in range(4) for t in range(2)]

    def ab_reads(st):
        buf = st & 1
        ops = []
        if "nolds" in OPT and st > 1:
            return []

        if USE_ROT:
            def addr():
                A(f"s_add_u32 s46, s57, {st}")
                A("s_and_b32 s46, s46, 15")
                A("s_lshl_b32 s46, s46, 7")
                A(f"v_add_u32 v{96 + buf}, s46, v35")
            ops.append(addr)
            for t in range(2):
                ops.append(lambda t=t: A(f"ds_read_b128 {v(AB[buf] + 4 * t, 4)}, v{96 + buf} offset:{t * 64}"))
                ops.append(lambda t=t: A(f"ds_read_b128 {v(AB[buf] + 8 + 4 * t, 4)}, v{96 + buf} offset:{8192 + t * 64}"))
            return ops
        for t in range(2):
            ops.append(lambda t=t: A(f"ds_read_b128 {v(AB[buf] + 4 * t, 4)}, v35 offset:{st * 128 + t * 64}"))
            ops.append(lambda t=t: A(f"ds_read_b128 {v(AB[buf] + 8 + 4 * t, 4)}, v35 offset:{8192 + st * 128 + t * 64}"))
        return ops

    def norm_ops(st):
        buf = st & 1
        b = BR + 8 * (st % NB)
        ops = []
        if "nonorm" in OPT:
            return [(lambda d=d: A(f"v_mov_b32 v{BN[buf] + d}, v{b + d}")) for d in range(8)]
        for nt in range(2):
            for dp in range(2):
                d0, d1 = 2 * dp, 2 * dp + 1
                x0, x1 = b + 4 * nt + d0, b + 4 * nt + d1
                tb = TMP + 4 * (dp & 1)
                ops.append(lambda x0=x0, tb=tb: A(f"v_lshlrev_b32 v{tb}, 16, v{x0}"))
                ops.append(lambda x0=x0, tb=tb: A(f"v_and_b32 v{tb + 1}, 0xffff0000, v{x0}"))
                ops.append(lambda x1=x1, tb=tb: A(f"v_lshlrev_b32 v{tb + 2}, 16, v{x1}"))
                ops.append(lambda x1=x1, tb=tb: A(f"v_and_b32 v{tb + 3}, 0xffff0000, v{x1}"))
                for (o, dd) in ((0, d0), (2, d1)):
                    for e in range(2):
                        ops.append(lambda tb=tb, o=o, dd=dd, e=e: A(
                            f"v_fma_f32 v{tb + o + e}, v{tb + o + e}, v{AB[buf] + 2 * dd + e}, v{AB[buf] + 8 + 2 * dd + e}"))
                ops.append(lambda tb=tb, nt=nt, d0=d0: A(f"v_cvt_pk_bf16_f32 v{BN[buf] + 4 * nt + d0}, v{tb}, v{tb + 1}"))
                ops.append(lambda tb=tb, nt=nt, d1=d1: A(f"v_cvt_pk_bf16_f32 v{BN[buf] + 4 * nt + d1}, v{tb + 2}, v{tb + 3}"))
        return ops

    def mfma_ops(st):
        buf = st & 1
        ops = []
        if "nomfma" in OPT and st > 0:
            return [lambda: A("s_nop 0")]
        for nt in range(2):
            for mt in range(4):
                acc = a(ACC + 4 * (2 * mt + nt), 4)
                c = "0" if st == 0 else acc
                if g1:
                    ops.append(lambda acc=acc, c=c, mt=mt, nt=nt: A(
                        f"v_mfma_f32_16x16x32_bf16 {acc}, {a(AFR[buf] + 4 * mt, 4)}, {v(BN[buf] + 4 * nt, 4)}, {c}"))
                else:
                    b = BR + 8 * (st % NB)
                    ops.append(lambda acc=acc, c=c, mt=mt, nt=nt, b=b: A(
                        f"v_mfma_f32_16x16x32_bf16 {acc}, {v(b + 4 * nt, 4)}, {a(AFR[buf] + 4 * mt, 4)}, {c}"))
        return ops

    def sync_op(st):
        def f():
            A.wait_vm(toks[st])
            if "nobar" not in OPT:
                A("s_barrier")
        return f

    def w2_touch_ops():
        def f0():
            A("s_lshr_b32 s44, s2, 3")
            A("s_bfe_u32 s45, s2, 0x20001")
            A("s_lshl_b32 s44, s44, 6")
            A("s_lshl_b32 s46, s22, 3")
            A("s_add_u32 s44, s44, s46")
            A("v_and_b32 v98, 7, v1")
            A("v_add_u32 v98, s44, v98")
            A("v_lshlrev_b32 v98, 12, v98")
            A("v_lshl_add_u32 v98, v3, 7, v98")
            A("s_lshl_b32 s45, s45, 10")
            A("v_add_u32 v98, s45, v98")
            srd(A, 92, 92, 93, S * F * 2)

        def f1():
            A.touch("buffer_load_dword v99, v98, s[92:95], 0 offen")
        return [f0, f1]

    next_issue = PRE0
    A.stamp(5)
    A.wait_vm(toks[0])
    A.wait_all(vm=False)
    A.stamp(6)
    A("s_barrier")
    A.stamp(7)
    if "rtg" in OPT:
        rtp(A, f"g{which}loop0")
    for f in a_reads(0):
        f()
    if g1:
        for f in ab_reads(0) + ab_reads(1):
            f()
        for f in norm_ops(0):
            f()
    SPD = G_SP
    synced = 0
    for st in range(NK):
        vm = []
        n_iss = 0
        issued_before = next_issue - 1
        while next_issue < NK and next_issue <= st + PRE and n_iss < 2:
            if F2 and next_issue < PREA:
                vm += issue_ops(next_issue, "B")
            else:
                vm += issue_ops(next_issue)
            next_issue += 1
            n_iss += 1
        lds = []
        if st + 1 < NK:
            if st + 1 > synced:
                tgt = min(NK - 1, st + SPD, issued_before)
                lds += [sync_op(tgt)]
                synced = tgt
            lds += a_reads(st + 1)
        va = norm_ops(st + 1) if (g1 and st + 1 < NK) else []
        ab = ab_reads(st + 2) if (g1 and st + 2 < NK) else []
        if g1 and PREFETCH and (not fused) and st == NK - PRE + 1:
            vm += w2_touch_ops()
        seq = lds + sprinkle(va + ab, vm)
        interleave(mfma_ops(st), seq)
    A.stamp(2)
    PBASE = 0 if g1 else 5 * 4096

    def owner(mt, nt):
        if g1:
            return (2 * (mt >> 1) + nt, mt & 1)
        return (mt, nt)
    A("v_lshlrev_b32 v34, 4, v1")
    A("s_lshl_b32 s35, s48, 13")
    A("s_add_u32 s34, s31, s35")
    A(f"s_add_u32 s34, s34, {PBASE}")
    A("v_add_u32 v33, s34, v34")
    for mt in range(4):
        for nt in range(2):
            o, k = owner(mt, nt)
            A(f"ds_write_b128 v33, {a(ACC + 4 * (2 * mt + nt), 4)} offset:{(o * 2 + k) * 1024}")
    A.wait_all(vm=False)
    A("s_barrier")
    A("s_lshl_b32 s34, s47, 11")
    A("s_add_u32 s34, s34, s35")
    A(f"s_add_u32 s34, s34, {PBASE}")
    A("v_add_u32 v33, s34, v34")
    A(f"v_add_u32 v35, {2 * G_RB}, v33")
    RD = 40
    for k in range(2):
        for src in range(4):
            A(f"ds_read_b128 {v(RD + 8 * src + 4 * k, 4)}, v{33 if src < 2 else 35} offset:{(src & 1) * G_RB + k * 1024}")
    for k in range(2):
        for r in range(4):
            A(f"v_add_f32 v{RD + 4 * k + r}, v{RD + 4 * k + r}, v{RD + 8 + 4 * k + r}")
            A(f"v_add_f32 v{RD + 16 + 4 * k + r}, v{RD + 16 + 4 * k + r}, v{RD + 24 + 4 * k + r}")
        for r in range(4):
            A(f"v_add_f32 v{RD + 4 * k + r}, v{RD + 4 * k + r}, v{RD + 16 + 4 * k + r}")
    A.stamp(3)
    if "rtg" in OPT:
        rtp(A, f"g{which}red")
    if g1:
        for m in range(2):
            for hlf in range(2):
                A(f"v_lshlrev_b32 v{76 + 4 * m + 2 * hlf}, 16, v{EP + 2 * m + hlf}")
                A(f"v_and_b32 v{77 + 4 * m + 2 * hlf}, 0xffff0000, v{EP + 2 * m + hlf}")
        c1 = -2.0 * 1.4426950408889634 * 0.7978845608028654
        c3 = c1 * 0.044715
        A(f"s_mov_b32 s39, {hexf(c1)}")
        A(f"s_mov_b32 s40, {hexf(c3)}")
        A("v_mov_b32 v84, s39")
        for m in range(2):
            for r in range(4):
                x = RD + 4 * m + r
                t = 85 + (r & 1)
                A(f"v_add_f32 v{x}, v{x}, v{76 + 4 * m + r}")
                A(f"v_mul_f32 v{t}, v{x}, v{x}")
                A(f"v_fma_f32 v{t}, v{t}, s40, v84")
                A(f"v_mul_f32 v{t}, v{t}, v{x}")
                A(f"v_exp_f32 v{t}, v{t}")
                A(f"v_add_f32 v{t}, 1.0, v{t}")
                A(f"v_rcp_f32 v{t}, v{t}")
                A(f"v_mul_f32 v{x}, v{x}, v{t}")
        for m in range(2):
            for hlf in range(2):
                A(f"v_cvt_pk_bf16_f32 v{88 + 2 * m + hlf}, v{RD + 4 * m + 2 * hlf}, v{RD + 4 * m + 2 * hlf + 1}")
        A("s_mul_i32 s41, s24, 56")
        A("s_lshl_b32 s42, s23, 1")
        A("s_add_u32 s41, s41, s42")
        A("s_add_u32 s41, s41, s36")
        A("s_mul_i32 s41, s41, 3584")
        A(f"s_add_u32 s41, s41, {hex(WS_UF + layer * LB)}")
        A("s_and_b32 s42, s47, 1")
        A("s_lshl_b32 s43, s48, 1")
        A("s_add_u32 s42, s42, s43")
        A("s_lshl_b32 s43, s42, 10")
        A("s_add_u32 s41, s41, s43")
        A("s_cmp_eq_u32 s42, 3")
        A("s_cselect_b32 s44, 0x00ff00ff, -1")
        A("s_mov_b32 s45, s44")
        A("s_mov_b64 exec, s[44:45]")
        A("buffer_store_dwordx4 v[88:91], v6, s[8:11], s41 offen")
        A("s_mov_b64 exec, -1")
    else:
        A("v_and_b32 v33, 15, v1")
        A(f"v_lshlrev_b32 v76, 16, v{EP + 4}")
        for k in range(2):
            for hlf in range(2):
                x = EP + 2 * k + hlf
                A(f"v_lshlrev_b32 v77, 16, v{x}")
                A(f"v_and_b32 v78, 0xffff0000, v{x}")
                y = RD + 4 * k + 2 * hlf
                A(f"v_add_f32 v{y}, v{y}, v76")
                A(f"v_add_f32 v{y + 1}, v{y + 1}, v76")
                A(f"v_add_f32 v{y}, v{y}, v77")
                A(f"v_add_f32 v{y + 1}, v{y + 1}, v78")
                A(f"v_cvt_pk_bf16_f32 v{88 + 2 * k + hlf}, v{y}, v{y + 1}")
        if layer == 0:
            A("s_cmp_eq_u32 s48, 0")
            A("s_cselect_b32 s45, -1, 0")
            A("s_mov_b32 s44, -1")
            A("v_cndmask_b32 v92, 0, v90, s[44:45]")
            A("v_cndmask_b32 v93, 0, v91, s[44:45]")
            A("v_mov_b32 v77, 0x3f803f80")
            A("v_mov_b32 v78, 0")
            A("v_mov_b32 v79, 0")
            for x in [88, 89, 92, 93]:
                A(f"v_dot2_f32_bf16 v78, v{x}, v77, v78")
                A(f"v_dot2_f32_bf16 v79, v{x}, v{x}, v79")
            reduce_groups(A, 78, 80)
            reduce_groups(A, 79, 81)
            A("v_cmp_gt_u32 vcc, 16, v1")
            A("v_cndmask_b32 v80, v79, v78, vcc")
            A("v_lshlrev_b32 v81, 2, v1")
            A("s_lshl_b32 s39, s36, 7")
            A(f"s_add_u32 s39, s39, {hex(WS_ST + 16384)}")
            exec_lanes(A, 32)
            A("buffer_atomic_add_f32 v80, v81, s[8:11], s39 offen")
            exec_lanes(A, 64)
        SP = 80
        A("s_lshl_b32 s40, s22, 11")
        A(f"s_add_u32 s40, s40, {G_TAB}")
        A(f"v_mul_u32_u24 v36, {SP}, v33")
        A("v_lshl_add_u32 v36, v7, 3, v36")
        A("v_add_u32 v36, s40, v36")
        for k in range(2):
            A(f"ds_write_b64 v36, {v(88 + 2 * k, 2)} offset:{32 * k}")
        A("v_lshrrev_b32 v37, 2, v1")
        A("v_and_b32 v38, 3, v1")
        A(f"v_mul_u32_u24 v39, {SP}, v37")
        A("v_lshl_add_u32 v39, v38, 4, v39")
        A("v_add_u32 v39, s40, v39")
        A("ds_read_b128 v[92:95], v39")
        A("s_lshl_b32 s39, s36, 4")
        A("s_mul_i32 s39, s39, 896")
        A("s_mul_i32 s41, s24, 112")
        A("s_add_u32 s39, s39, s41")
        A("s_lshl_b32 s41, s48, 6")
        A("s_add_u32 s39, s39, s41")
        A("v_mul_u32_u24 v37, 896, v37")
        A("v_lshl_add_u32 v37, v38, 4, v37")
        A("s_cmp_eq_u32 s48, 0")
        A("s_cselect_b32 s44, -1, 0x77777777")
        A("s_mov_b32 s45, s44")
        A("s_mov_b64 exec, s[44:45]")
        A("buffer_store_dwordx4 v[92:95], v37, s[16:19], s39 offen")
        A("s_mov_b64 exec, -1")
    if (fused or pers) and g1:
        A("s_lshl_b32 s34, s24, 7")
        A(f"s_add_u32 s34, s34, {hex(C4(layer))}")
        publish(A, 8, 34)
        if pers:
            A.raw(f"L_{name}_skip:")
        return None
    if pers:
        if layer == 0:
            A("s_lshr_b32 s34, s23, 1")
            A("s_lshl_b32 s34, s34, 7")
            A(f"s_add_u32 s34, s34, {hex(C5)}")
            publish(A, 8, 34)
        return None
    A.stamp(4)
    A.dump_stamps(STAMP_WG)
    kernel_end(A, name)
    return G_LDS, 512, 256, 176


def g1v2(A, name, layer, pers=False):
    NK = 8
    pitch = 3584
    R = 4
    if pers:
        phase_begin(A)
        A("s_cmp_ge_u32 s2, 224")
        A(f"s_cbranch_scc1 L_{name}_skip")
    else:
        kernel_begin(A, name, 224)
    A(f"s_load_dwordx2 s[20:21], s[0:1], {KA_WS}")
    A(f"s_load_dwordx2 s[4:5], s[0:1], {KA_W1}")
    A(f"s_load_dwordx2 s[12:13], s[0:1], {KA_B1}")
    A("v_and_b32 v1, 63, v0")
    A("v_lshrrev_b32 v2, 6, v0")
    A("v_readfirstlane_b32 s22, v2")
    A("s_and_b32 s25, s2, 7")
    A("s_lshr_b32 s26, s2, 3")
    A("s_and_b32 s24, s25, 1")
    A("s_lshl_b32 s24, s24, 2")
    A("s_and_b32 s27, s26, 3")
    A("s_add_u32 s24, s24, s27")
    A("s_lshr_b32 s23, s25, 1")
    A("s_mul_i32 s23, s23, 7")
    A("s_lshr_b32 s27, s26, 2")
    A("s_add_u32 s23, s23, s27")
    A("v_lshrrev_b32 v3, 3, v1")
    A("v_bfe_u32 v4, v1, 4, 2")
    A("v_lshlrev_b32 v4, 1, v4")
    A("v_and_b32 v5, 7, v1")
    A("v_xor_b32 v4, v4, v5")
    A(f"v_mul_u32_u24 v5, {pitch}, v3")
    A("v_lshl_add_u32 v5, v4, 4, v5")
    A(f"s_mul_i32 s27, s22, {NK * 32 * pitch}")
    A("s_lshl_b32 s28, s23, 7")
    A("s_add_u32 s27, s27, s28")
    A("v_add_u32 v5, s27, v5")
    for q in range(1, 4):
        A(f"v_add_u32 v{23 + q}, {q * (8 * pitch - 1024)}, v5")
    A("v_lshrrev_b32 v7, 4, v1")
    A("v_and_b32 v8, 7, v1")
    A("v_lshlrev_b32 v8, 4, v8")
    A("v_lshl_add_u32 v8, v7, 7, v8")
    A("v_bfe_u32 v9, v1, 3, 1")
    A("v_lshl_add_u32 v6, v9, 9, v8")
    A.wait_all(vm=False)
    srd(A, 4, 4, 5, S * F * 2)
    srd(A, 8, 20, 21, WSZ)
    srd(A, 12, 12, 13, F * 2)
    A(f"s_mul_i32 s29, s22, {NK * 28672}")
    A("s_mul_i32 s30, s24, 3584")
    A("s_add_u32 s29, s29, s30")
    A(f"s_add_u32 s29, s29, {hex(WS_X1F + layer * LB)}")
    A("s_lshl_b32 s31, s22, 14")
    NB = 4
    BR = 112
    toks = {}
    tokA = {}

    def a_ops(st):
        slot = st % R

        def f0():
            A(f"s_add_u32 m0, s31, {slot * 4096}")
            A(f"s_mov_b32 s32, {st * 32 * pitch}")
            A("buffer_load_dwordx4 v5, s[4:7], s32 offen lds")
        ops = [f0]
        for q in range(1, 4):
            def fq(q=q):
                tokA[st] = A(f"buffer_load_dwordx4 v{23 + q}, s[4:7], s32 offen offset:{1024 * q} lds")
            ops.append(fq)
        return ops

    def b_ops(st):
        b = BR + 16 * (st % NB)

        def f0():
            A(f"s_add_u32 s33, s29, {st * 28672}")
            A(f"buffer_load_dwordx4 {v(b, 4)}, v6, s[8:11], s33 offen")
        ops = [f0]
        for nt in range(1, 3):
            ops.append(lambda nt=nt: A(f"buffer_load_dwordx4 {v(b + 4 * nt, 4)}, v6, s[8:11], s33 offen offset:{1024 * nt}"))

        def f3():
            toks[st] = A(f"buffer_load_dwordx4 {v(b + 12, 4)}, v8, s[8:11], s33 offen offset:3072")
        ops.append(f3)
        return ops

    PRE = 4
    PA = 3
    for st in range(R):
        for f in a_ops(st):
            f()
    EP = 28
    A("s_lshr_b32 s36, s22, 2")
    A("s_lshl_b32 s37, s23, 7")
    A("s_lshl_b32 s38, s36, 6")
    A("s_add_u32 s37, s37, s38")
    A("v_lshlrev_b32 v33, 3, v7")
    A(f"buffer_load_dwordx2 {v(EP, 2)}, v33, s[12:15], s37 offen")
    A(f"buffer_load_dwordx2 {v(EP + 2, 2)}, v33, s[12:15], s37 offen offset:32")
    if pers:
        A(f"s_mov_b32 s34, {hex(C3(layer))}")
        A("v_lshlrev_b32 v10, 7, v1")
        await_cnt(A, 8, 34, 10, 8, 28)
    A("v_lshrrev_b32 v10, 2, v1")
    A("v_lshlrev_b32 v10, 7, v10")
    A("v_and_b32 v11, 3, v1")
    A("v_lshl_add_u32 v10, v11, 4, v10")
    A("s_lshl_b32 s34, s22, 11")
    A(f"s_add_u32 s34, s34, {hex(WS_ST + (0 if layer == 0 else 2) * 16384)}")
    A("buffer_load_dwordx4 v[16:19], v10, s[8:11], s34 offen")
    A("buffer_load_dwordx4 v[20:23], v10, s[8:11], s34 offen offset:64")
    for st in range(PRE):
        for f in b_ops(st):
            f()
    A("v_bfe_u32 v12, v1, 2, 2")
    A("v_and_b32 v13, 3, v1")
    A("v_and_b32 v14, 1, v7")
    A("v_lshlrev_b32 v15, 2, v7")
    A("v_add_u32 v15, v15, v12")
    A("v_lshlrev_b32 v15, 7, v15")
    A("v_lshl_add_u32 v15, v13, 3, v15")
    A("v_add_u32 v15, s31, v15")
    A("v_lshrrev_b32 v32, 1, v12")
    A("v_lshl_add_u32 v32, v14, 1, v32")
    for mt in range(4):
        A(f"v_xor_b32 v33, {mt}, v32")
        A(f"v_lshl_add_u32 v{36 + mt}, v33, 5, v15")
    for i in range(4):
        sm, sq = 16 + i, 20 + i
        A(f"v_mul_f32 v{sm}, {hexf(1.0 / 448)}, v{sm}")
        A(f"v_mul_f32 v{sq}, {hexf(1.0 / 448)}, v{sq}")
        A(f"v_fma_f32 v{sq}, -v{sm}, v{sm}, v{sq}")
        A(f"v_max_f32 v{sq}, 0, v{sq}")
        A(f"v_add_f32 v34, {hexf(1e-5)}, v{sq}")
        A("v_rcp_f32 v34, v34")
        A(f"v_mul_f32 v35, v{sq}, v34")
        A(f"v_add_f32 v35, {hexf(1e-5)}, v35")
        A("v_rcp_f32 v35, v35")
        A("v_mul_f32 v34, v34, v35")
        A(f"v_sqrt_f32 v{sq}, v34")
        A(f"v_mul_f32 v{sm}, -v{sm}, v{sq}")
    TABW = 8 * 16384
    A("v_lshlrev_b32 v34, 4, v1")
    A("s_lshl_b32 s34, s22, 11")
    A(f"s_add_u32 s34, s34, {TABW}")
    A("v_add_u32 v34, s34, v34")
    A("ds_write_b128 v34, v[20:23]")
    A("ds_write_b128 v34, v[16:19] offset:1024")
    A("v_lshlrev_b32 v35, 4, v7")
    A("v_add_u32 v35, s34, v35")
    AF = 0
    ACC = 16
    BN = [40, 56]
    AB = [72, 88]
    AB = [72, 176 - 0]
    AB = [72, 16]
    AB = [72, 88]
    EP2 = 104
    for r in range(4):
        pass
    TMP = 104

    def a_reads(st, mt):
        slot = st % R
        return [(lambda t=t: A(f"ds_read_b64_tr_b16 {a(AF + 4 * mt + 2 * t, 2)}, v{36 + mt} offset:{slot * 4096 + t * 2048}"))
                for t in range(2)]

    def ab_reads(st):
        buf = st & 1
        ops = []
        for t in range(2):
            ops.append(lambda t=t: A(f"ds_read_b128 {v(AB[buf] + 4 * t, 4)}, v35 offset:{st * 128 + t * 64}"))
            ops.append(lambda t=t: A(f"ds_read_b128 {v(AB[buf] + 8 + 4 * t, 4)}, v35 offset:{1024 + st * 128 + t * 64}"))
        return ops

    def norm_ops(st):
        buf = st & 1
        b = BR + 16 * (st % NB)
        ops = []
        for nt in range(4):
            for dp in range(2):
                d0, d1 = 2 * dp, 2 * dp + 1
                x0, x1 = b + 4 * nt + d0, b + 4 * nt + d1
                tb = TMP + 4 * (dp & 1)
                ops.append(lambda x0=x0, tb=tb: A(f"v_lshlrev_b32 v{tb}, 16, v{x0}"))
                ops.append(lambda x0=x0, tb=tb: A(f"v_and_b32 v{tb + 1}, 0xffff0000, v{x0}"))
                ops.append(lambda x1=x1, tb=tb: A(f"v_lshlrev_b32 v{tb + 2}, 16, v{x1}"))
                ops.append(lambda x1=x1, tb=tb: A(f"v_and_b32 v{tb + 3}, 0xffff0000, v{x1}"))
                for (o, dd) in ((0, d0), (2, d1)):
                    for e in range(2):
                        ops.append(lambda tb=tb, o=o, dd=dd, e=e: A(
                            f"v_fma_f32 v{tb + o + e}, v{tb + o + e}, v{AB[buf] + 2 * dd + e}, v{AB[buf] + 8 + 2 * dd + e}"))
                ops.append(lambda tb=tb, nt=nt, d0=d0: A(f"v_cvt_pk_bf16_f32 v{BN[buf] + 4 * nt + d0}, v{tb}, v{tb + 1}"))
                ops.append(lambda tb=tb, nt=nt, d1=d1: A(f"v_cvt_pk_bf16_f32 v{BN[buf] + 4 * nt + d1}, v{tb + 2}, v{tb + 3}"))
        return ops

    def mfma(st, mt, nt):
        buf = st & 1
        acc = a(ACC + 4 * (4 * mt + nt), 4)
        c = "0" if st == 0 else acc
        A(f"v_mfma_f32_16x16x32_bf16 {acc}, {a(AF + 4 * mt, 4)}, {v(BN[buf] + 4 * nt, 4)}, {c}")

    A.wait_vm(tokA[0])
    for mt in range(4):
        for f in a_reads(0, mt):
            f()
    for f in ab_reads(0) + ab_reads(1):
        f()
    for f in norm_ops(0):
        f()
    nextA, nextB = R, PRE
    for st in range(NK):
        va = norm_ops(st + 1) if st + 1 < NK else []
        ab = ab_reads(st + 2) if st + 2 < NK else []
        vm = []
        if nextB < NK and nextB <= st + PRE - 0 and nextB - NB <= st:
            vm += b_ops(nextB)
            nextB += 1
        fill = sprinkle(va + ab, vm)
        k = 0
        tot = len(fill)
        n = 0
        if st + 1 < NK:
            A.wait_vm(tokA[st + 1])
        for mt in range(4):
            for nt in range(4):
                mfma(st, mt, nt)
                n += 1
                while k < (tot * n) // 16:
                    fill[k]()
                    k += 1
            if st + 1 < NK:
                for f in a_reads(st + 1, mt):
                    f()
        if nextA < NK:
            for f in a_ops(nextA):
                f()
            nextA += 1
    A("v_lshlrev_b32 v34, 4, v1")
    A("v_add_u32 v33, s31, v34")
    for mt in range(4):
        for nt in range(4):
            o, kk = 4 * (mt >> 1) + nt, mt & 1
            A(f"ds_write_b128 v33, {a(ACC + 4 * (4 * mt + nt), 4)} offset:{(o * 2 + kk) * 1024}")
    A.wait_all(vm=False)
    A("s_barrier")
    A("s_lshl_b32 s34, s22, 11")
    A("v_add_u32 v33, s34, v34")
    A(f"v_add_u32 v35, {4 * 16384}, v33")
    RD = 40
    for r in range(4):
        A(f"v_mov_b32 v{108 + r}, v{EP + r}")
    for kk in range(2):
        for src in range(8):
            A(f"ds_read_b128 {v(RD + 8 * src + 4 * kk, 4)}, v{33 if src < 4 else 35} offset:{(src & 3) * 16384 + kk * 1024}")
    for kk in range(2):
        for step in (1, 2, 4):
            for base in range(0, 8, 2 * step):
                for r in range(4):
                    x, y = RD + 8 * base + 4 * kk + r, RD + 8 * (base + step) + 4 * kk + r
                    A(f"v_add_f32 v{x}, v{x}, v{y}")
    for m in range(2):
        for hlf in range(2):
            A(f"v_lshlrev_b32 v{112 + 4 * m + 2 * hlf}, 16, v{108 + 2 * m + hlf}")
            A(f"v_and_b32 v{113 + 4 * m + 2 * hlf}, 0xffff0000, v{108 + 2 * m + hlf}")
    c1 = -2.0 * 1.4426950408889634 * 0.7978845608028654
    c3 = c1 * 0.044715
    A(f"s_mov_b32 s39, {hexf(c1)}")
    A(f"s_mov_b32 s40, {hexf(c3)}")
    A("v_mov_b32 v120, s39")
    for m in range(2):
        for r in range(4):
            x = RD + 4 * m + r
            t = 121 + (r & 1)
            A(f"v_add_f32 v{x}, v{x}, v{112 + 4 * m + r}")
            A(f"v_mul_f32 v{t}, v{x}, v{x}")
            A(f"v_fma_f32 v{t}, v{t}, s40, v120")
            A(f"v_mul_f32 v{t}, v{t}, v{x}")
            A(f"v_exp_f32 v{t}, v{t}")
            A(f"v_add_f32 v{t}, 1.0, v{t}")
            A(f"v_rcp_f32 v{t}, v{t}")
            A(f"v_mul_f32 v{x}, v{x}, v{t}")
    for m in range(2):
        for hlf in range(2):
            A(f"v_cvt_pk_bf16_f32 v{124 + 2 * m + hlf}, v{RD + 4 * m + 2 * hlf}, v{RD + 4 * m + 2 * hlf + 1}")
    A("s_mul_i32 s41, s24, 56")
    A("s_lshl_b32 s42, s23, 1")
    A("s_add_u32 s41, s41, s42")
    A("s_add_u32 s41, s41, s36")
    A("s_mul_i32 s41, s41, 3584")
    A(f"s_add_u32 s41, s41, {hex(WS_UF + layer * LB)}")
    A("s_and_b32 s42, s22, 3")
    A("s_lshl_b32 s43, s42, 10")
    A("s_add_u32 s41, s41, s43")
    A("s_cmp_eq_u32 s42, 3")
    A("s_cselect_b32 s44, 0x00ff00ff, -1")
    A("s_mov_b32 s45, s44")
    A("s_mov_b64 exec, s[44:45]")
    A("buffer_store_dwordx4 v[124:127], v6, s[8:11], s41 offen")
    A("s_mov_b64 exec, -1")
    if pers:
        A("s_lshl_b32 s34, s24, 7")
        A(f"s_add_u32 s34, s34, {hex(C4(layer))}")
        publish(A, 8, 34)
        A.raw(f"L_{name}_skip:")
        return None
    kernel_end(A, name)
    return G_LDS, 512, 256, 176


K1_XP = 16384
K1_WP = 64 * 192
K1_SLOT = K1_XP + K1_WP
K1_NS = 5
K1_MISC = K1_NS * K1_SLOT
K1_CSUM = K1_MISC
K1_TOK = K1_MISC + 1024
K1_LDS = K1_MISC + 1024 + 2048
K1_EX = 2 * K1_SLOT


def k1(A, name, layer, pers=False):
    L0 = layer == 0
    if pers:
        phase_begin(A)
    else:
        kernel_begin(A, name, 256)
        A.stamp_base = 70
        A.stamp(0)
    if L0:
        A(f"s_load_dwordx2 s[4:5], s[0:1], {KA_X}")
        A(f"s_load_dwordx2 s[8:9], s[0:1], {KA_WQKV}")
    A(f"s_load_dwordx2 s[20:21], s[0:1], {KA_WS}")
    A("v_and_b32 v1, 63, v0")
    A("v_lshrrev_b32 v2, 6, v0")
    A("v_readfirstlane_b32 s22, v2")
    A("s_lshr_b32 s23, s2, 4")
    A("s_and_b32 s24, s2, 15")
    A("s_and_b32 s47, s22, 3")
    A("s_lshr_b32 s48, s22, 2")
    A("s_lshl_b32 s25, s23, 7")
    A("s_lshl_b32 s26, s47, 5")
    A("s_add_u32 s49, s25, s26")
    A("s_lshl_b32 s26, s48, 4")
    A("s_add_u32 s25, s49, s26")
    A("s_mul_i32 s25, s25, 896")
    A("v_lshrrev_b32 v16, 3, v1")
    A("v_mul_u32_u24 v16, 896, v16")
    A("v_lshrrev_b32 v17, 4, v1")
    A("v_and_b32 v18, 7, v1")
    A("v_xor_b32 v19, v18, v17")
    A("v_lshl_add_u32 v2, v19, 4, v16")
    A("v_xor_b32 v19, 4, v19")
    A("v_lshl_add_u32 v3, v19, 4, v16")
    A("v_add_u32 v2, s25, v2")
    A("v_add_u32 v3, s25, v3")
    A(f"v_add_u32 v3, {8 * 896 - 1024}, v3")
    if L0:
        A("s_lshl_b32 s26, s22, 3")
        A("s_mul_i32 s26, s26, 2688")
        A("s_mul_i32 s27, s24, 56")
        A("s_add_u32 s26, s26, s27")
        for i in range(2):
            A(f"v_add_u32 v16, {64 * i}, v1")
            div_const(A, "v17", "v16", 12, 27)
            A("v_mul_u32_u24 v18, 12, v17")
            A("v_sub_u32 v18, v16, v18")
            A("v_mul_u32_u24 v17, 2688, v17")
            A("v_lshrrev_b32 v19, 2, v18")
            A("v_mul_u32_u24 v19, 896, v19")
            A("v_and_b32 v18, 3, v18")
            A("v_lshl_add_u32 v17, v18, 4, v17")
            A("v_add_u32 v17, v17, v19")
            A(f"v_add_u32 v{4 + i}, s26, v17")
        A("v_subrev_u32 v5, 1024, v5")
        wstep = 64 * 2688
    else:
        A("s_mul_i32 s26, s24, 86016")
        A("s_mul_i32 s27, s22, 1536")
        A("s_add_u32 s26, s26, s27")
        A("v_lshlrev_b32 v4, 4, v1")
        A("v_add_u32 v4, s26, v4")
        A("v_mov_b32 v5, v4")
        wstep = 12288
    A.wait_all(vm=False)
    if L0:
        srd(A, 4, 4, 5, XBYTES)
        srd(A, 8, 8, 9, D * 3 * D * 2)
    else:
        srd_off(A, 4, 20, 21, hex(WS_X2), XBYTES)
        srd_off(A, 8, 20, 21, hex(WS_WC), 16 * 86016)
    srd(A, 12, 20, 21, WSZ)
    A("s_lshl_b32 s28, s47, 12")
    A("s_lshl_b32 s29, s48, 11")
    A("s_add_u32 s28, s28, s29")
    A("s_mul_i32 s29, s22, 1536")
    A(f"s_add_u32 s29, s29, {K1_XP}")
    tokq = {}
    ROT = 52
    A("s_add_u32 s35, s23, s24")
    A("s_mul_i32 s34, s35, 9363")
    A("s_lshr_b32 s34, s34, 16")
    A("s_mul_i32 s34, s34, 7")
    A("s_sub_u32 s34, s35, s34")
    if "norot" in OPT:
        A("s_mov_b32 s34, 0")
    for q in range(7):
        A(f"s_add_u32 s{ROT + q}, s34, {q}")
        A(f"s_cmp_ge_u32 s{ROT + q}, 7")
        A("s_cselect_b32 s35, 7, 0")
        A(f"s_sub_u32 s{ROT + q}, s{ROT + q}, s35")

    def dma_ops(p):
        slot = (p % K1_NS) * K1_SLOT

        def f0():
            A(f"s_add_u32 m0, s28, {slot}")
            A(f"s_lshl_b32 s30, s{ROT + p}, 7")
            A("buffer_load_dwordx4 v2, s[4:7], s30 offen lds")
            A("buffer_load_dwordx4 v3, s[4:7], s30 offen offset:1024 lds")

        def f1():
            A(f"s_add_u32 m0, s29, {slot}")
            A(f"s_mul_i32 s31, s{ROT + p}, {wstep}")
            A("buffer_load_dwordx4 v4, s[8:11], s31 offen lds")
            exec_lanes(A, 32)
            tokq[p] = A("buffer_load_dwordx4 v5, s[8:11], s31 offen offset:1024 lds")
            exec_lanes(A, 64)
        return [f0, f1]

    def l1_stats():
        A("v_and_b32 v16, 31, v1")
        A("v_add_u32 v16, s49, v16")
        A("v_lshrrev_b32 v17, 4, v16")
        A("v_lshlrev_b32 v17, 7, v17")
        A("v_and_b32 v16, 15, v16")
        A("v_lshl_add_u32 v17, v16, 2, v17")
        A(f"s_mov_b32 s32, {hex(WS_ST + 16384)}")
        A("buffer_load_dword v52, v17, s[12:15], s32 offen")
        A("buffer_load_dword v48, v17, s[12:15], s32 offen offset:64")

    def l1_csum():
        A("v_lshrrev_b32 v17, 5, v1")
        A("v_lshlrev_b32 v17, 4, v17")
        A("s_mul_i32 s32, s24, 384")
        A("s_lshl_b32 s33, s48, 7")
        A("s_add_u32 s33, s33, s32")
        A(f"s_add_u32 s33, s33, {hex(WS_CS)}")
        for j in range(4):
            A(f"buffer_load_dwordx4 {v(120 + 4 * j, 4)}, v17, s[12:15], s33 offen offset:{32 * j}")
        A("v_and_b32 v16, 31, v1")
        A("v_lshlrev_b32 v16, 2, v16")
        A(f"s_add_u32 s32, s32, {hex(WS_CS + 256)}")
        A("buffer_load_dword v56, v16, s[12:15], s32 offen")

    PRE = 3
    pers1 = pers and not L0
    if pers1:
        PRE = 4
        for p in range(5):
            dma_ops(p)[1]()
        l1_csum()
        A("s_lshl_b32 s32, s23, 7")
        A(f"s_add_u32 s32, s32, {hex(C5)}")
        A("v_mov_b32 v10, 0")
        await_cnt(A, 12, 32, 10, 1, 16)
        l1_stats()
        for p in range(PRE):
            dma_ops(p)[0]()
            tokq[p] = A.vmq[-1]["tok"]
            if p == 0 and "nofb" not in OPT:
                A("s_barrier")
    else:
        for f in dma_ops(0):
            f()
        if "nofb" not in OPT:
            A("s_barrier")
    if L0:
        A("s_lshl_b32 s32, s2, 13")
        A(f"s_add_u32 s32, s32, {hex(WS_ST)}")
        A("s_cmp_lt_u32 s2, 8")
        A("s_cselect_b32 s32, s32, 0x7fff0000")
        A("v_lshlrev_b32 v16, 4, v0")
        for i in range(4):
            A(f"v_mov_b32 v{12 + i}, 0")
        A("buffer_store_dwordx4 v[12:15], v16, s[12:15], s32 offen")
        if pers:
            A(f"s_load_dwordx2 s[60:61], s[0:1], {KA_DBG}")
    elif not pers1:
        l1_stats()
        l1_csum()
    if not pers1:
        for p in range(1, PRE):
            for f in dma_ops(p):
                f()
    if pers and L0 and "tlb" in OPT:
        tlb_warm(A)
    A.stamp(1)
    A("v_and_b32 v16, 31, v1")
    A("v_lshrrev_b32 v17, 5, v1")
    A("v_bfe_u32 v18, v1, 1, 3")
    A("v_xor_b32 v18, v18, v17")
    A("v_lshlrev_b32 v19, 7, v16")
    A("s_lshl_b32 s32, s47, 12")
    A("v_add_u32 v19, s32, v19")
    A("s_lshl_b32 s33, s48, 2")
    for ls in range(2):
        A(f"s_add_u32 s34, s33, {2 * ls}")
        A("v_xor_b32 v20, s34, v18")
        A(f"v_lshl_add_u32 v{8 + ls}, v20, 4, v19")
    A("v_bfe_u32 v18, v1, 2, 2")
    A("v_bfe_u32 v19, v1, 4, 1")
    A("v_and_b32 v20, 3, v1")
    A("v_lshlrev_b32 v22, 5, v19")
    A("v_lshl_add_u32 v22, v20, 3, v22")
    A("v_lshl_add_u32 v21, v17, 3, v18")
    A("v_mul_u32_u24 v21, 192, v21")
    A("v_add_u32 v21, v21, v22")
    A(f"s_mul_i32 s34, s48, {32 * 192}")
    A(f"s_add_u32 s34, s34, {K1_XP}")
    A("v_add_u32 v21, s34, v21")
    ONES = 28
    SS = 36
    if L0:
        A("s_mul_i32 s34, s22, 11")
        A("s_lshr_b32 s34, s34, 5")
        A("s_mul_i32 s35, s34, 3")
        A("s_sub_u32 s35, s22, s35")
        A("s_and_b32 s34, s34, 1")
        A(f"s_mul_i32 s34, s34, {32 * 192}")
        A("s_lshl_b32 s35, s35, 6")
        A("s_add_u32 s34, s34, s35")
        A(f"s_add_u32 s34, s34, {K1_XP}")
        A("v_lshl_add_u32 v23, v17, 3, v18")
        A("v_mul_u32_u24 v23, 192, v23")
        A("v_add_u32 v22, v22, v23")
        A("v_add_u32 v22, s34, v22")
        A("v_mul_u32_u24 v24, 192, v1")
        A("v_add_u32 v24, s29, v24")
        A("v_add_u32 v24, 56, v24")
        A("v_mov_b32 v26, 0x3f80")
        A("v_mov_b32 v27, 0")
        for i in range(4):
            A(f"v_mov_b32 v{ONES + i}, 0x3f803f80")
        for i in range(4):
            A(f"v_mov_b32 v{SS + i}, 0")
        A("v_lshlrev_b32 v33, 4, v1")
        A("v_add_u32 v34, s29, v33")
        A("s_mul_i32 s50, s24, 86016")
        A("s_mul_i32 s51, s22, 1536")
        A("s_add_u32 s50, s50, s51")
        A(f"s_add_u32 s50, s50, {hex(WS_WC)}")
    AQ, AK, AV, AC = 0, 16, 32, 48
    XF = 64
    WF = 76
    CF = 112
    VA = 40

    def token_stats(sumreg, sqreg):
        A(f"v_mul_f32 v{sumreg}, {hexf(1.0 / 448)}, v{sumreg}")
        A(f"v_mul_f32 v{sqreg}, {hexf(1.0 / 448)}, v{sqreg}")
        A(f"v_fma_f32 v{sqreg}, -v{sumreg}, v{sumreg}, v{sqreg}")
        A(f"v_max_f32 v{sqreg}, 0, v{sqreg}")
        A(f"v_add_f32 v{sqreg}, {hexf(1e-5)}, v{sqreg}")
        A(f"v_rsq_f32 v{sqreg}, v{sqreg}")
        A(f"v_mul_f32 v{sumreg}, -v{sumreg}, v{sqreg}")
        A("v_and_b32 v57, 31, v1")
        A("v_lshlrev_b32 v57, 2, v57")
        A("s_lshl_b32 s35, s22, 8")
        A(f"s_add_u32 s35, s35, {K1_TOK}")
        A("v_add_u32 v57, s35, v57")
        exec_lanes(A, 32)
        A(f"ds_write_b32 v57, v{sqreg}")
        A(f"ds_write_b32 v57, v{sumreg} offset:128")
        exec_lanes(A, 64)
        A("v_lshlrev_b32 v58, 4, v17")
        A("s_lshl_b32 s36, s48, 6")
        A("s_add_u32 s36, s36, s35")
        A("v_add_u32 v58, s36, v58")
        for j in range(2):
            A(f"ds_read_b128 {v(TA + 4 * j, 4)}, v58 offset:{32 * j}")
            A(f"ds_read_b128 {v(TB + 4 * j, 4)}, v58 offset:{128 + 32 * j}")

    TA, TB = 152, 160
    CS = 120
    if not L0:
        token_stats(52, 48)

    def set_addr(p):
        slot = (p % K1_NS) * K1_SLOT
        b = VA + 4 * (p & 1)
        A(f"v_add_u32 v{b}, {slot}, v8")
        A(f"v_add_u32 v{b + 1}, {slot}, v9")
        A(f"v_add_u32 v{b + 2}, {slot}, v21")
        if L0:
            A(f"v_add_u32 v{b + 3}, {slot}, v22")

    def sync(p):
        slot = (p % K1_NS) * K1_SLOT
        set_addr(p)
        A.wait_vm(tokq[p])
        if L0:
            A(f"v_add_u32 v49, {slot}, v24")
            if p == 0:
                A(f"v_add_u32 v35, {slot}, v34")
                A("ds_read_b128 v[120:123], v35")
                A("ds_read_b128 v[124:127], v35 offset:1024")
                A(f"s_mul_i32 s51, s{ROT}, 12288")
                A("s_add_u32 s51, s51, s50")
                A("s_cmp_lt_u32 s23, 7")
                A("s_cselect_b32 s51, s51, 0x7fff0000")
                A("buffer_store_dwordx4 v[120:123], v33, s[12:15], s51 offen")
                exec_lanes(A, 32)
                A("buffer_store_dwordx4 v[124:127], v33, s[12:15], s51 offen offset:1024")
            exec_lanes(A, 8)
            A("ds_write_b64 v49, v[26:27]")
            exec_lanes(A, 64)
            A.wait_all(vm=False)
        A("s_barrier")
        if pers and L0 and p == 1:
            srd(A, 60, 60, 61, 256)
            A("s_cmp_ge_u32 s2, 8")
            A(f"s_cbranch_scc1 L_{name}_nz")
            A("v_mov_b32 v10, 0")
            A("v_mov_b32 v11, 1")
            A("v_cmp_eq_u32 vcc, 0, v0")
            A("s_and_saveexec_b64 s[44:45], vcc")
            A(f"s_cbranch_execz L_{name}_nz2")
            A.raw("    buffer_atomic_add v11, v10, s[60:63], 0 offen sc1")
            A.raw(f"L_{name}_nz2:")
            A("s_mov_b64 exec, -1")
            A.raw(f"L_{name}_nz:")

    def read_ops(gs):
        p, ls = gs >> 1, gs & 1
        b = VA + 4 * (p & 1)
        buf = gs % 3
        ops = [lambda: A(f"ds_read_b128 {v(XF + 4 * buf, 4)}, v{b + ls}")]
        for t3 in range(3):
            for t in range(2):
                ops.append(lambda t3=t3, t=t: A(
                    f"ds_read_b64_tr_b16 {v(WF + 12 * buf + 4 * t3 + 2 * t, 2)}, v{b + 2} "
                    f"offset:{(16 * ls + 4 * t) * 192 + 64 * t3}"))
        return ops

    def cread_ops(p):
        b = VA + 4 * (p & 1)
        ops = []
        for f in range(2):
            for t in range(2):
                ops.append(lambda f=f, t=t: A(
                    f"ds_read_b64_tr_b16 {v(CF + 4 * f + 2 * t, 2)}, v{b + 3} offset:{(16 * f + 4 * t) * 192}"))
        return ops

    sync(0)
    for f in read_ops(0) + read_ops(1):
        f()
    A.stamp(2)
    if "rtg" in OPT:
        rtp(A, "k1loop0")
    for gs in range(14):
        p, ls = gs >> 1, gs & 1
        b = gs % 3
        xf = v(XF + 4 * b, 4)
        first = gs == 0
        m = [
            lambda: A(f"v_mfma_f32_32x32x16_bf16 {a(AQ, 16)}, {v(WF + 12 * b, 4)}, {xf}, {'0' if first else a(AQ, 16)}"),
            lambda: A(f"v_mfma_f32_32x32x16_bf16 {a(AK, 16)}, {v(WF + 12 * b + 4, 4)}, {xf}, {'0' if first else a(AK, 16)}"),
            lambda: A(f"v_mfma_f32_32x32x16_bf16 {a(AV, 16)}, {xf}, {v(WF + 12 * b + 8, 4)}, {'0' if first else a(AV, 16)}"),
        ]
        if ls == 1 and L0:
            for f in range(2):
                m.append(lambda f=f: A(
                    f"v_mfma_f32_32x32x16_bf16 {a(AC, 16)}, {v(ONES, 4)}, {v(CF + 4 * f, 4)}, "
                    f"{'0' if (p == 0 and f == 0) else a(AC, 16)}"))
        fill = []
        if ls == 0:
            if L0:
                fill += cread_ops(p)
            if p + 1 < 7:
                fill += [lambda p=p: sync(p + 1)]
        if gs + 2 < 14:
            fill += read_ops(gs + 2)
        dots = [(lambda d=d: A(f"v_dot2_f32_bf16 v{SS + d}, v{XF + 4 * b + d}, v{XF + 4 * b + d}, v{SS + d}"))
                for d in range(4)] if L0 else []
        vm = dma_ops(p + PRE) if (ls == 1 and p + PRE < 7) else []
        if pers1 and vm and p + PRE < 5:
            q_ = p + PRE

            def xonly(f=vm[0], q_=q_):
                f()
                tokq[q_] = A.vmq[-1]["tok"]
            vm = [xonly]
        elif pers1 and vm:
            vm = [vm[1], vm[0]]
            q_ = p + PRE
            vm.append(lambda q_=q_: tokq.__setitem__(q_, A.vmq[-1]["tok"]))
        fill = fill + sprinkle(dots, vm)
        interleave(m, fill)
    A.stamp(3)
    if "rtg" in OPT:
        rtp(A, "k1loopE")
    A("v_lshlrev_b32 v49, 4, v1")
    A("s_mul_i32 s33, s22, 7168")
    A(f"s_add_u32 s33, s33, {K1_EX}")
    A("v_add_u32 v50, s33, v49")
    A("s_xor_b32 s34, s22, 4")
    A("s_mul_i32 s34, s34, 7168")
    A(f"s_add_u32 s34, s34, {K1_EX}")
    A("v_add_u32 v51, s34, v49")
    if L0:
        A("v_and_b32 v47, 31, v1")
        A("v_lshlrev_b32 v47, 2, v47")
        A(f"v_add_u32 v47, {K1_CSUM}, v47")
        A(f"v_add_f32 v{SS}, v{SS}, v{SS + 1}")
        A(f"v_add_f32 v{SS + 2}, v{SS + 2}, v{SS + 3}")
        A(f"v_add_f32 v{SS}, v{SS}, v{SS + 2}")
        A(f"v_mov_b32 v53, v{SS}")
        A(f"v_permlane32_swap_b32 v53, v{SS}")
        A(f"v_add_f32 v53, v53, v{SS}")
        A("s_lshl_b32 s35, s22, 7")
        A("v_add_u32 v46, s35, v47")
        exec_lanes(A, 32)
        A(f"ds_write_b32 v46, a{AC}")
        exec_lanes(A, 64)
        A(f"v_accvgpr_read_b32 v52, a{AQ + 12}")
    A("s_lshl_b32 s36, s24, 6")
    A("s_lshl_b32 s37, s23, 2")
    A("s_add_u32 s36, s36, s37")
    A("s_add_u32 s36, s36, s47")
    A("s_lshl_b32 s36, s36, 11")
    A("v_add_u32 v59, s36, v49")
    A("v_cmp_eq_u32 s[38:39], 0, v17")
    A("v_and_b32 v62, 31, v1")
    A("v_cmp_gt_u32 s[42:43], 28, v62")
    A("v_cmp_eq_u32 vcc, 28, v62")
    A("v_mov_b32 v63, 0x3f803f80")
    A("v_cndmask_b32 v63, 0, v63, vcc")
    A("s_cmp_eq_u32 s48, 0")
    A(f"s_cbranch_scc0 L_{name}_e1")
    save_vm = [dict(o) for o in A.vmq]
    save_lg = [dict(o) for o in A.lgq]
    RX = 64
    KP = 92
    for kh in range(2):
        keep, send = (AQ, AK) if kh == 0 else (AK, AQ)
        vkeep, vsend = (AV, AV + 8) if kh == 0 else (AV + 8, AV)
        for j in range(4):
            A(f"ds_write_b128 v50, {a(send + 4 * j, 4)} offset:{1024 * j}")
        for j in range(2):
            A(f"ds_write_b128 v50, {a(vsend + 4 * j, 4)} offset:{4096 + 1024 * j}")
        if L0:
            A("ds_write_b64 v50, v[52:53] offset:6144")
        for r in range(16):
            A(f"v_accvgpr_read_b32 v{KP + r}, a{keep + r}")
        for r in range(8):
            A(f"v_accvgpr_read_b32 v{KP + 16 + r}, a{vkeep + r}")
        A.wait_all(vm=False)
        A.stamp(5)
        A("s_barrier")
        A.stamp(6)
        for j in range(6):
            A(f"ds_read_b128 {v(RX + 4 * j, 4)}, v51 offset:{1024 * j}")
        if L0:
            A(f"ds_read_b64 {v(RX + 24, 2)}, v51 offset:6144")
            A("v_lshlrev_b32 v54, 4, v17")
            A(f"v_add_u32 v55, {K1_CSUM}, v54")
            for j in range(4):
                A(f"ds_read_b128 {v(CS + 4 * j, 4)}, v55 offset:{128 * kh + 32 * j}")
                A(f"ds_read_b128 {v(136 + 4 * j, 4)}, v55 offset:{128 * (kh + 3) + 32 * j}")
            A("ds_read_b32 v56, v47 offset:256")
            A("ds_read_b32 v45, v47 offset:640")
            for r in range(16):
                A(f"v_add_f32 v{CS + r}, v{CS + r}, v{136 + r}")
            A("v_add_f32 v56, v56, v45")
            A("s_mul_i32 s40, s24, 384")
            A(f"s_add_u32 s40, s40, {hex(WS_CS + 128 * kh)}")
            A("s_or_b32 s41, s23, s47")
            A("s_cmp_eq_u32 s41, 0")
            A("s_cselect_b32 s40, s40, 0x7fff0000")
            A("v_and_b32 v60, 31, v1")
            A("v_lshlrev_b32 v60, 2, v60")
            A(f"ds_read_b32 v46, v47 offset:{128 * kh}")
            A(f"ds_read_b32 v45, v47 offset:{128 * (kh + 3)}")
            A("v_add_f32 v46, v46, v45")
            A("buffer_store_dword v46, v60, s[12:15], s40 offen")
            if kh == 0:
                A("buffer_store_dword v56, v60, s[12:15], s40 offen offset:256")
            A(f"v_add_f32 v52, v52, v{RX + 24}")
            A(f"v_add_f32 v48, v53, v{RX + 25}")
            A("v_mov_b32 v57, v52")
            A("v_permlane32_swap_b32 v57, v52")
            token_stats(52, 48)
        A.stamp(7)
        cq = (DH ** -0.5) * 1.4426950408889634
        if kh == 0:
            A(f"v_mul_f32 v60, {hexf(cq)}, v48")
            A(f"v_mul_f32 v61, {hexf(cq)}, v52")
            ra, rb_ = 60, 61
        else:
            ra, rb_ = 48, 52
        PK = 168
        for r in range(16):
            A(f"v_mul_f32 v{CS + r}, v{CS + r}, v{rb_}")
        for r in range(16):
            A(f"v_add_f32 v{KP + r}, v{KP + r}, v{RX + r}")
            A(f"v_fma_f32 v{KP + r}, v{KP + r}, v{ra}, v{CS + r}")
        for d in range(8):
            A(f"v_cvt_pk_bf16_f32 v{PK + d}, v{KP + 2 * d}, v{KP + 2 * d + 1}")
        if kh == 0:
            A("v_mov_b32 v62, 0x3f80")
            A(f"v_cndmask_b32 v{PK + 6}, v62, v{PK + 6}, s[38:39]")
        else:
            A(f"v_cndmask_b32 v{PK + 6}, 0, v{PK + 6}, s[38:39]")
        A(f"v_cndmask_b32 v{PK + 7}, 0, v{PK + 7}, s[38:39]")
        A(f"s_mov_b32 s40, {hex((WS_QF if kh == 0 else WS_KF) + layer * LB)}")
        A(f"buffer_store_dwordx4 {v(PK, 4)}, v59, s[12:15], s40 offen")
        A(f"buffer_store_dwordx4 {v(PK + 4, 4)}, v59, s[12:15], s40 offen offset:1024")
        for r in range(8):
            A(f"v_mul_f32 v{TB + r}, v{TB + r}, v56")
        for r in range(8):
            A(f"v_add_f32 v{KP + 16 + r}, v{KP + 16 + r}, v{RX + 16 + r}")
            A(f"v_fma_f32 v{KP + 16 + r}, v{KP + 16 + r}, v{TA + r}, v{TB + r}")
        for d in range(4):
            A(f"v_cvt_pk_bf16_f32 v{RX + d}, v{KP + 16 + 2 * d}, v{KP + 16 + 2 * d + 1}")
            A(f"v_cndmask_b32 v{RX + d}, v63, v{RX + d}, s[42:43]")
        A(f"s_mov_b32 s40, {hex(WS_VF + 1024 * kh + layer * LB)}")
        A(f"buffer_store_dwordx4 {v(RX, 4)}, v59, s[12:15], s40 offen")
        if kh == 0:
            A(f"s_branch L_{name}_e2")
            A.raw(f"L_{name}_e1:")
            A.hist = []
            A.vmq = [dict(o) for o in save_vm]
            A.lgq = [dict(o) for o in save_lg]
            A.nop(2)
    A.raw(f"L_{name}_e2:")
    if pers:
        phase_begin(A)
        if L0:
            A("s_mov_b32 s34, 0")
            A("v_mov_b32 v10, 0")
            await_cnt(A, 60, 34, 10, 1, 8)
        A("s_lshl_b32 s34, s24, 7")
        A("s_lshl_b32 s35, s23, 2")
        A("s_add_u32 s34, s34, s35")
        A(f"s_add_u32 s34, s34, {hex(F0 if L0 else F1)}")
        publish(A, 12, 34)
        return None
    A.stamp(4)
    A.dump_stamps(STAMP_WG)
    kernel_end(A, name)
    return K1_LDS, 512, 256, 176


K2_K, K2_V, K2_Q = 0, 24576, 49152
K2_X = 57344
K2_LDS = K2_X + 8 * 4096


def k2(A, name, layer, pers=False):
    if pers:
        phase_begin(A)
    else:
        kernel_begin(A, name, 256)
        A.stamp_base = 76
        A.stamp(0)
    A(f"s_load_dwordx2 s[20:21], s[0:1], {KA_WS}")
    if PREFETCH and layer == 0:
        A(f"s_load_dwordx2 s[88:89], s[0:1], {KA_W2}")
        A(f"s_load_dwordx2 s[84:85], s[0:1], {KA_W1}")
    A("v_and_b32 v1, 63, v0")
    A("v_lshrrev_b32 v2, 6, v0")
    A("v_readfirstlane_b32 s22, v2")
    A("s_lshr_b32 s23, s2, 4")
    A("s_and_b32 s24, s2, 15")
    A("s_and_b32 s38, s22, 3")
    A("s_lshr_b32 s39, s22, 2")
    A("v_lshlrev_b32 v2, 4, v1")
    A("s_lshl_b32 s25, s24, 17")
    A("s_lshl_b32 s26, s23, 2")
    A("s_sub_u32 s26, s26, 8")
    A("s_mul_i32 s27, s22, 3")
    for i in range(3):
        A(f"s_add_u32 s34, s27, {i}")
        A("s_lshr_b32 s35, s34, 1")
        A("s_add_i32 s35, s35, s26")
        A("s_lshl_b32 s36, s35, 11")
        A("s_and_b32 s37, s34, 1")
        A("s_lshl_b32 s37, s37, 10")
        A("s_add_u32 s36, s36, s37")
        A("s_cmp_lt_i32 s35, 0")
        A(f"s_cselect_b32 s{72 + i}, 0x40000000, s36")
    A("s_lshl_b32 s29, s27, 10")
    A.wait_all(vm=False)
    for (d, off) in [(4, WS_QF), (8, WS_KF), (12, WS_VF)]:
        A(f"s_add_u32 s28, s25, {hex(off + layer * LB)}")
        A(f"s_add_u32 s{d}, s20, s28")
        A(f"s_addc_u32 s{d + 1}, s21, 0")
        A(f"s_and_b32 s{d + 1}, s{d + 1}, 0xffff")
        A(f"s_mov_b32 s{d + 2}, 0x20000")
        A(f"s_mov_b32 s{d + 3}, 0x00020000")
    srd(A, 92, 20, 21, WSZ)
    if pers and (layer == 1 or "one" in OPT):
        A("s_lshl_b32 s34, s24, 7")
        A(f"s_add_u32 s34, s34, {hex(F1 if layer == 1 else F0)}")
        A("v_add_u32 v10, s23, v1")
        A("v_subrev_u32 v10, 2, v10")
        A("v_max_i32 v10, 0, v10")
        A("v_lshlrev_b32 v10, 2, v10")
        await_cnt(A, 92, 34, 10, 3, 1)
    for i in range(3):
        A(f"s_add_u32 m0, s29, {K2_K + i * 1024}")
        A(f"buffer_load_dwordx4 v2, s[8:11], s{72 + i} offen lds")
    A("s_lshl_b32 s30, s23, 13")
    A("s_lshl_b32 s31, s22, 10")
    A("s_add_u32 s30, s30, s31")
    A(f"s_add_u32 m0, s31, {K2_Q}")
    tokK = A("buffer_load_dwordx4 v2, s[4:7], s30 offen lds")
    if "nofb" not in OPT:
        A("s_barrier")
    for i in range(3):
        A(f"s_add_u32 m0, s29, {K2_V + i * 1024}")
        tokV = A(f"buffer_load_dwordx4 v2, s[12:15], s{72 + i} offen lds")
    srd_off(A, 16, 20, 21, hex(WS_OF + layer * LB), 128 * 14 * 1024)
    K2PF = PREFETCH and layer == 0
    if K2PF:
        A("s_lshl_b32 s34, s2, 3")
        A("s_add_u32 s34, s34, s22")
        A("s_mul_i32 s34, s34, 3584")
        A("v_lshlrev_b32 v40, 7, v1")
        A("v_add_u32 v40, s34, v40")
        srd(A, 88, 88, 89, S * F * 2)
        srd(A, 84, 84, 85, S * F * 2)
    A.stamp(1)
    A("v_and_b32 v4, 31, v1")
    A("v_lshrrev_b32 v5, 5, v1")
    A("v_mov_b32 v18, 0xf14a")
    A("v_mul_lo_u32 v18, v18, v5")
    A("v_add_u32 v19, s29, v2")
    A("v_lshlrev_b32 v6, 2, v5")
    A("v_sub_u32 v6, v4, v6")
    MS = 40
    for r in range(16):
        kk = 8 * (r >> 2) + (r & 3)
        A(f"v_cmp_ge_i32 s[{MS + 2 * r}:{MS + 2 * r + 1}], v6, {kk}")
    PM = 8
    A("v_mov_b32 v7, 0xffff")
    A("v_mov_b32 v16, 0xffff0000")
    for d in range(8):
        A(f"v_cndmask_b32 v{PM + d}, 0, v7, s[{MS + 4 * d}:{MS + 4 * d + 1}]")
        A(f"v_cndmask_b32 v17, 0, v16, s[{MS + 4 * d + 2}:{MS + 4 * d + 3}]")
        A(f"v_or_b32 v{PM + d}, v{PM + d}, v17")
    A.wait_vm(tokK)
    for i in range(3):
        A(f"s_add_u32 s34, s27, {i}")
        A("s_and_b32 s34, s34, 1")
        A(f"s_cmp_eq_u32 s{72 + i}, 0x40000000")
        A("s_cselect_b32 s35, s34, 0")
        A("s_cmp_eq_u32 s35, 0")
        lab = f"L_{name}_np{i}"
        A(f"s_cbranch_scc1 {lab}")
        A(f"ds_write_b32 v19, v18 offset:{K2_K + i * 1024 + 8}")
        A.raw(lab + ":")
    A.force_wait(lg=0)
    A("s_barrier")
    A.stamp(2)
    if "rtg" in OPT:
        rtp(A, "k2bar1", 172)
    A("s_lshl_b32 s35, s38, 11")
    A("v_add_u32 v28, s35, v2")
    A(f"ds_read_b128 v[20:23], v28 offset:{K2_Q}")
    A(f"ds_read_b128 v[24:27], v28 offset:{K2_Q + 1024}")
    BW = 14 if "k2both" in OPT else 7
    NBU = 4
    bcount = [0]

    def burst(i=None):
        n = bcount[0]
        if not K2PF or n >= NBU:
            return
        bcount[0] += 1
        if "k2both" in OPT:
            m = ((1 << 14) - 1) << (14 * (n & 1))
            sr = 84 if n < 2 else 88
        else:
            m = ((1 << 7) - 1) << (7 * n)
            sr = 84 if pers else 88
        A(f"s_mov_b64 exec, {hex(m)}")
        A.touch(f"buffer_load_dword v42, v40, s[{sr}:{sr + 3}], 0 offen")
        exec_lanes(A, 64)
    A("s_mul_i32 s36, s22, 4096")
    A(f"s_add_u32 s36, s36, {K2_X}")
    A("v_add_u32 v44, s36, v2")
    A("s_xor_b32 s37, s22, 4")
    A("s_mul_i32 s37, s37, 4096")
    A(f"s_add_u32 s37, s37, {K2_X}")
    A("v_add_u32 v45, s37, v2")
    A("s_cmp_eq_u32 s39, 0")
    A(f"s_cbranch_scc0 L_{name}_h1")
    A.vmq_save = [dict(o) for o in A.vmq]
    A.lgq_save = [dict(o) for o in A.lgq]
    SB = [48, 64, 80, 96]
    MX = 30
    CN = 112
    OA = 128
    PB = [144, 152, 160]

    for hf in range(2):
        blocks = [0, 8, 1, 2, 3] if hf == 0 else [4, 5, 6, 7]
        slotk = {b: i for i, b in enumerate(blocks)}
        for b in blocks:
            for st in range(2):
                A(f"ds_read_b128 {a(8 * slotk[b] + 4 * st, 4)}, v28 offset:{K2_K + 2048 * b + 1024 * st}")

        bcount[0] = 0

        def qk(b, buf, cinit):
            k = 8 * slotk[b]
            A(f"v_mfma_f32_32x32x16_bf16 {v(buf, 16)}, {a(k, 4)}, v[20:23], {cinit}")
            A(f"v_mfma_f32_32x32x16_bf16 {v(buf, 16)}, {a(k + 4, 4)}, v[24:27], {v(buf, 16)}")

        def maxblk(buf, first):
            if first:
                A(f"v_max3_f32 v{MX}, v{buf}, v{buf + 1}, v{buf + 2}")
                rest = list(range(3, 16))
            else:
                rest = list(range(16))
            while len(rest) >= 2:
                A(f"v_max3_f32 v{MX}, v{MX}, v{buf + rest[0]}, v{buf + rest[1]}")
                rest = rest[2:]
            if rest:
                A(f"v_max_f32 v{MX}, v{MX}, v{buf + rest[0]}")

        def merge():
            for r in range(16):
                A(f"v_cndmask_b32 v{SB[0] + r}, v{SB[0] + r}, v{SB[1] + r}, s[{MS + 2 * r}:{MS + 2 * r + 1}]")

        if hf == 0:
            qk(0, SB[0], "0"); qk(8, SB[1], "0"); qk(1, SB[2], "0"); qk(2, SB[3], "0")
            merge()
            qk(3, SB[1], "0")
            maxblk(SB[0], True); maxblk(SB[2], False); maxblk(SB[3], False); maxblk(SB[1], False)
        else:
            for i, b in enumerate(blocks):
                qk(b, SB[i], "0")
            maxblk(SB[0], True); maxblk(SB[1], False); maxblk(SB[2], False); maxblk(SB[3], False)
        A(f"v_mov_b32 v31, v{MX}")
        A(f"v_permlane32_swap_b32 v31, v{MX}")
        A(f"v_max_f32 v{MX}, v{MX}, v31")
        A(f"ds_write_b32 v44, v{MX}")
        A.wait_vm(tokV)
        A.wait_all(vm=False)
        A("s_barrier")
        A("ds_read_b32 v31, v45")
        for b in blocks:
            for st in range(2):
                A(f"ds_read_b128 {a(40 + 8 * slotk[b] + 4 * st, 4)}, v28 offset:{K2_V + 2048 * b + 1024 * st}")
        A(f"v_max_f32 v{MX}, v{MX}, v31")
        for r in range(16):
            A(f"v_sub_f32 v{CN + r}, 0, v{MX}")
        cn = v(CN, 16)

        def exppack(buf, pb):
            for r in range(16):
                A(f"v_exp_f32 v{buf + r}, v{buf + r}")
            for d in range(8):
                A(f"v_cvt_pk_bf16_f32 v{pb + d}, v{buf + 2 * d}, v{buf + 2 * d + 1}")
            burst()

        first_pv = [True]

        def pv(b, pb):
            for st in range(2):
                c = "0" if first_pv[0] else v(OA, 16)
                first_pv[0] = False
                A(f"v_mfma_f32_32x32x16_bf16 {v(OA, 16)}, {a(40 + 8 * slotk[b] + 4 * st, 4)}, {v(pb + 4 * st, 4)}, {c}")

        if hf == 0:
            qk(0, SB[0], cn); qk(8, SB[1], cn); qk(1, SB[2], cn); qk(2, SB[3], cn)
            merge()
            qk(3, SB[1], cn)
            exppack(SB[0], PB[0])
            for d in range(8):
                A(f"v_and_b32 v{PB[1] + d}, v{PM + d}, v{PB[0] + d}")
                A(f"v_xor_b32 v{PB[0] + d}, v{PB[0] + d}, v{PB[1] + d}")
            pv(0, PB[0]); pv(8, PB[1])
            exppack(SB[2], PB[2]); pv(1, PB[2])
            exppack(SB[3], PB[0]); pv(2, PB[0])
            exppack(SB[1], PB[1]); pv(3, PB[1])
        else:
            for i, b in enumerate(blocks):
                qk(b, SB[i], cn)
            for i, b in enumerate(blocks):
                exppack(SB[i], PB[i % 3])
                pv(b, PB[i % 3])
        A.stamp(3)
        keep, send = (OA, OA + 8) if hf == 0 else (OA + 8, OA)
        A(f"ds_write_b128 v44, {v(send, 4)} offset:1024")
        A(f"ds_write_b128 v44, {v(send + 4, 4)} offset:2048")
        A(f"ds_write_b32 v44, v{OA + 12} offset:3072")
        A.wait_all(vm=False)
        A("s_barrier")
        A("ds_read_b128 v[144:147], v45 offset:1024")
        A("ds_read_b128 v[148:151], v45 offset:2048")
        A("ds_read_b32 v32, v45 offset:3072")
        A(f"v_add_f32 v32, v32, v{OA + 12}")
        A("v_mov_b32 v33, v32")
        A("v_permlane32_swap_b32 v33, v32")
        A("v_rcp_f32 v33, v32")
        for r in range(8):
            A(f"v_add_f32 v{keep + r}, v{keep + r}, v{144 + r}")
            A(f"v_mul_f32 v{keep + r}, v{keep + r}, v33")
        for d in range(4):
            A(f"v_cvt_pk_bf16_f32 v{152 + d}, v{keep + 2 * d}, v{keep + 2 * d + 1}")
        A("s_mul_i32 s36, s24, 7")
        A("v_add_u32 v34, s36, v5")
        A("s_lshl_b32 s37, s23, 2")
        A("s_add_u32 s37, s37, s38")
        A("s_mul_i32 s37, s37, 28672")
        A("v_bfe_u32 v35, v1, 4, 1")
        A("v_mul_u32_u24 v35, 14336, v35")
        A("v_and_b32 v36, 15, v1")
        A("v_lshl_add_u32 v35, v36, 4, v35")
        A("v_add_u32 v35, s37, v35")
        for jj in range(2):
            j = 2 * hf + jj
            A(f"v_add_u32 v36, {2 * j}, v34")
            A("v_lshrrev_b32 v37, 3, v36")
            A("v_lshl_add_u32 v38, v37, 10, v35")
            A("v_bfe_u32 v37, v36, 2, 1")
            A("v_lshl_add_u32 v38, v37, 9, v38")
            A("v_and_b32 v37, 1, v36")
            A("v_lshl_add_u32 v38, v37, 8, v38")
            A("v_bfe_u32 v37, v36, 1, 1")
            A("v_lshl_add_u32 v38, v37, 3, v38")
            if j == 3:
                exec_lanes(A, 32)
            A(f"buffer_store_dwordx2 {v(152 + 2 * jj, 2)}, v38, s[16:19], 0 offen")
            if j == 3:
                exec_lanes(A, 64)
        if hf == 0:
            A(f"s_branch L_{name}_done")
            A.raw(f"L_{name}_h1:")
            A.hist = []
            A.lgq = [o for o in A.lgq_save] if hasattr(A, "lgq_save") else []
            A.vmq = list(A.vmq_save)
            A.force_wait(lg=0)
    A.raw(f"L_{name}_done:")
    if pers:
        phase_begin(A)
        A("s_lshl_b32 s34, s23, 7")
        A(f"s_add_u32 s34, s34, {hex(C2(layer))}")
        publish(A, 92, 34)
        return None
    A.stamp(4)
    A.dump_stamps(STAMP_WG)
    kernel_end(A, name)
    return K2_LDS, 512, 256, 176


K3_O, K3_W, K3_X, K3_T = 0, 57344, 114688, 122880
K3_LDS = K3_T + 64 * 136


def k3(A, name, layer, pers=False):
    if pers:
        phase_begin(A)
        A("s_cmp_ge_u32 s2, 224")
        A(f"s_cbranch_scc1 L_{name}_{'idle' if PREFETCH else 'skip'}")
    else:
        kernel_begin(A, name, 224)
        A.stamp_base = 70
        A.stamp(0)
    A(f"s_load_dwordx2 s[20:21], s[0:1], {KA_WS}")
    A(f"s_load_dwordx2 s[8:9], s[0:1], {KA_WO}")
    if layer == 0:
        A(f"s_load_dwordx2 s[12:13], s[0:1], {KA_X}")
    if PREFETCH:
        A(f"s_load_dwordx2 s[48:49], s[0:1], {KA_W1}")
    A("v_and_b32 v1, 63, v0")
    A("v_lshrrev_b32 v2, 6, v0")
    A("v_readfirstlane_b32 s22, v2")
    A("s_lshr_b32 s23, s2, 5")
    A("s_and_b32 s24, s2, 31")
    A("v_lshlrev_b32 v2, 4, v1")
    A("v_lshrrev_b32 v3, 3, v1")
    A("v_bfe_u32 v4, v1, 4, 2")
    A("v_lshlrev_b32 v4, 1, v4")
    A("v_and_b32 v5, 7, v1")
    A("v_xor_b32 v4, v4, v5")
    A("v_mul_u32_u24 v5, 896, v3")
    A("v_lshl_add_u32 v5, v4, 4, v5")
    A("s_lshl_b32 s25, s23, 7")
    A("v_add_u32 v5, s25, v5")
    A.wait_all(vm=False)
    srd_off(A, 4, 20, 21, hex(WS_OF + layer * LB), 128 * 14336)
    srd(A, 8, 8, 9, D * D * 2)
    if layer == 0:
        srd(A, 12, 12, 13, XBYTES)
    else:
        srd_off(A, 12, 20, 21, hex(WS_X2), XBYTES)
    srd(A, 16, 20, 21, WSZ)
    toks = {}
    A("s_mul_i32 s30, s22, 7168")
    A("s_lshl_b32 s32, s22, 10")
    for q in range(7):
        A(f"s_add_u32 m0, s32, {K3_W + q * 8192}")
        A(f"s_add_u32 s31, s30, {q * 64 * 896}")
        A("buffer_load_dwordx4 v5, s[8:11], s31 offen lds")

    def xtile():
        A("s_lshl_b32 s34, s24, 6")
        A("s_lshl_b32 s35, s22, 3")
        A("s_add_u32 s34, s34, s35")
        A("s_mul_i32 s34, s34, 896")
        A("s_lshl_b32 s35, s22, 10")
        A(f"s_add_u32 m0, s35, {K3_X}")
        A("buffer_load_dwordx4 v5, s[12:15], s34 offen lds")
    if layer == 0:
        xtile()
    if pers:
        A("s_lshr_b32 s34, s24, 1")
        A("s_lshl_b32 s34, s34, 7")
        A(f"s_add_u32 s34, s34, {hex(C2(layer))}")
        A("v_mov_b32 v10, 0")
        await_cnt(A, 16, 34, 10, 1, 16)
    A("s_and_b32 s26, s22, 3")
    A("s_lshr_b32 s27, s22, 2")
    A("s_mul_i32 s27, s27, 7168")
    A("s_mul_i32 s28, s26, 14336")
    A("s_add_u32 s32, s28, s27")
    A("s_lshl_b32 s29, s24, 2")
    A("s_mul_i32 s29, s29, 14336")
    A("s_add_u32 s30, s29, s32")
    for q in range(7):
        A(f"s_add_u32 m0, s32, {K3_O + q * 1024}")
        A(f"s_add_u32 s31, s30, {q * 1024}")
        toks[0] = A("buffer_load_dwordx4 v2, s[4:7], s31 offen lds")
    if layer == 1:
        xtile()
        toks[0] = A.vmq[-1]["tok"]
    if PREFETCH and layer == 0 and not pers:
        w1_prefetch(A, 48, 224, 126)
    A.stamp(1)
    A("s_and_b32 s33, s22, 1")
    A("s_lshr_b32 s34, s22, 1")
    A("s_mul_i32 s35, s33, 28672")
    A("v_add_u32 v6, s35, v2")
    A("v_lshrrev_b32 v7, 4, v1")
    A("v_bfe_u32 v8, v1, 2, 2")
    A("v_and_b32 v9, 3, v1")
    A("v_lshrrev_b32 v10, 1, v7")
    A("v_and_b32 v11, 1, v7")
    A("v_lshlrev_b32 v12, 4, v10")
    A("v_lshl_add_u32 v12, v11, 2, v12")
    A("v_add_u32 v12, v12, v8")
    A("v_lshlrev_b32 v12, 7, v12")
    A("v_lshl_add_u32 v12, v9, 3, v12")
    A("v_lshrrev_b32 v13, 1, v8")
    A("v_lshl_add_u32 v13, v11, 1, v13")
    A("v_xor_b32 v14, s34, v13")
    A("v_lshl_add_u32 v16, v14, 5, v12")
    A(f"v_add_u32 v16, {K3_W}, v16")
    A("v_lshl_add_u32 v14, v7, 2, v8")
    A("v_bfe_u32 v15, v14, 1, 2")
    A("v_lshlrev_b32 v14, 7, v14")
    A("v_lshl_add_u32 v14, v9, 3, v14")
    A("s_lshl_b32 s38, s33, 12")
    A(f"s_add_u32 s38, s38, {K3_X}")
    A("v_add_u32 v14, s38, v14")
    A("v_xor_b32 v20, s34, v15")
    A("v_lshl_add_u32 v18, v20, 5, v14")
    ACC = 32
    AF3, BF3 = 48, 72

    def reads(kp, buf):
        for mt in range(2):
            A(f"ds_read_b128 {v(AF3 + 8 * buf + 4 * mt, 4)}, v6 offset:{mt * 14336 + kp * 1024}")
        for t in range(2):
            A(f"ds_read_b64_tr_b16 {v(BF3 + 4 * buf + 2 * t, 2)}, v16 offset:{kp * 4096 + t * 1024}")

    def mfmas(kp, buf):
        for mt in range(2):
            c = "0" if kp == 0 else v(ACC + 4 * mt, 4)
            A(f"v_mfma_f32_16x16x32_bf16 {v(ACC + 4 * mt, 4)}, {v(AF3 + 8 * buf + 4 * mt, 4)}, {v(BF3 + 4 * buf, 4)}, {c}")

    A.wait_vm(toks[0])
    A("s_barrier")
    A.stamp(2)
    if "rtg" in OPT:
        rtp(A, "k3bar1")
    reads(0, 0)
    reads(1, 1)
    for kp in range(14):
        if kp + 2 < 14:
            reads(kp + 2, (kp + 2) % 3)
        if kp == 12:
            for mt in range(2):
                A(f"ds_read_b64_tr_b16 {v(96 + 2 * mt, 2)}, v18 offset:{mt * 2048}")
        mfmas(kp, kp % 3)
    A.stamp(4)
    XR = 96
    PKD = 112
    for mt in range(2):
        for hlf in range(2):
            x = XR + 2 * mt + hlf
            A(f"v_lshlrev_b32 v104, 16, v{x}")
            A(f"v_and_b32 v105, 0xffff0000, v{x}")
            A(f"v_add_f32 v{ACC + 4 * mt + 2 * hlf}, v{ACC + 4 * mt + 2 * hlf}, v104")
            A(f"v_add_f32 v{ACC + 4 * mt + 2 * hlf + 1}, v{ACC + 4 * mt + 2 * hlf + 1}, v105")
            A(f"v_cvt_pk_bf16_f32 v{PKD + 2 * mt + hlf}, v{ACC + 4 * mt + 2 * hlf}, v{ACC + 4 * mt + 2 * hlf + 1}")
    A("s_lshl_b32 s39, s24, 1")
    A("s_add_u32 s39, s39, s33")
    A("s_mul_i32 s39, s39, 28672")
    A("s_lshl_b32 s40, s23, 3")
    A("s_lshl_b32 s41, s34, 1")
    A("s_add_u32 s40, s40, s41")
    A("s_lshl_b32 s40, s40, 9")
    A("s_add_u32 s39, s39, s40")
    A(f"s_add_u32 s39, s39, {hex(WS_X1F + layer * LB)}")
    A("v_bfe_u32 v21, v1, 3, 1")
    A("v_lshlrev_b32 v21, 9, v21")
    A("v_lshl_add_u32 v21, v7, 7, v21")
    A("v_and_b32 v22, 7, v1")
    A("v_lshl_add_u32 v21, v22, 4, v21")
    A(f"buffer_store_dwordx4 {v(PKD, 4)}, v21, s[16:19], s39 offen")
    TP = 136
    A("v_and_b32 v22, 15, v1")
    A(f"v_mul_u32_u24 v23, {TP}, v22")
    A("v_lshl_add_u32 v23, v7, 3, v23")
    A(f"s_mul_i32 s41, s34, {16 * TP}")
    A("s_lshl_b32 s42, s33, 6")
    A("s_add_u32 s41, s41, s42")
    A(f"s_add_u32 s41, s41, {K3_T}")
    A("v_add_u32 v23, s41, v23")
    for mt in range(2):
        A(f"ds_write_b64 v23, {v(PKD + 2 * mt, 2)} offset:{mt * 32}")
    A("v_lshl_add_u32 v24, v7, 2, v8")
    A(f"v_mul_u32_u24 v24, {TP}, v24")
    A("v_lshl_add_u32 v24, v9, 3, v24")
    A("v_add_u32 v24, s41, v24")
    TR = 120
    for mt in range(2):
        A(f"ds_read_b64_tr_b16 {v(TR + 2 * mt, 2)}, v24 offset:{mt * 32}")
    A("s_lshl_b32 s42, s24, 2")
    A("s_lshl_b32 s43, s33, 1")
    A("s_add_u32 s42, s42, s43")
    A("s_mul_i32 s43, s42, 14336")
    A("s_lshl_b32 s44, s23, 4")
    A("s_lshl_b32 s45, s34, 2")
    A("s_add_u32 s44, s44, s45")
    A("s_lshl_b32 s44, s44, 7")
    A("s_add_u32 s43, s43, s44")
    A(f"s_add_u32 s43, s43, {hex(WS_X1T + layer * LB)}")
    A("v_lshlrev_b32 v25, 7, v7")
    A("v_lshl_add_u32 v25, v22, 3, v25")
    A("v_mov_b32 v26, 0x3f803f80")
    for i in range(4):
        A(f"v_mov_b32 v{28 + i}, 0")
    for mt in range(2):
        A(f"s_add_u32 s44, s43, {mt * 14336}")
        A(f"buffer_store_dwordx2 {v(TR + 2 * mt, 2)}, v25, s[16:19], s44 offen")
        for hlf in range(2):
            A(f"v_dot2_f32_bf16 v{28 + 2 * mt}, v{TR + 2 * mt + hlf}, v26, v{28 + 2 * mt}")
            A(f"v_dot2_f32_bf16 v{29 + 2 * mt}, v{TR + 2 * mt + hlf}, v{TR + 2 * mt + hlf}, v{29 + 2 * mt}")
    A("v_cmp_gt_u32 vcc, 16, v1")
    A("v_lshlrev_b32 v27, 2, v1")
    A("s_lshl_b32 s44, s42, 7")
    A(f"s_add_u32 s44, s44, {hex(WS_ST + (0 if layer == 0 else 2) * 16384)}")
    for mt in range(2):
        reduce_groups(A, 28 + 2 * mt, 104)
        reduce_groups(A, 29 + 2 * mt, 105)
        A(f"v_cndmask_b32 v{106 + mt}, v{29 + 2 * mt}, v{28 + 2 * mt}, vcc")
    exec_lanes(A, 32)
    A("buffer_atomic_add_f32 v106, v27, s[16:19], s44 offen")
    A("buffer_atomic_add_f32 v107, v27, s[16:19], s44 offen offset:128")
    exec_lanes(A, 64)
    if pers:
        A("s_and_b32 s34, s2, 7")
        A("s_lshl_b32 s34, s34, 7")
        A(f"s_add_u32 s34, s34, {hex(C3(layer))}")
        publish(A, 16, 34)
        A.raw(f"L_{name}_skip:")
        return None
    A.stamp(5)
    A.dump_stamps(STAMP_WG)
    kernel_end(A, name)
    return K3_LDS, 512, 256, 176


def pfx(A, name, nwg):
    kernel_begin(A, name, nwg)
    A(f"s_load_dwordx2 s[48:49], s[0:1], {KA_W1}")
    A("v_and_b32 v1, 63, v0")
    A("v_lshrrev_b32 v2, 6, v0")
    A("v_readfirstlane_b32 s22, v2")
    A.wait_all(vm=False)
    w1_prefetch(A, 48, nwg, 20)
    kernel_end(A, name)
    return 0, 512, 64, 64


def g12(A, name, layer):
    gk(A, name, layer, 1, fused=True)
    return gk(A, name, layer, 2, fused=True)


def idle_prefetch(A, layer):
    phase_begin(A)
    A(f"s_load_dwordx2 s[48:49], s[0:1], {KA_W1}")
    A(f"s_load_dwordx2 s[52:53], s[0:1], {KA_W2}")
    A("v_and_b32 v1, 63, v0")
    A("v_lshrrev_b32 v2, 6, v0")
    A("v_readfirstlane_b32 s22, v2")
    A("s_lshr_b32 s34, s2, 3")
    A("s_sub_u32 s34, s34, 28")
    A("s_lshl_b32 s34, s34, 3")
    A("s_add_u32 s34, s34, s22")
    A("s_bfe_u32 s36, s2, 0x20001")
    A.wait_all(vm=False)
    srd(A, 48, 48, 49, S * F * 2)
    srd(A, 52, 52, 53, S * F * 2)
    A("s_mul_i32 s35, s34, 448")
    A("s_mul_i32 s37, s36, 896")
    for q in range(7):
        A(f"s_add_u32 s38, s35, {64 * q}")
        A("v_add_u32 v10, s38, v1")
        div_const(A, "v11", "v10", 7, 39, rng=14400)
        A("v_mul_u32_u24 v12, 7, v11")
        A("v_sub_u32 v12, v10, v12")
        A("v_mul_u32_u24 v11, 3584, v11")
        A("v_lshl_add_u32 v11, v12, 7, v11")
        A.touch("buffer_load_dword v13, v11, s[48:51], s37 offen")
    if layer == 0:
        A("s_sub_u32 s35, s2, 224")
        A("s_lshl_b32 s35, s35, 3")
        A("s_add_u32 s35, s35, s22")
        A("s_mul_i32 s35, s35, 28672")
        A("v_lshlrev_b32 v10, 7, v1")
        for q in range(4):
            A(f"s_add_u32 s38, s35, {8192 * q}")
            if q == 3:
                exec_lanes(A, 32)
            A.touch("buffer_load_dword v13, v10, s[52:55], s38 offen")
        exec_lanes(A, 64)
    else:
        A("s_mul_i32 s35, s34, 448")
        A("s_lshl_b32 s37, s36, 10")
        for q in range(7):
            A(f"s_add_u32 s38, s35, {64 * q}")
            A("v_add_u32 v10, s38, v1")
            A("v_lshrrev_b32 v11, 3, v10")
            A("v_lshlrev_b32 v11, 12, v11")
            A("v_and_b32 v12, 7, v10")
            A("v_lshl_add_u32 v11, v12, 7, v11")
            A.touch("buffer_load_dword v13, v11, s[52:55], s37 offen")


def tlb_warm(A):
    A(f"s_load_dwordx2 s[64:65], s[0:1], {KA_W1}")
    A(f"s_load_dwordx2 s[68:69], s[0:1], {KA_W2}")
    A(f"s_load_dwordx2 s[72:73], s[0:1], {KA_OUT}")
    A(f"s_load_dwordx2 s[76:77], s[0:1], {KA_WO}")
    A("v_lshlrev_b32 v12, 21, v1")
    A.wait_all(vm=False)
    srd(A, 64, 64, 65, S * F * 2)
    srd(A, 68, 68, 69, S * F * 2)
    srd(A, 72, 72, 73, XBYTES)
    srd(A, 76, 76, 77, D * D * 2)
    exec_lanes(A, 24)
    A.touch("buffer_load_dword v13, v12, s[12:15], 0 offen")
    exec_lanes(A, 4)
    A.touch("buffer_load_dword v13, v12, s[64:67], 0 offen")
    A.touch("buffer_load_dword v13, v12, s[68:71], 0 offen")
    exec_lanes(A, 1)
    A.touch("buffer_load_dword v13, v12, s[72:75], 0 offen")
    A.touch("buffer_load_dword v13, v12, s[76:79], 0 offen")
    exec_lanes(A, 64)


def pk(A, name):
    kernel_begin(A, name, 256)
    st = A.stamps
    A.stamps = False
    if "one" in OPT:
        k1(A, "pk1a", 0, pers=True)
    k2(A, "pk2a", 0, pers=True)
    k3(A, "pk3a", 0, pers=True)
    if "g1old" in OPT:
        gk(A, "pg1a", 0, 1, pers=True)
    else:
        g1v2(A, "pg1a", 0, pers=True)
    if PREFETCH:
        A("s_branch L_pg1a_go")
        A.raw("L_pk3a_idle:")
        idle_prefetch(A, 0)
        A.raw("L_pg1a_go:")
    gk(A, "pg2a", 0, 2, pers=True)
    k1(A, "pk1b", 1, pers=True)
    k2(A, "pk2b", 1, pers=True)
    k3(A, "pk3b", 1, pers=True)
    if "g1old" in OPT:
        gk(A, "pg1b", 1, 1, pers=True)
    else:
        g1v2(A, "pg1b", 1, pers=True)
    if PREFETCH:
        A("s_branch L_pg1b_go")
        A.raw("L_pk3b_idle:")
        idle_prefetch(A, 1)
        A.raw("L_pg1b_go:")
    gk(A, "pg2b", 1, 2, pers=True)
    A.stamps = st
    phase_begin(A)
    kernel_end(A, name)
    return G_LDS, 512, 256, 176


def kd2(name, nv, acc):
    return kd(name, nv=nv, acc=acc)


def build(kernels, path, stamps=False):
    A = Asm()
    A.stamps = stamps
    A.store_mod = "sc0 sc1"
    for o in OPT:
        if o.startswith("st="):
            A.store_mod = o[3:].replace("+", " ")
    launches = []
    kds = []
    for (name, fn, args, grid) in kernels:
        lds, threads, nv, acc = fn(A, name, *args)
        if name == MAIN:
            launches.append(f"; @launch grid=({grid},1,1) block=({threads},1,1) lds={lds}")
        else:
            launches.append(f"; @launch kernel={name} grid=({grid},1,1) block=({threads},1,1) lds={lds}")
        kds.append(kd2(name, nv, acc))
    head = open("interleave_layers__sliding_block__mixer_token_mlp__prompt.s.ref").read()
    hdr = [l for l in head.splitlines() if l.startswith(";") and "@launch" not in l][:12]
    txt = "\n".join(hdr) + "\n" + "\n".join(launches) + "\n"
    txt += '.amdgcn_target "amdgcn-amd-amdhsa--gfx950"\n.text\n'
    txt += A.text()
    txt += '.section .rodata,"a"\n' + "\n".join(kds) + "\n"
    open(path, "w").write(txt)
    if RTN:
        open("rtn.txt", "w").write(repr(RTN))
    print(f"wrote {path}: {A.ninstr} instrs, {A.nops_inserted} nop states inserted, {len(txt)} bytes")


if __name__ == "__main__":
    ks = []
    for L, c in enumerate("ab"):
        ks += [(f"k1{c}_kernel", k1, (L,), 256), (f"k2{c}_kernel", k2, (L,), 256), (f"k3{c}_kernel", k3, (L,), 224),
               ] + ([(f"g12{c}_kernel", g12, (L,), 256)] if "fuse" in OPT else
                    [(f"g1{c}_kernel", gk, (L, 1), 224), (f"g2{c}_kernel", gk, (L, 2), 256)])
    if "pers" in OPT:
        ks = [("k1a_kernel", k1, (0,), 256), ("pb_kernel", pk, (), 256)]
        if "one" in OPT:
            ks = [(MAIN, pk, (), 256)]
    if "pfx" in OPT:
        ks += [("pfx_kernel", pfx, (224,), 224), ("pfy_kernel", pfx, (256,), 256)]
    build(ks, sys.argv[1] if len(sys.argv) > 1 else "dev.s", stamps=("--stamps" in sys.argv))
```

```python
import sys
import struct
sys.path.insert(0, "tools")
OPT = set(sys.argv[1:])
from dsl import Asm, v, a, s

S, D, H, DH, F = 2048, 448, 16, 28, 1792
PREFETCH = 'nopf' not in sys.argv
KA_X, KA_WQKV, KA_WO, KA_BX, KA_W1, KA_B1, KA_W2, KA_B2, KA_OUT, KA_DBG, KA_WS = [8 * i for i in range(11)]
WS_QF = 0x000000
WS_KF = 0x200000
WS_VF = 0x400000
WS_OF = 0x600000
WS_X1T = 0x800000
WS_X1F = 0xA00000
WS_UF = 0xC00000
WS_X2 = 0xE00000
WS_WC = 0x1200000
WS_CS = 0x1380000
WS_CNT = 0x100C000
WS_ST = 0x1000000
XBYTES = S * D * 2
MAIN = "interleave_layers__sliding_block__mixer_token_mlp__prompt_kernel"
LB = 0x2000000
WSZ = 0x4000000


def f32(x):
    return struct.unpack("<I", struct.pack("<f", x))[0]


def hexf(x):
    return "0x%08x" % f32(x)


def srd(A, d, base_lo, base_hi, nbytes):
    if base_lo != d:
        A(f"s_mov_b32 s{d}, s{base_lo}")
    A(f"s_and_b32 s{d + 1}, s{base_hi}, 0xffff")
    A(f"s_mov_b32 s{d + 2}, {hex(nbytes)}")
    A(f"s_mov_b32 s{d + 3}, 0x00020000")


def srd_off(A, d, base_lo, base_hi, off, nbytes):
    A(f"s_add_u32 s{d}, s{base_lo}, {off}")
    A(f"s_addc_u32 s{d + 1}, s{base_hi}, 0")
    A(f"s_and_b32 s{d + 1}, s{d + 1}, 0xffff")
    A(f"s_mov_b32 s{d + 2}, {hex(nbytes)}")
    A(f"s_mov_b32 s{d + 3}, 0x00020000")


def kernel_begin(A, name, nwg):
    A.raw(f".globl {name}")
    A.raw(".p2align 8")
    A.raw(f".type {name},@function")
    A.raw(f"{name}:")
    A.hist = []
    A.vmq = []
    A.lgq = []
    A(f"s_cmp_ge_u32 s2, {nwg}")
    A(f"s_cbranch_scc1 L_{name}_end")
    if "rt" in OPT:
        A("s_memrealtime s[98:99]")


KIDX = [0]


def kernel_end(A, name):
    if "rt" in OPT:
        A.wait_all()
        A("s_memrealtime s[96:97]")
        A(f"s_load_dwordx2 s[60:61], s[0:1], {KA_WS}")
        A.wait_all()
        A("s_mov_b32 s62, 0x2000000")
        A("s_mov_b32 s63, 0x00020000")
        A("v_mov_b32 v2, s98")
        A("v_mov_b32 v3, s96")
        A("s_lshl_b32 s64, s2, 3")
        A(f"s_add_u32 s64, s64, {0x1800000 + KIDX[0] * 4096}")
        A("v_mov_b32 v4, s64")
        A("v_cmp_eq_u32 vcc, 0, v0")
        A("s_and_saveexec_b64 s[66:67], vcc")
        A(f"s_cbranch_execz L_{name}_end")
        A("buffer_store_dwordx2 v[2:3], v4, s[60:63], 0 offen")
        KIDX[0] += 1
    A.raw(f"L_{name}_end:")
    A("s_endpgm")


def kd(name, nv=512, acc=256, ns=102):
    return f"""
.p2align 6
.amdhsa_kernel {name}
  .amdhsa_next_free_vgpr {nv}
  .amdhsa_next_free_sgpr {ns}
  .amdhsa_accum_offset {acc}
  .amdhsa_group_segment_fixed_size 0
  .amdhsa_kernarg_size 88
  .amdhsa_user_sgpr_count 2
  .amdhsa_user_sgpr_kernarg_segment_ptr 1
  .amdhsa_system_sgpr_workgroup_id_x 1
.end_amdhsa_kernel"""


def div_const(A, dst, src, d, tmp_s, rng=4096):
    m = (1 << 20) // d + 1
    for x in range(0, rng):
        assert (x * m) >> 20 == x // d and x * m < (1 << 32), (x, d)
    A(f"s_mov_b32 s{tmp_s}, {m}")
    A(f"v_mul_lo_u32 {dst}, {src}, s{tmp_s}")
    A(f"v_lshrrev_b32 {dst}, 20, {dst}")


def exec_lanes(A, n):
    if n == 64:
        A("s_mov_b64 exec, -1")
    elif n <= 32:
        A(f"s_mov_b64 exec, {hex((1 << n) - 1)}")
    else:
        raise ValueError


STAMP_WG = 37


def interleave(main, fillers):
    n = len(main)
    done = 0
    for i, m in enumerate(main):
        m()
        want = (len(fillers) * (i + 1)) // n
        while done < want:
            fillers[done]()
            done += 1


def sprinkle(base, extra):
    if not base:
        return list(extra)
    out = []
    k = 0
    for i, b in enumerate(base):
        out.append(b)
        while k < (len(extra) * (i + 1)) // len(base):
            out.append(extra[k])
            k += 1
    out += extra[k:]
    return out


def C4(layer): return WS_CNT + layer * 1024
def C2(layer): return WS_CNT + 2048 + layer * 2048
def C3(layer): return WS_CNT + 6144 + layer * 1024
C5 = WS_CNT + 8192
F1 = WS_CNT + 10240
F0 = WS_CNT + 12288
UID = [0]
POLL_SLEEP = int(([o[6:] for o in OPT if o.startswith('sleep=')] + ['2'])[0])
NPOLL = int(([o[6:] for o in OPT if o.startswith('npoll=')] + ['1'])[0])
PV = 168


def publish(A, sr, soff_sgpr):
    UID[0] += 1
    lab = f"L_pub{UID[0]}"
    A.force_wait(vm=0, lg=0)
    A("s_barrier")
    A("v_mov_b32 v10, 0")
    A("v_mov_b32 v11, 1")
    A("v_cmp_eq_u32 vcc, 0, v0")
    A("s_and_saveexec_b64 s[44:45], vcc")
    A(f"s_cbranch_execz {lab}")
    A(f"buffer_atomic_add v11, v10, s[{sr}:{sr + 3}], s{soff_sgpr} offen sc1")
    A.raw(lab + ":")
    A("s_mov_b64 exec, -1")
    rtp(A, "publish")


def await_cnt(A, sr, soff_sgpr, vaddr, nlanes, target):
    UID[0] += 1
    lp, lw, ld = f"L_awp{UID[0]}", f"L_aww{UID[0]}", f"L_awd{UID[0]}"
    A("s_cmp_lg_u32 s22, 0")
    A(f"s_cbranch_scc1 {lw}")
    A(f"s_mov_b64 exec, {hex((1 << nlanes) - 1)}")
    A("s_mov_b32 s45, 0x40000")
    ld_ = f"    buffer_load_dword v{{}}, v{vaddr}, s[{sr}:{sr + 3}], s{soff_sgpr} offen sc0 sc1"
    if NPOLL == 1:
        A.raw(lp + ":")
        A.raw(ld_.format(PV))
        A.raw("    s_waitcnt vmcnt(0)")
        A.raw(f"    v_cmp_gt_u32 vcc, {target}, v{PV}")
        A.raw(f"    s_cbranch_vccz {ld}")
        A.raw("    s_sub_u32 s45, s45, 1")
        A.raw("    s_cmp_lg_u32 s45, 0")
        A.raw(f"    s_cbranch_scc1 {lp}")
    else:
        A.raw("    s_waitcnt vmcnt(0)")
        for i in range(NPOLL):
            A.raw(ld_.format(PV + i))
            A.raw(f"    s_sleep {POLL_SLEEP}")
        A.raw(lp + ":")
        for i in range(NPOLL):
            A.raw(f"    s_waitcnt vmcnt({NPOLL - 1})")
            A.raw(f"    v_cmp_gt_u32 vcc, {target}, v{PV + i}")
            A.raw(f"    s_cbranch_vccz {ld}")
            A.raw(ld_.format(PV + i))
            A.raw(f"    s_sleep {POLL_SLEEP}")
        A.raw("    s_sub_u32 s45, s45, 1")
        A.raw("    s_cmp_lg_u32 s45, 0")
        A.raw(f"    s_cbranch_scc1 {lp}")
    A.raw(ld + ":")
    A.raw("    s_mov_b64 exec, -1")
    A.raw(lw + ":")
    A.hist = []
    A.nop(1)
    A("s_barrier")
    rtp(A, "await")


RTP = [0]
RTN = []


def rtp(A, label, r0=12):
    if "rtp" not in OPT:
        return
    UID[0] += 1
    lab = f"L_rtp{UID[0]}"
    A("s_memrealtime s[96:97]")
    A.force_wait(lg=0)
    A(f"v_mov_b32 v{r0}, s96")
    A("s_lshl_b32 s97, s2, 2")
    A(f"s_add_u32 s97, s97, {0x1900000 + RTP[0] * 1024}")
    A(f"v_mov_b32 v{r0 + 1}, s97")
    A("v_cmp_eq_u32 vcc, 0, v0")
    A("s_and_saveexec_b64 s[98:99], vcc")
    A(f"s_cbranch_execz {lab}")
    A.raw(f"    global_store_dword v{r0 + 1}, v{r0}, s[20:21]")
    A.raw(lab + ":")
    A("s_mov_b64 exec, s[98:99]")
    RTP[0] += 1
    RTN.append(label)


def phase_begin(A):
    A.hist = []
    A.vmq = []
    A.lgq = []
    A.nop(2)


def x2_addr(A, vd, vc, s8p, vt64, vt48, t0=12):
    A(f"v_add_u32 v{t0}, s{s8p}, v{vc}")
    A(f"v_mul_u32_u24 v{t0 + 1}, 37, v{t0}")
    A(f"v_lshrrev_b32 v{t0 + 1}, 8, v{t0 + 1}")
    A(f"v_mul_u32_u24 v{t0 + 2}, 7, v{t0 + 1}")
    A(f"v_sub_u32 v{t0}, v{t0}, v{t0 + 2}")
    A(f"v_cmp_lt_u32 vcc, 3, v{t0}")
    A(f"v_lshlrev_b32 v{t0}, 4, v{t0}")
    A(f"v_cndmask_b32 v{t0 + 2}, v{vt64}, v{vt48}, vcc")
    A(f"v_add_u32 v{t0}, v{t0}, v{t0 + 2}")
    A(f"v_mul_u32_u24 v{t0 + 1}, 1792, v{t0 + 1}")
    A(f"v_add_u32 v{vd}, v{t0}, v{t0 + 1}")


def reduce_groups(A, reg, tmp):
    A(f"v_mov_b32 v{tmp}, v{reg}")
    A(f"v_permlane16_swap_b32 v{tmp}, v{reg}")
    A(f"v_add_f32 v{reg}, v{reg}, v{tmp}")
    A(f"v_mov_b32 v{tmp}, v{reg}")
    A(f"v_permlane32_swap_b32 v{tmp}, v{reg}")
    A(f"v_add_f32 v{reg}, v{reg}, v{tmp}")


def w1_prefetch(A, sr, nwg, vd, prep_only=False):
    per = 14336 // (nwg // 8) // 8
    A("s_lshr_b32 s34, s2, 3")
    A("s_lshl_b32 s34, s34, 3")
    A("s_add_u32 s34, s34, s22")
    A(f"s_mul_i32 s35, s34, {per}")
    A("v_add_u32 v10, s35, v1")
    A("s_bfe_u32 s36, s2, 0x20001")
    div_const(A, "v11", "v10", 7, 35, rng=14400)
    A("v_mul_u32_u24 v12, 7, v11")
    A("v_sub_u32 v12, v10, v12")
    A("v_mul_u32_u24 v11, 3584, v11")
    A("v_lshl_add_u32 v11, v12, 7, v11")
    A("s_mul_i32 s36, s36, 896")
    srd(A, sr, sr, sr + 1, S * F * 2)
    if prep_only:
        A("s_mov_b32 s33, s36")
        return
    if per < 64:
        A(f"s_mov_b32 exec_hi, {hex((1 << (per - 32)) - 1)}")
    A.touch(f"buffer_load_dword v{vd}, v11, s[{sr}:{sr + 3}], s36 offen")
    if per < 64:
        A("s_mov_b64 exec, -1")


G_RING = 9
G_RB = G_RING * 4096
G_TAB = 4 * G_RB
G_LDS = G_TAB + 16384
G_PRE0 = int(([o[5:] for o in OPT if o.startswith("pre0=")] + ["3"])[0])
G_PREA = int(([o[5:] for o in OPT if o.startswith("prea=")] + ["5"])[0])
G_SP = int(([o[3:] for o in OPT if o.startswith("sp=")] + ["2"])[0])


def gk(A, name, layer, which, fused=False, pers=False):
    g1 = which == 1
    nwg = 224 if g1 else 256
    NK = 16 if g1 else 14
    pitch = 3584 if g1 else 4096
    if pers:
        phase_begin(A)
        if g1:
            A("s_cmp_ge_u32 s2, 224")
            A(f"s_cbranch_scc1 L_{name}_skip")
    elif not fused:
        kernel_begin(A, name, nwg)
    elif g1:
        kernel_begin(A, name, 256)
        A("s_cmp_ge_u32 s2, 224")
        A(f"s_cbranch_scc1 L_{name}_p2")
    else:
        A.raw(f"L_{name}_p2:")
        phase_begin(A)
    A.stamp_base = 70
    if not (fused and not g1) and not pers:
        A.stamp(0)
    A(f"s_load_dwordx2 s[20:21], s[0:1], {KA_WS}")
    A(f"s_load_dwordx2 s[4:5], s[0:1], {KA_W1 if g1 else KA_W2}")
    A(f"s_load_dwordx2 s[12:13], s[0:1], {KA_B1 if g1 else KA_B2}")
    if (not g1) and layer == 1:
        A(f"s_load_dwordx2 s[16:17], s[0:1], {KA_OUT}")
    if g1 and PREFETCH and not fused:
        A(f"s_load_dwordx2 s[92:93], s[0:1], {KA_W2}")
    A("v_and_b32 v1, 63, v0")
    A("v_lshrrev_b32 v2, 6, v0")
    A("v_readfirstlane_b32 s22, v2")
    NI4 = 7 if g1 else 8
    A("s_and_b32 s25, s2, 7")
    A("s_lshr_b32 s26, s2, 3")
    A("s_and_b32 s24, s25, 1")
    A("s_lshl_b32 s24, s24, 2")
    A("s_and_b32 s27, s26, 3")
    A("s_add_u32 s24, s24, s27")
    A("s_lshr_b32 s23, s25, 1")
    A(f"s_mul_i32 s23, s23, {NI4}")
    A("s_lshr_b32 s27, s26, 2")
    A("s_add_u32 s23, s23, s27")
    A("s_and_b32 s47, s22, 3")
    A("s_lshr_b32 s48, s22, 2")
    A("v_lshrrev_b32 v3, 3, v1")
    A("v_bfe_u32 v4, v1, 4, 2")
    A("v_lshlrev_b32 v4, 1, v4")
    A("v_and_b32 v5, 7, v1")
    A("v_xor_b32 v4, v4, v5")
    A(f"v_mul_u32_u24 v5, {pitch}, v3")
    A("v_lshl_add_u32 v5, v4, 4, v5")
    A(f"s_mul_i32 s27, s47, {NK * 32 * pitch}")
    A(f"s_mul_i32 s28, s48, {16 * pitch}")
    A("s_add_u32 s27, s27, s28")
    A("s_lshl_b32 s28, s23, 7")
    A("s_add_u32 s27, s27, s28")
    A("v_add_u32 v5, s27, v5")
    A("v_lshrrev_b32 v7, 4, v1")
    A("v_and_b32 v8, 7, v1")
    A("v_lshlrev_b32 v8, 4, v8")
    A("v_lshl_add_u32 v8, v7, 7, v8")
    A("v_bfe_u32 v9, v1, 3, 1")
    A("v_lshl_add_u32 v6, v9, 9, v8")
    A("s_cmp_eq_u32 s48, 0")
    A("s_cselect_b64 s[50:51], -1, 0")
    A("v_cndmask_b32 v9, v8, v6, s[50:51]")
    A.wait_all(vm=False)
    srd(A, 4, 4, 5, (S * F * 2))
    srd(A, 8, 20, 21, WSZ)
    srd(A, 12, 12, 13, (F if g1 else S) * 2)
    if (not g1) and layer == 1:
        srd(A, 16, 16, 17, XBYTES)
    elif not g1:
        srd_off(A, 16, 20, 21, hex(WS_X2), XBYTES)
    if g1:
        A(f"s_mul_i32 s29, s47, {16 * 28672}")
        A("s_mul_i32 s30, s24, 3584")
        A("s_add_u32 s29, s29, s30")
        A(f"s_add_u32 s29, s29, {hex(WS_X1F + layer * LB)}")
        bstep = 28672
    else:
        A("s_mul_i32 s29, s24, 56")
        A("s_mul_i32 s30, s47, 14")
        A("s_add_u32 s29, s29, s30")
        A("s_mul_i32 s29, s29, 3584")
        A(f"s_add_u32 s29, s29, {hex(WS_UF + layer * LB)}")
        bstep = 3584
    A("s_lshl_b32 s30, s48, 11")
    A("s_add_u32 s29, s29, s30")
    A(f"s_mul_i32 s31, s47, {G_RB}")
    A("s_lshl_b32 s30, s48, 11")
    A("s_add_u32 s49, s31, s30")
    NB = 8
    BR = 112
    toks = {}
    A(f"v_add_u32 v4, {8 * pitch - 1024}, v5")
    USE_ROT = "rotg" in OPT
    ROT = 54
    if USE_ROT:
        A("s_lshr_b32 s34, s2, 3")
        A(f"s_mul_i32 s34, s34, {NK * 2341 if g1 else NK * 2048}")
        A("s_lshr_b32 s34, s34, 16")
        A(f"s_mul_i32 s54, s34, {32 * pitch}")
        A(f"s_mul_i32 s55, s34, {bstep}")
        A("s_add_u32 s55, s55, s29")
        A(f"s_sub_u32 s56, {NK}, s34")
        A(f"s_mov_b32 s57, s34")

    def issue_ops(st, part=None):
        slot = st % G_RING
        b = BR + 8 * (st % NB)

        def fa0():
            A(f"s_add_u32 m0, s49, {slot * 4096}")
            if USE_ROT:
                A(f"s_cmp_le_u32 s56, {st}")
                A(f"s_cselect_b32 s35, {NK * 32 * pitch}, 0")
                A(f"s_add_u32 s32, s54, {st * 32 * pitch}")
                A("s_sub_u32 s32, s32, s35")
            else:
                A(f"s_mov_b32 s32, {st * 32 * pitch}")
            A("buffer_load_dwordx4 v5, s[4:7], s32 offen lds")

        def fb0():
            if USE_ROT:
                A(f"s_cmp_le_u32 s56, {st}")
                A(f"s_cselect_b32 s35, {NK * bstep}, 0")
                A(f"s_add_u32 s33, s55, {st * bstep}")
                A("s_sub_u32 s33, s33, s35")
            else:
                A(f"s_add_u32 s33, s29, {st * bstep}")
            A(f"buffer_load_dwordx4 {v(b, 4)}, v6, s[8:11], s33 offen")

        def fa1():
            A("buffer_load_dwordx4 v4, s[4:7], s32 offen offset:1024 lds")

        def fb1():
            toks[st] = A(f"buffer_load_dwordx4 {v(b + 4, 4)}, v9, s[8:11], s33 offen offset:1024")
        if part == "A":
            return [fa0, fa1]
        if part == "B":
            return [fb0, fb1]
        return [fa0, fa1, fb0, fb1]

    if "notouch" not in OPT:
        A("s_lshr_b32 s34, s2, 3")
        A("s_lshl_b32 s34, s34, 3")
        A("s_add_u32 s34, s34, s22")
        A("s_and_b32 s37, s2, 1")
        if g1:
            A("s_lshl_b32 s35, s34, 5")
        else:
            A("s_mul_i32 s35, s34, 25")
        A("v_add_u32 v10, s35, v1")
        if g1:
            div_const(A, "v12", "v10", 112, 38, rng=7200)
            A("v_mul_u32_u24 v13, 112, v12")
            A("v_sub_u32 v13, v10, v13")
            A("v_mul_u32_u24 v12, 28672, v12")
            A("v_lshl_add_u32 v12, v13, 7, v12")
            A("s_mul_i32 s37, s37, 14336")
            A(f"s_add_u32 s37, s37, {hex(WS_X1F + layer * LB)}")
        else:
            A("v_lshlrev_b32 v12, 7, v10")
            A("s_mul_i32 s37, s37, 802816")
            A(f"s_add_u32 s37, s37, {hex(WS_UF + layer * LB)}")
        exec_lanes(A, 32 if g1 else 25)
        A.touch("buffer_load_dword v99, v12, s[8:11], s37 offen")
        exec_lanes(A, 64)
    def stats_loads():
        A("v_lshrrev_b32 v10, 2, v1")
        A("v_lshlrev_b32 v10, 7, v10")
        A("v_and_b32 v11, 3, v1")
        A("v_lshl_add_u32 v10, v11, 4, v10")
        A("s_lshl_b32 s34, s22, 11")
        A(f"s_add_u32 s34, s34, {hex(WS_ST + (0 if layer == 0 else 2) * 16384)}")
        A("buffer_load_dwordx4 v[16:19], v10, s[8:11], s34 offen")
        A("buffer_load_dwordx4 v[20:23], v10, s[8:11], s34 offen offset:64")

    if g1 and not pers:
        stats_loads()
    PRE0 = G_PRE0
    PRE = 7
    F2 = (fused and not g1) or pers
    if F2:
        PRE0 = PRE
        PREA = G_PREA
        for st in range(PREA):
            for f in issue_ops(st, "A"):
                f()
    else:
        for st in range(PRE0):
            for f in issue_ops(st):
                f()
    EP = 100
    if g1:
        A("s_lshr_b32 s36, s47, 1")
        A("s_lshl_b32 s37, s23, 7")
        A("s_lshl_b32 s38, s36, 6")
        A("s_add_u32 s37, s37, s38")
        A("v_lshlrev_b32 v33, 3, v7")
        A(f"buffer_load_dwordx2 {v(EP, 2)}, v33, s[12:15], s37 offen")
        A(f"buffer_load_dwordx2 {v(EP + 2, 2)}, v33, s[12:15], s37 offen offset:32")

    def g2_early():
        A("s_lshl_b32 s36, s23, 2")
        A("s_add_u32 s36, s36, s47")
        A("s_mul_i32 s37, s36, 14336")
        A("s_mul_i32 s38, s24, 1792")
        A("s_add_u32 s37, s37, s38")
        A("s_lshl_b32 s38, s48, 10")
        A("s_add_u32 s37, s37, s38")
        A(f"s_add_u32 s37, s37, {hex(WS_X1T + layer * LB)}")
        A("v_and_b32 v33, 15, v1")
        A("v_lshlrev_b32 v35, 3, v33")
        A("v_lshl_add_u32 v35, v7, 7, v35")
        for k in range(2):
            A(f"buffer_load_dwordx2 {v(EP + 2 * k, 2)}, v35, s[8:11], s37 offen offset:{k * 512}")
        A("s_lshl_b32 s38, s36, 5")
        A("v_lshlrev_b32 v36, 1, v33")
        A(f"buffer_load_ushort v{EP + 4}, v36, s[12:15], s38 offen")
    if (not g1) and not F2:
        g2_early()
    if F2:
        if g1:
            A(f"s_mov_b32 s34, {hex(C3(layer))}")
            A("v_lshlrev_b32 v10, 7, v1")
            await_cnt(A, 8, 34, 10, 8, 28)
            stats_loads()
        else:
            A("s_lshl_b32 s34, s24, 7")
            A(f"s_add_u32 s34, s34, {hex(C4(layer))}")
            A("v_mov_b32 v10, 0")
            await_cnt(A, 8, 34, 10, 1, 28)
        for st in range(PRE0):
            for f in issue_ops(st, "B" if st < PREA else None):
                f()
            if st == 0 and "nofb" not in OPT:
                A("s_barrier")
        if not g1:
            g2_early()
    A.stamp(1)
    A("v_bfe_u32 v12, v1, 2, 2")
    A("v_and_b32 v13, 3, v1")
    A("v_and_b32 v14, 1, v7")
    A("v_lshlrev_b32 v15, 2, v7")
    A("v_add_u32 v15, v15, v12")
    A("v_lshlrev_b32 v15, 7, v15")
    A("v_lshl_add_u32 v15, v13, 3, v15")
    A("v_add_u32 v15, s31, v15")
    A("v_lshrrev_b32 v32, 1, v12")
    A("v_lshl_add_u32 v32, v14, 1, v32")
    for mt in range(4):
        A(f"v_xor_b32 v33, {mt}, v32")
        A(f"v_lshl_add_u32 v{36 + mt}, v33, 5, v15")
    if g1:
        for i in range(4):
            sm, sq = 16 + i, 20 + i
            A(f"v_mul_f32 v{sm}, {hexf(1.0 / 448)}, v{sm}")
            A(f"v_mul_f32 v{sq}, {hexf(1.0 / 448)}, v{sq}")
            A(f"v_fma_f32 v{sq}, -v{sm}, v{sm}, v{sq}")
            A(f"v_max_f32 v{sq}, 0, v{sq}")
            A(f"v_add_f32 v34, {hexf(1e-5)}, v{sq}")
            A("v_rcp_f32 v34, v34")
            A(f"v_mul_f32 v35, v{sq}, v34")
            A(f"v_add_f32 v35, {hexf(1e-5)}, v35")
            A("v_rcp_f32 v35, v35")
            A("v_mul_f32 v34, v34, v35")
            A(f"v_sqrt_f32 v{sq}, v34")
            A(f"v_mul_f32 v{sm}, -v{sm}, v{sq}")
        A("v_lshlrev_b32 v34, 4, v1")
        A("s_lshl_b32 s34, s22, 10")
        A(f"s_add_u32 s34, s34, {G_TAB}")
        A("v_add_u32 v34, s34, v34")
        A("ds_write_b128 v34, v[20:23]")
        A("ds_write_b128 v34, v[16:19] offset:8192")
        A("v_lshlrev_b32 v35, 4, v7")
        A("s_lshl_b32 s34, s47, 11")
        A(f"s_add_u32 s34, s34, {G_TAB}")
        A("v_add_u32 v35, s34, v35")
    AFR = [0, 16]
    ACC = 32
    BN = [40, 48]
    AB = [56, 72]
    TMP = 88

    def a_reads(st):
        slot = st % G_RING
        buf = st & 1
        if "nolds" in OPT and st > 1:
            return []
        return [(lambda mt=mt, t=t: A(f"ds_read_b64_tr_b16 {a(AFR[buf] + 4 * mt + 2 * t, 2)}, v{36 + mt} "
                                      f"offset:{slot * 4096 + t * 2048}")) for mt in range(4) for t in range(2)]

    def ab_reads(st):
        buf = st & 1
        ops = []
        if "nolds" in OPT and st > 1:
            return []

        if USE_ROT:
            def addr():
                A(f"s_add_u32 s46, s57, {st}")
                A("s_and_b32 s46, s46, 15")
                A("s_lshl_b32 s46, s46, 7")
                A(f"v_add_u32 v{96 + buf}, s46, v35")
            ops.append(addr)
            for t in range(2):
                ops.append(lambda t=t: A(f"ds_read_b128 {v(AB[buf] + 4 * t, 4)}, v{96 + buf} offset:{t * 64}"))
                ops.append(lambda t=t: A(f"ds_read_b128 {v(AB[buf] + 8 + 4 * t, 4)}, v{96 + buf} offset:{8192 + t * 64}"))
            return ops
        for t in range(2):
            ops.append(lambda t=t: A(f"ds_read_b128 {v(AB[buf] + 4 * t, 4)}, v35 offset:{st * 128 + t * 64}"))
            ops.append(lambda t=t: A(f"ds_read_b128 {v(AB[buf] + 8 + 4 * t, 4)}, v35 offset:{8192 + st * 128 + t * 64}"))
        return ops

    def norm_ops(st):
        buf = st & 1
        b = BR + 8 * (st % NB)
        ops = []
        if "nonorm" in OPT:
            return [(lambda d=d: A(f"v_mov_b32 v{BN[buf] + d}, v{b + d}")) for d in range(8)]
        for nt in range(2):
            for dp in range(2):
                d0, d1 = 2 * dp, 2 * dp + 1
                x0, x1 = b + 4 * nt + d0, b + 4 * nt + d1
                tb = TMP + 4 * (dp & 1)
                ops.append(lambda x0=x0, tb=tb: A(f"v_lshlrev_b32 v{tb}, 16, v{x0}"))
                ops.append(lambda x0=x0, tb=tb: A(f"v_and_b32 v{tb + 1}, 0xffff0000, v{x0}"))
                ops.append(lambda x1=x1, tb=tb: A(f"v_lshlrev_b32 v{tb + 2}, 16, v{x1}"))
                ops.append(lambda x1=x1, tb=tb: A(f"v_and_b32 v{tb + 3}, 0xffff0000, v{x1}"))
                for (o, dd) in ((0, d0), (2, d1)):
                    for e in range(2):
                        ops.append(lambda tb=tb, o=o, dd=dd, e=e: A(
                            f"v_fma_f32 v{tb + o + e}, v{tb + o + e}, v{AB[buf] + 2 * dd + e}, v{AB[buf] + 8 + 2 * dd + e}"))
                ops.append(lambda tb=tb, nt=nt, d0=d0: A(f"v_cvt_pk_bf16_f32 v{BN[buf] + 4 * nt + d0}, v{tb}, v{tb + 1}"))
                ops.append(lambda tb=tb, nt=nt, d1=d1: A(f"v_cvt_pk_bf16_f32 v{BN[buf] + 4 * nt + d1}, v{tb + 2}, v{tb + 3}"))
        return ops

    def mfma_ops(st):
        buf = st & 1
        ops = []
        if "nomfma" in OPT and st > 0:
            return [lambda: A("s_nop 0")]
        for nt in range(2):
            for mt in range(4):
                acc = a(ACC + 4 * (2 * mt + nt), 4)
                c = "0" if st == 0 else acc
                if g1:
                    ops.append(lambda acc=acc, c=c, mt=mt, nt=nt: A(
                        f"v_mfma_f32_16x16x32_bf16 {acc}, {a(AFR[buf] + 4 * mt, 4)}, {v(BN[buf] + 4 * nt, 4)}, {c}"))
                else:
                    b = BR + 8 * (st % NB)
                    ops.append(lambda acc=acc, c=c, mt=mt, nt=nt, b=b: A(
                        f"v_mfma_f32_16x16x32_bf16 {acc}, {v(b + 4 * nt, 4)}, {a(AFR[buf] + 4 * mt, 4)}, {c}"))
        return ops

    def sync_op(st):
        def f():
            A.wait_vm(toks[st])
            if "nobar" not in OPT:
                A("s_barrier")
        return f

    def w2_touch_ops():
        def f0():
            A("s_lshr_b32 s44, s2, 3")
            A("s_bfe_u32 s45, s2, 0x20001")
            A("s_lshl_b32 s44, s44, 6")
            A("s_lshl_b32 s46, s22, 3")
            A("s_add_u32 s44, s44, s46")
            A("v_and_b32 v98, 7, v1")
            A("v_add_u32 v98, s44, v98")
            A("v_lshlrev_b32 v98, 12, v98")
            A("v_lshl_add_u32 v98, v3, 7, v98")
            A("s_lshl_b32 s45, s45, 10")
            A("v_add_u32 v98, s45, v98")
            srd(A, 92, 92, 93, S * F * 2)

        def f1():
            A.touch("buffer_load_dword v99, v98, s[92:95], 0 offen")
        return [f0, f1]

    next_issue = PRE0
    A.stamp(5)
    A.wait_vm(toks[0])
    A.wait_all(vm=False)
    A.stamp(6)
    A("s_barrier")
    A.stamp(7)
    if "rtg" in OPT:
        rtp(A, f"g{which}loop0")
    for f in a_reads(0):
        f()
    if g1:
        for f in ab_reads(0) + ab_reads(1):
            f()
        for f in norm_ops(0):
            f()
    SPD = G_SP
    synced = 0
    for st in range(NK):
        vm = []
        n_iss = 0
        issued_before = next_issue - 1
        while next_issue < NK and next_issue <= st + PRE and n_iss < 2:
            if F2 and next_issue < PREA:
                vm += issue_ops(next_issue, "B")
            else:
                vm += issue_ops(next_issue)
            next_issue += 1
            n_iss += 1
        lds = []
        if st + 1 < NK:
            if st + 1 > synced:
                tgt = min(NK - 1, st + SPD, issued_before)
                lds += [sync_op(tgt)]
                synced = tgt
            lds += a_reads(st + 1)
        va = norm_ops(st + 1) if (g1 and st + 1 < NK) else []
        ab = ab_reads(st + 2) if (g1 and st + 2 < NK) else []
        if g1 and PREFETCH and (not fused) and st == NK - PRE + 1:
            vm += w2_touch_ops()
        seq = lds + sprinkle(va + ab, vm)
        interleave(mfma_ops(st), seq)
    A.stamp(2)
    PBASE = 0 if g1 else 5 * 4096

    def owner(mt, nt):
        if g1:
            return (2 * (mt >> 1) + nt, mt & 1)
        return (mt, nt)
    A("v_lshlrev_b32 v34, 4, v1")
    A("s_lshl_b32 s35, s48, 13")
    A("s_add_u32 s34, s31, s35")
    A(f"s_add_u32 s34, s34, {PBASE}")
    A("v_add_u32 v33, s34, v34")
    for mt in range(4):
        for nt in range(2):
            o, k = owner(mt, nt)
            A(f"ds_write_b128 v33, {a(ACC + 4 * (2 * mt + nt), 4)} offset:{(o * 2 + k) * 1024}")
    A.wait_all(vm=False)
    A("s_barrier")
    A("s_lshl_b32 s34, s47, 11")
    A("s_add_u32 s34, s34, s35")
    A(f"s_add_u32 s34, s34, {PBASE}")
    A("v_add_u32 v33, s34, v34")
    A(f"v_add_u32 v35, {2 * G_RB}, v33")
    RD = 40
    for k in range(2):
        for src in range(4):
            A(f"ds_read_b128 {v(RD + 8 * src + 4 * k, 4)}, v{33 if src < 2 else 35} offset:{(src & 1) * G_RB + k * 1024}")
    for k in range(2):
        for r in range(4):
            A(f"v_add_f32 v{RD + 4 * k + r}, v{RD + 4 * k + r}, v{RD + 8 + 4 * k + r}")
            A(f"v_add_f32 v{RD + 16 + 4 * k + r}, v{RD + 16 + 4 * k + r}, v{RD + 24 + 4 * k + r}")
        for r in range(4):
            A(f"v_add_f32 v{RD + 4 * k + r}, v{RD + 4 * k + r}, v{RD + 16 + 4 * k + r}")
    A.stamp(3)
    if "rtg" in OPT:
        rtp(A, f"g{which}red")
    if g1:
        for m in range(2):
            for hlf in range(2):
                A(f"v_lshlrev_b32 v{76 + 4 * m + 2 * hlf}, 16, v{EP + 2 * m + hlf}")
                A(f"v_and_b32 v{77 + 4 * m + 2 * hlf}, 0xffff0000, v{EP + 2 * m + hlf}")
        c1 = -2.0 * 1.4426950408889634 * 0.7978845608028654
        c3 = c1 * 0.044715
        A(f"s_mov_b32 s39, {hexf(c1)}")
        A(f"s_mov_b32 s40, {hexf(c3)}")
        A("v_mov_b32 v84, s39")
        for m in range(2):
            for r in range(4):
                x = RD + 4 * m + r
                t = 85 + (r & 1)
                A(f"v_add_f32 v{x}, v{x}, v{76 + 4 * m + r}")
                A(f"v_mul_f32 v{t}, v{x}, v{x}")
                A(f"v_fma_f32 v{t}, v{t}, s40, v84")
                A(f"v_mul_f32 v{t}, v{t}, v{x}")
                A(f"v_exp_f32 v{t}, v{t}")
                A(f"v_add_f32 v{t}, 1.0, v{t}")
                A(f"v_rcp_f32 v{t}, v{t}")
                A(f"v_mul_f32 v{x}, v{x}, v{t}")
        for m in range(2):
            for hlf in range(2):
                A(f"v_cvt_pk_bf16_f32 v{88 + 2 * m + hlf}, v{RD + 4 * m + 2 * hlf}, v{RD + 4 * m + 2 * hlf + 1}")
        A("s_mul_i32 s41, s24, 56")
        A("s_lshl_b32 s42, s23, 1")
        A("s_add_u32 s41, s41, s42")
        A("s_add_u32 s41, s41, s36")
        A("s_mul_i32 s41, s41, 3584")
        A(f"s_add_u32 s41, s41, {hex(WS_UF + layer * LB)}")
        A("s_and_b32 s42, s47, 1")
        A("s_lshl_b32 s43, s48, 1")
        A("s_add_u32 s42, s42, s43")
        A("s_lshl_b32 s43, s42, 10")
        A("s_add_u32 s41, s41, s43")
        A("s_cmp_eq_u32 s42, 3")
        A("s_cselect_b32 s44, 0x00ff00ff, -1")
        A("s_mov_b32 s45, s44")
        A("s_mov_b64 exec, s[44:45]")
        A("buffer_store_dwordx4 v[88:91], v6, s[8:11], s41 offen")
        A("s_mov_b64 exec, -1")
    else:
        A("v_and_b32 v33, 15, v1")
        A(f"v_lshlrev_b32 v76, 16, v{EP + 4}")
        for k in range(2):
            for hlf in range(2):
                x = EP + 2 * k + hlf
                A(f"v_lshlrev_b32 v77, 16, v{x}")
                A(f"v_and_b32 v78, 0xffff0000, v{x}")
                y = RD + 4 * k + 2 * hlf
                A(f"v_add_f32 v{y}, v{y}, v76")
                A(f"v_add_f32 v{y + 1}, v{y + 1}, v76")
                A(f"v_add_f32 v{y}, v{y}, v77")
                A(f"v_add_f32 v{y + 1}, v{y + 1}, v78")
                A(f"v_cvt_pk_bf16_f32 v{88 + 2 * k + hlf}, v{y}, v{y + 1}")
        if layer == 0:
            A("s_cmp_eq_u32 s48, 0")
            A("s_cselect_b32 s45, -1, 0")
            A("s_mov_b32 s44, -1")
            A("v_cndmask_b32 v92, 0, v90, s[44:45]")
            A("v_cndmask_b32 v93, 0, v91, s[44:45]")
            A("v_mov_b32 v77, 0x3f803f80")
            A("v_mov_b32 v78, 0")
            A("v_mov_b32 v79, 0")
            for x in [88, 89, 92, 93]:
                A(f"v_dot2_f32_bf16 v78, v{x}, v77, v78")
                A(f"v_dot2_f32_bf16 v79, v{x}, v{x}, v79")
            reduce_groups(A, 78, 80)
            reduce_groups(A, 79, 81)
            A("v_cmp_gt_u32 vcc, 16, v1")
            A("v_cndmask_b32 v80, v79, v78, vcc")
            A("v_lshlrev_b32 v81, 2, v1")
            A("s_lshl_b32 s39, s36, 7")
            A(f"s_add_u32 s39, s39, {hex(WS_ST + 16384)}")
            exec_lanes(A, 32)
            A("buffer_atomic_add_f32 v80, v81, s[8:11], s39 offen")
            exec_lanes(A, 64)
        SP = 80
        A("s_lshl_b32 s40, s22, 11")
        A(f"s_add_u32 s40, s40, {G_TAB}")
        A(f"v_mul_u32_u24 v36, {SP}, v33")
        A("v_lshl_add_u32 v36, v7, 3, v36")
        A("v_add_u32 v36, s40, v36")
        for k in range(2):
            A(f"ds_write_b64 v36, {v(88 + 2 * k, 2)} offset:{32 * k}")
        A("v_lshrrev_b32 v37, 2, v1")
        A("v_and_b32 v38, 3, v1")
        A(f"v_mul_u32_u24 v39, {SP}, v37")
        A("v_lshl_add_u32 v39, v38, 4, v39")
        A("v_add_u32 v39, s40, v39")
        A("ds_read_b128 v[92:95], v39")
        if layer == 1:
            A("s_lshl_b32 s39, s36, 4")
            A("s_mul_i32 s39, s39, 896")
            A("s_mul_i32 s41, s24, 112")
            A("s_add_u32 s39, s39, s41")
            A("s_lshl_b32 s41, s48, 6")
            A("s_add_u32 s39, s39, s41")
            A("v_mul_u32_u24 v37, 896, v37")
            A("v_lshl_add_u32 v37, v38, 4, v37")
        else:
            A("s_lshl_b32 s39, s36, 3")
            A("s_add_u32 s39, s39, s24")
            A("s_mul_i32 s39, s39, 1792")
            A("s_lshl_b32 s41, s48, 10")
            A("s_add_u32 s39, s39, s41")
            A("s_lshl_b32 s41, s48, 4")
            A("s_sub_u32 s41, 64, s41")
            A("v_mul_lo_u32 v37, v37, s41")
            A("v_lshl_add_u32 v37, v38, 4, v37")
        A("s_cmp_eq_u32 s48, 0")
        A("s_cselect_b32 s44, -1, 0x77777777")
        A("s_mov_b32 s45, s44")
        A("s_mov_b64 exec, s[44:45]")
        A("buffer_store_dwordx4 v[92:95], v37, s[16:19], s39 offen")
        A("s_mov_b64 exec, -1")
    if (fused or pers) and g1:
        A("s_lshl_b32 s34, s24, 7")
        A(f"s_add_u32 s34, s34, {hex(C4(layer))}")
        publish(A, 8, 34)
        if pers:
            A.raw(f"L_{name}_skip:")
        return None
    if pers:
        if layer == 0:
            A("s_lshr_b32 s34, s23, 1")
            A("s_lshl_b32 s34, s34, 7")
            A(f"s_add_u32 s34, s34, {hex(C5)}")
            publish(A, 8, 34)
        return None
    A.stamp(4)
    A.dump_stamps(STAMP_WG)
    kernel_end(A, name)
    return G_LDS, 512, 256, 176


def g1v2(A, name, layer, pers=False):
    NK = 8
    pitch = 3584
    R = 4
    if pers:
        phase_begin(A)
        A("s_cmp_ge_u32 s2, 224")
        A(f"s_cbranch_scc1 L_{name}_skip")
    else:
        kernel_begin(A, name, 224)
    A(f"s_load_dwordx2 s[20:21], s[0:1], {KA_WS}")
    A(f"s_load_dwordx2 s[4:5], s[0:1], {KA_W1}")
    A(f"s_load_dwordx2 s[12:13], s[0:1], {KA_B1}")
    A("v_and_b32 v1, 63, v0")
    A("v_lshrrev_b32 v2, 6, v0")
    A("v_readfirstlane_b32 s22, v2")
    A("s_and_b32 s25, s2, 7")
    A("s_lshr_b32 s26, s2, 3")
    A("s_and_b32 s24, s25, 1")
    A("s_lshl_b32 s24, s24, 2")
    A("s_and_b32 s27, s26, 3")
    A("s_add_u32 s24, s24, s27")
    A("s_lshr_b32 s23, s25, 1")
    A("s_mul_i32 s23, s23, 7")
    A("s_lshr_b32 s27, s26, 2")
    A("s_add_u32 s23, s23, s27")
    A("v_lshrrev_b32 v3, 3, v1")
    A("v_bfe_u32 v4, v1, 4, 2")
    A("v_lshlrev_b32 v4, 1, v4")
    A("v_and_b32 v5, 7, v1")
    A("v_xor_b32 v4, v4, v5")
    A(f"v_mul_u32_u24 v5, {pitch}, v3")
    A("v_lshl_add_u32 v5, v4, 4, v5")
    A(f"s_mul_i32 s27, s22, {NK * 32 * pitch}")
    A("s_lshl_b32 s28, s23, 7")
    A("s_add_u32 s27, s27, s28")
    A("v_add_u32 v5, s27, v5")
    for q in range(1, 4):
        A(f"v_add_u32 v{23 + q}, {q * (8 * pitch - 1024)}, v5")
    A("v_lshrrev_b32 v7, 4, v1")
    A("v_and_b32 v8, 7, v1")
    A("v_lshlrev_b32 v8, 4, v8")
    A("v_lshl_add_u32 v8, v7, 7, v8")
    A("v_bfe_u32 v9, v1, 3, 1")
    A("v_lshl_add_u32 v6, v9, 9, v8")
    A.wait_all(vm=False)
    srd(A, 4, 4, 5, S * F * 2)
    srd(A, 8, 20, 21, WSZ)
    srd(A, 12, 12, 13, F * 2)
    A(f"s_mul_i32 s29, s22, {NK * 28672}")
    A("s_mul_i32 s30, s24, 3584")
    A("s_add_u32 s29, s29, s30")
    A(f"s_add_u32 s29, s29, {hex(WS_X1F + layer * LB)}")
    A("s_lshl_b32 s31, s22, 14")
    NB = 4
    BR = 112
    toks = {}
    tokA = {}

    def a_ops(st):
        slot = st % R

        def f0():
            A(f"s_add_u32 m0, s31, {slot * 4096}")
            A(f"s_mov_b32 s32, {st * 32 * pitch}")
            A("buffer_load_dwordx4 v5, s[4:7], s32 offen lds")
        ops = [f0]
        for q in range(1, 4):
            def fq(q=q):
                tokA[st] = A(f"buffer_load_dwordx4 v{23 + q}, s[4:7], s32 offen offset:{1024 * q} lds")
            ops.append(fq)
        return ops

    def b_ops(st):
        b = BR + 16 * (st % NB)

        def f0():
            A(f"s_add_u32 s33, s29, {st * 28672}")
            A(f"buffer_load_dwordx4 {v(b, 4)}, v6, s[8:11], s33 offen")
        ops = [f0]
        for nt in range(1, 3):
            ops.append(lambda nt=nt: A(f"buffer_load_dwordx4 {v(b + 4 * nt, 4)}, v6, s[8:11], s33 offen offset:{1024 * nt}"))

        def f3():
            toks[st] = A(f"buffer_load_dwordx4 {v(b + 12, 4)}, v8, s[8:11], s33 offen offset:3072")
        ops.append(f3)
        return ops

    PRE = 4
    PA = 3
    for st in range(R):
        for f in a_ops(st):
            f()
    EP = 28
    A("s_lshr_b32 s36, s22, 2")
    A("s_lshl_b32 s37, s23, 7")
    A("s_lshl_b32 s38, s36, 6")
    A("s_add_u32 s37, s37, s38")
    A("v_lshlrev_b32 v33, 3, v7")
    A(f"buffer_load_dwordx2 {v(EP, 2)}, v33, s[12:15], s37 offen")
    A(f"buffer_load_dwordx2 {v(EP + 2, 2)}, v33, s[12:15], s37 offen offset:32")
    if pers:
        A(f"s_mov_b32 s34, {hex(C3(layer))}")
        A("v_lshlrev_b32 v10, 7, v1")
        await_cnt(A, 8, 34, 10, 8, 28)
    A("v_lshrrev_b32 v10, 2, v1")
    A("v_lshlrev_b32 v10, 7, v10")
    A("v_and_b32 v11, 3, v1")
    A("v_lshl_add_u32 v10, v11, 4, v10")
    A("s_lshl_b32 s34, s22, 11")
    A(f"s_add_u32 s34, s34, {hex(WS_ST + (0 if layer == 0 else 2) * 16384)}")
    A("buffer_load_dwordx4 v[16:19], v10, s[8:11], s34 offen")
    A("buffer_load_dwordx4 v[20:23], v10, s[8:11], s34 offen offset:64")
    for st in range(PRE):
        for f in b_ops(st):
            f()
    A("v_bfe_u32 v12, v1, 2, 2")
    A("v_and_b32 v13, 3, v1")
    A("v_and_b32 v14, 1, v7")
    A("v_lshlrev_b32 v15, 2, v7")
    A("v_add_u32 v15, v15, v12")
    A("v_lshlrev_b32 v15, 7, v15")
    A("v_lshl_add_u32 v15, v13, 3, v15")
    A("v_add_u32 v15, s31, v15")
    A("v_lshrrev_b32 v32, 1, v12")
    A("v_lshl_add_u32 v32, v14, 1, v32")
    for mt in range(4):
        A(f"v_xor_b32 v33, {mt}, v32")
        A(f"v_lshl_add_u32 v{36 + mt}, v33, 5, v15")
    for i in range(4):
        sm, sq = 16 + i, 20 + i
        A(f"v_mul_f32 v{sm}, {hexf(1.0 / 448)}, v{sm}")
        A(f"v_mul_f32 v{sq}, {hexf(1.0 / 448)}, v{sq}")
        A(f"v_fma_f32 v{sq}, -v{sm}, v{sm}, v{sq}")
        A(f"v_max_f32 v{sq}, 0, v{sq}")
        A(f"v_add_f32 v34, {hexf(1e-5)}, v{sq}")
        A("v_rcp_f32 v34, v34")
        A(f"v_mul_f32 v35, v{sq}, v34")
        A(f"v_add_f32 v35, {hexf(1e-5)}, v35")
        A("v_rcp_f32 v35, v35")
        A("v_mul_f32 v34, v34, v35")
        A(f"v_sqrt_f32 v{sq}, v34")
        A(f"v_mul_f32 v{sm}, -v{sm}, v{sq}")
    TABW = 8 * 16384
    A("v_lshlrev_b32 v34, 4, v1")
    A("s_lshl_b32 s34, s22, 11")
    A(f"s_add_u32 s34, s34, {TABW}")
    A("v_add_u32 v34, s34, v34")
    A("ds_write_b128 v34, v[20:23]")
    A("ds_write_b128 v34, v[16:19] offset:1024")
    A("v_lshlrev_b32 v35, 4, v7")
    A("v_add_u32 v35, s34, v35")
    AF = 0
    ACC = 16
    BN = [40, 56]
    AB = [72, 88]
    AB = [72, 176 - 0]
    AB = [72, 16]
    AB = [72, 88]
    EP2 = 104
    for r in range(4):
        pass
    TMP = 104

    def a_reads(st, mt):
        slot = st % R
        return [(lambda t=t: A(f"ds_read_b64_tr_b16 {a(AF + 4 * mt + 2 * t, 2)}, v{36 + mt} offset:{slot * 4096 + t * 2048}"))
                for t in range(2)]

    def ab_reads(st):
        buf = st & 1
        ops = []
        for t in range(2):
            ops.append(lambda t=t: A(f"ds_read_b128 {v(AB[buf] + 4 * t, 4)}, v35 offset:{st * 128 + t * 64}"))
            ops.append(lambda t=t: A(f"ds_read_b128 {v(AB[buf] + 8 + 4 * t, 4)}, v35 offset:{1024 + st * 128 + t * 64}"))
        return ops

    def norm_ops(st):
        buf = st & 1
        b = BR + 16 * (st % NB)
        ops = []
        for nt in range(4):
            for dp in range(2):
                d0, d1 = 2 * dp, 2 * dp + 1
                x0, x1 = b + 4 * nt + d0, b + 4 * nt + d1
                tb = TMP + 4 * (dp & 1)
                ops.append(lambda x0=x0, tb=tb: A(f"v_lshlrev_b32 v{tb}, 16, v{x0}"))
                ops.append(lambda x0=x0, tb=tb: A(f"v_and_b32 v{tb + 1}, 0xffff0000, v{x0}"))
                ops.append(lambda x1=x1, tb=tb: A(f"v_lshlrev_b32 v{tb + 2}, 16, v{x1}"))
                ops.append(lambda x1=x1, tb=tb: A(f"v_and_b32 v{tb + 3}, 0xffff0000, v{x1}"))
                for (o, dd) in ((0, d0), (2, d1)):
                    for e in range(2):
                        ops.append(lambda tb=tb, o=o, dd=dd, e=e: A(
                            f"v_fma_f32 v{tb + o + e}, v{tb + o + e}, v{AB[buf] + 2 * dd + e}, v{AB[buf] + 8 + 2 * dd + e}"))
                ops.append(lambda tb=tb, nt=nt, d0=d0: A(f"v_cvt_pk_bf16_f32 v{BN[buf] + 4 * nt + d0}, v{tb}, v{tb + 1}"))
                ops.append(lambda tb=tb, nt=nt, d1=d1: A(f"v_cvt_pk_bf16_f32 v{BN[buf] + 4 * nt + d1}, v{tb + 2}, v{tb + 3}"))
        return ops

    def mfma(st, mt, nt):
        buf = st & 1
        acc = a(ACC + 4 * (4 * mt + nt), 4)
        c = "0" if st == 0 else acc
        A(f"v_mfma_f32_16x16x32_bf16 {acc}, {a(AF + 4 * mt, 4)}, {v(BN[buf] + 4 * nt, 4)}, {c}")

    A.wait_vm(tokA[0])
    for mt in range(4):
        for f in a_reads(0, mt):
            f()
    for f in ab_reads(0) + ab_reads(1):
        f()
    for f in norm_ops(0):
        f()
    nextA, nextB = R, PRE
    for st in range(NK):
        va = norm_ops(st + 1) if st + 1 < NK else []
        ab = ab_reads(st + 2) if st + 2 < NK else []
        vm = []
        if nextB < NK and nextB <= st + PRE - 0 and nextB - NB <= st:
            vm += b_ops(nextB)
            nextB += 1
        fill = sprinkle(va + ab, vm)
        k = 0
        tot = len(fill)
        n = 0
        if st + 1 < NK:
            A.wait_vm(tokA[st + 1])
        for mt in range(4):
            for nt in range(4):
                mfma(st, mt, nt)
                n += 1
                while k < (tot * n) // 16:
                    fill[k]()
                    k += 1
            if st + 1 < NK:
                for f in a_reads(st + 1, mt):
                    f()
        if nextA < NK:
            for f in a_ops(nextA):
                f()
            nextA += 1
    A("v_lshlrev_b32 v34, 4, v1")
    A("v_add_u32 v33, s31, v34")
    for mt in range(4):
        for nt in range(4):
            o, kk = 4 * (mt >> 1) + nt, mt & 1
            A(f"ds_write_b128 v33, {a(ACC + 4 * (4 * mt + nt), 4)} offset:{(o * 2 + kk) * 1024}")
    A.wait_all(vm=False)
    A("s_barrier")
    A("s_lshl_b32 s34, s22, 11")
    A("v_add_u32 v33, s34, v34")
    A(f"v_add_u32 v35, {4 * 16384}, v33")
    RD = 40
    for r in range(4):
        A(f"v_mov_b32 v{108 + r}, v{EP + r}")
    for kk in range(2):
        for src in range(8):
            A(f"ds_read_b128 {v(RD + 8 * src + 4 * kk, 4)}, v{33 if src < 4 else 35} offset:{(src & 3) * 16384 + kk * 1024}")
    for kk in range(2):
        for step in (1, 2, 4):
            for base in range(0, 8, 2 * step):
                for r in range(4):
                    x, y = RD + 8 * base + 4 * kk + r, RD + 8 * (base + step) + 4 * kk + r
                    A(f"v_add_f32 v{x}, v{x}, v{y}")
    for m in range(2):
        for hlf in range(2):
            A(f"v_lshlrev_b32 v{112 + 4 * m + 2 * hlf}, 16, v{108 + 2 * m + hlf}")
            A(f"v_and_b32 v{113 + 4 * m + 2 * hlf}, 0xffff0000, v{108 + 2 * m + hlf}")
    c1 = -2.0 * 1.4426950408889634 * 0.7978845608028654
    c3 = c1 * 0.044715
    A(f"s_mov_b32 s39, {hexf(c1)}")
    A(f"s_mov_b32 s40, {hexf(c3)}")
    A("v_mov_b32 v120, s39")
    for m in range(2):
        for r in range(4):
            x = RD + 4 * m + r
            t = 121 + (r & 1)
            A(f"v_add_f32 v{x}, v{x}, v{112 + 4 * m + r}")
            A(f"v_mul_f32 v{t}, v{x}, v{x}")
            A(f"v_fma_f32 v{t}, v{t}, s40, v120")
            A(f"v_mul_f32 v{t}, v{t}, v{x}")
            A(f"v_exp_f32 v{t}, v{t}")
            A(f"v_add_f32 v{t}, 1.0, v{t}")
            A(f"v_rcp_f32 v{t}, v{t}")
            A(f"v_mul_f32 v{x}, v{x}, v{t}")
    for m in range(2):
        for hlf in range(2):
            A(f"v_cvt_pk_bf16_f32 v{124 + 2 * m + hlf}, v{RD + 4 * m + 2 * hlf}, v{RD + 4 * m + 2 * hlf + 1}")
    A("s_mul_i32 s41, s24, 56")
    A("s_lshl_b32 s42, s23, 1")
    A("s_add_u32 s41, s41, s42")
    A("s_add_u32 s41, s41, s36")
    A("s_mul_i32 s41, s41, 3584")
    A(f"s_add_u32 s41, s41, {hex(WS_UF + layer * LB)}")
    A("s_and_b32 s42, s22, 3")
    A("s_lshl_b32 s43, s42, 10")
    A("s_add_u32 s41, s41, s43")
    A("s_cmp_eq_u32 s42, 3")
    A("s_cselect_b32 s44, 0x00ff00ff, -1")
    A("s_mov_b32 s45, s44")
    A("s_mov_b64 exec, s[44:45]")
    A("buffer_store_dwordx4 v[124:127], v6, s[8:11], s41 offen")
    A("s_mov_b64 exec, -1")
    if pers:
        A("s_lshl_b32 s34, s24, 7")
        A(f"s_add_u32 s34, s34, {hex(C4(layer))}")
        publish(A, 8, 34)
        A.raw(f"L_{name}_skip:")
        return None
    kernel_end(A, name)
    return G_LDS, 512, 256, 176


K1_XP = 16384
K1_WP = 64 * 192
K1_SLOT = K1_XP + K1_WP
K1_NS = 5
K1_MISC = K1_NS * K1_SLOT
K1_CSUM = K1_MISC
K1_TOK = K1_MISC + 1024
K1_LDS = K1_MISC + 1024 + 2048
K1_EX = 2 * K1_SLOT


def k1(A, name, layer, pers=False):
    L0 = layer == 0
    if pers:
        phase_begin(A)
    else:
        kernel_begin(A, name, 256)
        A.stamp_base = 70
        A.stamp(0)
    if L0:
        A(f"s_load_dwordx2 s[4:5], s[0:1], {KA_X}")
        A(f"s_load_dwordx2 s[8:9], s[0:1], {KA_WQKV}")
    A(f"s_load_dwordx2 s[20:21], s[0:1], {KA_WS}")
    A("v_and_b32 v1, 63, v0")
    A("v_lshrrev_b32 v2, 6, v0")
    A("v_readfirstlane_b32 s22, v2")
    A("s_lshr_b32 s23, s2, 4")
    A("s_and_b32 s24, s2, 15")
    A("s_and_b32 s47, s22, 3")
    A("s_lshr_b32 s48, s22, 2")
    A("s_lshl_b32 s25, s23, 7")
    A("s_lshl_b32 s26, s47, 5")
    A("s_add_u32 s49, s25, s26")
    A("s_lshl_b32 s26, s48, 4")
    A("s_add_u32 s25, s49, s26")
    A("s_mul_i32 s25, s25, 896")
    A("v_lshrrev_b32 v16, 3, v1")
    A("v_mul_u32_u24 v16, 896, v16")
    A("v_lshrrev_b32 v17, 4, v1")
    A("v_and_b32 v18, 7, v1")
    A("v_xor_b32 v19, v18, v17")
    A("v_lshl_add_u32 v2, v19, 4, v16")
    A("v_xor_b32 v19, 4, v19")
    A("v_lshl_add_u32 v3, v19, 4, v16")
    A("v_add_u32 v2, s25, v2")
    A("v_add_u32 v3, s25, v3")
    A(f"v_add_u32 v3, {8 * 896 - 1024}, v3")
    if not L0:
        A("v_lshrrev_b32 v16, 3, v1")
        A("v_lshrrev_b32 v17, 4, v1")
        A("v_and_b32 v18, 7, v1")
        A("v_xor_b32 v60, v18, v17")
        A("v_xor_b32 v61, 4, v60")
        A("v_lshlrev_b32 v62, 6, v16")
        A("v_mul_u32_u24 v63, 48, v16")
        A("v_add_u32 v63, 960, v63")
        A("v_add_u32 v6, 512, v62")
        A("v_add_u32 v7, 384, v63")
        A("s_lshl_b32 s59, s23, 3")
        A("s_lshl_b32 s26, s47, 1")
        A("s_add_u32 s59, s59, s26")
        A("s_add_u32 s59, s59, s48")
        A("s_mul_i32 s59, s59, 14336")
        A("s_add_u32 s59, s59, 4096")
        A("s_sub_u32 s60, s59, 1024")
    if L0:
        A("s_lshl_b32 s26, s22, 3")
        A("s_mul_i32 s26, s26, 2688")
        A("s_mul_i32 s27, s24, 56")
        A("s_add_u32 s26, s26, s27")
        for i in range(2):
            A(f"v_add_u32 v16, {64 * i}, v1")
            div_const(A, "v17", "v16", 12, 27)
            A("v_mul_u32_u24 v18, 12, v17")
            A("v_sub_u32 v18, v16, v18")
            A("v_mul_u32_u24 v17, 2688, v17")
            A("v_lshrrev_b32 v19, 2, v18")
            A("v_mul_u32_u24 v19, 896, v19")
            A("v_and_b32 v18, 3, v18")
            A("v_lshl_add_u32 v17, v18, 4, v17")
            A("v_add_u32 v17, v17, v19")
            A(f"v_add_u32 v{4 + i}, s26, v17")
        A("v_subrev_u32 v5, 1024, v5")
        wstep = 64 * 2688
    else:
        A("s_mul_i32 s26, s24, 86016")
        A("s_mul_i32 s27, s22, 1536")
        A("s_add_u32 s26, s26, s27")
        A("v_lshlrev_b32 v4, 4, v1")
        A("v_add_u32 v4, s26, v4")
        A("v_mov_b32 v5, v4")
        wstep = 12288
    A.wait_all(vm=False)
    if L0:
        srd(A, 4, 4, 5, XBYTES)
        srd(A, 8, 8, 9, D * 3 * D * 2)
    else:
        srd_off(A, 4, 20, 21, hex(WS_X2 - 4096), XBYTES + 4096)
        srd_off(A, 8, 20, 21, hex(WS_WC), 16 * 86016)
    srd(A, 12, 20, 21, WSZ)
    A("s_lshl_b32 s28, s47, 12")
    A("s_lshl_b32 s29, s48, 11")
    A("s_add_u32 s28, s28, s29")
    A("s_mul_i32 s29, s22, 1536")
    A(f"s_add_u32 s29, s29, {K1_XP}")
    tokq = {}
    ROT = 52
    A("s_add_u32 s35, s23, s24")
    A("s_mul_i32 s34, s35, 9363")
    A("s_lshr_b32 s34, s34, 16")
    A("s_mul_i32 s34, s34, 7")
    A("s_sub_u32 s34, s35, s34")
    if "norot" in OPT:
        A("s_mov_b32 s34, 0")
    for q in range(7):
        A(f"s_add_u32 s{ROT + q}, s34, {q}")
        A(f"s_cmp_ge_u32 s{ROT + q}, 7")
        A("s_cselect_b32 s35, 7, 0")
        A(f"s_sub_u32 s{ROT + q}, s{ROT + q}, s35")

    def dma_ops(p):
        slot = (p % K1_NS) * K1_SLOT

        def f0():
            A(f"s_add_u32 m0, s28, {slot}")
            if L0:
                A(f"s_lshl_b32 s30, s{ROT + p}, 7")
                A("buffer_load_dwordx4 v2, s[4:7], s30 offen lds")
                A("buffer_load_dwordx4 v3, s[4:7], s30 offen offset:1024 lds")
            else:
                A(f"s_lshl_b32 s30, s{ROT + p}, 3")
                x2_addr(A, 2, 60, 30, 62, 63)
                A("buffer_load_dwordx4 v2, s[4:7], s59 offen lds")
                x2_addr(A, 3, 61, 30, 6, 7)
                A("buffer_load_dwordx4 v3, s[4:7], s60 offen offset:1024 lds")

        def f1():
            A(f"s_add_u32 m0, s29, {slot}")
            A(f"s_mul_i32 s31, s{ROT + p}, {wstep}")
            A("buffer_load_dwordx4 v4, s[8:11], s31 offen lds")
            exec_lanes(A, 32)
            tokq[p] = A("buffer_load_dwordx4 v5, s[8:11], s31 offen offset:1024 lds")
            exec_lanes(A, 64)
        return [f0, f1]

    def l1_stats():
        A("v_and_b32 v16, 31, v1")
        A("v_add_u32 v16, s49, v16")
        A("v_lshrrev_b32 v17, 4, v16")
        A("v_lshlrev_b32 v17, 7, v17")
        A("v_and_b32 v16, 15, v16")
        A("v_lshl_add_u32 v17, v16, 2, v17")
        A(f"s_mov_b32 s32, {hex(WS_ST + 16384)}")
        A("buffer_load_dword v52, v17, s[12:15], s32 offen")
        A("buffer_load_dword v48, v17, s[12:15], s32 offen offset:64")

    def l1_csum():
        A("v_lshrrev_b32 v17, 5, v1")
        A("v_lshlrev_b32 v17, 4, v17")
        A("s_mul_i32 s32, s24, 384")
        A("s_lshl_b32 s33, s48, 7")
        A("s_add_u32 s33, s33, s32")
        A(f"s_add_u32 s33, s33, {hex(WS_CS)}")
        for j in range(4):
            A(f"buffer_load_dwordx4 {v(120 + 4 * j, 4)}, v17, s[12:15], s33 offen offset:{32 * j}")
        A("v_and_b32 v16, 31, v1")
        A("v_lshlrev_b32 v16, 2, v16")
        A(f"s_add_u32 s32, s32, {hex(WS_CS + 256)}")
        A("buffer_load_dword v56, v16, s[12:15], s32 offen")

    PRE = 3
    pers1 = pers and not L0
    if pers1:
        PRE = 4
        for p in range(5):
            dma_ops(p)[1]()
        l1_csum()
        A("s_lshl_b32 s32, s23, 7")
        A(f"s_add_u32 s32, s32, {hex(C5)}")
        A("v_mov_b32 v10, 0")
        await_cnt(A, 12, 32, 10, 1, 16)
        l1_stats()
        for p in range(PRE):
            dma_ops(p)[0]()
            tokq[p] = A.vmq[-1]["tok"]
            if p == 0 and "nofb" not in OPT:
                A("s_barrier")
    else:
        for f in dma_ops(0):
            f()
        if "nofb" not in OPT:
            A("s_barrier")
    if L0:
        A("s_lshl_b32 s32, s2, 13")
        A(f"s_add_u32 s32, s32, {hex(WS_ST)}")
        A("s_cmp_lt_u32 s2, 8")
        A("s_cselect_b32 s32, s32, 0x7fff0000")
        A("v_lshlrev_b32 v16, 4, v0")
        for i in range(4):
            A(f"v_mov_b32 v{12 + i}, 0")
        A("buffer_store_dwordx4 v[12:15], v16, s[12:15], s32 offen")
        if pers:
            A(f"s_load_dwordx2 s[60:61], s[0:1], {KA_DBG}")
    elif not pers1:
        l1_stats()
        l1_csum()
    if not pers1:
        for p in range(1, PRE):
            for f in dma_ops(p):
                f()
    if pers and L0 and "tlb" in OPT:
        tlb_warm(A)
    A.stamp(1)
    A("v_and_b32 v16, 31, v1")
    A("v_lshrrev_b32 v17, 5, v1")
    A("v_bfe_u32 v18, v1, 1, 3")
    A("v_xor_b32 v18, v18, v17")
    A("v_lshlrev_b32 v19, 7, v16")
    A("s_lshl_b32 s32, s47, 12")
    A("v_add_u32 v19, s32, v19")
    A("s_lshl_b32 s33, s48, 2")
    for ls in range(2):
        A(f"s_add_u32 s34, s33, {2 * ls}")
        A("v_xor_b32 v20, s34, v18")
        A(f"v_lshl_add_u32 v{8 + ls}, v20, 4, v19")
    A("v_bfe_u32 v18, v1, 2, 2")
    A("v_bfe_u32 v19, v1, 4, 1")
    A("v_and_b32 v20, 3, v1")
    A("v_lshlrev_b32 v22, 5, v19")
    A("v_lshl_add_u32 v22, v20, 3, v22")
    A("v_lshl_add_u32 v21, v17, 3, v18")
    A("v_mul_u32_u24 v21, 192, v21")
    A("v_add_u32 v21, v21, v22")
    A(f"s_mul_i32 s34, s48, {32 * 192}")
    A(f"s_add_u32 s34, s34, {K1_XP}")
    A("v_add_u32 v21, s34, v21")
    ONES = 28
    SS = 36
    if L0:
        A("s_mul_i32 s34, s22, 11")
        A("s_lshr_b32 s34, s34, 5")
        A("s_mul_i32 s35, s34, 3")
        A("s_sub_u32 s35, s22, s35")
        A("s_and_b32 s34, s34, 1")
        A(f"s_mul_i32 s34, s34, {32 * 192}")
        A("s_lshl_b32 s35, s35, 6")
        A("s_add_u32 s34, s34, s35")
        A(f"s_add_u32 s34, s34, {K1_XP}")
        A("v_lshl_add_u32 v23, v17, 3, v18")
        A("v_mul_u32_u24 v23, 192, v23")
        A("v_add_u32 v22, v22, v23")
        A("v_add_u32 v22, s34, v22")
        A("v_mul_u32_u24 v24, 192, v1")
        A("v_add_u32 v24, s29, v24")
        A("v_add_u32 v24, 56, v24")
        A("v_mov_b32 v26, 0x3f80")
        A("v_mov_b32 v27, 0")
        for i in range(4):
            A(f"v_mov_b32 v{ONES + i}, 0x3f803f80")
        for i in range(4):
            A(f"v_mov_b32 v{SS + i}, 0")
        A("v_lshlrev_b32 v33, 4, v1")
        A("v_add_u32 v34, s29, v33")
        A("s_mul_i32 s50, s24, 86016")
        A("s_mul_i32 s51, s22, 1536")
        A("s_add_u32 s50, s50, s51")
        A(f"s_add_u32 s50, s50, {hex(WS_WC)}")
    AQ, AK, AV, AC = 0, 16, 32, 48
    XF = 64
    WF = 76
    CF = 112
    VA = 40

    def token_stats(sumreg, sqreg):
        A(f"v_mul_f32 v{sumreg}, {hexf(1.0 / 448)}, v{sumreg}")
        A(f"v_mul_f32 v{sqreg}, {hexf(1.0 / 448)}, v{sqreg}")
        A(f"v_fma_f32 v{sqreg}, -v{sumreg}, v{sumreg}, v{sqreg}")
        A(f"v_max_f32 v{sqreg}, 0, v{sqreg}")
        A(f"v_add_f32 v{sqreg}, {hexf(1e-5)}, v{sqreg}")
        A(f"v_rsq_f32 v{sqreg}, v{sqreg}")
        A(f"v_mul_f32 v{sumreg}, -v{sumreg}, v{sqreg}")
        A("v_and_b32 v57, 31, v1")
        A("v_lshlrev_b32 v57, 2, v57")
        A("s_lshl_b32 s35, s22, 8")
        A(f"s_add_u32 s35, s35, {K1_TOK}")
        A("v_add_u32 v57, s35, v57")
        exec_lanes(A, 32)
        A(f"ds_write_b32 v57, v{sqreg}")
        A(f"ds_write_b32 v57, v{sumreg} offset:128")
        exec_lanes(A, 64)
        A("v_lshlrev_b32 v58, 4, v17")
        A("s_lshl_b32 s36, s48, 6")
        A("s_add_u32 s36, s36, s35")
        A("v_add_u32 v58, s36, v58")
        for j in range(2):
            A(f"ds_read_b128 {v(TA + 4 * j, 4)}, v58 offset:{32 * j}")
            A(f"ds_read_b128 {v(TB + 4 * j, 4)}, v58 offset:{128 + 32 * j}")

    TA, TB = 152, 160
    CS = 120
    if not L0:
        token_stats(52, 48)

    def set_addr(p):
        slot = (p % K1_NS) * K1_SLOT
        b = VA + 4 * (p & 1)
        A(f"v_add_u32 v{b}, {slot}, v8")
        A(f"v_add_u32 v{b + 1}, {slot}, v9")
        A(f"v_add_u32 v{b + 2}, {slot}, v21")
        if L0:
            A(f"v_add_u32 v{b + 3}, {slot}, v22")

    def sync(p):
        slot = (p % K1_NS) * K1_SLOT
        set_addr(p)
        A.wait_vm(tokq[p])
        if L0:
            A(f"v_add_u32 v49, {slot}, v24")
            if p == 0:
                A(f"v_add_u32 v35, {slot}, v34")
                A("ds_read_b128 v[120:123], v35")
                A("ds_read_b128 v[124:127], v35 offset:1024")
                A(f"s_mul_i32 s51, s{ROT}, 12288")
                A("s_add_u32 s51, s51, s50")
                A("s_cmp_lt_u32 s23, 7")
                A("s_cselect_b32 s51, s51, 0x7fff0000")
                A("buffer_store_dwordx4 v[120:123], v33, s[12:15], s51 offen")
                exec_lanes(A, 32)
                A("buffer_store_dwordx4 v[124:127], v33, s[12:15], s51 offen offset:1024")
            exec_lanes(A, 8)
            A("ds_write_b64 v49, v[26:27]")
            exec_lanes(A, 64)
            A.wait_all(vm=False)
        A("s_barrier")
        if pers and L0 and p == 1:
            srd(A, 60, 60, 61, 256)
            A("s_cmp_ge_u32 s2, 8")
            A(f"s_cbranch_scc1 L_{name}_nz")
            A("v_mov_b32 v10, 0")
            A("v_mov_b32 v11, 1")
            A("v_cmp_eq_u32 vcc, 0, v0")
            A("s_and_saveexec_b64 s[44:45], vcc")
            A(f"s_cbranch_execz L_{name}_nz2")
            A.raw("    buffer_atomic_add v11, v10, s[60:63], 0 offen sc1")
            A.raw(f"L_{name}_nz2:")
            A("s_mov_b64 exec, -1")
            A.raw(f"L_{name}_nz:")

    def read_ops(gs):
        p, ls = gs >> 1, gs & 1
        b = VA + 4 * (p & 1)
        buf = gs % 3
        ops = [lambda: A(f"ds_read_b128 {v(XF + 4 * buf, 4)}, v{b + ls}")]
        for t3 in range(3):
            for t in range(2):
                ops.append(lambda t3=t3, t=t: A(
                    f"ds_read_b64_tr_b16 {v(WF + 12 * buf + 4 * t3 + 2 * t, 2)}, v{b + 2} "
                    f"offset:{(16 * ls + 4 * t) * 192 + 64 * t3}"))
        return ops

    def cread_ops(p):
        b = VA + 4 * (p & 1)
        ops = []
        for f in range(2):
            for t in range(2):
                ops.append(lambda f=f, t=t: A(
                    f"ds_read_b64_tr_b16 {v(CF + 4 * f + 2 * t, 2)}, v{b + 3} offset:{(16 * f + 4 * t) * 192}"))
        return ops

    sync(0)
    for f in read_ops(0) + read_ops(1):
        f()
    A.stamp(2)
    if "rtg" in OPT:
        rtp(A, "k1loop0")
    for gs in range(14):
        p, ls = gs >> 1, gs & 1
        b = gs % 3
        xf = v(XF + 4 * b, 4)
        first = gs == 0
        m = [
            lambda: A(f"v_mfma_f32_32x32x16_bf16 {a(AQ, 16)}, {v(WF + 12 * b, 4)}, {xf}, {'0' if first else a(AQ, 16)}"),
            lambda: A(f"v_mfma_f32_32x32x16_bf16 {a(AK, 16)}, {v(WF + 12 * b + 4, 4)}, {xf}, {'0' if first else a(AK, 16)}"),
            lambda: A(f"v_mfma_f32_32x32x16_bf16 {a(AV, 16)}, {xf}, {v(WF + 12 * b + 8, 4)}, {'0' if first else a(AV, 16)}"),
        ]
        if ls == 1 and L0:
            for f in range(2):
                m.append(lambda f=f: A(
                    f"v_mfma_f32_32x32x16_bf16 {a(AC, 16)}, {v(ONES, 4)}, {v(CF + 4 * f, 4)}, "
                    f"{'0' if (p == 0 and f == 0) else a(AC, 16)}"))
        fill = []
        if ls == 0:
            if L0:
                fill += cread_ops(p)
            if p + 1 < 7:
                fill += [lambda p=p: sync(p + 1)]
        if gs + 2 < 14:
            fill += read_ops(gs + 2)
        dots = [(lambda d=d: A(f"v_dot2_f32_bf16 v{SS + d}, v{XF + 4 * b + d}, v{XF + 4 * b + d}, v{SS + d}"))
                for d in range(4)] if L0 else []
        vm = dma_ops(p + PRE) if (ls == 1 and p + PRE < 7) else []
        if pers1 and vm and p + PRE < 5:
            q_ = p + PRE

            def xonly(f=vm[0], q_=q_):
                f()
                tokq[q_] = A.vmq[-1]["tok"]
            vm = [xonly]
        elif pers1 and vm:
            vm = [vm[1], vm[0]]
            q_ = p + PRE
            vm.append(lambda q_=q_: tokq.__setitem__(q_, A.vmq[-1]["tok"]))
        fill = fill + sprinkle(dots, vm)
        interleave(m, fill)
    A.stamp(3)
    if "rtg" in OPT:
        rtp(A, "k1loopE")
    A("v_lshlrev_b32 v49, 4, v1")
    A("s_mul_i32 s33, s22, 7168")
    A(f"s_add_u32 s33, s33, {K1_EX}")
    A("v_add_u32 v50, s33, v49")
    A("s_xor_b32 s34, s22, 4")
    A("s_mul_i32 s34, s34, 7168")
    A(f"s_add_u32 s34, s34, {K1_EX}")
    A("v_add_u32 v51, s34, v49")
    if L0:
        A("v_and_b32 v47, 31, v1")
        A("v_lshlrev_b32 v47, 2, v47")
        A(f"v_add_u32 v47, {K1_CSUM}, v47")
        A(f"v_add_f32 v{SS}, v{SS}, v{SS + 1}")
        A(f"v_add_f32 v{SS + 2}, v{SS + 2}, v{SS + 3}")
        A(f"v_add_f32 v{SS}, v{SS}, v{SS + 2}")
        A(f"v_mov_b32 v53, v{SS}")
        A(f"v_permlane32_swap_b32 v53, v{SS}")
        A(f"v_add_f32 v53, v53, v{SS}")
        A("s_lshl_b32 s35, s22, 7")
        A("v_add_u32 v46, s35, v47")
        exec_lanes(A, 32)
        A(f"ds_write_b32 v46, a{AC}")
        exec_lanes(A, 64)
        A(f"v_accvgpr_read_b32 v52, a{AQ + 12}")
    A("s_lshl_b32 s36, s24, 6")
    A("s_lshl_b32 s37, s23, 2")
    A("s_add_u32 s36, s36, s37")
    A("s_add_u32 s36, s36, s47")
    A("s_lshl_b32 s36, s36, 11")
    A("v_add_u32 v59, s36, v49")
    A("v_cmp_eq_u32 s[38:39], 0, v17")
    A("v_and_b32 v62, 31, v1")
    A("v_cmp_gt_u32 s[42:43], 28, v62")
    A("v_cmp_eq_u32 vcc, 28, v62")
    A("v_mov_b32 v63, 0x3f803f80")
    A("v_cndmask_b32 v63, 0, v63, vcc")
    A("s_cmp_eq_u32 s48, 0")
    A(f"s_cbranch_scc0 L_{name}_e1")
    save_vm = [dict(o) for o in A.vmq]
    save_lg = [dict(o) for o in A.lgq]
    RX = 64
    KP = 92
    for kh in range(2):
        keep, send = (AQ, AK) if kh == 0 else (AK, AQ)
        vkeep, vsend = (AV, AV + 8) if kh == 0 else (AV + 8, AV)
        for j in range(4):
            A(f"ds_write_b128 v50, {a(send + 4 * j, 4)} offset:{1024 * j}")
        for j in range(2):
            A(f"ds_write_b128 v50, {a(vsend + 4 * j, 4)} offset:{4096 + 1024 * j}")
        if L0:
            A("ds_write_b64 v50, v[52:53] offset:6144")
        for r in range(16):
            A(f"v_accvgpr_read_b32 v{KP + r}, a{keep + r}")
        for r in range(8):
            A(f"v_accvgpr_read_b32 v{KP + 16 + r}, a{vkeep + r}")
        A.wait_all(vm=False)
        A.stamp(5)
        A("s_barrier")
        A.stamp(6)
        for j in range(6):
            A(f"ds_read_b128 {v(RX + 4 * j, 4)}, v51 offset:{1024 * j}")
        if L0:
            A(f"ds_read_b64 {v(RX + 24, 2)}, v51 offset:6144")
            A("v_lshlrev_b32 v54, 4, v17")
            A(f"v_add_u32 v55, {K1_CSUM}, v54")
            for j in range(4):
                A(f"ds_read_b128 {v(CS + 4 * j, 4)}, v55 offset:{128 * kh + 32 * j}")
                A(f"ds_read_b128 {v(136 + 4 * j, 4)}, v55 offset:{128 * (kh + 3) + 32 * j}")
            A("ds_read_b32 v56, v47 offset:256")
            A("ds_read_b32 v45, v47 offset:640")
            for r in range(16):
                A(f"v_add_f32 v{CS + r}, v{CS + r}, v{136 + r}")
            A("v_add_f32 v56, v56, v45")
            A("s_mul_i32 s40, s24, 384")
            A(f"s_add_u32 s40, s40, {hex(WS_CS + 128 * kh)}")
            A("s_or_b32 s41, s23, s47")
            A("s_cmp_eq_u32 s41, 0")
            A("s_cselect_b32 s40, s40, 0x7fff0000")
            A("v_and_b32 v60, 31, v1")
            A("v_lshlrev_b32 v60, 2, v60")
            A(f"ds_read_b32 v46, v47 offset:{128 * kh}")
            A(f"ds_read_b32 v45, v47 offset:{128 * (kh + 3)}")
            A("v_add_f32 v46, v46, v45")
            A("buffer_store_dword v46, v60, s[12:15], s40 offen")
            if kh == 0:
                A("buffer_store_dword v56, v60, s[12:15], s40 offen offset:256")
            A(f"v_add_f32 v52, v52, v{RX + 24}")
            A(f"v_add_f32 v48, v53, v{RX + 25}")
            A("v_mov_b32 v57, v52")
            A("v_permlane32_swap_b32 v57, v52")
            token_stats(52, 48)
        A.stamp(7)
        cq = (DH ** -0.5) * 1.4426950408889634
        if kh == 0:
            A(f"v_mul_f32 v60, {hexf(cq)}, v48")
            A(f"v_mul_f32 v61, {hexf(cq)}, v52")
            ra, rb_ = 60, 61
        else:
            ra, rb_ = 48, 52
        PK = 168
        for r in range(16):
            A(f"v_mul_f32 v{CS + r}, v{CS + r}, v{rb_}")
        for r in range(16):
            A(f"v_add_f32 v{KP + r}, v{KP + r}, v{RX + r}")
            A(f"v_fma_f32 v{KP + r}, v{KP + r}, v{ra}, v{CS + r}")
        for d in range(8):
            A(f"v_cvt_pk_bf16_f32 v{PK + d}, v{KP + 2 * d}, v{KP + 2 * d + 1}")
        if kh == 0:
            A("v_mov_b32 v62, 0x3f80")
            A(f"v_cndmask_b32 v{PK + 6}, v62, v{PK + 6}, s[38:39]")
        else:
            A(f"v_cndmask_b32 v{PK + 6}, 0, v{PK + 6}, s[38:39]")
        A(f"v_cndmask_b32 v{PK + 7}, 0, v{PK + 7}, s[38:39]")
        A(f"s_mov_b32 s40, {hex((WS_QF if kh == 0 else WS_KF) + layer * LB)}")
        A(f"buffer_store_dwordx4 {v(PK, 4)}, v59, s[12:15], s40 offen")
        A(f"buffer_store_dwordx4 {v(PK + 4, 4)}, v59, s[12:15], s40 offen offset:1024")
        for r in range(8):
            A(f"v_mul_f32 v{TB + r}, v{TB + r}, v56")
        for r in range(8):
            A(f"v_add_f32 v{KP + 16 + r}, v{KP + 16 + r}, v{RX + 16 + r}")
            A(f"v_fma_f32 v{KP + 16 + r}, v{KP + 16 + r}, v{TA + r}, v{TB + r}")
        for d in range(4):
            A(f"v_cvt_pk_bf16_f32 v{RX + d}, v{KP + 16 + 2 * d}, v{KP + 16 + 2 * d + 1}")
            A(f"v_cndmask_b32 v{RX + d}, v63, v{RX + d}, s[42:43]")
        A(f"s_mov_b32 s40, {hex(WS_VF + 1024 * kh + layer * LB)}")
        A(f"buffer_store_dwordx4 {v(RX, 4)}, v59, s[12:15], s40 offen")
        if kh == 0:
            A(f"s_branch L_{name}_e2")
            A.raw(f"L_{name}_e1:")
            A.hist = []
            A.vmq = [dict(o) for o in save_vm]
            A.lgq = [dict(o) for o in save_lg]
            A.nop(2)
    A.raw(f"L_{name}_e2:")
    if pers:
        phase_begin(A)
        if L0:
            A("s_mov_b32 s34, 0")
            A("v_mov_b32 v10, 0")
            await_cnt(A, 60, 34, 10, 1, 8)
        A("s_lshl_b32 s34, s24, 7")
        A("s_lshl_b32 s35, s23, 2")
        A("s_add_u32 s34, s34, s35")
        A(f"s_add_u32 s34, s34, {hex(F0 if L0 else F1)}")
        publish(A, 12, 34)
        return None
    A.stamp(4)
    A.dump_stamps(STAMP_WG)
    kernel_end(A, name)
    return K1_LDS, 512, 256, 176


K2_K, K2_V, K2_Q = 0, 24576, 49152
K2_X = 57344
K2_LDS = K2_X + 8 * 4096


def k2(A, name, layer, pers=False):
    if pers:
        phase_begin(A)
    else:
        kernel_begin(A, name, 256)
        A.stamp_base = 76
        A.stamp(0)
    A(f"s_load_dwordx2 s[20:21], s[0:1], {KA_WS}")
    if PREFETCH and layer == 0:
        A(f"s_load_dwordx2 s[88:89], s[0:1], {KA_W2}")
        A(f"s_load_dwordx2 s[84:85], s[0:1], {KA_W1}")
    A("v_and_b32 v1, 63, v0")
    A("v_lshrrev_b32 v2, 6, v0")
    A("v_readfirstlane_b32 s22, v2")
    A("s_lshr_b32 s23, s2, 4")
    A("s_and_b32 s24, s2, 15")
    A("s_and_b32 s38, s22, 3")
    A("s_lshr_b32 s39, s22, 2")
    A("v_lshlrev_b32 v2, 4, v1")
    A("s_lshl_b32 s25, s24, 17")
    A("s_lshl_b32 s26, s23, 2")
    A("s_sub_u32 s26, s26, 8")
    A("s_mul_i32 s27, s22, 3")
    for i in range(3):
        A(f"s_add_u32 s34, s27, {i}")
        A("s_lshr_b32 s35, s34, 1")
        A("s_add_i32 s35, s35, s26")
        A("s_lshl_b32 s36, s35, 11")
        A("s_and_b32 s37, s34, 1")
        A("s_lshl_b32 s37, s37, 10")
        A("s_add_u32 s36, s36, s37")
        A("s_cmp_lt_i32 s35, 0")
        A(f"s_cselect_b32 s{72 + i}, 0x40000000, s36")
    A("s_lshl_b32 s29, s27, 10")
    A.wait_all(vm=False)
    for (d, off) in [(4, WS_QF), (8, WS_KF), (12, WS_VF)]:
        A(f"s_add_u32 s28, s25, {hex(off + layer * LB)}")
        A(f"s_add_u32 s{d}, s20, s28")
        A(f"s_addc_u32 s{d + 1}, s21, 0")
        A(f"s_and_b32 s{d + 1}, s{d + 1}, 0xffff")
        A(f"s_mov_b32 s{d + 2}, 0x20000")
        A(f"s_mov_b32 s{d + 3}, 0x00020000")
    srd(A, 92, 20, 21, WSZ)
    if pers and (layer == 1 or "one" in OPT):
        A("s_lshl_b32 s34, s24, 7")
        A(f"s_add_u32 s34, s34, {hex(F1 if layer == 1 else F0)}")
        A("v_add_u32 v10, s23, v1")
        A("v_subrev_u32 v10, 2, v10")
        A("v_max_i32 v10, 0, v10")
        A("v_lshlrev_b32 v10, 2, v10")
        await_cnt(A, 92, 34, 10, 3, 1)
    for i in range(3):
        A(f"s_add_u32 m0, s29, {K2_K + i * 1024}")
        A(f"buffer_load_dwordx4 v2, s[8:11], s{72 + i} offen lds")
    A("s_lshl_b32 s30, s23, 13")
    A("s_lshl_b32 s31, s22, 10")
    A("s_add_u32 s30, s30, s31")
    A(f"s_add_u32 m0, s31, {K2_Q}")
    tokK = A("buffer_load_dwordx4 v2, s[4:7], s30 offen lds")
    if "nofb" not in OPT:
        A("s_barrier")
    for i in range(3):
        A(f"s_add_u32 m0, s29, {K2_V + i * 1024}")
        tokV = A(f"buffer_load_dwordx4 v2, s[12:15], s{72 + i} offen lds")
    srd_off(A, 16, 20, 21, hex(WS_OF + layer * LB), 128 * 16 * 1024)
    K2PF = PREFETCH and layer == 0
    if K2PF:
        A("s_lshl_b32 s34, s2, 3")
        A("s_add_u32 s34, s34, s22")
        A("s_mul_i32 s34, s34, 3584")
        A("v_lshlrev_b32 v40, 7, v1")
        A("v_add_u32 v40, s34, v40")
        srd(A, 88, 88, 89, S * F * 2)
        srd(A, 84, 84, 85, S * F * 2)
    A.stamp(1)
    A("v_and_b32 v4, 31, v1")
    A("v_lshrrev_b32 v5, 5, v1")
    A("v_mov_b32 v18, 0xf14a")
    A("v_mul_lo_u32 v18, v18, v5")
    A("v_add_u32 v19, s29, v2")
    A("v_lshlrev_b32 v6, 2, v5")
    A("v_sub_u32 v6, v4, v6")
    MS = 40
    for r in range(16):
        kk = 8 * (r >> 2) + (r & 3)
        A(f"v_cmp_ge_i32 s[{MS + 2 * r}:{MS + 2 * r + 1}], v6, {kk}")
    PM = 8
    A("v_mov_b32 v7, 0xffff")
    A("v_mov_b32 v16, 0xffff0000")
    for d in range(8):
        A(f"v_cndmask_b32 v{PM + d}, 0, v7, s[{MS + 4 * d}:{MS + 4 * d + 1}]")
        A(f"v_cndmask_b32 v17, 0, v16, s[{MS + 4 * d + 2}:{MS + 4 * d + 3}]")
        A(f"v_or_b32 v{PM + d}, v{PM + d}, v17")
    A.wait_vm(tokK)
    for i in range(3):
        A(f"s_add_u32 s34, s27, {i}")
        A("s_and_b32 s34, s34, 1")
        A(f"s_cmp_eq_u32 s{72 + i}, 0x40000000")
        A("s_cselect_b32 s35, s34, 0")
        A("s_cmp_eq_u32 s35, 0")
        lab = f"L_{name}_np{i}"
        A(f"s_cbranch_scc1 {lab}")
        A(f"ds_write_b32 v19, v18 offset:{K2_K + i * 1024 + 8}")
        A.raw(lab + ":")
    A.force_wait(lg=0)
    A("s_barrier")
    A.stamp(2)
    if "rtg" in OPT:
        rtp(A, "k2bar1", 172)
    A("s_lshl_b32 s35, s38, 11")
    A("v_add_u32 v28, s35, v2")
    A(f"ds_read_b128 v[20:23], v28 offset:{K2_Q}")
    A(f"ds_read_b128 v[24:27], v28 offset:{K2_Q + 1024}")
    BW = 14 if "k2both" in OPT else 7
    NBU = 4
    bcount = [0]

    def burst(i=None):
        n = bcount[0]
        if not K2PF or n >= NBU:
            return
        bcount[0] += 1
        if "k2both" in OPT:
            m = ((1 << 14) - 1) << (14 * (n & 1))
            sr = 84 if n < 2 else 88
        else:
            m = ((1 << 7) - 1) << (7 * n)
            sr = 84 if pers else 88
        A(f"s_mov_b64 exec, {hex(m)}")
        A.touch(f"buffer_load_dword v42, v40, s[{sr}:{sr + 3}], 0 offen")
        exec_lanes(A, 64)
    A("s_mul_i32 s36, s22, 4096")
    A(f"s_add_u32 s36, s36, {K2_X}")
    A("v_add_u32 v44, s36, v2")
    A("s_xor_b32 s37, s22, 4")
    A("s_mul_i32 s37, s37, 4096")
    A(f"s_add_u32 s37, s37, {K2_X}")
    A("v_add_u32 v45, s37, v2")
    A("s_cmp_eq_u32 s39, 0")
    A(f"s_cbranch_scc0 L_{name}_h1")
    A.vmq_save = [dict(o) for o in A.vmq]
    A.lgq_save = [dict(o) for o in A.lgq]
    SB = [48, 64, 80, 96]
    MX = 30
    CN = 112
    OA = 128
    PB = [144, 152, 160]

    for hf in range(2):
        blocks = [0, 8, 1, 2, 3] if hf == 0 else [4, 5, 6, 7]
        slotk = {b: i for i, b in enumerate(blocks)}
        for b in blocks:
            for st in range(2):
                A(f"ds_read_b128 {a(8 * slotk[b] + 4 * st, 4)}, v28 offset:{K2_K + 2048 * b + 1024 * st}")

        bcount[0] = 0

        def qk(b, buf, cinit):
            k = 8 * slotk[b]
            A(f"v_mfma_f32_32x32x16_bf16 {v(buf, 16)}, {a(k, 4)}, v[20:23], {cinit}")
            A(f"v_mfma_f32_32x32x16_bf16 {v(buf, 16)}, {a(k + 4, 4)}, v[24:27], {v(buf, 16)}")

        def maxblk(buf, first):
            if first:
                A(f"v_max3_f32 v{MX}, v{buf}, v{buf + 1}, v{buf + 2}")
                rest = list(range(3, 16))
            else:
                rest = list(range(16))
            while len(rest) >= 2:
                A(f"v_max3_f32 v{MX}, v{MX}, v{buf + rest[0]}, v{buf + rest[1]}")
                rest = rest[2:]
            if rest:
                A(f"v_max_f32 v{MX}, v{MX}, v{buf + rest[0]}")

        def merge():
            for r in range(16):
                A(f"v_cndmask_b32 v{SB[0] + r}, v{SB[0] + r}, v{SB[1] + r}, s[{MS + 2 * r}:{MS + 2 * r + 1}]")

        if hf == 0:
            qk(0, SB[0], "0"); qk(8, SB[1], "0"); qk(1, SB[2], "0"); qk(2, SB[3], "0")
            merge()
            qk(3, SB[1], "0")
            maxblk(SB[0], True); maxblk(SB[2], False); maxblk(SB[3], False); maxblk(SB[1], False)
        else:
            for i, b in enumerate(blocks):
                qk(b, SB[i], "0")
            maxblk(SB[0], True); maxblk(SB[1], False); maxblk(SB[2], False); maxblk(SB[3], False)
        A(f"v_mov_b32 v31, v{MX}")
        A(f"v_permlane32_swap_b32 v31, v{MX}")
        A(f"v_max_f32 v{MX}, v{MX}, v31")
        A(f"ds_write_b32 v44, v{MX}")
        A.wait_vm(tokV)
        A.wait_all(vm=False)
        A("s_barrier")
        A("ds_read_b32 v31, v45")
        for b in blocks:
            for st in range(2):
                A(f"ds_read_b128 {a(40 + 8 * slotk[b] + 4 * st, 4)}, v28 offset:{K2_V + 2048 * b + 1024 * st}")
        A(f"v_max_f32 v{MX}, v{MX}, v31")
        for r in range(16):
            A(f"v_sub_f32 v{CN + r}, 0, v{MX}")
        cn = v(CN, 16)

        def exppack(buf, pb):
            for r in range(16):
                A(f"v_exp_f32 v{buf + r}, v{buf + r}")
            for d in range(8):
                A(f"v_cvt_pk_bf16_f32 v{pb + d}, v{buf + 2 * d}, v{buf + 2 * d + 1}")
            burst()

        first_pv = [True]

        def pv(b, pb):
            for st in range(2):
                c = "0" if first_pv[0] else v(OA, 16)
                first_pv[0] = False
                A(f"v_mfma_f32_32x32x16_bf16 {v(OA, 16)}, {a(40 + 8 * slotk[b] + 4 * st, 4)}, {v(pb + 4 * st, 4)}, {c}")

        if hf == 0:
            qk(0, SB[0], cn); qk(8, SB[1], cn); qk(1, SB[2], cn); qk(2, SB[3], cn)
            merge()
            qk(3, SB[1], cn)
            exppack(SB[0], PB[0])
            for d in range(8):
                A(f"v_and_b32 v{PB[1] + d}, v{PM + d}, v{PB[0] + d}")
                A(f"v_xor_b32 v{PB[0] + d}, v{PB[0] + d}, v{PB[1] + d}")
            pv(0, PB[0]); pv(8, PB[1])
            exppack(SB[2], PB[2]); pv(1, PB[2])
            exppack(SB[3], PB[0]); pv(2, PB[0])
            exppack(SB[1], PB[1]); pv(3, PB[1])
        else:
            for i, b in enumerate(blocks):
                qk(b, SB[i], cn)
            for i, b in enumerate(blocks):
                exppack(SB[i], PB[i % 3])
                pv(b, PB[i % 3])
        A.stamp(3)
        keep, send = (OA, OA + 8) if hf == 0 else (OA + 8, OA)
        A(f"ds_write_b128 v44, {v(send, 4)} offset:1024")
        A(f"ds_write_b128 v44, {v(send + 4, 4)} offset:2048")
        A(f"ds_write_b32 v44, v{OA + 12} offset:3072")
        A.wait_all(vm=False)
        A("s_barrier")
        A("ds_read_b128 v[144:147], v45 offset:1024")
        A("ds_read_b128 v[148:151], v45 offset:2048")
        A("ds_read_b32 v32, v45 offset:3072")
        A(f"v_add_f32 v32, v32, v{OA + 12}")
        A("v_mov_b32 v33, v32")
        A("v_permlane32_swap_b32 v33, v32")
        A("v_rcp_f32 v33, v32")
        for r in range(8):
            A(f"v_add_f32 v{keep + r}, v{keep + r}, v{144 + r}")
            A(f"v_mul_f32 v{keep + r}, v{keep + r}, v33")
        for d in range(4):
            A(f"v_cvt_pk_bf16_f32 v{152 + d}, v{keep + 2 * d}, v{keep + 2 * d + 1}")
        if hf == 1:
            A("v_cmp_eq_u32 vcc, 0, v5")
            A("v_cndmask_b32 v154, 0, v154, vcc")
            A("v_cndmask_b32 v155, 0, v155, vcc")
        A("s_lshl_b32 s37, s23, 2")
        A("s_add_u32 s37, s37, s38")
        A("s_lshl_b32 s37, s37, 15")
        A("s_lshl_b32 s36, s24, 10")
        A("s_add_u32 s37, s37, s36")
        A("v_bfe_u32 v35, v1, 4, 1")
        A("v_lshlrev_b32 v35, 14, v35")
        A("v_and_b32 v36, 15, v1")
        A("v_lshl_add_u32 v35, v36, 4, v35")
        A("v_lshl_add_u32 v35, v5, 8, v35")
        A(f"buffer_store_dwordx4 v[152:155], v35, s[16:19], s37 offen offset:{512 * hf}")
        if hf == 0:
            A(f"s_branch L_{name}_done")
            A.raw(f"L_{name}_h1:")
            A.hist = []
            A.lgq = [o for o in A.lgq_save] if hasattr(A, "lgq_save") else []
            A.vmq = list(A.vmq_save)
            A.force_wait(lg=0)
    A.raw(f"L_{name}_done:")
    if pers:
        phase_begin(A)
        A("s_lshl_b32 s34, s23, 7")
        A(f"s_add_u32 s34, s34, {hex(C2(layer))}")
        publish(A, 92, 34)
        return None
    A.stamp(4)
    A.dump_stamps(STAMP_WG)
    kernel_end(A, name)
    return K2_LDS, 512, 256, 176


K3_O, K3_W, K3_X, K3_T = 0, 65536, 122880, 131072
K3_LDS = K3_T + 64 * 136


def k3(A, name, layer, pers=False):
    if pers:
        phase_begin(A)
        A("s_cmp_ge_u32 s2, 224")
        A(f"s_cbranch_scc1 L_{name}_{'idle' if PREFETCH else 'skip'}")
    else:
        kernel_begin(A, name, 224)
        A.stamp_base = 70
        A.stamp(0)
    A(f"s_load_dwordx2 s[20:21], s[0:1], {KA_WS}")
    A(f"s_load_dwordx2 s[8:9], s[0:1], {KA_WO}")
    if layer == 0:
        A(f"s_load_dwordx2 s[12:13], s[0:1], {KA_X}")
    if PREFETCH:
        A(f"s_load_dwordx2 s[48:49], s[0:1], {KA_W1}")
    A("v_and_b32 v1, 63, v0")
    A("v_lshrrev_b32 v2, 6, v0")
    A("v_readfirstlane_b32 s22, v2")
    A("s_lshr_b32 s23, s2, 5")
    A("s_and_b32 s24, s2, 31")
    A("v_lshlrev_b32 v2, 4, v1")
    A("v_lshrrev_b32 v3, 3, v1")
    A("v_bfe_u32 v4, v1, 4, 2")
    A("v_lshlrev_b32 v4, 1, v4")
    A("v_and_b32 v5, 7, v1")
    A("v_xor_b32 v4, v4, v5")
    A("v_mul_u32_u24 v5, 896, v3")
    A("v_lshl_add_u32 v5, v4, 4, v5")
    A("s_lshl_b32 s25, s23, 7")
    A("v_add_u32 v5, s25, v5")
    A.wait_all(vm=False)
    srd_off(A, 4, 20, 21, hex(WS_OF + layer * LB), 128 * 16384)
    srd(A, 8, 8, 9, D * D * 2)
    if layer == 0:
        srd(A, 12, 12, 13, XBYTES)
    else:
        srd_off(A, 12, 20, 21, hex(WS_X2), XBYTES)
    srd(A, 16, 20, 21, WSZ)
    toks = {}
    A("s_mul_i32 s30, s22, 7168")
    A("s_lshl_b32 s32, s22, 10")
    for q in range(7):
        A(f"s_add_u32 m0, s32, {K3_W + q * 8192}")
        A(f"s_add_u32 s31, s30, {q * 64 * 896}")
        A("buffer_load_dwordx4 v5, s[8:11], s31 offen lds")

    def xtile():
        A("s_lshl_b32 s35, s22, 10")
        A(f"s_add_u32 m0, s35, {K3_X}")
        if layer == 0:
            A("s_lshl_b32 s34, s24, 6")
            A("s_lshl_b32 s35, s22, 3")
            A("s_add_u32 s34, s34, s35")
            A("s_mul_i32 s34, s34, 896")
            A("buffer_load_dwordx4 v5, s[12:15], s34 offen lds")
        else:
            A("s_and_b32 s34, s22, 1")
            A("s_lshl_b32 s34, s34, 3")
            A("v_add_u32 v20, s34, v3")
            A("v_lshlrev_b32 v21, 6, v20")
            A("v_mul_u32_u24 v22, 48, v20")
            A("v_add_u32 v22, 960, v22")
            A("s_lshl_b32 s34, s23, 3")
            x2_addr(A, 23, 4, 34, 21, 22)
            A("s_lshl_b32 s34, s24, 2")
            A("s_lshr_b32 s35, s22, 1")
            A("s_add_u32 s34, s34, s35")
            A("s_mul_i32 s34, s34, 14336")
            A("buffer_load_dwordx4 v23, s[12:15], s34 offen lds")
    if layer == 0:
        xtile()
    if pers:
        A("s_lshr_b32 s34, s24, 1")
        A("s_lshl_b32 s34, s34, 7")
        A(f"s_add_u32 s34, s34, {hex(C2(layer))}")
        A("v_mov_b32 v10, 0")
        await_cnt(A, 16, 34, 10, 1, 16)
    A("s_lshl_b32 s32, s22, 13")
    A("s_lshl_b32 s29, s24, 16")
    A("s_add_u32 s30, s29, s32")
    for q in range(8):
        A(f"s_add_u32 m0, s32, {K3_O + q * 1024}")
        A(f"s_add_u32 s31, s30, {q * 1024}")
        toks[0] = A("buffer_load_dwordx4 v2, s[4:7], s31 offen lds")
        if q == 1 and "nofb" not in OPT:
            A("s_barrier")
    if layer == 1:
        xtile()
        toks[0] = A.vmq[-1]["tok"]
    if PREFETCH and layer == 0 and not pers:
        w1_prefetch(A, 48, 224, 126)
    A.stamp(1)
    A("s_and_b32 s33, s22, 1")
    A("s_lshr_b32 s34, s22, 1")
    A("s_lshl_b32 s35, s33, 15")
    A("v_add_u32 v6, s35, v2")
    A("v_lshrrev_b32 v7, 4, v1")
    A("v_bfe_u32 v8, v1, 2, 2")
    A("v_and_b32 v9, 3, v1")
    A("v_lshrrev_b32 v10, 1, v7")
    A("v_and_b32 v11, 1, v7")
    A("v_lshlrev_b32 v12, 4, v10")
    A("v_lshl_add_u32 v12, v11, 2, v12")
    A("v_add_u32 v12, v12, v8")
    A("v_lshlrev_b32 v12, 7, v12")
    A("v_lshl_add_u32 v12, v9, 3, v12")
    A("v_lshrrev_b32 v13, 1, v8")
    A("v_lshl_add_u32 v13, v11, 1, v13")
    A("v_xor_b32 v14, s34, v13")
    A("v_lshl_add_u32 v16, v14, 5, v12")
    A(f"v_add_u32 v16, {K3_W}, v16")
    A("v_add_u32 v13, 2, v13")
    A("v_and_b32 v13, 3, v13")
    A("v_xor_b32 v14, s34, v13")
    A("v_lshl_add_u32 v17, v14, 5, v12")
    A(f"v_add_u32 v17, {K3_W}, v17")
    A("v_lshl_add_u32 v14, v7, 2, v8")
    A("v_bfe_u32 v15, v14, 1, 2")
    A("v_lshlrev_b32 v14, 7, v14")
    A("v_lshl_add_u32 v14, v9, 3, v14")
    A("s_lshl_b32 s38, s33, 12")
    A(f"s_add_u32 s38, s38, {K3_X}")
    A("v_add_u32 v14, s38, v14")
    A("v_xor_b32 v20, s34, v15")
    A("v_lshl_add_u32 v18, v20, 5, v14")
    ACC = 32
    AF3, BF3 = 48, 72

    def reads(kp, buf):
        for mt in range(2):
            A(f"ds_read_b128 {v(AF3 + 8 * buf + 4 * mt, 4)}, v6 offset:{mt * 16384 + kp * 1024}")
        for t in range(2):
            A(f"ds_read_b64_tr_b16 {v(BF3 + 4 * buf + 2 * t, 2)}, v{16 + (kp & 1)} offset:{kp * 3584 + t * 1024}")

    def mfmas(kp, buf):
        for mt in range(2):
            c = "0" if kp == 0 else v(ACC + 4 * mt, 4)
            A(f"v_mfma_f32_16x16x32_bf16 {v(ACC + 4 * mt, 4)}, {v(AF3 + 8 * buf + 4 * mt, 4)}, {v(BF3 + 4 * buf, 4)}, {c}")

    A.wait_vm(toks[0])
    A("s_barrier")
    A.stamp(2)
    if "rtg" in OPT:
        rtp(A, "k3bar1")
    reads(0, 0)
    reads(1, 1)
    for kp in range(16):
        if kp + 2 < 16:
            reads(kp + 2, (kp + 2) % 3)
        if kp == 13:
            for mt in range(2):
                A(f"ds_read_b64_tr_b16 {v(96 + 2 * mt, 2)}, v18 offset:{mt * 2048}")
        mfmas(kp, kp % 3)
    A.stamp(4)
    XR = 96
    PKD = 112
    for mt in range(2):
        for hlf in range(2):
            x = XR + 2 * mt + hlf
            A(f"v_lshlrev_b32 v104, 16, v{x}")
            A(f"v_and_b32 v105, 0xffff0000, v{x}")
            A(f"v_add_f32 v{ACC + 4 * mt + 2 * hlf}, v{ACC + 4 * mt + 2 * hlf}, v104")
            A(f"v_add_f32 v{ACC + 4 * mt + 2 * hlf + 1}, v{ACC + 4 * mt + 2 * hlf + 1}, v105")
            A(f"v_cvt_pk_bf16_f32 v{PKD + 2 * mt + hlf}, v{ACC + 4 * mt + 2 * hlf}, v{ACC + 4 * mt + 2 * hlf + 1}")
    A("s_lshl_b32 s39, s24, 1")
    A("s_add_u32 s39, s39, s33")
    A("s_mul_i32 s39, s39, 28672")
    A("s_lshl_b32 s40, s23, 3")
    A("s_lshl_b32 s41, s34, 1")
    A("s_add_u32 s40, s40, s41")
    A("s_lshl_b32 s40, s40, 9")
    A("s_add_u32 s39, s39, s40")
    A(f"s_add_u32 s39, s39, {hex(WS_X1F + layer * LB)}")
    A("v_bfe_u32 v21, v1, 3, 1")
    A("v_lshlrev_b32 v21, 9, v21")
    A("v_lshl_add_u32 v21, v7, 7, v21")
    A("v_and_b32 v22, 7, v1")
    A("v_lshl_add_u32 v21, v22, 4, v21")
    A(f"buffer_store_dwordx4 {v(PKD, 4)}, v21, s[16:19], s39 offen")
    TP = 136
    A("v_and_b32 v22, 15, v1")
    A(f"v_mul_u32_u24 v23, {TP}, v22")
    A("v_lshl_add_u32 v23, v7, 3, v23")
    A(f"s_mul_i32 s41, s34, {16 * TP}")
    A("s_lshl_b32 s42, s33, 6")
    A("s_add_u32 s41, s41, s42")
    A(f"s_add_u32 s41, s41, {K3_T}")
    A("v_add_u32 v23, s41, v23")
    for mt in range(2):
        A(f"ds_write_b64 v23, {v(PKD + 2 * mt, 2)} offset:{mt * 32}")
    A("v_lshl_add_u32 v24, v7, 2, v8")
    A(f"v_mul_u32_u24 v24, {TP}, v24")
    A("v_lshl_add_u32 v24, v9, 3, v24")
    A("v_add_u32 v24, s41, v24")
    TR = 120
    for mt in range(2):
        A(f"ds_read_b64_tr_b16 {v(TR + 2 * mt, 2)}, v24 offset:{mt * 32}")
    A("s_lshl_b32 s42, s24, 2")
    A("s_lshl_b32 s43, s33, 1")
    A("s_add_u32 s42, s42, s43")
    A("s_mul_i32 s43, s42, 14336")
    A("s_lshl_b32 s44, s23, 4")
    A("s_lshl_b32 s45, s34, 2")
    A("s_add_u32 s44, s44, s45")
    A("s_lshl_b32 s44, s44, 7")
    A("s_add_u32 s43, s43, s44")
    A(f"s_add_u32 s43, s43, {hex(WS_X1T + layer * LB)}")
    A("v_lshlrev_b32 v25, 7, v7")
    A("v_lshl_add_u32 v25, v22, 3, v25")
    A("v_mov_b32 v26, 0x3f803f80")
    for i in range(4):
        A(f"v_mov_b32 v{28 + i}, 0")
    for mt in range(2):
        A(f"s_add_u32 s44, s43, {mt * 14336}")
        A(f"buffer_store_dwordx2 {v(TR + 2 * mt, 2)}, v25, s[16:19], s44 offen")
        for hlf in range(2):
            A(f"v_dot2_f32_bf16 v{28 + 2 * mt}, v{TR + 2 * mt + hlf}, v26, v{28 + 2 * mt}")
            A(f"v_dot2_f32_bf16 v{29 + 2 * mt}, v{TR + 2 * mt + hlf}, v{TR + 2 * mt + hlf}, v{29 + 2 * mt}")
    A("v_cmp_gt_u32 vcc, 16, v1")
    A("v_lshlrev_b32 v27, 2, v1")
    A("s_lshl_b32 s44, s42, 7")
    A(f"s_add_u32 s44, s44, {hex(WS_ST + (0 if layer == 0 else 2) * 16384)}")
    for mt in range(2):
        reduce_groups(A, 28 + 2 * mt, 104)
        reduce_groups(A, 29 + 2 * mt, 105)
        A(f"v_cndmask_b32 v{106 + mt}, v{29 + 2 * mt}, v{28 + 2 * mt}, vcc")
    exec_lanes(A, 32)
    A("buffer_atomic_add_f32 v106, v27, s[16:19], s44 offen")
    A("buffer_atomic_add_f32 v107, v27, s[16:19], s44 offen offset:128")
    exec_lanes(A, 64)
    if pers:
        A("s_and_b32 s34, s2, 7")
        A("s_lshl_b32 s34, s34, 7")
        A(f"s_add_u32 s34, s34, {hex(C3(layer))}")
        publish(A, 16, 34)
        A.raw(f"L_{name}_skip:")
        return None
    A.stamp(5)
    A.dump_stamps(STAMP_WG)
    kernel_end(A, name)
    return K3_LDS, 512, 256, 176


def pfx(A, name, nwg):
    kernel_begin(A, name, nwg)
    A(f"s_load_dwordx2 s[48:49], s[0:1], {KA_W1}")
    A("v_and_b32 v1, 63, v0")
    A("v_lshrrev_b32 v2, 6, v0")
    A("v_readfirstlane_b32 s22, v2")
    A.wait_all(vm=False)
    w1_prefetch(A, 48, nwg, 20)
    kernel_end(A, name)
    return 0, 512, 64, 64


def g12(A, name, layer):
    gk(A, name, layer, 1, fused=True)
    return gk(A, name, layer, 2, fused=True)


def idle_prefetch(A, layer):
    phase_begin(A)
    A(f"s_load_dwordx2 s[48:49], s[0:1], {KA_W1}")
    A(f"s_load_dwordx2 s[52:53], s[0:1], {KA_W2}")
    A("v_and_b32 v1, 63, v0")
    A("v_lshrrev_b32 v2, 6, v0")
    A("v_readfirstlane_b32 s22, v2")
    A("s_lshr_b32 s34, s2, 3")
    A("s_sub_u32 s34, s34, 28")
    A("s_lshl_b32 s34, s34, 3")
    A("s_add_u32 s34, s34, s22")
    A("s_bfe_u32 s36, s2, 0x20001")
    A.wait_all(vm=False)
    srd(A, 48, 48, 49, S * F * 2)
    srd(A, 52, 52, 53, S * F * 2)
    A("s_mul_i32 s35, s34, 448")
    A("s_mul_i32 s37, s36, 896")
    for q in range(7):
        A(f"s_add_u32 s38, s35, {64 * q}")
        A("v_add_u32 v10, s38, v1")
        div_const(A, "v11", "v10", 7, 39, rng=14400)
        A("v_mul_u32_u24 v12, 7, v11")
        A("v_sub_u32 v12, v10, v12")
        A("v_mul_u32_u24 v11, 3584, v11")
        A("v_lshl_add_u32 v11, v12, 7, v11")
        A.touch("buffer_load_dword v13, v11, s[48:51], s37 offen")
    if layer == 0:
        A("s_sub_u32 s35, s2, 224")
        A("s_lshl_b32 s35, s35, 3")
        A("s_add_u32 s35, s35, s22")
        A("s_mul_i32 s35, s35, 28672")
        A("v_lshlrev_b32 v10, 7, v1")
        for q in range(4):
            A(f"s_add_u32 s38, s35, {8192 * q}")
            if q == 3:
                exec_lanes(A, 32)
            A.touch("buffer_load_dword v13, v10, s[52:55], s38 offen")
        exec_lanes(A, 64)
    else:
        A("s_mul_i32 s35, s34, 448")
        A("s_lshl_b32 s37, s36, 10")
        for q in range(7):
            A(f"s_add_u32 s38, s35, {64 * q}")
            A("v_add_u32 v10, s38, v1")
            A("v_lshrrev_b32 v11, 3, v10")
            A("v_lshlrev_b32 v11, 12, v11")
            A("v_and_b32 v12, 7, v10")
            A("v_lshl_add_u32 v11, v12, 7, v11")
            A.touch("buffer_load_dword v13, v11, s[52:55], s37 offen")


def tlb_warm(A):
    A(f"s_load_dwordx2 s[64:65], s[0:1], {KA_W1}")
    A(f"s_load_dwordx2 s[68:69], s[0:1], {KA_W2}")
    A(f"s_load_dwordx2 s[72:73], s[0:1], {KA_OUT}")
    A(f"s_load_dwordx2 s[76:77], s[0:1], {KA_WO}")
    A("v_lshlrev_b32 v12, 21, v1")
    A.wait_all(vm=False)
    srd(A, 64, 64, 65, S * F * 2)
    srd(A, 68, 68, 69, S * F * 2)
    srd(A, 72, 72, 73, XBYTES)
    srd(A, 76, 76, 77, D * D * 2)
    exec_lanes(A, 24)
    A.touch("buffer_load_dword v13, v12, s[12:15], 0 offen")
    exec_lanes(A, 4)
    A.touch("buffer_load_dword v13, v12, s[64:67], 0 offen")
    A.touch("buffer_load_dword v13, v12, s[68:71], 0 offen")
    exec_lanes(A, 1)
    A.touch("buffer_load_dword v13, v12, s[72:75], 0 offen")
    A.touch("buffer_load_dword v13, v12, s[76:79], 0 offen")
    exec_lanes(A, 64)


def pk(A, name):
    kernel_begin(A, name, 256)
    st = A.stamps
    A.stamps = False
    if "one" in OPT:
        k1(A, "pk1a", 0, pers=True)
    k2(A, "pk2a", 0, pers=True)
    k3(A, "pk3a", 0, pers=True)
    if "g1old" in OPT:
        gk(A, "pg1a", 0, 1, pers=True)
    else:
        g1v2(A, "pg1a", 0, pers=True)
    if PREFETCH:
        A("s_branch L_pg1a_go")
        A.raw("L_pk3a_idle:")
        idle_prefetch(A, 0)
        A.raw("L_pg1a_go:")
    gk(A, "pg2a", 0, 2, pers=True)
    k1(A, "pk1b", 1, pers=True)
    k2(A, "pk2b", 1, pers=True)
    k3(A, "pk3b", 1, pers=True)
    if "g1old" in OPT:
        gk(A, "pg1b", 1, 1, pers=True)
    else:
        g1v2(A, "pg1b", 1, pers=True)
    if PREFETCH:
        A("s_branch L_pg1b_go")
        A.raw("L_pk3b_idle:")
        idle_prefetch(A, 1)
        A.raw("L_pg1b_go:")
    gk(A, "pg2b", 1, 2, pers=True)
    A.stamps = st
    phase_begin(A)
    kernel_end(A, name)
    return G_LDS, 512, 256, 176


def kd2(name, nv, acc):
    return kd(name, nv=nv, acc=acc)


def build(kernels, path, stamps=False):
    A = Asm()
    A.stamps = stamps
    A.store_mod = "sc0 sc1"
    if "ldsc1" in OPT:
        A.load_mod = "sc1"
    for o in OPT:
        if o.startswith("st="):
            A.store_mod = o[3:].replace("+", " ")
    launches = []
    kds = []
    for (name, fn, args, grid) in kernels:
        lds, threads, nv, acc = fn(A, name, *args)
        if name == MAIN:
            launches.append(f"; @launch grid=({grid},1,1) block=({threads},1,1) lds={lds}")
        else:
            launches.append(f"; @launch kernel={name} grid=({grid},1,1) block=({threads},1,1) lds={lds}")
        kds.append(kd2(name, nv, acc))
    head = open("interleave_layers__sliding_block__mixer_token_mlp__prompt.s.ref").read()
    hdr = [l for l in head.splitlines() if l.startswith(";") and "@launch" not in l][:12]
    txt = "\n".join(hdr) + "\n" + "\n".join(launches) + "\n"
    txt += '.amdgcn_target "amdgcn-amd-amdhsa--gfx950"\n.text\n'
    txt += A.text()
    txt += '.section .rodata,"a"\n' + "\n".join(kds) + "\n"
    open(path, "w").write(txt)
    if RTN:
        open("rtn.txt", "w").write(repr(RTN))
    print(f"wrote {path}: {A.ninstr} instrs, {A.nops_inserted} nop states inserted, {len(txt)} bytes")


if __name__ == "__main__":
    ks = []
    for L, c in enumerate("ab"):
        ks += [(f"k1{c}_kernel", k1, (L,), 256), (f"k2{c}_kernel", k2, (L,), 256), (f"k3{c}_kernel", k3, (L,), 224),
               ] + ([(f"g12{c}_kernel", g12, (L,), 256)] if "fuse" in OPT else
                    [(f"g1{c}_kernel", gk, (L, 1), 224), (f"g2{c}_kernel", gk, (L, 2), 256)])
    if "pers" in OPT:
        ks = [("k1a_kernel", k1, (0,), 256), ("pb_kernel", pk, (), 256)]
        if "one" in OPT:
            ks = [(MAIN, pk, (), 256)]
    if "pfx" in OPT:
        ks += [("pfx_kernel", pfx, (224,), 224), ("pfy_kernel", pfx, (256,), 256)]
    build(ks, sys.argv[1] if len(sys.argv) > 1 else "dev.s", stamps=("--stamps" in sys.argv))
```

```python
import re

REG_RE = re.compile(r"^(v|a|s)(\d+)$|^(v|a|s)\[(\d+):(\d+)\]$")


def parse_reg(tok):
    tok = tok.strip()
    neg = tok
    if neg.startswith("-"):
        neg = neg[1:]
    if neg.startswith("abs(") and neg.endswith(")"):
        neg = neg[4:-1]
    if neg.startswith("|") and neg.endswith("|"):
        neg = neg[1:-1]
    m = REG_RE.match(neg)
    if m:
        if m.group(1):
            return {(m.group(1), int(m.group(2)))}
        return {(m.group(3), i) for i in range(int(m.group(4)), int(m.group(5)) + 1)}
    if neg == "vcc":
        return {("s", 106), ("s", 107)}
    if neg == "vcc_lo":
        return {("s", 106)}
    if neg == "vcc_hi":
        return {("s", 107)}
    if neg == "exec":
        return {("x", 0), ("x", 1)}
    if neg == "exec_lo":
        return {("x", 0)}
    if neg == "exec_hi":
        return {("x", 1)}
    if neg == "m0":
        return {("m", 0)}
    if neg == "scc":
        return {("c", 0)}
    return set()


TRANS = ("v_exp_f32", "v_log_f32", "v_rcp_f32", "v_rsq_f32", "v_sqrt_f32", "v_sin_f32", "v_cos_f32",
         "v_rcp_iflag_f32")


class Ins:
    __slots__ = ("text", "op", "defs", "uses", "kind", "passes", "srcc", "comment", "vm", "lg", "is_store_wide",
                 "store_data", "lds_dma", "dpp")

    def __init__(self, text):
        self.text = text
        body = text.split(";")[0].strip()
        parts = body.split(None, 1)
        self.op = parts[0]
        rest = parts[1] if len(parts) > 1 else ""
        ops = []
        cur = ""
        depth = 0
        for ch in rest:
            if ch == "[":
                depth += 1
            if ch == "]":
                depth -= 1
            if ch == "," and depth == 0:
                ops.append(cur.strip())
                cur = ""
            else:
                cur += ch
        if cur.strip():
            ops.append(cur.strip())
        mods = []
        if ops:
            last = ops[-1].split()
            ops[-1] = last[0]
            mods = last[1:]
        op = self.op
        self.defs = set()
        self.uses = set()
        self.kind = "other"
        self.passes = 0
        self.srcc = set()
        self.vm = False
        self.lg = False
        self.is_store_wide = False
        self.store_data = set()
        self.lds_dma = False
        self.dpp = any(m.startswith(("row_", "quad_perm", "wave_", "row_bcast", "bank_mask", "row_mask")) for m in mods)
        R = [parse_reg(o) for o in ops]
        if op.startswith("v_mfma"):
            self.kind = "mfma"
            self.passes = 8 if "32x32" in op else 4
            self.defs = R[0]
            self.uses = R[1] | R[2] | R[3]
            self.srcc = R[3]
        elif op.startswith("v_"):
            self.kind = "trans" if op.replace("_e32", "").replace("_e64", "") in TRANS else "valu"
            base = op.replace("_e32", "").replace("_e64", "")
            if base.startswith("v_cmp"):
                self.defs = R[0]
                for r in R[1:]:
                    self.uses |= r
                if base.startswith("v_cmpx"):
                    self.defs |= {("x", 0), ("x", 1)}
            elif base in ("v_add_co_u32", "v_sub_co_u32", "v_subrev_co_u32"):
                self.defs = R[0] | R[1]
                for r in R[2:]:
                    self.uses |= r
            elif base in ("v_addc_co_u32", "v_subb_co_u32"):
                self.defs = R[0] | R[1]
                for r in R[2:]:
                    self.uses |= r
            elif base.startswith("v_permlane") and "swap" in base:
                self.defs = R[0] | R[1]
                self.uses = R[0] | R[1]
                self.kind = "permlane"
            elif base in ("v_fmac_f32", "v_dot2c_f32_bf16", "v_pk_fmac_f16", "v_mac_f32", "v_writelane_b32"):
                self.defs = R[0]
                for r in R:
                    self.uses |= r
            else:
                self.defs = R[0]
                for r in R[1:]:
                    self.uses |= r
                if base == "v_cndmask_b32" and len(ops) == 3:
                    self.uses |= parse_reg("vcc")
            if base in ("v_readfirstlane_b32", "v_readlane_b32"):
                self.kind = "readlane"
            self.uses |= {("x", 0), ("x", 1)}
        elif op.startswith("ds_"):
            self.kind = "ds"
            self.lg = True
            if op.startswith(("ds_read", "ds_bpermute", "ds_permute", "ds_swizzle")) or "_rtn" in op:
                self.defs = R[0]
                for r in R[1:]:
                    self.uses |= r
            else:
                for r in R:
                    self.uses |= r
        elif op.startswith(("buffer_", "global_")):
            self.kind = "vmem"
            self.vm = True
            if op in ("buffer_inv", "buffer_wbl2"):
                pass
            elif "lds" in mods or "_lds_" in op:
                self.lds_dma = True
                for r in R:
                    self.uses |= r
                self.uses |= {("m", 0)}
            elif op.startswith(("buffer_load", "global_load")):
                self.defs = R[0]
                for r in R[1:]:
                    self.uses |= r
            elif "atomic" in op:
                for r in R:
                    self.uses |= r
                if "sc0" in mods:
                    self.defs = R[0] if op.startswith("buffer") else R[0]
            else:
                for r in R:
                    self.uses |= r
                data = R[0] if op.startswith("buffer") else R[1]
                if "x3" in op or "x4" in op:
                    self.is_store_wide = True
                    self.store_data = data
        elif op.startswith("s_"):
            self.kind = "salu"
            if op.startswith("s_load") or op.startswith("s_buffer_load") or op in ("s_memtime", "s_memrealtime"):
                self.kind = "smem"
                self.lg = True
                self.defs = R[0]
                for r in R[1:]:
                    self.uses |= r
            elif op.startswith(("s_cmp", "s_bitcmp")):
                for r in R:
                    self.uses |= r
                self.defs = {("c", 0)}
            elif op in ("s_waitcnt", "s_nop", "s_barrier", "s_endpgm", "s_branch", "s_sleep", "s_setprio") or \
                    op.startswith("s_cbranch"):
                self.kind = "ctl"
            elif "saveexec" in op:
                self.defs = R[0] | {("x", 0), ("x", 1), ("c", 0)}
                for r in R[1:]:
                    self.uses |= r
                self.uses |= {("x", 0), ("x", 1)}
            else:
                self.defs = R[0] if R else set()
                for r in R[1:]:
                    self.uses |= r
                if op.startswith(("s_add", "s_sub", "s_and", "s_or", "s_xor", "s_lshl", "s_lshr", "s_ashr", "s_min",
                                  "s_max", "s_not", "s_andn2", "s_bfe")):
                    self.defs = self.defs | {("c", 0)}
                if op in ("s_addk_i32", "s_mulk_i32"):
                    self.uses |= R[0]
                if op.startswith("s_cselect") or op.startswith("s_addc") or op.startswith("s_subb"):
                    self.uses |= {("c", 0)}

    def nstates(self):
        if self.op == "s_nop":
            return int(self.text.split()[1], 0) + 1
        return 1


def is_vgprish(r):
    return r[0] in ("v", "a")


class Asm:
    def __init__(self):
        self.out = []
        self.hist = []
        self.vmq = []
        self.lgq = []
        self.smem_pending = False
        self.ntok = 0
        self.nops_inserted = 0
        self.ninstr = 0

    def raw(self, text):
        self.out.append(text)

    def comment(self, text):
        self.out.append("    ; " + text)

    def label(self, name):
        self.out.append(name + ":")

    def _required_nops(self, ins):
        need = 0
        age = 0
        for p in reversed(self.hist):
            req = 0
            pv = p.kind in ("valu", "trans", "permlane", "readlane")
            vdefs = {r for r in p.defs if is_vgprish(r)}
            sdefs = {r for r in p.defs if r[0] == "s"}
            if pv:
                if ins.kind == "mfma" and vdefs & ins.uses:
                    req = max(req, 2)
                if ins.kind in ("valu", "trans", "permlane", "readlane") and sdefs & ins.uses:
                    req = max(req, 4 if ins.op.startswith(("v_readlane", "v_writelane")) else 2)
                if ins.kind == "vmem" and sdefs & ins.uses:
                    req = max(req, 5)
                if ins.kind == "readlane" and vdefs & ins.uses:
                    req = max(req, 1)
                if ins.kind == "permlane" and vdefs & ins.uses:
                    req = max(req, 2)
                if ins.dpp and vdefs & ins.uses:
                    req = max(req, 2)
                if p.kind == "trans" and ins.kind in ("valu", "permlane", "readlane", "mfma", "vmem", "ds") and \
                        vdefs & ins.uses:
                    req = max(req, 1)
                if ("x", 0) in p.defs and ins.kind == "mfma":
                    req = max(req, 4)
                if ("x", 0) in p.defs and ins.dpp:
                    req = max(req, 5)
                if ("x", 0) in p.defs and ins.kind in ("permlane", "readlane"):
                    req = max(req, 4)
            if p.op.startswith("v_dot") and (vdefs & (ins.uses | ins.defs)):
                same = ins.op == p.op
                srcc_only = False
                if same:
                    ops_ = [x.strip() for x in ins.text.split(None, 1)[1].split(",")]
                    ab = parse_reg(ops_[1]) | parse_reg(ops_[2])
                    srcc_only = not (vdefs & ab)
                if not (same and srcc_only):
                    req = max(req, 3)
            if p.kind == "mfma":
                big = 12 if p.passes == 8 else 8
                mid = 10 if p.passes == 8 else 6
                war = 7 if p.passes == 8 else 3
                if ins.kind == "mfma":
                    ab = ins.uses - ins.srcc
                    if p.defs & (ins.uses - ins.srcc):
                        req = max(req, big)
                    if p.defs & ins.srcc:
                        if ins.srcc == p.defs and ins.passes == p.passes:
                            pass
                        else:
                            req = max(req, mid)
                    if (p.defs & ins.defs) and not (ins.srcc == p.defs):
                        req = max(req, mid)
                else:
                    if p.defs & (ins.uses | ins.defs):
                        req = max(req, big)
                    if ins.kind in ("valu", "trans", "permlane", "readlane") and (p.srcc & ins.defs):
                        req = max(req, war)
            if p.kind == "salu" and ("m", 0) in p.defs and ins.lds_dma:
                req = max(req, 1)
            if p.is_store_wide and (p.store_data & ins.defs):
                req = max(req, 2 if ins.kind in ("valu", "trans", "permlane", "readlane") else 1)
            if req > age:
                need = max(need, req - age)
            age += p.nstates()
            if age > 24:
                break
        return need

    def _push(self, ins):
        self.out.append("    " + ins.text)
        self.hist.append(ins)
        if len(self.hist) > 40:
            self.hist = self.hist[-40:]
        self.ninstr += 1

    def nop(self, n):
        while n > 0:
            k = min(n, 16)
            self._push(Ins(f"s_nop {k - 1}"))
            n -= k

    def _auto_wait(self, ins):
        regs = ins.uses | ins.defs
        vm_need = None
        for i, o in enumerate(self.vmq):
            if o["defs"] & regs:
                vm_need = len(self.vmq) - 1 - i
        lg_need = None
        for i, o in enumerate(self.lgq):
            if o["defs"] & regs:
                lg_need = len(self.lgq) - 1 - i
                if o.get("smem"):
                    lg_need = 0
        if lg_need is not None and any(o.get("smem") for o in self.lgq):
            lg_need = 0
        self._emit_wait(vm_need, lg_need)

    def _emit_wait(self, vm, lg):
        parts = []
        if vm is not None and vm < len(self.vmq):
            vm = min(vm, 63)
            parts.append(f"vmcnt({vm})")
            self.vmq = self.vmq[len(self.vmq) - vm:] if vm > 0 else []
        if lg is not None and lg < len(self.lgq):
            lg = min(lg, 15)
            parts.append(f"lgkmcnt({lg})")
            self.lgq = self.lgq[len(self.lgq) - lg:] if lg > 0 else []
        if parts:
            self._push(Ins("s_waitcnt " + " ".join(parts)))

    def wait_vm(self, tok):
        for i, o in enumerate(self.vmq):
            if o["tok"] == tok:
                self._emit_wait(len(self.vmq) - 1 - i, None)
                return

    def wait_lg(self, tok):
        for i, o in enumerate(self.lgq):
            if o["tok"] == tok:
                n = len(self.lgq) - 1 - i
                if any(x.get("smem") for x in self.lgq):
                    n = 0
                self._emit_wait(None, n)
                return

    def wait_all(self, vm=True, lg=True):
        self._emit_wait(0 if vm else None, 0 if lg else None)

    def force_wait(self, vm=None, lg=None):
        parts = []
        if vm is not None:
            parts.append(f"vmcnt({vm})")
            self.vmq = self.vmq[len(self.vmq) - vm:] if (vm > 0 and vm < len(self.vmq)) else ([] if vm == 0 else self.vmq)
        if lg is not None:
            parts.append(f"lgkmcnt({lg})")
            self.lgq = self.lgq[len(self.lgq) - lg:] if (lg > 0 and lg < len(self.lgq)) else ([] if lg == 0 else self.lgq)
        self._push(Ins("s_waitcnt " + " ".join(parts)))

    def __call__(self, text):
        if getattr(self, "store_mod", None) and text.startswith("buffer_store"):
            text = text + " " + self.store_mod
        if getattr(self, "load_mod", None) and text.startswith("buffer_load") and "sc1" not in text:
            if text.endswith(" lds"):
                text = text[:-4] + " " + self.load_mod + " lds"
            else:
                text = text + " " + self.load_mod
        ins = Ins(text)
        self._auto_wait(ins)
        if ins.lg and len(self.lgq) >= 15:
            n14 = 0 if any(o.get("smem") for o in self.lgq) else 13
            self._emit_wait(None, n14)
        if ins.vm and len(self.vmq) >= 63:
            self._emit_wait(60, None)
        n = self._required_nops(ins)
        if n:
            self.nops_inserted += n
            self.nop(n)
        self._push(ins)
        tok = None
        if ins.vm:
            self.ntok += 1
            tok = self.ntok
            self.vmq.append({"defs": set(ins.defs), "tok": tok})
            assert len(self.vmq) <= 63, "too many outstanding vm ops: " + text
        if ins.lg:
            self.ntok += 1
            tok = self.ntok
            self.lgq.append({"defs": set(ins.defs), "tok": tok, "smem": ins.kind == "smem"})
            if len(self.lgq) > 15 and False:
                pass
        return tok

    def stamp(self, i):
        if not getattr(self, "stamps", False):
            return
        sb = getattr(self, "stamp_base", 70)
        self(f"s_memtime s[{sb + 2 * i}:{sb + 1 + 2 * i}]")
        self.wait_all(vm=False)
        self.nstamps = max(getattr(self, "nstamps", 0), i + 1)

    def dump_stamps(self, wg=0):
        if not getattr(self, "stamps", False):
            return
        n = self.nstamps
        sb = getattr(self, "stamp_base", 70)
        self.nstamps = 0
        self("s_load_dwordx2 s[60:61], s[0:1], 72")
        self.wait_all(vm=False)
        self("s_mov_b32 s62, 256")
        self("s_mov_b32 s63, 0x00020000")
        self(f"s_cmp_lg_u32 s2, {wg}")
        self("s_cbranch_scc1 L_nostamp_%d" % len(self.out))
        lab = "L_nostamp_%d" % (len(self.out) - 1)
        self("v_lshrrev_b32 v60, 6, v0")
        self("v_and_b32 v61, 63, v0")
        self("v_lshlrev_b32 v60, 5, v60")
        for i in range(n):
            self(f"s_sub_u32 s64, s{sb + 2 * i}, s{sb}")
            self("v_mov_b32 v62, s64")
            self(f"v_add_u32 v63, {4 * i}, v60")
            self("v_cmp_eq_u32 vcc, 0, v61")
            self("s_and_saveexec_b64 s[66:67], vcc")
            self("buffer_store_dword v62, v63, s[60:63], 0 offen")
            self("s_mov_b64 exec, s[66:67]")
        self.raw(lab + ":")

    def touch(self, text):
        ins = Ins(text)
        ins.defs = set()
        n = self._required_nops(ins)
        if n:
            self.nop(n)
        if len(self.vmq) >= 63:
            self._emit_wait(60, None)
        self._push(ins)
        self.ntok += 1
        self.vmq.append({"defs": set(), "tok": self.ntok})
        return self.ntok

    def text(self):
        return "\n".join(self.out) + "\n"


def v(i, n=1):
    return f"v{i}" if n == 1 else f"v[{i}:{i + n - 1}]"


def a(i, n=1):
    return f"a{i}" if n == 1 else f"a[{i}:{i + n - 1}]"


def s(i, n=1):
    return f"s{i}" if n == 1 else f"s[{i}:{i + n - 1}]"
```

```python
import sys
import struct
sys.path.insert(0, "tools")
OPT = set(sys.argv[1:])
from dsl import Asm, v, a, s

S, D, H, DH, F = 2048, 448, 16, 28, 1792
PREFETCH = 'nopf' not in sys.argv
KA_X, KA_WQKV, KA_WO, KA_BX, KA_W1, KA_B1, KA_W2, KA_B2, KA_OUT, KA_DBG, KA_WS = [8 * i for i in range(11)]
WS_QF = 0x000000
WS_KF = 0x200000
WS_VF = 0x400000
WS_OF = 0x600000
WS_X1T = 0x800000
WS_X1F = 0xA00000
WS_UF = 0xC00000
WS_X2 = 0xE00000
WS_WC = 0x1200000
WS_CS = 0x1380000
WS_CNT = 0x100C000
WS_ST = 0x1000000
XBYTES = S * D * 2
MAIN = "interleave_layers__sliding_block__mixer_token_mlp__prompt_kernel"
LB = 0x2000000
WSZ = 0x4000000


def f32(x):
    return struct.unpack("<I", struct.pack("<f", x))[0]


def hexf(x):
    return "0x%08x" % f32(x)


def srd(A, d, base_lo, base_hi, nbytes):
    if base_lo != d:
        A(f"s_mov_b32 s{d}, s{base_lo}")
    A(f"s_and_b32 s{d + 1}, s{base_hi}, 0xffff")
    A(f"s_mov_b32 s{d + 2}, {hex(nbytes)}")
    A(f"s_mov_b32 s{d + 3}, 0x00020000")


def srd_off(A, d, base_lo, base_hi, off, nbytes):
    A(f"s_add_u32 s{d}, s{base_lo}, {off}")
    A(f"s_addc_u32 s{d + 1}, s{base_hi}, 0")
    A(f"s_and_b32 s{d + 1}, s{d + 1}, 0xffff")
    A(f"s_mov_b32 s{d + 2}, {hex(nbytes)}")
    A(f"s_mov_b32 s{d + 3}, 0x00020000")


def kernel_begin(A, name, nwg):
    A.raw(f".globl {name}")
    A.raw(".p2align 8")
    A.raw(f".type {name},@function")
    A.raw(f"{name}:")
    A.hist = []
    A.vmq = []
    A.lgq = []
    A(f"s_cmp_ge_u32 s2, {nwg}")
    A(f"s_cbranch_scc1 L_{name}_end")
    if "rt" in OPT:
        A("s_memrealtime s[98:99]")


KIDX = [0]


def kernel_end(A, name):
    if "rt" in OPT:
        A.wait_all()
        A("s_memrealtime s[96:97]")
        A(f"s_load_dwordx2 s[60:61], s[0:1], {KA_WS}")
        A.wait_all()
        A("s_mov_b32 s62, 0x2000000")
        A("s_mov_b32 s63, 0x00020000")
        A("v_mov_b32 v2, s98")
        A("v_mov_b32 v3, s96")
        A("s_lshl_b32 s64, s2, 3")
        A(f"s_add_u32 s64, s64, {0x1800000 + KIDX[0] * 4096}")
        A("v_mov_b32 v4, s64")
        A("v_cmp_eq_u32 vcc, 0, v0")
        A("s_and_saveexec_b64 s[66:67], vcc")
        A(f"s_cbranch_execz L_{name}_end")
        A("buffer_store_dwordx2 v[2:3], v4, s[60:63], 0 offen")
        KIDX[0] += 1
    A.raw(f"L_{name}_end:")
    A("s_endpgm")


def kd(name, nv=512, acc=256, ns=102):
    return f"""
.p2align 6
.amdhsa_kernel {name}
  .amdhsa_next_free_vgpr {nv}
  .amdhsa_next_free_sgpr {ns}
  .amdhsa_accum_offset {acc}
  .amdhsa_group_segment_fixed_size 0
  .amdhsa_kernarg_size 88
  .amdhsa_user_sgpr_count 2
  .amdhsa_user_sgpr_kernarg_segment_ptr 1
  .amdhsa_system_sgpr_workgroup_id_x 1
.end_amdhsa_kernel"""


def div_const(A, dst, src, d, tmp_s, rng=4096):
    m = (1 << 20) // d + 1
    for x in range(0, rng):
        assert (x * m) >> 20 == x // d and x * m < (1 << 32), (x, d)
    A(f"s_mov_b32 s{tmp_s}, {m}")
    A(f"v_mul_lo_u32 {dst}, {src}, s{tmp_s}")
    A(f"v_lshrrev_b32 {dst}, 20, {dst}")


def exec_lanes(A, n):
    if n == 64:
        A("s_mov_b64 exec, -1")
    elif n <= 32:
        A(f"s_mov_b64 exec, {hex((1 << n) - 1)}")
    else:
        raise ValueError


STAMP_WG = 37


def interleave(main, fillers):
    n = len(main)
    done = 0
    for i, m in enumerate(main):
        m()
        want = (len(fillers) * (i + 1)) // n
        while done < want:
            fillers[done]()
            done += 1


def sprinkle(base, extra):
    if not base:
        return list(extra)
    out = []
    k = 0
    for i, b in enumerate(base):
        out.append(b)
        while k < (len(extra) * (i + 1)) // len(base):
            out.append(extra[k])
            k += 1
    out += extra[k:]
    return out


def C4(layer): return WS_CNT + layer * 1024
def C2(layer): return WS_CNT + 2048 + layer * 2048
def C3(layer): return WS_CNT + 6144 + layer * 1024
C5 = WS_CNT + 8192
F1 = WS_CNT + 10240
F0 = WS_CNT + 12288
UID = [0]
POLL_SLEEP = int(([o[6:] for o in OPT if o.startswith('sleep=')] + ['2'])[0])
NPOLL = int(([o[6:] for o in OPT if o.startswith('npoll=')] + ['1'])[0])
PV = 168


def publish(A, sr, soff_sgpr):
    UID[0] += 1
    lab = f"L_pub{UID[0]}"
    A.force_wait(vm=0, lg=0)
    A("s_barrier")
    A("v_mov_b32 v10, 0")
    A("v_mov_b32 v11, 1")
    A("v_cmp_eq_u32 vcc, 0, v0")
    A("s_and_saveexec_b64 s[44:45], vcc")
    A(f"s_cbranch_execz {lab}")
    A(f"buffer_atomic_add v11, v10, s[{sr}:{sr + 3}], s{soff_sgpr} offen sc1")
    A.raw(lab + ":")
    A("s_mov_b64 exec, -1")
    rtp(A, "publish")


def await_cnt(A, sr, soff_sgpr, vaddr, nlanes, target, pre=None):
    UID[0] += 1
    lp, lw, ld = f"L_awp{UID[0]}", f"L_aww{UID[0]}", f"L_awd{UID[0]}"
    A("s_cmp_lg_u32 s22, 0")
    A(f"s_cbranch_scc1 {lw}")
    A(f"s_mov_b64 exec, {hex((1 << nlanes) - 1)}")
    A("s_mov_b32 s45, 0x40000")
    ld_ = f"    buffer_load_dword v{{}}, v{vaddr}, s[{sr}:{sr + 3}], s{soff_sgpr} offen sc0 sc1"
    if pre is not None:
        A.raw("    s_waitcnt vmcnt(0)")
        A.raw(f"    v_cmp_gt_u32 vcc, {target}, v{pre}")
        A.raw(f"    s_cbranch_vccz {ld}")
    if NPOLL == 1:
        A.raw(lp + ":")
        A.raw(ld_.format(PV))
        A.raw("    s_waitcnt vmcnt(0)")
        A.raw(f"    v_cmp_gt_u32 vcc, {target}, v{PV}")
        A.raw(f"    s_cbranch_vccz {ld}")
        A.raw("    s_sub_u32 s45, s45, 1")
        A.raw("    s_cmp_lg_u32 s45, 0")
        A.raw(f"    s_cbranch_scc1 {lp}")
    else:
        A.raw("    s_waitcnt vmcnt(0)")
        for i in range(NPOLL):
            A.raw(ld_.format(PV + i))
            A.raw(f"    s_sleep {POLL_SLEEP}")
        A.raw(lp + ":")
        for i in range(NPOLL):
            A.raw(f"    s_waitcnt vmcnt({NPOLL - 1})")
            A.raw(f"    v_cmp_gt_u32 vcc, {target}, v{PV + i}")
            A.raw(f"    s_cbranch_vccz {ld}")
            A.raw(ld_.format(PV + i))
            A.raw(f"    s_sleep {POLL_SLEEP}")
        A.raw("    s_sub_u32 s45, s45, 1")
        A.raw("    s_cmp_lg_u32 s45, 0")
        A.raw(f"    s_cbranch_scc1 {lp}")
    A.raw(ld + ":")
    A.raw("    s_mov_b64 exec, -1")
    A.raw(lw + ":")
    A.hist = []
    A.nop(1)
    A("s_barrier")
    rtp(A, "await")


RTP = [0]
RTN = []


def rtp(A, label, r0=12):
    if "rtp" not in OPT:
        return
    UID[0] += 1
    lab = f"L_rtp{UID[0]}"
    A("s_memrealtime s[96:97]")
    A.force_wait(lg=0)
    A(f"v_mov_b32 v{r0}, s96")
    A("s_lshl_b32 s97, s2, 2")
    A(f"s_add_u32 s97, s97, {0x1900000 + RTP[0] * 1024}")
    A(f"v_mov_b32 v{r0 + 1}, s97")
    A("v_cmp_eq_u32 vcc, 0, v0")
    A("s_and_saveexec_b64 s[98:99], vcc")
    A(f"s_cbranch_execz {lab}")
    A.raw(f"    global_store_dword v{r0 + 1}, v{r0}, s[20:21]")
    A.raw(lab + ":")
    A("s_mov_b64 exec, s[98:99]")
    RTP[0] += 1
    RTN.append(label)


def phase_begin(A):
    A.hist = []
    A.vmq = []
    A.lgq = []
    A.nop(2)


def x2_addr(A, vd, vc, s8p, vt64, vt48, t0=12):
    A(f"v_add_u32 v{t0}, s{s8p}, v{vc}")
    A(f"v_mul_u32_u24 v{t0 + 1}, 37, v{t0}")
    A(f"v_lshrrev_b32 v{t0 + 1}, 8, v{t0 + 1}")
    A(f"v_mul_u32_u24 v{t0 + 2}, 7, v{t0 + 1}")
    A(f"v_sub_u32 v{t0}, v{t0}, v{t0 + 2}")
    A(f"v_cmp_lt_u32 vcc, 3, v{t0}")
    A(f"v_lshlrev_b32 v{t0}, 4, v{t0}")
    A(f"v_cndmask_b32 v{t0 + 2}, v{vt64}, v{vt48}, vcc")
    A(f"v_add_u32 v{t0}, v{t0}, v{t0 + 2}")
    A(f"v_mul_u32_u24 v{t0 + 1}, 1792, v{t0 + 1}")
    A(f"v_add_u32 v{vd}, v{t0}, v{t0 + 1}")


def reduce_groups(A, reg, tmp):
    A(f"v_mov_b32 v{tmp}, v{reg}")
    A(f"v_permlane16_swap_b32 v{tmp}, v{reg}")
    A(f"v_add_f32 v{reg}, v{reg}, v{tmp}")
    A(f"v_mov_b32 v{tmp}, v{reg}")
    A(f"v_permlane32_swap_b32 v{tmp}, v{reg}")
    A(f"v_add_f32 v{reg}, v{reg}, v{tmp}")


def w1_prefetch(A, sr, nwg, vd, prep_only=False):
    per = 14336 // (nwg // 8) // 8
    A("s_lshr_b32 s34, s2, 3")
    A("s_lshl_b32 s34, s34, 3")
    A("s_add_u32 s34, s34, s22")
    A(f"s_mul_i32 s35, s34, {per}")
    A("v_add_u32 v10, s35, v1")
    A("s_bfe_u32 s36, s2, 0x20001")
    div_const(A, "v11", "v10", 7, 35, rng=14400)
    A("v_mul_u32_u24 v12, 7, v11")
    A("v_sub_u32 v12, v10, v12")
    A("v_mul_u32_u24 v11, 3584, v11")
    A("v_lshl_add_u32 v11, v12, 7, v11")
    A("s_mul_i32 s36, s36, 896")
    srd(A, sr, sr, sr + 1, S * F * 2)
    if prep_only:
        A("s_mov_b32 s33, s36")
        return
    if per < 64:
        A(f"s_mov_b32 exec_hi, {hex((1 << (per - 32)) - 1)}")
    A.touch(f"buffer_load_dword v{vd}, v11, s[{sr}:{sr + 3}], s36 offen")
    if per < 64:
        A("s_mov_b64 exec, -1")


G_RING = 9
G_RB = G_RING * 4096
G_TAB = 4 * G_RB
G_LDS = G_TAB + 16384
G_PRE0 = int(([o[5:] for o in OPT if o.startswith("pre0=")] + ["3"])[0])
G_PREA = int(([o[5:] for o in OPT if o.startswith("prea=")] + ["5"])[0])
G_SP = int(([o[3:] for o in OPT if o.startswith("sp=")] + ["2"])[0])


def gk(A, name, layer, which, fused=False, pers=False):
    g1 = which == 1
    nwg = 224 if g1 else 256
    NK = 16 if g1 else 14
    pitch = 3584 if g1 else 4096
    if pers:
        phase_begin(A)
        if g1:
            A("s_cmp_ge_u32 s2, 224")
            A(f"s_cbranch_scc1 L_{name}_skip")
    elif not fused:
        kernel_begin(A, name, nwg)
    elif g1:
        kernel_begin(A, name, 256)
        A("s_cmp_ge_u32 s2, 224")
        A(f"s_cbranch_scc1 L_{name}_p2")
    else:
        A.raw(f"L_{name}_p2:")
        phase_begin(A)
    A.stamp_base = 70
    if not (fused and not g1) and not pers:
        A.stamp(0)
    A(f"s_load_dwordx2 s[20:21], s[0:1], {KA_WS}")
    A(f"s_load_dwordx2 s[4:5], s[0:1], {KA_W1 if g1 else KA_W2}")
    A(f"s_load_dwordx2 s[12:13], s[0:1], {KA_B1 if g1 else KA_B2}")
    if (not g1) and layer == 1:
        A(f"s_load_dwordx2 s[16:17], s[0:1], {KA_OUT}")
    if g1 and PREFETCH and not fused:
        A(f"s_load_dwordx2 s[92:93], s[0:1], {KA_W2}")
    A("v_and_b32 v1, 63, v0")
    A("v_lshrrev_b32 v2, 6, v0")
    A("v_readfirstlane_b32 s22, v2")
    NI4 = 7 if g1 else 8
    A("s_and_b32 s25, s2, 7")
    A("s_lshr_b32 s26, s2, 3")
    A("s_and_b32 s24, s25, 1")
    A("s_lshl_b32 s24, s24, 2")
    A("s_and_b32 s27, s26, 3")
    A("s_add_u32 s24, s24, s27")
    A("s_lshr_b32 s23, s25, 1")
    A(f"s_mul_i32 s23, s23, {NI4}")
    A("s_lshr_b32 s27, s26, 2")
    A("s_add_u32 s23, s23, s27")
    A("s_and_b32 s47, s22, 3")
    A("s_lshr_b32 s48, s22, 2")
    A("v_lshrrev_b32 v3, 3, v1")
    A("v_bfe_u32 v4, v1, 4, 2")
    A("v_lshlrev_b32 v4, 1, v4")
    A("v_and_b32 v5, 7, v1")
    A("v_xor_b32 v4, v4, v5")
    A(f"v_mul_u32_u24 v5, {pitch}, v3")
    A("v_lshl_add_u32 v5, v4, 4, v5")
    A(f"s_mul_i32 s27, s47, {NK * 32 * pitch}")
    A(f"s_mul_i32 s28, s48, {16 * pitch}")
    A("s_add_u32 s27, s27, s28")
    A("s_lshl_b32 s28, s23, 7")
    A("s_add_u32 s27, s27, s28")
    A("v_add_u32 v5, s27, v5")
    A("v_lshrrev_b32 v7, 4, v1")
    A("v_and_b32 v8, 7, v1")
    A("v_lshlrev_b32 v8, 4, v8")
    A("v_lshl_add_u32 v8, v7, 7, v8")
    A("v_bfe_u32 v9, v1, 3, 1")
    A("v_lshl_add_u32 v6, v9, 9, v8")
    A("s_cmp_eq_u32 s48, 0")
    A("s_cselect_b64 s[50:51], -1, 0")
    A("v_cndmask_b32 v9, v8, v6, s[50:51]")
    A.wait_all(vm=False)
    srd(A, 4, 4, 5, (S * F * 2))
    srd(A, 8, 20, 21, WSZ)
    srd(A, 12, 12, 13, (F if g1 else S) * 2)
    if (not g1) and layer == 1:
        srd(A, 16, 16, 17, XBYTES)
    elif not g1:
        srd_off(A, 16, 20, 21, hex(WS_X2), XBYTES)
    if g1:
        A(f"s_mul_i32 s29, s47, {16 * 28672}")
        A("s_mul_i32 s30, s24, 3584")
        A("s_add_u32 s29, s29, s30")
        A(f"s_add_u32 s29, s29, {hex(WS_X1F + layer * LB)}")
        bstep = 28672
    else:
        A("s_mul_i32 s29, s24, 56")
        A("s_mul_i32 s30, s47, 14")
        A("s_add_u32 s29, s29, s30")
        A("s_mul_i32 s29, s29, 3584")
        A(f"s_add_u32 s29, s29, {hex(WS_UF + layer * LB)}")
        bstep = 3584
    A("s_lshl_b32 s30, s48, 11")
    A("s_add_u32 s29, s29, s30")
    A(f"s_mul_i32 s31, s47, {G_RB}")
    A("s_lshl_b32 s30, s48, 11")
    A("s_add_u32 s49, s31, s30")
    NB = 8
    BR = 112
    toks = {}
    A(f"v_add_u32 v4, {8 * pitch - 1024}, v5")
    USE_ROT = "rotg" in OPT
    ROT = 54
    if USE_ROT:
        A("s_lshr_b32 s34, s2, 3")
        A(f"s_mul_i32 s34, s34, {NK * 2341 if g1 else NK * 2048}")
        A("s_lshr_b32 s34, s34, 16")
        A(f"s_mul_i32 s54, s34, {32 * pitch}")
        A(f"s_mul_i32 s55, s34, {bstep}")
        A("s_add_u32 s55, s55, s29")
        A(f"s_sub_u32 s56, {NK}, s34")
        A(f"s_mov_b32 s57, s34")

    def issue_ops(st, part=None):
        slot = st % G_RING
        b = BR + 8 * (st % NB)

        def fa0():
            A(f"s_add_u32 m0, s49, {slot * 4096}")
            if USE_ROT:
                A(f"s_cmp_le_u32 s56, {st}")
                A(f"s_cselect_b32 s35, {NK * 32 * pitch}, 0")
                A(f"s_add_u32 s32, s54, {st * 32 * pitch}")
                A("s_sub_u32 s32, s32, s35")
            else:
                A(f"s_mov_b32 s32, {st * 32 * pitch}")
            A("buffer_load_dwordx4 v5, s[4:7], s32 offen lds")

        def fb0():
            if USE_ROT:
                A(f"s_cmp_le_u32 s56, {st}")
                A(f"s_cselect_b32 s35, {NK * bstep}, 0")
                A(f"s_add_u32 s33, s55, {st * bstep}")
                A("s_sub_u32 s33, s33, s35")
            else:
                A(f"s_add_u32 s33, s29, {st * bstep}")
            A(f"buffer_load_dwordx4 {v(b, 4)}, v6, s[8:11], s33 offen")

        def fa1():
            A("buffer_load_dwordx4 v4, s[4:7], s32 offen offset:1024 lds")

        def fb1():
            toks[st] = A(f"buffer_load_dwordx4 {v(b + 4, 4)}, v9, s[8:11], s33 offen offset:1024")
        if part == "A":
            return [fa0, fa1]
        if part == "B":
            return [fb0, fb1]
        return [fa0, fa1, fb0, fb1]

    if "notouch" not in OPT:
        A("s_lshr_b32 s34, s2, 3")
        A("s_lshl_b32 s34, s34, 3")
        A("s_add_u32 s34, s34, s22")
        A("s_and_b32 s37, s2, 1")
        if g1:
            A("s_lshl_b32 s35, s34, 5")
        else:
            A("s_mul_i32 s35, s34, 25")
        A("v_add_u32 v10, s35, v1")
        if g1:
            div_const(A, "v12", "v10", 112, 38, rng=7200)
            A("v_mul_u32_u24 v13, 112, v12")
            A("v_sub_u32 v13, v10, v13")
            A("v_mul_u32_u24 v12, 28672, v12")
            A("v_lshl_add_u32 v12, v13, 7, v12")
            A("s_mul_i32 s37, s37, 14336")
            A(f"s_add_u32 s37, s37, {hex(WS_X1F + layer * LB)}")
        else:
            A("v_lshlrev_b32 v12, 7, v10")
            A("s_mul_i32 s37, s37, 802816")
            A(f"s_add_u32 s37, s37, {hex(WS_UF + layer * LB)}")
        exec_lanes(A, 32 if g1 else 25)
        A.touch("buffer_load_dword v99, v12, s[8:11], s37 offen")
        exec_lanes(A, 64)
    def stats_loads():
        A("v_lshrrev_b32 v10, 2, v1")
        A("v_lshlrev_b32 v10, 7, v10")
        A("v_and_b32 v11, 3, v1")
        A("v_lshl_add_u32 v10, v11, 4, v10")
        A("s_lshl_b32 s34, s22, 11")
        A(f"s_add_u32 s34, s34, {hex(WS_ST + (0 if layer == 0 else 2) * 16384)}")
        A("buffer_load_dwordx4 v[16:19], v10, s[8:11], s34 offen")
        A("buffer_load_dwordx4 v[20:23], v10, s[8:11], s34 offen offset:64")

    if g1 and not pers:
        stats_loads()
    PRE0 = G_PRE0
    PRE = 7
    F2 = (fused and not g1) or pers
    if F2:
        PRE0 = PRE
        PREA = G_PREA
        for st in range(PREA):
            for f in issue_ops(st, "A"):
                f()
    else:
        for st in range(PRE0):
            for f in issue_ops(st):
                f()
    EP = 100
    if g1:
        A("s_lshr_b32 s36, s47, 1")
        A("s_lshl_b32 s37, s23, 7")
        A("s_lshl_b32 s38, s36, 6")
        A("s_add_u32 s37, s37, s38")
        A("v_lshlrev_b32 v33, 3, v7")
        A(f"buffer_load_dwordx2 {v(EP, 2)}, v33, s[12:15], s37 offen")
        A(f"buffer_load_dwordx2 {v(EP + 2, 2)}, v33, s[12:15], s37 offen offset:32")

    def g2_early():
        A("s_lshl_b32 s36, s23, 2")
        A("s_add_u32 s36, s36, s47")
        A("s_mul_i32 s37, s36, 14336")
        A("s_mul_i32 s38, s24, 1792")
        A("s_add_u32 s37, s37, s38")
        A("s_lshl_b32 s38, s48, 10")
        A("s_add_u32 s37, s37, s38")
        A(f"s_add_u32 s37, s37, {hex(WS_X1T + layer * LB)}")
        A("v_and_b32 v33, 15, v1")
        A("v_lshlrev_b32 v35, 3, v33")
        A("v_lshl_add_u32 v35, v7, 7, v35")
        for k in range(2):
            A(f"buffer_load_dwordx2 {v(EP + 2 * k, 2)}, v35, s[8:11], s37 offen offset:{k * 512}")
        A("s_lshl_b32 s38, s36, 5")
        A("v_lshlrev_b32 v36, 1, v33")
        A(f"buffer_load_ushort v{EP + 4}, v36, s[12:15], s38 offen")
    if (not g1) and not F2:
        g2_early()
    if F2:
        if g1:
            A(f"s_mov_b32 s34, {hex(C3(layer))}")
            A("v_lshlrev_b32 v10, 7, v1")
            await_cnt(A, 8, 34, 10, 8, 28)
            stats_loads()
        else:
            A("s_lshl_b32 s34, s24, 7")
            A(f"s_add_u32 s34, s34, {hex(C4(layer))}")
            A("v_mov_b32 v10, 0")
            await_cnt(A, 8, 34, 10, 1, 28)
        for st in range(PRE0):
            for f in issue_ops(st, "B" if st < PREA else None):
                f()
            if st == 0 and "nofb" not in OPT:
                A("s_barrier")
        if not g1:
            g2_early()
    A.stamp(1)
    A("v_bfe_u32 v12, v1, 2, 2")
    A("v_and_b32 v13, 3, v1")
    A("v_and_b32 v14, 1, v7")
    A("v_lshlrev_b32 v15, 2, v7")
    A("v_add_u32 v15, v15, v12")
    A("v_lshlrev_b32 v15, 7, v15")
    A("v_lshl_add_u32 v15, v13, 3, v15")
    A("v_add_u32 v15, s31, v15")
    A("v_lshrrev_b32 v32, 1, v12")
    A("v_lshl_add_u32 v32, v14, 1, v32")
    for mt in range(4):
        A(f"v_xor_b32 v33, {mt}, v32")
        A(f"v_lshl_add_u32 v{36 + mt}, v33, 5, v15")
    if g1:
        for i in range(4):
            sm, sq = 16 + i, 20 + i
            A(f"v_mul_f32 v{sm}, {hexf(1.0 / 448)}, v{sm}")
            A(f"v_mul_f32 v{sq}, {hexf(1.0 / 448)}, v{sq}")
            A(f"v_fma_f32 v{sq}, -v{sm}, v{sm}, v{sq}")
            A(f"v_max_f32 v{sq}, 0, v{sq}")
            A(f"v_add_f32 v34, {hexf(1e-5)}, v{sq}")
            A("v_rcp_f32 v34, v34")
            A(f"v_mul_f32 v35, v{sq}, v34")
            A(f"v_add_f32 v35, {hexf(1e-5)}, v35")
            A("v_rcp_f32 v35, v35")
            A("v_mul_f32 v34, v34, v35")
            A(f"v_sqrt_f32 v{sq}, v34")
            A(f"v_mul_f32 v{sm}, -v{sm}, v{sq}")
        A("v_lshlrev_b32 v34, 4, v1")
        A("s_lshl_b32 s34, s22, 10")
        A(f"s_add_u32 s34, s34, {G_TAB}")
        A("v_add_u32 v34, s34, v34")
        A("ds_write_b128 v34, v[20:23]")
        A("ds_write_b128 v34, v[16:19] offset:8192")
        A("v_lshlrev_b32 v35, 4, v7")
        A("s_lshl_b32 s34, s47, 11")
        A(f"s_add_u32 s34, s34, {G_TAB}")
        A("v_add_u32 v35, s34, v35")
    AFR = [0, 16]
    ACC = 32
    BN = [40, 48]
    AB = [56, 72]
    TMP = 88

    def a_reads(st):
        slot = st % G_RING
        buf = st & 1
        if "nolds" in OPT and st > 1:
            return []
        return [(lambda mt=mt, t=t: A(f"ds_read_b64_tr_b16 {a(AFR[buf] + 4 * mt + 2 * t, 2)}, v{36 + mt} "
                                      f"offset:{slot * 4096 + t * 2048}")) for mt in range(4) for t in range(2)]

    def ab_reads(st):
        buf = st & 1
        ops = []
        if "nolds" in OPT and st > 1:
            return []

        if USE_ROT:
            def addr():
                A(f"s_add_u32 s46, s57, {st}")
                A("s_and_b32 s46, s46, 15")
                A("s_lshl_b32 s46, s46, 7")
                A(f"v_add_u32 v{96 + buf}, s46, v35")
            ops.append(addr)
            for t in range(2):
                ops.append(lambda t=t: A(f"ds_read_b128 {v(AB[buf] + 4 * t, 4)}, v{96 + buf} offset:{t * 64}"))
                ops.append(lambda t=t: A(f"ds_read_b128 {v(AB[buf] + 8 + 4 * t, 4)}, v{96 + buf} offset:{8192 + t * 64}"))
            return ops
        for t in range(2):
            ops.append(lambda t=t: A(f"ds_read_b128 {v(AB[buf] + 4 * t, 4)}, v35 offset:{st * 128 + t * 64}"))
            ops.append(lambda t=t: A(f"ds_read_b128 {v(AB[buf] + 8 + 4 * t, 4)}, v35 offset:{8192 + st * 128 + t * 64}"))
        return ops

    def norm_ops(st):
        buf = st & 1
        b = BR + 8 * (st % NB)
        ops = []
        if "nonorm" in OPT:
            return [(lambda d=d: A(f"v_mov_b32 v{BN[buf] + d}, v{b + d}")) for d in range(8)]
        for nt in range(2):
            for dp in range(2):
                d0, d1 = 2 * dp, 2 * dp + 1
                x0, x1 = b + 4 * nt + d0, b + 4 * nt + d1
                tb = TMP + 4 * (dp & 1)
                ops.append(lambda x0=x0, tb=tb: A(f"v_lshlrev_b32 v{tb}, 16, v{x0}"))
                ops.append(lambda x0=x0, tb=tb: A(f"v_and_b32 v{tb + 1}, 0xffff0000, v{x0}"))
                ops.append(lambda x1=x1, tb=tb: A(f"v_lshlrev_b32 v{tb + 2}, 16, v{x1}"))
                ops.append(lambda x1=x1, tb=tb: A(f"v_and_b32 v{tb + 3}, 0xffff0000, v{x1}"))
                for (o, dd) in ((0, d0), (2, d1)):
                    for e in range(2):
                        ops.append(lambda tb=tb, o=o, dd=dd, e=e: A(
                            f"v_fma_f32 v{tb + o + e}, v{tb + o + e}, v{AB[buf] + 2 * dd + e}, v{AB[buf] + 8 + 2 * dd + e}"))
                ops.append(lambda tb=tb, nt=nt, d0=d0: A(f"v_cvt_pk_bf16_f32 v{BN[buf] + 4 * nt + d0}, v{tb}, v{tb + 1}"))
                ops.append(lambda tb=tb, nt=nt, d1=d1: A(f"v_cvt_pk_bf16_f32 v{BN[buf] + 4 * nt + d1}, v{tb + 2}, v{tb + 3}"))
        return ops

    def mfma_ops(st):
        buf = st & 1
        ops = []
        if "nomfma" in OPT and st > 0:
            return [lambda: A("s_nop 0")]
        for nt in range(2):
            for mt in range(4):
                acc = a(ACC + 4 * (2 * mt + nt), 4)
                c = "0" if st == 0 else acc
                if g1:
                    ops.append(lambda acc=acc, c=c, mt=mt, nt=nt: A(
                        f"v_mfma_f32_16x16x32_bf16 {acc}, {a(AFR[buf] + 4 * mt, 4)}, {v(BN[buf] + 4 * nt, 4)}, {c}"))
                else:
                    b = BR + 8 * (st % NB)
                    ops.append(lambda acc=acc, c=c, mt=mt, nt=nt, b=b: A(
                        f"v_mfma_f32_16x16x32_bf16 {acc}, {v(b + 4 * nt, 4)}, {a(AFR[buf] + 4 * mt, 4)}, {c}"))
        return ops

    def sync_op(st):
        def f():
            A.wait_vm(toks[st])
            if "nobar" not in OPT:
                A("s_barrier")
        return f

    def w2_touch_ops():
        def f0():
            A("s_lshr_b32 s44, s2, 3")
            A("s_bfe_u32 s45, s2, 0x20001")
            A("s_lshl_b32 s44, s44, 6")
            A("s_lshl_b32 s46, s22, 3")
            A("s_add_u32 s44, s44, s46")
            A("v_and_b32 v98, 7, v1")
            A("v_add_u32 v98, s44, v98")
            A("v_lshlrev_b32 v98, 12, v98")
            A("v_lshl_add_u32 v98, v3, 7, v98")
            A("s_lshl_b32 s45, s45, 10")
            A("v_add_u32 v98, s45, v98")
            srd(A, 92, 92, 93, S * F * 2)

        def f1():
            A.touch("buffer_load_dword v99, v98, s[92:95], 0 offen")
        return [f0, f1]

    next_issue = PRE0
    A.stamp(5)
    A.wait_vm(toks[0])
    A.wait_all(vm=False)
    A.stamp(6)
    A("s_barrier")
    A.stamp(7)
    if "rtg" in OPT:
        rtp(A, f"g{which}loop0")
    for f in a_reads(0):
        f()
    if g1:
        for f in ab_reads(0) + ab_reads(1):
            f()
        for f in norm_ops(0):
            f()
    SPD = G_SP
    synced = 0
    for st in range(NK):
        vm = []
        n_iss = 0
        issued_before = next_issue - 1
        while next_issue < NK and next_issue <= st + PRE and n_iss < 2:
            if F2 and next_issue < PREA:
                vm += issue_ops(next_issue, "B")
            else:
                vm += issue_ops(next_issue)
            next_issue += 1
            n_iss += 1
        lds = []
        if st + 1 < NK:
            if st + 1 > synced:
                tgt = min(NK - 1, st + SPD, issued_before)
                lds += [sync_op(tgt)]
                synced = tgt
            lds += a_reads(st + 1)
        va = norm_ops(st + 1) if (g1 and st + 1 < NK) else []
        ab = ab_reads(st + 2) if (g1 and st + 2 < NK) else []
        if g1 and PREFETCH and (not fused) and st == NK - PRE + 1:
            vm += w2_touch_ops()
        seq = lds + sprinkle(va + ab, vm)
        interleave(mfma_ops(st), seq)
    A.stamp(2)
    PBASE = 0 if g1 else 5 * 4096

    def owner(mt, nt):
        if g1:
            return (2 * (mt >> 1) + nt, mt & 1)
        return (mt, nt)
    A("v_lshlrev_b32 v34, 4, v1")
    A("s_lshl_b32 s35, s48, 13")
    A("s_add_u32 s34, s31, s35")
    A(f"s_add_u32 s34, s34, {PBASE}")
    A("v_add_u32 v33, s34, v34")
    for mt in range(4):
        for nt in range(2):
            o, k = owner(mt, nt)
            A(f"ds_write_b128 v33, {a(ACC + 4 * (2 * mt + nt), 4)} offset:{(o * 2 + k) * 1024}")
    A.wait_all(vm=False)
    A("s_barrier")
    A("s_lshl_b32 s34, s47, 11")
    A("s_add_u32 s34, s34, s35")
    A(f"s_add_u32 s34, s34, {PBASE}")
    A("v_add_u32 v33, s34, v34")
    A(f"v_add_u32 v35, {2 * G_RB}, v33")
    RD = 40
    for k in range(2):
        for src in range(4):
            A(f"ds_read_b128 {v(RD + 8 * src + 4 * k, 4)}, v{33 if src < 2 else 35} offset:{(src & 1) * G_RB + k * 1024}")
    for k in range(2):
        for r in range(4):
            A(f"v_add_f32 v{RD + 4 * k + r}, v{RD + 4 * k + r}, v{RD + 8 + 4 * k + r}")
            A(f"v_add_f32 v{RD + 16 + 4 * k + r}, v{RD + 16 + 4 * k + r}, v{RD + 24 + 4 * k + r}")
        for r in range(4):
            A(f"v_add_f32 v{RD + 4 * k + r}, v{RD + 4 * k + r}, v{RD + 16 + 4 * k + r}")
    A.stamp(3)
    if "rtg" in OPT:
        rtp(A, f"g{which}red")
    if g1:
        for m in range(2):
            for hlf in range(2):
                A(f"v_lshlrev_b32 v{76 + 4 * m + 2 * hlf}, 16, v{EP + 2 * m + hlf}")
                A(f"v_and_b32 v{77 + 4 * m + 2 * hlf}, 0xffff0000, v{EP + 2 * m + hlf}")
        c1 = -2.0 * 1.4426950408889634 * 0.7978845608028654
        c3 = c1 * 0.044715
        A(f"s_mov_b32 s39, {hexf(c1)}")
        A(f"s_mov_b32 s40, {hexf(c3)}")
        A("v_mov_b32 v84, s39")
        for m in range(2):
            for r in range(4):
                x = RD + 4 * m + r
                t = 85 + (r & 1)
                A(f"v_add_f32 v{x}, v{x}, v{76 + 4 * m + r}")
                A(f"v_mul_f32 v{t}, v{x}, v{x}")
                A(f"v_fma_f32 v{t}, v{t}, s40, v84")
                A(f"v_mul_f32 v{t}, v{t}, v{x}")
                A(f"v_exp_f32 v{t}, v{t}")
                A(f"v_add_f32 v{t}, 1.0, v{t}")
                A(f"v_rcp_f32 v{t}, v{t}")
                A(f"v_mul_f32 v{x}, v{x}, v{t}")
        for m in range(2):
            for hlf in range(2):
                A(f"v_cvt_pk_bf16_f32 v{88 + 2 * m + hlf}, v{RD + 4 * m + 2 * hlf}, v{RD + 4 * m + 2 * hlf + 1}")
        A("s_mul_i32 s41, s24, 56")
        A("s_lshl_b32 s42, s23, 1")
        A("s_add_u32 s41, s41, s42")
        A("s_add_u32 s41, s41, s36")
        A("s_mul_i32 s41, s41, 3584")
        A(f"s_add_u32 s41, s41, {hex(WS_UF + layer * LB)}")
        A("s_and_b32 s42, s47, 1")
        A("s_lshl_b32 s43, s48, 1")
        A("s_add_u32 s42, s42, s43")
        A("s_lshl_b32 s43, s42, 10")
        A("s_add_u32 s41, s41, s43")
        A("s_cmp_eq_u32 s42, 3")
        A("s_cselect_b32 s44, 0x00ff00ff, -1")
        A("s_mov_b32 s45, s44")
        A("s_mov_b64 exec, s[44:45]")
        A("buffer_store_dwordx4 v[88:91], v6, s[8:11], s41 offen")
        A("s_mov_b64 exec, -1")
    else:
        A("v_and_b32 v33, 15, v1")
        A(f"v_lshlrev_b32 v76, 16, v{EP + 4}")
        for k in range(2):
            for hlf in range(2):
                x = EP + 2 * k + hlf
                A(f"v_lshlrev_b32 v77, 16, v{x}")
                A(f"v_and_b32 v78, 0xffff0000, v{x}")
                y = RD + 4 * k + 2 * hlf
                A(f"v_add_f32 v{y}, v{y}, v76")
                A(f"v_add_f32 v{y + 1}, v{y + 1}, v76")
                A(f"v_add_f32 v{y}, v{y}, v77")
                A(f"v_add_f32 v{y + 1}, v{y + 1}, v78")
                A(f"v_cvt_pk_bf16_f32 v{88 + 2 * k + hlf}, v{y}, v{y + 1}")
        if layer == 0:
            A("s_cmp_eq_u32 s48, 0")
            A("s_cselect_b32 s45, -1, 0")
            A("s_mov_b32 s44, -1")
            A("v_cndmask_b32 v92, 0, v90, s[44:45]")
            A("v_cndmask_b32 v93, 0, v91, s[44:45]")
            A("v_mov_b32 v77, 0x3f803f80")
            A("v_mov_b32 v78, 0")
            A("v_mov_b32 v79, 0")
            for x in [88, 89, 92, 93]:
                A(f"v_dot2_f32_bf16 v78, v{x}, v77, v78")
                A(f"v_dot2_f32_bf16 v79, v{x}, v{x}, v79")
            reduce_groups(A, 78, 80)
            reduce_groups(A, 79, 81)
            A("v_cmp_gt_u32 vcc, 16, v1")
            A("v_cndmask_b32 v80, v79, v78, vcc")
            A("v_lshlrev_b32 v81, 2, v1")
            A("s_lshl_b32 s39, s36, 7")
            A(f"s_add_u32 s39, s39, {hex(WS_ST + 16384)}")
            exec_lanes(A, 32)
            A("buffer_atomic_add_f32 v80, v81, s[8:11], s39 offen")
            exec_lanes(A, 64)
        SP = 80
        A("s_lshl_b32 s40, s22, 11")
        A(f"s_add_u32 s40, s40, {G_TAB}")
        A(f"v_mul_u32_u24 v36, {SP}, v33")
        A("v_lshl_add_u32 v36, v7, 3, v36")
        A("v_add_u32 v36, s40, v36")
        for k in range(2):
            A(f"ds_write_b64 v36, {v(88 + 2 * k, 2)} offset:{32 * k}")
        A("v_lshrrev_b32 v37, 2, v1")
        A("v_and_b32 v38, 3, v1")
        A(f"v_mul_u32_u24 v39, {SP}, v37")
        A("v_lshl_add_u32 v39, v38, 4, v39")
        A("v_add_u32 v39, s40, v39")
        A("ds_read_b128 v[92:95], v39")
        if layer == 1:
            A("s_lshl_b32 s39, s36, 4")
            A("s_mul_i32 s39, s39, 896")
            A("s_mul_i32 s41, s24, 112")
            A("s_add_u32 s39, s39, s41")
            A("s_lshl_b32 s41, s48, 6")
            A("s_add_u32 s39, s39, s41")
            A("v_mul_u32_u24 v37, 896, v37")
            A("v_lshl_add_u32 v37, v38, 4, v37")
        else:
            A("s_lshl_b32 s39, s36, 3")
            A("s_add_u32 s39, s39, s24")
            A("s_mul_i32 s39, s39, 1792")
            A("s_lshl_b32 s41, s48, 10")
            A("s_add_u32 s39, s39, s41")
            A("s_lshl_b32 s41, s48, 4")
            A("s_sub_u32 s41, 64, s41")
            A("v_mul_lo_u32 v37, v37, s41")
            A("v_lshl_add_u32 v37, v38, 4, v37")
        A("s_cmp_eq_u32 s48, 0")
        A("s_cselect_b32 s44, -1, 0x77777777")
        A("s_mov_b32 s45, s44")
        A("s_mov_b64 exec, s[44:45]")
        A("buffer_store_dwordx4 v[92:95], v37, s[16:19], s39 offen")
        A("s_mov_b64 exec, -1")
    if (fused or pers) and g1:
        A("s_lshl_b32 s34, s24, 7")
        A(f"s_add_u32 s34, s34, {hex(C4(layer))}")
        publish(A, 8, 34)
        if pers:
            A.raw(f"L_{name}_skip:")
        return None
    if pers:
        if layer == 0:
            A("s_lshr_b32 s34, s23, 1")
            A("s_lshl_b32 s34, s34, 7")
            A(f"s_add_u32 s34, s34, {hex(C5)}")
            publish(A, 8, 34)
        return None
    A.stamp(4)
    A.dump_stamps(STAMP_WG)
    kernel_end(A, name)
    return G_LDS, 512, 256, 176


def g1v2(A, name, layer, pers=False):
    NK = 8
    pitch = 3584
    R = 4
    if pers:
        phase_begin(A)
        A("s_cmp_ge_u32 s2, 224")
        A(f"s_cbranch_scc1 L_{name}_skip")
    else:
        kernel_begin(A, name, 224)
    A(f"s_load_dwordx2 s[20:21], s[0:1], {KA_WS}")
    A(f"s_load_dwordx2 s[4:5], s[0:1], {KA_W1}")
    A(f"s_load_dwordx2 s[12:13], s[0:1], {KA_B1}")
    A("v_and_b32 v1, 63, v0")
    A("v_lshrrev_b32 v2, 6, v0")
    A("v_readfirstlane_b32 s22, v2")
    A("s_and_b32 s25, s2, 7")
    A("s_lshr_b32 s26, s2, 3")
    A("s_and_b32 s24, s25, 1")
    A("s_lshl_b32 s24, s24, 2")
    A("s_and_b32 s27, s26, 3")
    A("s_add_u32 s24, s24, s27")
    A("s_lshr_b32 s23, s25, 1")
    A("s_mul_i32 s23, s23, 7")
    A("s_lshr_b32 s27, s26, 2")
    A("s_add_u32 s23, s23, s27")
    A("v_lshrrev_b32 v3, 3, v1")
    A("v_bfe_u32 v4, v1, 4, 2")
    A("v_lshlrev_b32 v4, 1, v4")
    A("v_and_b32 v5, 7, v1")
    A("v_xor_b32 v4, v4, v5")
    A(f"v_mul_u32_u24 v5, {pitch}, v3")
    A("v_lshl_add_u32 v5, v4, 4, v5")
    A(f"s_mul_i32 s27, s22, {NK * 32 * pitch}")
    A("s_lshl_b32 s28, s23, 7")
    A("s_add_u32 s27, s27, s28")
    A("v_add_u32 v5, s27, v5")
    for q in range(1, 4):
        A(f"v_add_u32 v{23 + q}, {q * (8 * pitch - 1024)}, v5")
    A("v_lshrrev_b32 v7, 4, v1")
    A("v_and_b32 v8, 7, v1")
    A("v_lshlrev_b32 v8, 4, v8")
    A("v_lshl_add_u32 v8, v7, 7, v8")
    A("v_bfe_u32 v9, v1, 3, 1")
    A("v_lshl_add_u32 v6, v9, 9, v8")
    A.wait_all(vm=False)
    srd(A, 4, 4, 5, S * F * 2)
    srd(A, 8, 20, 21, WSZ)
    srd(A, 12, 12, 13, F * 2)
    A(f"s_mul_i32 s29, s22, {NK * 28672}")
    A("s_mul_i32 s30, s24, 3584")
    A("s_add_u32 s29, s29, s30")
    A(f"s_add_u32 s29, s29, {hex(WS_X1F + layer * LB)}")
    A("s_lshl_b32 s31, s22, 14")
    NB = 4
    BR = 112
    toks = {}
    tokA = {}

    def a_ops(st):
        slot = st % R

        def f0():
            A(f"s_add_u32 m0, s31, {slot * 4096}")
            A(f"s_mov_b32 s32, {st * 32 * pitch}")
            A("buffer_load_dwordx4 v5, s[4:7], s32 offen lds")
        ops = [f0]
        for q in range(1, 4):
            def fq(q=q):
                tokA[st] = A(f"buffer_load_dwordx4 v{23 + q}, s[4:7], s32 offen offset:{1024 * q} lds")
            ops.append(fq)
        return ops

    def b_ops(st):
        b = BR + 16 * (st % NB)

        def f0():
            A(f"s_add_u32 s33, s29, {st * 28672}")
            A(f"buffer_load_dwordx4 {v(b, 4)}, v6, s[8:11], s33 offen")
        ops = [f0]
        for nt in range(1, 3):
            ops.append(lambda nt=nt: A(f"buffer_load_dwordx4 {v(b + 4 * nt, 4)}, v6, s[8:11], s33 offen offset:{1024 * nt}"))

        def f3():
            toks[st] = A(f"buffer_load_dwordx4 {v(b + 12, 4)}, v8, s[8:11], s33 offen offset:3072")
        ops.append(f3)
        return ops

    PRE = 4
    PA = 3
    for st in range(R):
        for f in a_ops(st):
            f()
    EP = 28
    A("s_lshr_b32 s36, s22, 2")
    A("s_lshl_b32 s37, s23, 7")
    A("s_lshl_b32 s38, s36, 6")
    A("s_add_u32 s37, s37, s38")
    A("v_lshlrev_b32 v33, 3, v7")
    A(f"buffer_load_dwordx2 {v(EP, 2)}, v33, s[12:15], s37 offen")
    A(f"buffer_load_dwordx2 {v(EP + 2, 2)}, v33, s[12:15], s37 offen offset:32")
    if pers:
        A(f"s_mov_b32 s34, {hex(C3(layer))}")
        A("v_lshlrev_b32 v10, 7, v1")
        await_cnt(A, 8, 34, 10, 8, 28)
    A("v_lshrrev_b32 v10, 2, v1")
    A("v_lshlrev_b32 v10, 7, v10")
    A("v_and_b32 v11, 3, v1")
    A("v_lshl_add_u32 v10, v11, 4, v10")
    A("s_lshl_b32 s34, s22, 11")
    A(f"s_add_u32 s34, s34, {hex(WS_ST + (0 if layer == 0 else 2) * 16384)}")
    A("buffer_load_dwordx4 v[16:19], v10, s[8:11], s34 offen")
    A("buffer_load_dwordx4 v[20:23], v10, s[8:11], s34 offen offset:64")
    for st in range(PRE):
        for f in b_ops(st):
            f()
    A("v_bfe_u32 v12, v1, 2, 2")
    A("v_and_b32 v13, 3, v1")
    A("v_and_b32 v14, 1, v7")
    A("v_lshlrev_b32 v15, 2, v7")
    A("v_add_u32 v15, v15, v12")
    A("v_lshlrev_b32 v15, 7, v15")
    A("v_lshl_add_u32 v15, v13, 3, v15")
    A("v_add_u32 v15, s31, v15")
    A("v_lshrrev_b32 v32, 1, v12")
    A("v_lshl_add_u32 v32, v14, 1, v32")
    for mt in range(4):
        A(f"v_xor_b32 v33, {mt}, v32")
        A(f"v_lshl_add_u32 v{36 + mt}, v33, 5, v15")
    for i in range(4):
        sm, sq = 16 + i, 20 + i
        A(f"v_mul_f32 v{sm}, {hexf(1.0 / 448)}, v{sm}")
        A(f"v_mul_f32 v{sq}, {hexf(1.0 / 448)}, v{sq}")
        A(f"v_fma_f32 v{sq}, -v{sm}, v{sm}, v{sq}")
        A(f"v_max_f32 v{sq}, 0, v{sq}")
        A(f"v_add_f32 v34, {hexf(1e-5)}, v{sq}")
        A("v_rcp_f32 v34, v34")
        A(f"v_mul_f32 v35, v{sq}, v34")
        A(f"v_add_f32 v35, {hexf(1e-5)}, v35")
        A("v_rcp_f32 v35, v35")
        A("v_mul_f32 v34, v34, v35")
        A(f"v_sqrt_f32 v{sq}, v34")
        A(f"v_mul_f32 v{sm}, -v{sm}, v{sq}")
    TABW = 8 * 16384
    A("v_lshlrev_b32 v34, 4, v1")
    A("s_lshl_b32 s34, s22, 11")
    A(f"s_add_u32 s34, s34, {TABW}")
    A("v_add_u32 v34, s34, v34")
    A("ds_write_b128 v34, v[20:23]")
    A("ds_write_b128 v34, v[16:19] offset:1024")
    A("v_lshlrev_b32 v35, 4, v7")
    A("v_add_u32 v35, s34, v35")
    AF = 0
    ACC = 16
    BN = [40, 56]
    AB = [72, 88]
    AB = [72, 176 - 0]
    AB = [72, 16]
    AB = [72, 88]
    EP2 = 104
    for r in range(4):
        pass
    TMP = 104

    def a_reads(st, mt):
        slot = st % R
        return [(lambda t=t: A(f"ds_read_b64_tr_b16 {a(AF + 4 * mt + 2 * t, 2)}, v{36 + mt} offset:{slot * 4096 + t * 2048}"))
                for t in range(2)]

    def ab_reads(st):
        buf = st & 1
        ops = []
        for t in range(2):
            ops.append(lambda t=t: A(f"ds_read_b128 {v(AB[buf] + 4 * t, 4)}, v35 offset:{st * 128 + t * 64}"))
            ops.append(lambda t=t: A(f"ds_read_b128 {v(AB[buf] + 8 + 4 * t, 4)}, v35 offset:{1024 + st * 128 + t * 64}"))
        return ops

    def norm_ops(st):
        buf = st & 1
        b = BR + 16 * (st % NB)
        ops = []
        for nt in range(4):
            for dp in range(2):
                d0, d1 = 2 * dp, 2 * dp + 1
                x0, x1 = b + 4 * nt + d0, b + 4 * nt + d1
                tb = TMP + 4 * (dp & 1)
                ops.append(lambda x0=x0, tb=tb: A(f"v_lshlrev_b32 v{tb}, 16, v{x0}"))
                ops.append(lambda x0=x0, tb=tb: A(f"v_and_b32 v{tb + 1}, 0xffff0000, v{x0}"))
                ops.append(lambda x1=x1, tb=tb: A(f"v_lshlrev_b32 v{tb + 2}, 16, v{x1}"))
                ops.append(lambda x1=x1, tb=tb: A(f"v_and_b32 v{tb + 3}, 0xffff0000, v{x1}"))
                for (o, dd) in ((0, d0), (2, d1)):
                    for e in range(2):
                        ops.append(lambda tb=tb, o=o, dd=dd, e=e: A(
                            f"v_fma_f32 v{tb + o + e}, v{tb + o + e}, v{AB[buf] + 2 * dd + e}, v{AB[buf] + 8 + 2 * dd + e}"))
                ops.append(lambda tb=tb, nt=nt, d0=d0: A(f"v_cvt_pk_bf16_f32 v{BN[buf] + 4 * nt + d0}, v{tb}, v{tb + 1}"))
                ops.append(lambda tb=tb, nt=nt, d1=d1: A(f"v_cvt_pk_bf16_f32 v{BN[buf] + 4 * nt + d1}, v{tb + 2}, v{tb + 3}"))
        return ops

    def mfma(st, mt, nt):
        buf = st & 1
        acc = a(ACC + 4 * (4 * mt + nt), 4)
        c = "0" if st == 0 else acc
        A(f"v_mfma_f32_16x16x32_bf16 {acc}, {a(AF + 4 * mt, 4)}, {v(BN[buf] + 4 * nt, 4)}, {c}")

    A.wait_vm(tokA[0])
    for mt in range(4):
        for f in a_reads(0, mt):
            f()
    for f in ab_reads(0) + ab_reads(1):
        f()
    for f in norm_ops(0):
        f()
    nextA, nextB = R, PRE
    for st in range(NK):
        va = norm_ops(st + 1) if st + 1 < NK else []
        ab = ab_reads(st + 2) if st + 2 < NK else []
        vm = []
        if nextB < NK and nextB <= st + PRE - 0 and nextB - NB <= st:
            vm += b_ops(nextB)
            nextB += 1
        fill = sprinkle(va + ab, vm)
        k = 0
        tot = len(fill)
        n = 0
        if st + 1 < NK:
            A.wait_vm(tokA[st + 1])
        for mt in range(4):
            for nt in range(4):
                mfma(st, mt, nt)
                n += 1
                while k < (tot * n) // 16:
                    fill[k]()
                    k += 1
            if st + 1 < NK:
                for f in a_reads(st + 1, mt):
                    f()
        if nextA < NK:
            for f in a_ops(nextA):
                f()
            nextA += 1
    A("v_lshlrev_b32 v34, 4, v1")
    A("v_add_u32 v33, s31, v34")
    for mt in range(4):
        for nt in range(4):
            o, kk = 4 * (mt >> 1) + nt, mt & 1
            A(f"ds_write_b128 v33, {a(ACC + 4 * (4 * mt + nt), 4)} offset:{(o * 2 + kk) * 1024}")
    A.wait_all(vm=False)
    A("s_barrier")
    A("s_lshl_b32 s34, s22, 11")
    A("v_add_u32 v33, s34, v34")
    A(f"v_add_u32 v35, {4 * 16384}, v33")
    RD = 40
    for r in range(4):
        A(f"v_mov_b32 v{108 + r}, v{EP + r}")
    for kk in range(2):
        for src in range(8):
            A(f"ds_read_b128 {v(RD + 8 * src + 4 * kk, 4)}, v{33 if src < 4 else 35} offset:{(src & 3) * 16384 + kk * 1024}")
    for kk in range(2):
        for step in (1, 2, 4):
            for base in range(0, 8, 2 * step):
                for r in range(4):
                    x, y = RD + 8 * base + 4 * kk + r, RD + 8 * (base + step) + 4 * kk + r
                    A(f"v_add_f32 v{x}, v{x}, v{y}")
    for m in range(2):
        for hlf in range(2):
            A(f"v_lshlrev_b32 v{112 + 4 * m + 2 * hlf}, 16, v{108 + 2 * m + hlf}")
            A(f"v_and_b32 v{113 + 4 * m + 2 * hlf}, 0xffff0000, v{108 + 2 * m + hlf}")
    c1 = -2.0 * 1.4426950408889634 * 0.7978845608028654
    c3 = c1 * 0.044715
    A(f"s_mov_b32 s39, {hexf(c1)}")
    A(f"s_mov_b32 s40, {hexf(c3)}")
    A("v_mov_b32 v120, s39")
    for m in range(2):
        for r in range(4):
            x = RD + 4 * m + r
            t = 121 + (r & 1)
            A(f"v_add_f32 v{x}, v{x}, v{112 + 4 * m + r}")
            A(f"v_mul_f32 v{t}, v{x}, v{x}")
            A(f"v_fma_f32 v{t}, v{t}, s40, v120")
            A(f"v_mul_f32 v{t}, v{t}, v{x}")
            A(f"v_exp_f32 v{t}, v{t}")
            A(f"v_add_f32 v{t}, 1.0, v{t}")
            A(f"v_rcp_f32 v{t}, v{t}")
            A(f"v_mul_f32 v{x}, v{x}, v{t}")
    for m in range(2):
        for hlf in range(2):
            A(f"v_cvt_pk_bf16_f32 v{124 + 2 * m + hlf}, v{RD + 4 * m + 2 * hlf}, v{RD + 4 * m + 2 * hlf + 1}")
    A("s_mul_i32 s41, s24, 56")
    A("s_lshl_b32 s42, s23, 1")
    A("s_add_u32 s41, s41, s42")
    A("s_add_u32 s41, s41, s36")
    A("s_mul_i32 s41, s41, 3584")
    A(f"s_add_u32 s41, s41, {hex(WS_UF + layer * LB)}")
    A("s_and_b32 s42, s22, 3")
    A("s_lshl_b32 s43, s42, 10")
    A("s_add_u32 s41, s41, s43")
    A("s_cmp_eq_u32 s42, 3")
    A("s_cselect_b32 s44, 0x00ff00ff, -1")
    A("s_mov_b32 s45, s44")
    A("s_mov_b64 exec, s[44:45]")
    A("buffer_store_dwordx4 v[124:127], v6, s[8:11], s41 offen")
    A("s_mov_b64 exec, -1")
    if pers:
        A("s_lshl_b32 s34, s24, 7")
        A(f"s_add_u32 s34, s34, {hex(C4(layer))}")
        publish(A, 8, 34)
        A.raw(f"L_{name}_skip:")
        return None
    kernel_end(A, name)
    return G_LDS, 512, 256, 176


K1_XP = 16384
K1_WP = 64 * 192
K1_SLOT = K1_XP + K1_WP
K1_NS = 5
K1_MISC = K1_NS * K1_SLOT
K1_CSUM = K1_MISC
K1_TOK = K1_MISC + 1024
K1_LDS = K1_MISC + 1024 + 2048
K1_EX = 2 * K1_SLOT


def k1(A, name, layer, pers=False):
    L0 = layer == 0
    if pers:
        phase_begin(A)
    else:
        kernel_begin(A, name, 256)
        A.stamp_base = 70
        A.stamp(0)
    if L0:
        A(f"s_load_dwordx2 s[4:5], s[0:1], {KA_X}")
        A(f"s_load_dwordx2 s[8:9], s[0:1], {KA_WQKV}")
    A(f"s_load_dwordx2 s[20:21], s[0:1], {KA_WS}")
    A("v_and_b32 v1, 63, v0")
    A("v_lshrrev_b32 v2, 6, v0")
    A("v_readfirstlane_b32 s22, v2")
    A("s_lshr_b32 s23, s2, 4")
    A("s_and_b32 s24, s2, 15")
    A("s_and_b32 s47, s22, 3")
    A("s_lshr_b32 s48, s22, 2")
    A("s_lshl_b32 s25, s23, 7")
    A("s_lshl_b32 s26, s47, 5")
    A("s_add_u32 s49, s25, s26")
    A("s_lshl_b32 s26, s48, 4")
    A("s_add_u32 s25, s49, s26")
    A("s_mul_i32 s25, s25, 896")
    A("v_lshrrev_b32 v16, 3, v1")
    A("v_mul_u32_u24 v16, 896, v16")
    A("v_lshrrev_b32 v17, 4, v1")
    A("v_and_b32 v18, 7, v1")
    A("v_xor_b32 v19, v18, v17")
    A("v_lshl_add_u32 v2, v19, 4, v16")
    A("v_xor_b32 v19, 4, v19")
    A("v_lshl_add_u32 v3, v19, 4, v16")
    A("v_add_u32 v2, s25, v2")
    A("v_add_u32 v3, s25, v3")
    A(f"v_add_u32 v3, {8 * 896 - 1024}, v3")
    if not L0:
        A("v_lshrrev_b32 v16, 3, v1")
        A("v_lshrrev_b32 v17, 4, v1")
        A("v_and_b32 v18, 7, v1")
        A("v_xor_b32 v60, v18, v17")
        A("v_xor_b32 v61, 4, v60")
        A("v_lshlrev_b32 v62, 6, v16")
        A("v_mul_u32_u24 v63, 48, v16")
        A("v_add_u32 v63, 960, v63")
        A("v_add_u32 v6, 512, v62")
        A("v_add_u32 v7, 384, v63")
        A("s_lshl_b32 s59, s23, 3")
        A("s_lshl_b32 s26, s47, 1")
        A("s_add_u32 s59, s59, s26")
        A("s_add_u32 s59, s59, s48")
        A("s_mul_i32 s59, s59, 14336")
        A("s_add_u32 s59, s59, 4096")
        A("s_sub_u32 s60, s59, 1024")
    if L0:
        A("s_lshl_b32 s26, s22, 3")
        A("s_mul_i32 s26, s26, 2688")
        A("s_mul_i32 s27, s24, 56")
        A("s_add_u32 s26, s26, s27")
        for i in range(2):
            A(f"v_add_u32 v16, {64 * i}, v1")
            div_const(A, "v17", "v16", 12, 27)
            A("v_mul_u32_u24 v18, 12, v17")
            A("v_sub_u32 v18, v16, v18")
            A("v_mul_u32_u24 v17, 2688, v17")
            A("v_lshrrev_b32 v19, 2, v18")
            A("v_mul_u32_u24 v19, 896, v19")
            A("v_and_b32 v18, 3, v18")
            A("v_lshl_add_u32 v17, v18, 4, v17")
            A("v_add_u32 v17, v17, v19")
            A(f"v_add_u32 v{4 + i}, s26, v17")
        A("v_subrev_u32 v5, 1024, v5")
        wstep = 64 * 2688
    else:
        A("s_mul_i32 s26, s24, 86016")
        A("s_mul_i32 s27, s22, 1536")
        A("s_add_u32 s26, s26, s27")
        A("v_lshlrev_b32 v4, 4, v1")
        A("v_add_u32 v4, s26, v4")
        A("v_mov_b32 v5, v4")
        wstep = 12288
    A.wait_all(vm=False)
    if L0:
        srd(A, 4, 4, 5, XBYTES)
        srd(A, 8, 8, 9, D * 3 * D * 2)
    else:
        srd_off(A, 4, 20, 21, hex(WS_X2 - 4096), XBYTES + 4096)
        srd_off(A, 8, 20, 21, hex(WS_WC), 16 * 86016)
    srd(A, 12, 20, 21, WSZ)
    if "rtg" in OPT:
        rtp(A, "k1srd")
    A("s_lshl_b32 s28, s47, 12")
    A("s_lshl_b32 s29, s48, 11")
    A("s_add_u32 s28, s28, s29")
    A("s_mul_i32 s29, s22, 1536")
    A(f"s_add_u32 s29, s29, {K1_XP}")
    tokq = {}
    ROT = 52
    A("s_add_u32 s35, s23, s24")
    A("s_mul_i32 s34, s35, 9363")
    A("s_lshr_b32 s34, s34, 16")
    A("s_mul_i32 s34, s34, 7")
    A("s_sub_u32 s34, s35, s34")
    if "norot" in OPT:
        A("s_mov_b32 s34, 0")
    for q in range(7):
        A(f"s_add_u32 s{ROT + q}, s34, {q}")
        A(f"s_cmp_ge_u32 s{ROT + q}, 7")
        A("s_cselect_b32 s35, 7, 0")
        A(f"s_sub_u32 s{ROT + q}, s{ROT + q}, s35")

    def dma_ops(p):
        slot = (p % K1_NS) * K1_SLOT

        def f0():
            A(f"s_add_u32 m0, s28, {slot}")
            if L0:
                A(f"s_lshl_b32 s30, s{ROT + p}, 7")
                A("buffer_load_dwordx4 v2, s[4:7], s30 offen lds")
                A("buffer_load_dwordx4 v3, s[4:7], s30 offen offset:1024 lds")
            else:
                A(f"s_lshl_b32 s30, s{ROT + p}, 3")
                x2_addr(A, 2, 60, 30, 62, 63)
                A("buffer_load_dwordx4 v2, s[4:7], s59 offen lds")
                x2_addr(A, 3, 61, 30, 6, 7)
                A("buffer_load_dwordx4 v3, s[4:7], s60 offen offset:1024 lds")

        def f1():
            A(f"s_add_u32 m0, s29, {slot}")
            A(f"s_mul_i32 s31, s{ROT + p}, {wstep}")
            A("buffer_load_dwordx4 v4, s[8:11], s31 offen lds")
            exec_lanes(A, 32)
            tokq[p] = A("buffer_load_dwordx4 v5, s[8:11], s31 offen offset:1024 lds")
            exec_lanes(A, 64)
        return [f0, f1]

    def l1_stats():
        A("v_and_b32 v16, 31, v1")
        A("v_add_u32 v16, s49, v16")
        A("v_lshrrev_b32 v17, 4, v16")
        A("v_lshlrev_b32 v17, 7, v17")
        A("v_and_b32 v16, 15, v16")
        A("v_lshl_add_u32 v17, v16, 2, v17")
        A(f"s_mov_b32 s32, {hex(WS_ST + 16384)}")
        A("buffer_load_dword v52, v17, s[12:15], s32 offen")
        A("buffer_load_dword v48, v17, s[12:15], s32 offen offset:64")

    def l1_csum():
        A("v_lshrrev_b32 v17, 5, v1")
        A("v_lshlrev_b32 v17, 4, v17")
        A("s_mul_i32 s32, s24, 384")
        A("s_lshl_b32 s33, s48, 7")
        A("s_add_u32 s33, s33, s32")
        A(f"s_add_u32 s33, s33, {hex(WS_CS)}")
        for j in range(4):
            A(f"buffer_load_dwordx4 {v(120 + 4 * j, 4)}, v17, s[12:15], s33 offen offset:{32 * j}")
        A("v_and_b32 v16, 31, v1")
        A("v_lshlrev_b32 v16, 2, v16")
        A(f"s_add_u32 s32, s32, {hex(WS_CS + 256)}")
        A("buffer_load_dword v56, v16, s[12:15], s32 offen")

    PRE = 3
    pers1 = pers and not L0
    if pers1:
        PRE = 4
        for p in range(5):
            dma_ops(p)[1]()
        l1_csum()
        A("s_lshl_b32 s32, s23, 7")
        A(f"s_add_u32 s32, s32, {hex(C5)}")
        A("v_mov_b32 v10, 0")
        await_cnt(A, 12, 32, 10, 1, 16)
        l1_stats()
        for p in range(PRE):
            dma_ops(p)[0]()
            tokq[p] = A.vmq[-1]["tok"]
            if p == 0 and "nofb" not in OPT:
                A("s_barrier")
    else:
        for f in dma_ops(0):
            f()
        if "nofb" not in OPT:
            A("s_barrier")
    if L0:
        A("s_lshl_b32 s32, s2, 13")
        A(f"s_add_u32 s32, s32, {hex(WS_ST)}")
        A("s_cmp_lt_u32 s2, 8")
        A("s_cselect_b32 s32, s32, 0x7fff0000")
        A("v_lshlrev_b32 v16, 4, v0")
        for i in range(4):
            A(f"v_mov_b32 v{12 + i}, 0")
        A("buffer_store_dwordx4 v[12:15], v16, s[12:15], s32 offen")
        if pers:
            A(f"s_load_dwordx2 s[60:61], s[0:1], {KA_DBG}")
    elif not pers1:
        l1_stats()
        l1_csum()
    if not pers1:
        for p in range(1, PRE):
            for f in dma_ops(p):
                f()
    if pers and L0 and "tlb" in OPT:
        tlb_warm(A)
    if "rtg" in OPT:
        rtp(A, "k1issued")
    A.stamp(1)
    A("v_and_b32 v16, 31, v1")
    A("v_lshrrev_b32 v17, 5, v1")
    A("v_bfe_u32 v18, v1, 1, 3")
    A("v_xor_b32 v18, v18, v17")
    A("v_lshlrev_b32 v19, 7, v16")
    A("s_lshl_b32 s32, s47, 12")
    A("v_add_u32 v19, s32, v19")
    A("s_lshl_b32 s33, s48, 2")
    for ls in range(2):
        A(f"s_add_u32 s34, s33, {2 * ls}")
        A("v_xor_b32 v20, s34, v18")
        A(f"v_lshl_add_u32 v{8 + ls}, v20, 4, v19")
    A("v_bfe_u32 v18, v1, 2, 2")
    A("v_bfe_u32 v19, v1, 4, 1")
    A("v_and_b32 v20, 3, v1")
    A("v_lshlrev_b32 v22, 5, v19")
    A("v_lshl_add_u32 v22, v20, 3, v22")
    A("v_lshl_add_u32 v21, v17, 3, v18")
    A("v_mul_u32_u24 v21, 192, v21")
    A("v_add_u32 v21, v21, v22")
    A(f"s_mul_i32 s34, s48, {32 * 192}")
    A(f"s_add_u32 s34, s34, {K1_XP}")
    A("v_add_u32 v21, s34, v21")
    ONES = 28
    SS = 36
    if L0:
        A("s_mul_i32 s34, s22, 11")
        A("s_lshr_b32 s34, s34, 5")
        A("s_mul_i32 s35, s34, 3")
        A("s_sub_u32 s35, s22, s35")
        A("s_and_b32 s34, s34, 1")
        A(f"s_mul_i32 s34, s34, {32 * 192}")
        A("s_lshl_b32 s35, s35, 6")
        A("s_add_u32 s34, s34, s35")
        A(f"s_add_u32 s34, s34, {K1_XP}")
        A("v_lshl_add_u32 v23, v17, 3, v18")
        A("v_mul_u32_u24 v23, 192, v23")
        A("v_add_u32 v22, v22, v23")
        A("v_add_u32 v22, s34, v22")
        A("v_mul_u32_u24 v24, 192, v1")
        A("v_add_u32 v24, s29, v24")
        A("v_add_u32 v24, 56, v24")
        A("v_mov_b32 v26, 0x3f80")
        A("v_mov_b32 v27, 0")
        for i in range(4):
            A(f"v_mov_b32 v{ONES + i}, 0x3f803f80")
        for i in range(4):
            A(f"v_mov_b32 v{SS + i}, 0")
        A("v_lshlrev_b32 v33, 4, v1")
        A("v_add_u32 v34, s29, v33")
        A("s_mul_i32 s50, s24, 86016")
        A("s_mul_i32 s51, s22, 1536")
        A("s_add_u32 s50, s50, s51")
        A(f"s_add_u32 s50, s50, {hex(WS_WC)}")
    AQ, AK, AV, AC = 0, 16, 32, 48
    XF = 64
    WF = 76
    CF = 112
    VA = 40

    def token_stats(sumreg, sqreg):
        A(f"v_mul_f32 v{sumreg}, {hexf(1.0 / 448)}, v{sumreg}")
        A(f"v_mul_f32 v{sqreg}, {hexf(1.0 / 448)}, v{sqreg}")
        A(f"v_fma_f32 v{sqreg}, -v{sumreg}, v{sumreg}, v{sqreg}")
        A(f"v_max_f32 v{sqreg}, 0, v{sqreg}")
        A(f"v_add_f32 v{sqreg}, {hexf(1e-5)}, v{sqreg}")
        A(f"v_rsq_f32 v{sqreg}, v{sqreg}")
        A(f"v_mul_f32 v{sumreg}, -v{sumreg}, v{sqreg}")
        A("v_and_b32 v57, 31, v1")
        A("v_lshlrev_b32 v57, 2, v57")
        A("s_lshl_b32 s35, s22, 8")
        A(f"s_add_u32 s35, s35, {K1_TOK}")
        A("v_add_u32 v57, s35, v57")
        exec_lanes(A, 32)
        A(f"ds_write_b32 v57, v{sqreg}")
        A(f"ds_write_b32 v57, v{sumreg} offset:128")
        exec_lanes(A, 64)
        A("v_lshlrev_b32 v58, 4, v17")
        A("s_lshl_b32 s36, s48, 6")
        A("s_add_u32 s36, s36, s35")
        A("v_add_u32 v58, s36, v58")
        for j in range(2):
            A(f"ds_read_b128 {v(TA + 4 * j, 4)}, v58 offset:{32 * j}")
            A(f"ds_read_b128 {v(TB + 4 * j, 4)}, v58 offset:{128 + 32 * j}")

    TA, TB = 152, 160
    CS = 120
    if not L0:
        token_stats(52, 48)

    def set_addr(p):
        slot = (p % K1_NS) * K1_SLOT
        b = VA + 4 * (p & 1)
        A(f"v_add_u32 v{b}, {slot}, v8")
        A(f"v_add_u32 v{b + 1}, {slot}, v9")
        A(f"v_add_u32 v{b + 2}, {slot}, v21")
        if L0:
            A(f"v_add_u32 v{b + 3}, {slot}, v22")

    def sync(p):
        slot = (p % K1_NS) * K1_SLOT
        set_addr(p)
        A.wait_vm(tokq[p])
        if L0:
            A(f"v_add_u32 v49, {slot}, v24")
            if p == 0:
                A(f"v_add_u32 v35, {slot}, v34")
                A("ds_read_b128 v[120:123], v35")
                A("ds_read_b128 v[124:127], v35 offset:1024")
                A(f"s_mul_i32 s51, s{ROT}, 12288")
                A("s_add_u32 s51, s51, s50")
                A("s_cmp_lt_u32 s23, 7")
                A("s_cselect_b32 s51, s51, 0x7fff0000")
                A("buffer_store_dwordx4 v[120:123], v33, s[12:15], s51 offen")
                exec_lanes(A, 32)
                A("buffer_store_dwordx4 v[124:127], v33, s[12:15], s51 offen offset:1024")
            exec_lanes(A, 8)
            A("ds_write_b64 v49, v[26:27]")
            exec_lanes(A, 64)
            A.wait_all(vm=False)
        A("s_barrier")
        if pers and L0 and p == 1:
            srd(A, 60, 60, 61, 256)
            A("s_cmp_ge_u32 s2, 8")
            A(f"s_cbranch_scc1 L_{name}_nz")
            A("v_mov_b32 v10, 0")
            A("v_mov_b32 v11, 1")
            A("v_cmp_eq_u32 vcc, 0, v0")
            A("s_and_saveexec_b64 s[44:45], vcc")
            A(f"s_cbranch_execz L_{name}_nz2")
            A.raw("    buffer_atomic_add v11, v10, s[60:63], 0 offen sc1")
            A.raw(f"L_{name}_nz2:")
            A("s_mov_b64 exec, -1")
            A.raw(f"L_{name}_nz:")

    def read_ops(gs):
        p, ls = gs >> 1, gs & 1
        b = VA + 4 * (p & 1)
        buf = gs % 3
        ops = [lambda: A(f"ds_read_b128 {v(XF + 4 * buf, 4)}, v{b + ls}")]
        for t3 in range(3):
            for t in range(2):
                ops.append(lambda t3=t3, t=t: A(
                    f"ds_read_b64_tr_b16 {v(WF + 12 * buf + 4 * t3 + 2 * t, 2)}, v{b + 2} "
                    f"offset:{(16 * ls + 4 * t) * 192 + 64 * t3}"))
        return ops

    def cread_ops(p):
        b = VA + 4 * (p & 1)
        ops = []
        for f in range(2):
            for t in range(2):
                ops.append(lambda f=f, t=t: A(
                    f"ds_read_b64_tr_b16 {v(CF + 4 * f + 2 * t, 2)}, v{b + 3} offset:{(16 * f + 4 * t) * 192}"))
        return ops

    sync(0)
    for f in read_ops(0) + read_ops(1):
        f()
    A.stamp(2)
    if "rtg" in OPT:
        rtp(A, "k1loop0")
    for gs in range(14):
        p, ls = gs >> 1, gs & 1
        b = gs % 3
        xf = v(XF + 4 * b, 4)
        first = gs == 0
        m = [
            lambda: A(f"v_mfma_f32_32x32x16_bf16 {a(AQ, 16)}, {v(WF + 12 * b, 4)}, {xf}, {'0' if first else a(AQ, 16)}"),
            lambda: A(f"v_mfma_f32_32x32x16_bf16 {a(AK, 16)}, {v(WF + 12 * b + 4, 4)}, {xf}, {'0' if first else a(AK, 16)}"),
            lambda: A(f"v_mfma_f32_32x32x16_bf16 {a(AV, 16)}, {xf}, {v(WF + 12 * b + 8, 4)}, {'0' if first else a(AV, 16)}"),
        ]
        if ls == 1 and L0:
            for f in range(2):
                m.append(lambda f=f: A(
                    f"v_mfma_f32_32x32x16_bf16 {a(AC, 16)}, {v(ONES, 4)}, {v(CF + 4 * f, 4)}, "
                    f"{'0' if (p == 0 and f == 0) else a(AC, 16)}"))
        fill = []
        if ls == 0:
            if L0:
                fill += cread_ops(p)
            if p + 1 < 7:
                fill += [lambda p=p: sync(p + 1)]
        if gs + 2 < 14:
            fill += read_ops(gs + 2)
        dots = [(lambda d=d: A(f"v_dot2_f32_bf16 v{SS + d}, v{XF + 4 * b + d}, v{XF + 4 * b + d}, v{SS + d}"))
                for d in range(4)] if L0 else []
        vm = dma_ops(p + PRE) if (ls == 1 and p + PRE < 7) else []
        if pers1 and vm and p + PRE < 5:
            q_ = p + PRE

            def xonly(f=vm[0], q_=q_):
                f()
                tokq[q_] = A.vmq[-1]["tok"]
            vm = [xonly]
        elif pers1 and vm:
            vm = [vm[1], vm[0]]
            q_ = p + PRE
            vm.append(lambda q_=q_: tokq.__setitem__(q_, A.vmq[-1]["tok"]))
        fill = fill + sprinkle(dots, vm)
        interleave(m, fill)
    A.stamp(3)
    if "rtg" in OPT:
        rtp(A, "k1loopE")
    if pers and L0:
        A("v_mov_b32 v10, 0")
        exec_lanes(A, 1)
        A("buffer_load_dword v116, v10, s[60:63], 0 offen sc0 sc1")
        exec_lanes(A, 64)
    A("v_lshlrev_b32 v49, 4, v1")
    A("s_mul_i32 s33, s22, 7168")
    A(f"s_add_u32 s33, s33, {K1_EX}")
    A("v_add_u32 v50, s33, v49")
    A("s_xor_b32 s34, s22, 4")
    A("s_mul_i32 s34, s34, 7168")
    A(f"s_add_u32 s34, s34, {K1_EX}")
    A("v_add_u32 v51, s34, v49")
    if L0:
        A("v_and_b32 v47, 31, v1")
        A("v_lshlrev_b32 v47, 2, v47")
        A(f"v_add_u32 v47, {K1_CSUM}, v47")
        A(f"v_add_f32 v{SS}, v{SS}, v{SS + 1}")
        A(f"v_add_f32 v{SS + 2}, v{SS + 2}, v{SS + 3}")
        A(f"v_add_f32 v{SS}, v{SS}, v{SS + 2}")
        A(f"v_mov_b32 v53, v{SS}")
        A(f"v_permlane32_swap_b32 v53, v{SS}")
        A(f"v_add_f32 v53, v53, v{SS}")
        A("s_lshl_b32 s35, s22, 7")
        A("v_add_u32 v46, s35, v47")
        exec_lanes(A, 32)
        A(f"ds_write_b32 v46, a{AC}")
        exec_lanes(A, 64)
        A(f"v_accvgpr_read_b32 v52, a{AQ + 12}")
    A("s_lshl_b32 s36, s24, 6")
    A("s_lshl_b32 s37, s23, 2")
    A("s_add_u32 s36, s36, s37")
    A("s_add_u32 s36, s36, s47")
    A("s_lshl_b32 s36, s36, 11")
    A("v_add_u32 v59, s36, v49")
    A("v_cmp_eq_u32 s[38:39], 0, v17")
    A("v_and_b32 v62, 31, v1")
    A("v_cmp_gt_u32 s[42:43], 28, v62")
    A("v_cmp_eq_u32 vcc, 28, v62")
    A("v_mov_b32 v63, 0x3f803f80")
    A("v_cndmask_b32 v63, 0, v63, vcc")
    A("s_cmp_eq_u32 s48, 0")
    A(f"s_cbranch_scc0 L_{name}_e1")
    save_vm = [dict(o) for o in A.vmq]
    save_lg = [dict(o) for o in A.lgq]
    RX = 64
    KP = 92
    for kh in range(2):
        keep, send = (AQ, AK) if kh == 0 else (AK, AQ)
        vkeep, vsend = (AV, AV + 8) if kh == 0 else (AV + 8, AV)
        for j in range(4):
            A(f"ds_write_b128 v50, {a(send + 4 * j, 4)} offset:{1024 * j}")
        for j in range(2):
            A(f"ds_write_b128 v50, {a(vsend + 4 * j, 4)} offset:{4096 + 1024 * j}")
        if L0:
            A("ds_write_b64 v50, v[52:53] offset:6144")
        for r in range(16):
            A(f"v_accvgpr_read_b32 v{KP + r}, a{keep + r}")
        for r in range(8):
            A(f"v_accvgpr_read_b32 v{KP + 16 + r}, a{vkeep + r}")
        A.wait_all(vm=False)
        A.stamp(5)
        A("s_barrier")
        A.stamp(6)
        for j in range(6):
            A(f"ds_read_b128 {v(RX + 4 * j, 4)}, v51 offset:{1024 * j}")
        if L0:
            A(f"ds_read_b64 {v(RX + 24, 2)}, v51 offset:6144")
            A("v_lshlrev_b32 v54, 4, v17")
            A(f"v_add_u32 v55, {K1_CSUM}, v54")
            for j in range(4):
                A(f"ds_read_b128 {v(CS + 4 * j, 4)}, v55 offset:{128 * kh + 32 * j}")
                A(f"ds_read_b128 {v(136 + 4 * j, 4)}, v55 offset:{128 * (kh + 3) + 32 * j}")
            A("ds_read_b32 v56, v47 offset:256")
            A("ds_read_b32 v45, v47 offset:640")
            for r in range(16):
                A(f"v_add_f32 v{CS + r}, v{CS + r}, v{136 + r}")
            A("v_add_f32 v56, v56, v45")
            A("s_mul_i32 s40, s24, 384")
            A(f"s_add_u32 s40, s40, {hex(WS_CS + 128 * kh)}")
            A("s_or_b32 s41, s23, s47")
            A("s_cmp_eq_u32 s41, 0")
            A("s_cselect_b32 s40, s40, 0x7fff0000")
            A("v_and_b32 v60, 31, v1")
            A("v_lshlrev_b32 v60, 2, v60")
            A(f"ds_read_b32 v46, v47 offset:{128 * kh}")
            A(f"ds_read_b32 v45, v47 offset:{128 * (kh + 3)}")
            A("v_add_f32 v46, v46, v45")
            A("buffer_store_dword v46, v60, s[12:15], s40 offen")
            if kh == 0:
                A("buffer_store_dword v56, v60, s[12:15], s40 offen offset:256")
            A(f"v_add_f32 v52, v52, v{RX + 24}")
            A(f"v_add_f32 v48, v53, v{RX + 25}")
            A("v_mov_b32 v57, v52")
            A("v_permlane32_swap_b32 v57, v52")
            token_stats(52, 48)
        A.stamp(7)
        cq = (DH ** -0.5) * 1.4426950408889634
        if kh == 0:
            A(f"v_mul_f32 v60, {hexf(cq)}, v48")
            A(f"v_mul_f32 v61, {hexf(cq)}, v52")
            ra, rb_ = 60, 61
        else:
            ra, rb_ = 48, 52
        PK = 168
        for r in range(16):
            A(f"v_mul_f32 v{CS + r}, v{CS + r}, v{rb_}")
        for r in range(16):
            A(f"v_add_f32 v{KP + r}, v{KP + r}, v{RX + r}")
            A(f"v_fma_f32 v{KP + r}, v{KP + r}, v{ra}, v{CS + r}")
        for d in range(8):
            A(f"v_cvt_pk_bf16_f32 v{PK + d}, v{KP + 2 * d}, v{KP + 2 * d + 1}")
        if kh == 0:
            A("v_mov_b32 v62, 0x3f80")
            A(f"v_cndmask_b32 v{PK + 6}, v62, v{PK + 6}, s[38:39]")
        else:
            A(f"v_cndmask_b32 v{PK + 6}, 0, v{PK + 6}, s[38:39]")
        A(f"v_cndmask_b32 v{PK + 7}, 0, v{PK + 7}, s[38:39]")
        A(f"s_mov_b32 s40, {hex((WS_QF if kh == 0 else WS_KF) + layer * LB)}")
        A(f"buffer_store_dwordx4 {v(PK, 4)}, v59, s[12:15], s40 offen")
        A(f"buffer_store_dwordx4 {v(PK + 4, 4)}, v59, s[12:15], s40 offen offset:1024")
        for r in range(8):
            A(f"v_mul_f32 v{TB + r}, v{TB + r}, v56")
        for r in range(8):
            A(f"v_add_f32 v{KP + 16 + r}, v{KP + 16 + r}, v{RX + 16 + r}")
            A(f"v_fma_f32 v{KP + 16 + r}, v{KP + 16 + r}, v{TA + r}, v{TB + r}")
        for d in range(4):
            A(f"v_cvt_pk_bf16_f32 v{RX + d}, v{KP + 16 + 2 * d}, v{KP + 16 + 2 * d + 1}")
            A(f"v_cndmask_b32 v{RX + d}, v63, v{RX + d}, s[42:43]")
        A(f"s_mov_b32 s40, {hex(WS_VF + 1024 * kh + layer * LB)}")
        A(f"buffer_store_dwordx4 {v(RX, 4)}, v59, s[12:15], s40 offen")
        if kh == 0:
            A(f"s_branch L_{name}_e2")
            A.raw(f"L_{name}_e1:")
            A.hist = []
            A.vmq = [dict(o) for o in save_vm]
            A.lgq = [dict(o) for o in save_lg]
            A.nop(2)
    A.raw(f"L_{name}_e2:")
    if pers:
        phase_begin(A)
        if L0:
            A("s_mov_b32 s34, 0")
            A("v_mov_b32 v10, 0")
            await_cnt(A, 60, 34, 10, 1, 8, pre=116)
        A("s_lshl_b32 s34, s24, 7")
        A("s_lshl_b32 s35, s23, 2")
        A("s_add_u32 s34, s34, s35")
        A(f"s_add_u32 s34, s34, {hex(F0 if L0 else F1)}")
        publish(A, 12, 34)
        return None
    A.stamp(4)
    A.dump_stamps(STAMP_WG)
    kernel_end(A, name)
    return K1_LDS, 512, 256, 176


K2_K, K2_V, K2_Q = 0, 24576, 49152
K2_X = 57344
K2_LDS = K2_X + 8 * 4096


def k2(A, name, layer, pers=False):
    if pers:
        phase_begin(A)
    else:
        kernel_begin(A, name, 256)
        A.stamp_base = 76
        A.stamp(0)
    A(f"s_load_dwordx2 s[20:21], s[0:1], {KA_WS}")
    if PREFETCH and layer == 0:
        A(f"s_load_dwordx2 s[88:89], s[0:1], {KA_W2}")
        A(f"s_load_dwordx2 s[84:85], s[0:1], {KA_W1}")
    A("v_and_b32 v1, 63, v0")
    A("v_lshrrev_b32 v2, 6, v0")
    A("v_readfirstlane_b32 s22, v2")
    A("s_lshr_b32 s23, s2, 4")
    A("s_and_b32 s24, s2, 15")
    A("s_and_b32 s38, s22, 3")
    A("s_lshr_b32 s39, s22, 2")
    A("v_lshlrev_b32 v2, 4, v1")
    A("s_lshl_b32 s25, s24, 17")
    A("s_lshl_b32 s26, s23, 2")
    A("s_sub_u32 s26, s26, 8")
    A("s_mul_i32 s27, s22, 3")
    for i in range(3):
        A(f"s_add_u32 s34, s27, {i}")
        A("s_lshr_b32 s35, s34, 1")
        A("s_add_i32 s35, s35, s26")
        A("s_lshl_b32 s36, s35, 11")
        A("s_and_b32 s37, s34, 1")
        A("s_lshl_b32 s37, s37, 10")
        A("s_add_u32 s36, s36, s37")
        A("s_cmp_lt_i32 s35, 0")
        A(f"s_cselect_b32 s{72 + i}, 0x40000000, s36")
    A("s_lshl_b32 s29, s27, 10")
    A.wait_all(vm=False)
    for (d, off) in [(4, WS_QF), (8, WS_KF), (12, WS_VF)]:
        A(f"s_add_u32 s28, s25, {hex(off + layer * LB)}")
        A(f"s_add_u32 s{d}, s20, s28")
        A(f"s_addc_u32 s{d + 1}, s21, 0")
        A(f"s_and_b32 s{d + 1}, s{d + 1}, 0xffff")
        A(f"s_mov_b32 s{d + 2}, 0x20000")
        A(f"s_mov_b32 s{d + 3}, 0x00020000")
    srd(A, 92, 20, 21, WSZ)
    if pers and (layer == 1 or "one" in OPT):
        A("s_lshl_b32 s34, s24, 7")
        A(f"s_add_u32 s34, s34, {hex(F1 if layer == 1 else F0)}")
        A("v_add_u32 v10, s23, v1")
        A("v_subrev_u32 v10, 2, v10")
        A("v_max_i32 v10, 0, v10")
        A("v_lshlrev_b32 v10, 2, v10")
        await_cnt(A, 92, 34, 10, 3, 1)
    for i in range(3):
        A(f"s_add_u32 m0, s29, {K2_K + i * 1024}")
        A(f"buffer_load_dwordx4 v2, s[8:11], s{72 + i} offen lds")
    A("s_lshl_b32 s30, s23, 13")
    A("s_lshl_b32 s31, s22, 10")
    A("s_add_u32 s30, s30, s31")
    A(f"s_add_u32 m0, s31, {K2_Q}")
    tokK = A("buffer_load_dwordx4 v2, s[4:7], s30 offen lds")
    if "nofb" not in OPT:
        A("s_barrier")
    for i in range(3):
        A(f"s_add_u32 m0, s29, {K2_V + i * 1024}")
        tokV = A(f"buffer_load_dwordx4 v2, s[12:15], s{72 + i} offen lds")
    srd_off(A, 16, 20, 21, hex(WS_OF + layer * LB), 128 * 16 * 1024)
    K2PF = PREFETCH and layer == 0
    if K2PF:
        A("s_lshl_b32 s34, s2, 3")
        A("s_add_u32 s34, s34, s22")
        A("s_mul_i32 s34, s34, 3584")
        A("v_lshlrev_b32 v40, 7, v1")
        A("v_add_u32 v40, s34, v40")
        srd(A, 88, 88, 89, S * F * 2)
        srd(A, 84, 84, 85, S * F * 2)
    A.stamp(1)
    A("v_and_b32 v4, 31, v1")
    A("v_lshrrev_b32 v5, 5, v1")
    A("v_mov_b32 v18, 0xf14a")
    A("v_mul_lo_u32 v18, v18, v5")
    A("v_add_u32 v19, s29, v2")
    A("v_lshlrev_b32 v6, 2, v5")
    A("v_sub_u32 v6, v4, v6")
    MS = 40
    for r in range(16):
        kk = 8 * (r >> 2) + (r & 3)
        A(f"v_cmp_ge_i32 s[{MS + 2 * r}:{MS + 2 * r + 1}], v6, {kk}")
    PM = 8
    A("v_mov_b32 v7, 0xffff")
    A("v_mov_b32 v16, 0xffff0000")
    for d in range(8):
        A(f"v_cndmask_b32 v{PM + d}, 0, v7, s[{MS + 4 * d}:{MS + 4 * d + 1}]")
        A(f"v_cndmask_b32 v17, 0, v16, s[{MS + 4 * d + 2}:{MS + 4 * d + 3}]")
        A(f"v_or_b32 v{PM + d}, v{PM + d}, v17")
    A.wait_vm(tokK)
    for i in range(3):
        A(f"s_add_u32 s34, s27, {i}")
        A("s_and_b32 s34, s34, 1")
        A(f"s_cmp_eq_u32 s{72 + i}, 0x40000000")
        A("s_cselect_b32 s35, s34, 0")
        A("s_cmp_eq_u32 s35, 0")
        lab = f"L_{name}_np{i}"
        A(f"s_cbranch_scc1 {lab}")
        A(f"ds_write_b32 v19, v18 offset:{K2_K + i * 1024 + 8}")
        A.raw(lab + ":")
    A.force_wait(lg=0)
    A("s_barrier")
    A.stamp(2)
    if "rtg" in OPT:
        rtp(A, "k2bar1", 172)
    A("s_lshl_b32 s35, s38, 11")
    A("v_add_u32 v28, s35, v2")
    A(f"ds_read_b128 v[20:23], v28 offset:{K2_Q}")
    A(f"ds_read_b128 v[24:27], v28 offset:{K2_Q + 1024}")
    BW = 14 if "k2both" in OPT else 7
    NBU = 4
    bcount = [0]

    def burst(i=None):
        n = bcount[0]
        if not K2PF or n >= NBU:
            return
        bcount[0] += 1
        if "k2both" in OPT:
            m = ((1 << 14) - 1) << (14 * (n & 1))
            sr = 84 if n < 2 else 88
        else:
            m = ((1 << 7) - 1) << (7 * n)
            sr = 84 if pers else 88
        A(f"s_mov_b64 exec, {hex(m)}")
        A.touch(f"buffer_load_dword v42, v40, s[{sr}:{sr + 3}], 0 offen")
        exec_lanes(A, 64)
    A("s_mul_i32 s36, s22, 4096")
    A(f"s_add_u32 s36, s36, {K2_X}")
    A("v_add_u32 v44, s36, v2")
    A("s_xor_b32 s37, s22, 4")
    A("s_mul_i32 s37, s37, 4096")
    A(f"s_add_u32 s37, s37, {K2_X}")
    A("v_add_u32 v45, s37, v2")
    A("s_cmp_eq_u32 s39, 0")
    A(f"s_cbranch_scc0 L_{name}_h1")
    A.vmq_save = [dict(o) for o in A.vmq]
    A.lgq_save = [dict(o) for o in A.lgq]
    SB = [48, 64, 80, 96]
    MX = 30
    CN = 112
    OA = 128
    PB = [144, 152, 160]

    for hf in range(2):
        blocks = [0, 8, 1, 2, 3] if hf == 0 else [4, 5, 6, 7]
        slotk = {b: i for i, b in enumerate(blocks)}
        for b in blocks:
            for st in range(2):
                A(f"ds_read_b128 {a(8 * slotk[b] + 4 * st, 4)}, v28 offset:{K2_K + 2048 * b + 1024 * st}")

        bcount[0] = 0

        def qk(b, buf, cinit):
            k = 8 * slotk[b]
            A(f"v_mfma_f32_32x32x16_bf16 {v(buf, 16)}, {a(k, 4)}, v[20:23], {cinit}")
            A(f"v_mfma_f32_32x32x16_bf16 {v(buf, 16)}, {a(k + 4, 4)}, v[24:27], {v(buf, 16)}")

        def maxblk(buf, first):
            if first:
                A(f"v_max3_f32 v{MX}, v{buf}, v{buf + 1}, v{buf + 2}")
                rest = list(range(3, 16))
            else:
                rest = list(range(16))
            while len(rest) >= 2:
                A(f"v_max3_f32 v{MX}, v{MX}, v{buf + rest[0]}, v{buf + rest[1]}")
                rest = rest[2:]
            if rest:
                A(f"v_max_f32 v{MX}, v{MX}, v{buf + rest[0]}")

        def merge():
            for r in range(16):
                A(f"v_cndmask_b32 v{SB[0] + r}, v{SB[0] + r}, v{SB[1] + r}, s[{MS + 2 * r}:{MS + 2 * r + 1}]")

        if hf == 0:
            qk(0, SB[0], "0"); qk(8, SB[1], "0"); qk(1, SB[2], "0"); qk(2, SB[3], "0")
            merge()
            qk(3, SB[1], "0")
            maxblk(SB[0], True); maxblk(SB[2], False); maxblk(SB[3], False); maxblk(SB[1], False)
        else:
            for i, b in enumerate(blocks):
                qk(b, SB[i], "0")
            maxblk(SB[0], True); maxblk(SB[1], False); maxblk(SB[2], False); maxblk(SB[3], False)
        A(f"v_mov_b32 v31, v{MX}")
        A(f"v_permlane32_swap_b32 v31, v{MX}")
        A(f"v_max_f32 v{MX}, v{MX}, v31")
        A(f"ds_write_b32 v44, v{MX}")
        A.wait_vm(tokV)
        A.wait_all(vm=False)
        A("s_barrier")
        A("ds_read_b32 v31, v45")
        for b in blocks:
            for st in range(2):
                A(f"ds_read_b128 {a(40 + 8 * slotk[b] + 4 * st, 4)}, v28 offset:{K2_V + 2048 * b + 1024 * st}")
        A(f"v_max_f32 v{MX}, v{MX}, v31")
        for r in range(16):
            A(f"v_sub_f32 v{CN + r}, 0, v{MX}")
        cn = v(CN, 16)

        def exppack(buf, pb):
            for r in range(16):
                A(f"v_exp_f32 v{buf + r}, v{buf + r}")
            for d in range(8):
                A(f"v_cvt_pk_bf16_f32 v{pb + d}, v{buf + 2 * d}, v{buf + 2 * d + 1}")
            burst()

        first_pv = [True]

        def pv(b, pb):
            for st in range(2):
                c = "0" if first_pv[0] else v(OA, 16)
                first_pv[0] = False
                A(f"v_mfma_f32_32x32x16_bf16 {v(OA, 16)}, {a(40 + 8 * slotk[b] + 4 * st, 4)}, {v(pb + 4 * st, 4)}, {c}")

        if hf == 0:
            qk(0, SB[0], cn); qk(8, SB[1], cn); qk(1, SB[2], cn); qk(2, SB[3], cn)
            merge()
            qk(3, SB[1], cn)
            exppack(SB[0], PB[0])
            for d in range(8):
                A(f"v_and_b32 v{PB[1] + d}, v{PM + d}, v{PB[0] + d}")
                A(f"v_xor_b32 v{PB[0] + d}, v{PB[0] + d}, v{PB[1] + d}")
            pv(0, PB[0]); pv(8, PB[1])
            exppack(SB[2], PB[2]); pv(1, PB[2])
            exppack(SB[3], PB[0]); pv(2, PB[0])
            exppack(SB[1], PB[1]); pv(3, PB[1])
        else:
            for i, b in enumerate(blocks):
                qk(b, SB[i], cn)
            for i, b in enumerate(blocks):
                exppack(SB[i], PB[i % 3])
                pv(b, PB[i % 3])
        A.stamp(3)
        keep, send = (OA, OA + 8) if hf == 0 else (OA + 8, OA)
        A(f"ds_write_b128 v44, {v(send, 4)} offset:1024")
        A(f"ds_write_b128 v44, {v(send + 4, 4)} offset:2048")
        A(f"ds_write_b32 v44, v{OA + 12} offset:3072")
        A.wait_all(vm=False)
        A("s_barrier")
        A("ds_read_b128 v[144:147], v45 offset:1024")
        A("ds_read_b128 v[148:151], v45 offset:2048")
        A("ds_read_b32 v32, v45 offset:3072")
        A(f"v_add_f32 v32, v32, v{OA + 12}")
        A("v_mov_b32 v33, v32")
        A("v_permlane32_swap_b32 v33, v32")
        A("v_rcp_f32 v33, v32")
        for r in range(8):
            A(f"v_add_f32 v{keep + r}, v{keep + r}, v{144 + r}")
            A(f"v_mul_f32 v{keep + r}, v{keep + r}, v33")
        for d in range(4):
            A(f"v_cvt_pk_bf16_f32 v{152 + d}, v{keep + 2 * d}, v{keep + 2 * d + 1}")
        if hf == 1:
            A("v_cmp_eq_u32 vcc, 0, v5")
            A("v_cndmask_b32 v154, 0, v154, vcc")
            A("v_cndmask_b32 v155, 0, v155, vcc")
        A("s_lshl_b32 s37, s23, 2")
        A("s_add_u32 s37, s37, s38")
        A("s_lshl_b32 s37, s37, 15")
        A("s_lshl_b32 s36, s24, 10")
        A("s_add_u32 s37, s37, s36")
        A("v_bfe_u32 v35, v1, 4, 1")
        A("v_lshlrev_b32 v35, 14, v35")
        A("v_and_b32 v36, 15, v1")
        A("v_lshl_add_u32 v35, v36, 4, v35")
        A("v_lshl_add_u32 v35, v5, 8, v35")
        A(f"buffer_store_dwordx4 v[152:155], v35, s[16:19], s37 offen offset:{512 * hf}")
        if hf == 0:
            A(f"s_branch L_{name}_done")
            A.raw(f"L_{name}_h1:")
            A.hist = []
            A.lgq = [o for o in A.lgq_save] if hasattr(A, "lgq_save") else []
            A.vmq = list(A.vmq_save)
            A.force_wait(lg=0)
    A.raw(f"L_{name}_done:")
    if pers:
        phase_begin(A)
        A("s_lshl_b32 s34, s23, 7")
        A(f"s_add_u32 s34, s34, {hex(C2(layer))}")
        publish(A, 92, 34)
        return None
    A.stamp(4)
    A.dump_stamps(STAMP_WG)
    kernel_end(A, name)
    return K2_LDS, 512, 256, 176


K3_O, K3_W, K3_X, K3_T = 0, 65536, 122880, 131072
K3_LDS = K3_T + 64 * 136


def k3(A, name, layer, pers=False):
    if pers:
        phase_begin(A)
        A("s_cmp_ge_u32 s2, 224")
        A(f"s_cbranch_scc1 L_{name}_{'idle' if PREFETCH else 'skip'}")
    else:
        kernel_begin(A, name, 224)
        A.stamp_base = 70
        A.stamp(0)
    A(f"s_load_dwordx2 s[20:21], s[0:1], {KA_WS}")
    A(f"s_load_dwordx2 s[8:9], s[0:1], {KA_WO}")
    if layer == 0:
        A(f"s_load_dwordx2 s[12:13], s[0:1], {KA_X}")
    if PREFETCH:
        A(f"s_load_dwordx2 s[48:49], s[0:1], {KA_W1}")
    A("v_and_b32 v1, 63, v0")
    A("v_lshrrev_b32 v2, 6, v0")
    A("v_readfirstlane_b32 s22, v2")
    A("s_lshr_b32 s23, s2, 5")
    A("s_and_b32 s24, s2, 31")
    A("v_lshlrev_b32 v2, 4, v1")
    A("v_lshrrev_b32 v3, 3, v1")
    A("v_bfe_u32 v4, v1, 4, 2")
    A("v_lshlrev_b32 v4, 1, v4")
    A("v_and_b32 v5, 7, v1")
    A("v_xor_b32 v4, v4, v5")
    A("v_mul_u32_u24 v5, 896, v3")
    A("v_lshl_add_u32 v5, v4, 4, v5")
    A("s_lshl_b32 s25, s23, 7")
    A("v_add_u32 v5, s25, v5")
    A.wait_all(vm=False)
    srd_off(A, 4, 20, 21, hex(WS_OF + layer * LB), 128 * 16384)
    srd(A, 8, 8, 9, D * D * 2)
    if layer == 0:
        srd(A, 12, 12, 13, XBYTES)
    else:
        srd_off(A, 12, 20, 21, hex(WS_X2), XBYTES)
    srd(A, 16, 20, 21, WSZ)
    toks = {}
    A("s_mul_i32 s30, s22, 7168")
    A("s_lshl_b32 s32, s22, 10")
    for q in range(7):
        A(f"s_add_u32 m0, s32, {K3_W + q * 8192}")
        A(f"s_add_u32 s31, s30, {q * 64 * 896}")
        A("buffer_load_dwordx4 v5, s[8:11], s31 offen lds")

    def xtile():
        A("s_lshl_b32 s35, s22, 10")
        A(f"s_add_u32 m0, s35, {K3_X}")
        if layer == 0:
            A("s_lshl_b32 s34, s24, 6")
            A("s_lshl_b32 s35, s22, 3")
            A("s_add_u32 s34, s34, s35")
            A("s_mul_i32 s34, s34, 896")
            A("buffer_load_dwordx4 v5, s[12:15], s34 offen lds")
        else:
            A("s_and_b32 s34, s22, 1")
            A("s_lshl_b32 s34, s34, 3")
            A("v_add_u32 v20, s34, v3")
            A("v_lshlrev_b32 v21, 6, v20")
            A("v_mul_u32_u24 v22, 48, v20")
            A("v_add_u32 v22, 960, v22")
            A("s_lshl_b32 s34, s23, 3")
            x2_addr(A, 23, 4, 34, 21, 22)
            A("s_lshl_b32 s34, s24, 2")
            A("s_lshr_b32 s35, s22, 1")
            A("s_add_u32 s34, s34, s35")
            A("s_mul_i32 s34, s34, 14336")
            A("buffer_load_dwordx4 v23, s[12:15], s34 offen lds")
    if layer == 0:
        xtile()
    if pers:
        A("s_lshr_b32 s34, s24, 1")
        A("s_lshl_b32 s34, s34, 7")
        A(f"s_add_u32 s34, s34, {hex(C2(layer))}")
        A("v_mov_b32 v10, 0")
        await_cnt(A, 16, 34, 10, 1, 16)
    A("s_lshl_b32 s32, s22, 13")
    A("s_lshl_b32 s29, s24, 16")
    A("s_add_u32 s30, s29, s32")
    for q in range(8):
        A(f"s_add_u32 m0, s32, {K3_O + q * 1024}")
        A(f"s_add_u32 s31, s30, {q * 1024}")
        toks[0] = A("buffer_load_dwordx4 v2, s[4:7], s31 offen lds")
        if q == 1 and "nofb" not in OPT:
            A("s_barrier")
    if layer == 1:
        xtile()
        toks[0] = A.vmq[-1]["tok"]
    if PREFETCH and layer == 0 and not pers:
        w1_prefetch(A, 48, 224, 126)
    A.stamp(1)
    A("s_and_b32 s33, s22, 1")
    A("s_lshr_b32 s34, s22, 1")
    A("s_lshl_b32 s35, s33, 15")
    A("v_add_u32 v6, s35, v2")
    A("v_lshrrev_b32 v7, 4, v1")
    A("v_bfe_u32 v8, v1, 2, 2")
    A("v_and_b32 v9, 3, v1")
    A("v_lshrrev_b32 v10, 1, v7")
    A("v_and_b32 v11, 1, v7")
    A("v_lshlrev_b32 v12, 4, v10")
    A("v_lshl_add_u32 v12, v11, 2, v12")
    A("v_add_u32 v12, v12, v8")
    A("v_lshlrev_b32 v12, 7, v12")
    A("v_lshl_add_u32 v12, v9, 3, v12")
    A("v_lshrrev_b32 v13, 1, v8")
    A("v_lshl_add_u32 v13, v11, 1, v13")
    A("v_xor_b32 v14, s34, v13")
    A("v_lshl_add_u32 v16, v14, 5, v12")
    A(f"v_add_u32 v16, {K3_W}, v16")
    A("v_add_u32 v13, 2, v13")
    A("v_and_b32 v13, 3, v13")
    A("v_xor_b32 v14, s34, v13")
    A("v_lshl_add_u32 v17, v14, 5, v12")
    A(f"v_add_u32 v17, {K3_W}, v17")
    A("v_lshl_add_u32 v14, v7, 2, v8")
    A("v_bfe_u32 v15, v14, 1, 2")
    A("v_lshlrev_b32 v14, 7, v14")
    A("v_lshl_add_u32 v14, v9, 3, v14")
    A("s_lshl_b32 s38, s33, 12")
    A(f"s_add_u32 s38, s38, {K3_X}")
    A("v_add_u32 v14, s38, v14")
    A("v_xor_b32 v20, s34, v15")
    A("v_lshl_add_u32 v18, v20, 5, v14")
    ACC = 32
    AF3, BF3 = 48, 72

    def reads(kp, buf):
        for mt in range(2):
            A(f"ds_read_b128 {v(AF3 + 8 * buf + 4 * mt, 4)}, v6 offset:{mt * 16384 + kp * 1024}")
        for t in range(2):
            A(f"ds_read_b64_tr_b16 {v(BF3 + 4 * buf + 2 * t, 2)}, v{16 + (kp & 1)} offset:{kp * 3584 + t * 1024}")

    def mfmas(kp, buf):
        for mt in range(2):
            c = "0" if kp == 0 else v(ACC + 4 * mt, 4)
            A(f"v_mfma_f32_16x16x32_bf16 {v(ACC + 4 * mt, 4)}, {v(AF3 + 8 * buf + 4 * mt, 4)}, {v(BF3 + 4 * buf, 4)}, {c}")

    A.wait_vm(toks[0])
    A("s_barrier")
    A.stamp(2)
    if "rtg" in OPT:
        rtp(A, "k3bar1")
    reads(0, 0)
    reads(1, 1)
    for kp in range(16):
        if kp + 2 < 16:
            reads(kp + 2, (kp + 2) % 3)
        if kp == 13:
            for mt in range(2):
                A(f"ds_read_b64_tr_b16 {v(96 + 2 * mt, 2)}, v18 offset:{mt * 2048}")
        mfmas(kp, kp % 3)
    A.stamp(4)
    XR = 96
    PKD = 112
    for mt in range(2):
        for hlf in range(2):
            x = XR + 2 * mt + hlf
            A(f"v_lshlrev_b32 v104, 16, v{x}")
            A(f"v_and_b32 v105, 0xffff0000, v{x}")
            A(f"v_add_f32 v{ACC + 4 * mt + 2 * hlf}, v{ACC + 4 * mt + 2 * hlf}, v104")
            A(f"v_add_f32 v{ACC + 4 * mt + 2 * hlf + 1}, v{ACC + 4 * mt + 2 * hlf + 1}, v105")
            A(f"v_cvt_pk_bf16_f32 v{PKD + 2 * mt + hlf}, v{ACC + 4 * mt + 2 * hlf}, v{ACC + 4 * mt + 2 * hlf + 1}")
    A("s_lshl_b32 s39, s24, 1")
    A("s_add_u32 s39, s39, s33")
    A("s_mul_i32 s39, s39, 28672")
    A("s_lshl_b32 s40, s23, 3")
    A("s_lshl_b32 s41, s34, 1")
    A("s_add_u32 s40, s40, s41")
    A("s_lshl_b32 s40, s40, 9")
    A("s_add_u32 s39, s39, s40")
    A(f"s_add_u32 s39, s39, {hex(WS_X1F + layer * LB)}")
    A("v_bfe_u32 v21, v1, 3, 1")
    A("v_lshlrev_b32 v21, 9, v21")
    A("v_lshl_add_u32 v21, v7, 7, v21")
    A("v_and_b32 v22, 7, v1")
    A("v_lshl_add_u32 v21, v22, 4, v21")
    A(f"buffer_store_dwordx4 {v(PKD, 4)}, v21, s[16:19], s39 offen")
    TP = 136
    A("v_and_b32 v22, 15, v1")
    A(f"v_mul_u32_u24 v23, {TP}, v22")
    A("v_lshl_add_u32 v23, v7, 3, v23")
    A(f"s_mul_i32 s41, s34, {16 * TP}")
    A("s_lshl_b32 s42, s33, 6")
    A("s_add_u32 s41, s41, s42")
    A(f"s_add_u32 s41, s41, {K3_T}")
    A("v_add_u32 v23, s41, v23")
    for mt in range(2):
        A(f"ds_write_b64 v23, {v(PKD + 2 * mt, 2)} offset:{mt * 32}")
    A("v_lshl_add_u32 v24, v7, 2, v8")
    A(f"v_mul_u32_u24 v24, {TP}, v24")
    A("v_lshl_add_u32 v24, v9, 3, v24")
    A("v_add_u32 v24, s41, v24")
    TR = 120
    for mt in range(2):
        A(f"ds_read_b64_tr_b16 {v(TR + 2 * mt, 2)}, v24 offset:{mt * 32}")
    A("s_lshl_b32 s42, s24, 2")
    A("s_lshl_b32 s43, s33, 1")
    A("s_add_u32 s42, s42, s43")
    A("s_mul_i32 s43, s42, 14336")
    A("s_lshl_b32 s44, s23, 4")
    A("s_lshl_b32 s45, s34, 2")
    A("s_add_u32 s44, s44, s45")
    A("s_lshl_b32 s44, s44, 7")
    A("s_add_u32 s43, s43, s44")
    A(f"s_add_u32 s43, s43, {hex(WS_X1T + layer * LB)}")
    A("v_lshlrev_b32 v25, 7, v7")
    A("v_lshl_add_u32 v25, v22, 3, v25")
    A("v_mov_b32 v26, 0x3f803f80")
    for i in range(4):
        A(f"v_mov_b32 v{28 + i}, 0")
    for mt in range(2):
        A(f"s_add_u32 s44, s43, {mt * 14336}")
        A(f"buffer_store_dwordx2 {v(TR + 2 * mt, 2)}, v25, s[16:19], s44 offen")
        for hlf in range(2):
            A(f"v_dot2_f32_bf16 v{28 + 2 * mt}, v{TR + 2 * mt + hlf}, v26, v{28 + 2 * mt}")
            A(f"v_dot2_f32_bf16 v{29 + 2 * mt}, v{TR + 2 * mt + hlf}, v{TR + 2 * mt + hlf}, v{29 + 2 * mt}")
    A("v_cmp_gt_u32 vcc, 16, v1")
    A("v_lshlrev_b32 v27, 2, v1")
    A("s_lshl_b32 s44, s42, 7")
    A(f"s_add_u32 s44, s44, {hex(WS_ST + (0 if layer == 0 else 2) * 16384)}")
    for mt in range(2):
        reduce_groups(A, 28 + 2 * mt, 104)
        reduce_groups(A, 29 + 2 * mt, 105)
        A(f"v_cndmask_b32 v{106 + mt}, v{29 + 2 * mt}, v{28 + 2 * mt}, vcc")
    exec_lanes(A, 32)
    A("buffer_atomic_add_f32 v106, v27, s[16:19], s44 offen")
    A("buffer_atomic_add_f32 v107, v27, s[16:19], s44 offen offset:128")
    exec_lanes(A, 64)
    if pers:
        A("s_and_b32 s34, s2, 7")
        A("s_lshl_b32 s34, s34, 7")
        A(f"s_add_u32 s34, s34, {hex(C3(layer))}")
        publish(A, 16, 34)
        A.raw(f"L_{name}_skip:")
        return None
    A.stamp(5)
    A.dump_stamps(STAMP_WG)
    kernel_end(A, name)
    return K3_LDS, 512, 256, 176


def pfx(A, name, nwg):
    kernel_begin(A, name, nwg)
    A(f"s_load_dwordx2 s[48:49], s[0:1], {KA_W1}")
    A("v_and_b32 v1, 63, v0")
    A("v_lshrrev_b32 v2, 6, v0")
    A("v_readfirstlane_b32 s22, v2")
    A.wait_all(vm=False)
    w1_prefetch(A, 48, nwg, 20)
    kernel_end(A, name)
    return 0, 512, 64, 64


def g12(A, name, layer):
    gk(A, name, layer, 1, fused=True)
    return gk(A, name, layer, 2, fused=True)


def idle_prefetch(A, layer):
    phase_begin(A)
    A(f"s_load_dwordx2 s[48:49], s[0:1], {KA_W1}")
    A(f"s_load_dwordx2 s[52:53], s[0:1], {KA_W2}")
    A("v_and_b32 v1, 63, v0")
    A("v_lshrrev_b32 v2, 6, v0")
    A("v_readfirstlane_b32 s22, v2")
    A("s_lshr_b32 s34, s2, 3")
    A("s_sub_u32 s34, s34, 28")
    A("s_lshl_b32 s34, s34, 3")
    A("s_add_u32 s34, s34, s22")
    A("s_bfe_u32 s36, s2, 0x20001")
    A.wait_all(vm=False)
    srd(A, 48, 48, 49, S * F * 2)
    srd(A, 52, 52, 53, S * F * 2)
    A("s_mul_i32 s35, s34, 448")
    A("s_mul_i32 s37, s36, 896")
    for q in range(7):
        A(f"s_add_u32 s38, s35, {64 * q}")
        A("v_add_u32 v10, s38, v1")
        div_const(A, "v11", "v10", 7, 39, rng=14400)
        A("v_mul_u32_u24 v12, 7, v11")
        A("v_sub_u32 v12, v10, v12")
        A("v_mul_u32_u24 v11, 3584, v11")
        A("v_lshl_add_u32 v11, v12, 7, v11")
        A.touch("buffer_load_dword v13, v11, s[48:51], s37 offen")
    if layer == 0:
        A("s_sub_u32 s35, s2, 224")
        A("s_lshl_b32 s35, s35, 3")
        A("s_add_u32 s35, s35, s22")
        A("s_mul_i32 s35, s35, 28672")
        A("v_lshlrev_b32 v10, 7, v1")
        for q in range(4):
            A(f"s_add_u32 s38, s35, {8192 * q}")
            if q == 3:
                exec_lanes(A, 32)
            A.touch("buffer_load_dword v13, v10, s[52:55], s38 offen")
        exec_lanes(A, 64)
    else:
        A("s_mul_i32 s35, s34, 448")
        A("s_lshl_b32 s37, s36, 10")
        for q in range(7):
            A(f"s_add_u32 s38, s35, {64 * q}")
            A("v_add_u32 v10, s38, v1")
            A("v_lshrrev_b32 v11, 3, v10")
            A("v_lshlrev_b32 v11, 12, v11")
            A("v_and_b32 v12, 7, v10")
            A("v_lshl_add_u32 v11, v12, 7, v11")
            A.touch("buffer_load_dword v13, v11, s[52:55], s37 offen")


def tlb_warm(A):
    A(f"s_load_dwordx2 s[64:65], s[0:1], {KA_W1}")
    A(f"s_load_dwordx2 s[68:69], s[0:1], {KA_W2}")
    A(f"s_load_dwordx2 s[72:73], s[0:1], {KA_OUT}")
    A(f"s_load_dwordx2 s[76:77], s[0:1], {KA_WO}")
    A("v_lshlrev_b32 v12, 21, v1")
    A.wait_all(vm=False)
    srd(A, 64, 64, 65, S * F * 2)
    srd(A, 68, 68, 69, S * F * 2)
    srd(A, 72, 72, 73, XBYTES)
    srd(A, 76, 76, 77, D * D * 2)
    exec_lanes(A, 24)
    A.touch("buffer_load_dword v13, v12, s[12:15], 0 offen")
    exec_lanes(A, 4)
    A.touch("buffer_load_dword v13, v12, s[64:67], 0 offen")
    A.touch("buffer_load_dword v13, v12, s[68:71], 0 offen")
    exec_lanes(A, 1)
    A.touch("buffer_load_dword v13, v12, s[72:75], 0 offen")
    A.touch("buffer_load_dword v13, v12, s[76:79], 0 offen")
    exec_lanes(A, 64)


def pk(A, name):
    kernel_begin(A, name, 256)
    st = A.stamps
    A.stamps = False
    if "one" in OPT:
        k1(A, "pk1a", 0, pers=True)
    k2(A, "pk2a", 0, pers=True)
    k3(A, "pk3a", 0, pers=True)
    if "g1old" in OPT:
        gk(A, "pg1a", 0, 1, pers=True)
    else:
        g1v2(A, "pg1a", 0, pers=True)
    if PREFETCH:
        A("s_branch L_pg1a_go")
        A.raw("L_pk3a_idle:")
        idle_prefetch(A, 0)
        A.raw("L_pg1a_go:")
    gk(A, "pg2a", 0, 2, pers=True)
    k1(A, "pk1b", 1, pers=True)
    k2(A, "pk2b", 1, pers=True)
    k3(A, "pk3b", 1, pers=True)
    if "g1old" in OPT:
        gk(A, "pg1b", 1, 1, pers=True)
    else:
        g1v2(A, "pg1b", 1, pers=True)
    if PREFETCH:
        A("s_branch L_pg1b_go")
        A.raw("L_pk3b_idle:")
        idle_prefetch(A, 1)
        A.raw("L_pg1b_go:")
    gk(A, "pg2b", 1, 2, pers=True)
    A.stamps = st
    phase_begin(A)
    kernel_end(A, name)
    return G_LDS, 512, 256, 176


def kd2(name, nv, acc):
    return kd(name, nv=nv, acc=acc)


def build(kernels, path, stamps=False):
    A = Asm()
    A.stamps = stamps
    A.store_mod = "sc0 sc1"
    if "ldsc1" in OPT:
        A.load_mod = "sc1"
    for o in OPT:
        if o.startswith("st="):
            A.store_mod = o[3:].replace("+", " ")
    launches = []
    kds = []
    for (name, fn, args, grid) in kernels:
        lds, threads, nv, acc = fn(A, name, *args)
        if name == MAIN:
            launches.append(f"; @launch grid=({grid},1,1) block=({threads},1,1) lds={lds}")
        else:
            launches.append(f"; @launch kernel={name} grid=({grid},1,1) block=({threads},1,1) lds={lds}")
        kds.append(kd2(name, nv, acc))
    head = open("interleave_layers__sliding_block__mixer_token_mlp__prompt.s.ref").read()
    hdr = [l for l in head.splitlines() if l.startswith(";") and "@launch" not in l][:12]
    txt = "\n".join(hdr) + "\n" + "\n".join(launches) + "\n"
    txt += '.amdgcn_target "amdgcn-amd-amdhsa--gfx950"\n.text\n'
    txt += A.text()
    txt += '.section .rodata,"a"\n' + "\n".join(kds) + "\n"
    open(path, "w").write(txt)
    if RTN:
        open("rtn.txt", "w").write(repr(RTN))
    print(f"wrote {path}: {A.ninstr} instrs, {A.nops_inserted} nop states inserted, {len(txt)} bytes")


if __name__ == "__main__":
    ks = []
    for L, c in enumerate("ab"):
        ks += [(f"k1{c}_kernel", k1, (L,), 256), (f"k2{c}_kernel", k2, (L,), 256), (f"k3{c}_kernel", k3, (L,), 224),
               ] + ([(f"g12{c}_kernel", g12, (L,), 256)] if "fuse" in OPT else
                    [(f"g1{c}_kernel", gk, (L, 1), 224), (f"g2{c}_kernel", gk, (L, 2), 256)])
    if "pers" in OPT:
        ks = [("k1a_kernel", k1, (0,), 256), ("pb_kernel", pk, (), 256)]
        if "one" in OPT:
            ks = [(MAIN, pk, (), 256)]
    if "pfx" in OPT:
        ks += [("pfx_kernel", pfx, (224,), 224), ("pfy_kernel", pfx, (256,), 256)]
    build(ks, sys.argv[1] if len(sys.argv) > 1 else "dev.s", stamps=("--stamps" in sys.argv))
```

```python
import sys
import struct
sys.path.insert(0, "tools")
OPT = set(sys.argv[1:])
from dsl import Asm, v, a, s

S, D, H, DH, F = 2048, 448, 16, 28, 1792
PREFETCH = 'nopf' not in sys.argv
KA_X, KA_WQKV, KA_WO, KA_BX, KA_W1, KA_B1, KA_W2, KA_B2, KA_OUT, KA_DBG, KA_WS = [8 * i for i in range(11)]
WS_QF = 0x000000
WS_KF = 0x200000
WS_VF = 0x400000
WS_OF = 0x600000
WS_X1T = 0x800000
WS_X1F = 0xA00000
WS_UF = 0xC00000
WS_X2 = 0xE00000
WS_WC = 0x1200000
WS_CS = 0x1380000
WS_CNT = 0x100C000
WS_ST = 0x1000000
XBYTES = S * D * 2
MAIN = "interleave_layers__sliding_block__mixer_token_mlp__prompt_kernel"
LB = 0x2000000
WSZ = 0x4000000


def f32(x):
    return struct.unpack("<I", struct.pack("<f", x))[0]


def hexf(x):
    return "0x%08x" % f32(x)


def srd(A, d, base_lo, base_hi, nbytes):
    if base_lo != d:
        A(f"s_mov_b32 s{d}, s{base_lo}")
    A(f"s_and_b32 s{d + 1}, s{base_hi}, 0xffff")
    A(f"s_mov_b32 s{d + 2}, {hex(nbytes)}")
    A(f"s_mov_b32 s{d + 3}, 0x00020000")


def srd_off(A, d, base_lo, base_hi, off, nbytes):
    A(f"s_add_u32 s{d}, s{base_lo}, {off}")
    A(f"s_addc_u32 s{d + 1}, s{base_hi}, 0")
    A(f"s_and_b32 s{d + 1}, s{d + 1}, 0xffff")
    A(f"s_mov_b32 s{d + 2}, {hex(nbytes)}")
    A(f"s_mov_b32 s{d + 3}, 0x00020000")


def kernel_begin(A, name, nwg):
    A.raw(f".globl {name}")
    A.raw(".p2align 8")
    A.raw(f".type {name},@function")
    A.raw(f"{name}:")
    A.hist = []
    A.vmq = []
    A.lgq = []
    A(f"s_cmp_ge_u32 s2, {nwg}")
    A(f"s_cbranch_scc1 L_{name}_end")
    if "rt" in OPT:
        A("s_memrealtime s[98:99]")


KIDX = [0]


def kernel_end(A, name):
    if "rt" in OPT:
        A.wait_all()
        A("s_memrealtime s[96:97]")
        A(f"s_load_dwordx2 s[60:61], s[0:1], {KA_WS}")
        A.wait_all()
        A("s_mov_b32 s62, 0x2000000")
        A("s_mov_b32 s63, 0x00020000")
        A("v_mov_b32 v2, s98")
        A("v_mov_b32 v3, s96")
        A("s_lshl_b32 s64, s2, 3")
        A(f"s_add_u32 s64, s64, {0x1800000 + KIDX[0] * 4096}")
        A("v_mov_b32 v4, s64")
        A("v_cmp_eq_u32 vcc, 0, v0")
        A("s_and_saveexec_b64 s[66:67], vcc")
        A(f"s_cbranch_execz L_{name}_end")
        A("buffer_store_dwordx2 v[2:3], v4, s[60:63], 0 offen")
        KIDX[0] += 1
    A.raw(f"L_{name}_end:")
    A("s_endpgm")


def kd(name, nv=512, acc=256, ns=102):
    return f"""
.p2align 6
.amdhsa_kernel {name}
  .amdhsa_next_free_vgpr {nv}
  .amdhsa_next_free_sgpr {ns}
  .amdhsa_accum_offset {acc}
  .amdhsa_group_segment_fixed_size 0
  .amdhsa_kernarg_size 88
  .amdhsa_user_sgpr_count 2
  .amdhsa_user_sgpr_kernarg_segment_ptr 1
  .amdhsa_system_sgpr_workgroup_id_x 1
.end_amdhsa_kernel"""


def div_const(A, dst, src, d, tmp_s, rng=4096):
    m = (1 << 20) // d + 1
    for x in range(0, rng):
        assert (x * m) >> 20 == x // d and x * m < (1 << 32), (x, d)
    A(f"s_mov_b32 s{tmp_s}, {m}")
    A(f"v_mul_lo_u32 {dst}, {src}, s{tmp_s}")
    A(f"v_lshrrev_b32 {dst}, 20, {dst}")


def exec_lanes(A, n):
    if n == 64:
        A("s_mov_b64 exec, -1")
    elif n <= 32:
        A(f"s_mov_b64 exec, {hex((1 << n) - 1)}")
    else:
        raise ValueError


STAMP_WG = 37


def interleave(main, fillers):
    n = len(main)
    done = 0
    for i, m in enumerate(main):
        m()
        want = (len(fillers) * (i + 1)) // n
        while done < want:
            fillers[done]()
            done += 1


def sprinkle(base, extra):
    if not base:
        return list(extra)
    out = []
    k = 0
    for i, b in enumerate(base):
        out.append(b)
        while k < (len(extra) * (i + 1)) // len(base):
            out.append(extra[k])
            k += 1
    out += extra[k:]
    return out


def C4(layer): return WS_CNT + layer * 1024
def C2(layer): return WS_CNT + 2048 + layer * 2048
def C3(layer): return WS_CNT + 6144 + layer * 1024
C5 = WS_CNT + 8192
F1 = WS_CNT + 10240
F0 = WS_CNT + 12288
UID = [0]
POLL_SLEEP = int(([o[6:] for o in OPT if o.startswith('sleep=')] + ['2'])[0])
NPOLL = int(([o[6:] for o in OPT if o.startswith('npoll=')] + ['1'])[0])
PV = 168


def publish(A, sr, soff_sgpr):
    UID[0] += 1
    lab = f"L_pub{UID[0]}"
    A.force_wait(vm=0, lg=0)
    A("s_barrier")
    A("v_mov_b32 v10, 0")
    A("v_mov_b32 v11, 1")
    A("v_cmp_eq_u32 vcc, 0, v0")
    A("s_and_saveexec_b64 s[44:45], vcc")
    A(f"s_cbranch_execz {lab}")
    A(f"buffer_atomic_add v11, v10, s[{sr}:{sr + 3}], s{soff_sgpr} offen sc1")
    A.raw(lab + ":")
    A("s_mov_b64 exec, -1")
    rtp(A, "publish")


def await_cnt(A, sr, soff_sgpr, vaddr, nlanes, target, pre=None):
    UID[0] += 1
    lp, lw, ld = f"L_awp{UID[0]}", f"L_aww{UID[0]}", f"L_awd{UID[0]}"
    A("s_cmp_lg_u32 s22, 0")
    A(f"s_cbranch_scc1 {lw}")
    A(f"s_mov_b64 exec, {hex((1 << nlanes) - 1)}")
    A("s_mov_b32 s45, 0x40000")
    ld_ = f"    buffer_load_dword v{{}}, v{vaddr}, s[{sr}:{sr + 3}], s{soff_sgpr} offen sc0 sc1"
    if pre is not None:
        A.raw("    s_waitcnt vmcnt(0)")
        A.raw(f"    v_cmp_gt_u32 vcc, {target}, v{pre}")
        A.raw(f"    s_cbranch_vccz {ld}")
    if NPOLL == 1:
        A.raw(lp + ":")
        A.raw(ld_.format(PV))
        A.raw("    s_waitcnt vmcnt(0)")
        A.raw(f"    v_cmp_gt_u32 vcc, {target}, v{PV}")
        A.raw(f"    s_cbranch_vccz {ld}")
        A.raw("    s_sub_u32 s45, s45, 1")
        A.raw("    s_cmp_lg_u32 s45, 0")
        A.raw(f"    s_cbranch_scc1 {lp}")
    else:
        A.raw("    s_waitcnt vmcnt(0)")
        for i in range(NPOLL):
            A.raw(ld_.format(PV + i))
            A.raw(f"    s_sleep {POLL_SLEEP}")
        A.raw(lp + ":")
        for i in range(NPOLL):
            A.raw(f"    s_waitcnt vmcnt({NPOLL - 1})")
            A.raw(f"    v_cmp_gt_u32 vcc, {target}, v{PV + i}")
            A.raw(f"    s_cbranch_vccz {ld}")
            A.raw(ld_.format(PV + i))
            A.raw(f"    s_sleep {POLL_SLEEP}")
        A.raw("    s_sub_u32 s45, s45, 1")
        A.raw("    s_cmp_lg_u32 s45, 0")
        A.raw(f"    s_cbranch_scc1 {lp}")
    A.raw(ld + ":")
    A.raw("    s_mov_b64 exec, -1")
    A.raw(lw + ":")
    A.hist = []
    A.nop(1)
    A("s_barrier")
    rtp(A, "await")


RTP = [0]
RTN = []


def rtp(A, label, r0=12):
    if "rtp" not in OPT:
        return
    UID[0] += 1
    lab = f"L_rtp{UID[0]}"
    A("s_memrealtime s[96:97]")
    A.force_wait(lg=0)
    A(f"v_mov_b32 v{r0}, s96")
    A("s_lshl_b32 s97, s2, 2")
    A(f"s_add_u32 s97, s97, {0x1900000 + RTP[0] * 1024}")
    A(f"v_mov_b32 v{r0 + 1}, s97")
    A("v_cmp_eq_u32 vcc, 0, v0")
    A("s_and_saveexec_b64 s[98:99], vcc")
    A(f"s_cbranch_execz {lab}")
    A.raw(f"    global_store_dword v{r0 + 1}, v{r0}, s[20:21]")
    A.raw(lab + ":")
    A("s_mov_b64 exec, s[98:99]")
    RTP[0] += 1
    RTN.append(label)


def phase_begin(A):
    A.hist = []
    A.vmq = []
    A.lgq = []
    A.nop(2)


def x2_addr(A, vd, vc, s8p, vt64, vt48, t0=12):
    A(f"v_add_u32 v{t0}, s{s8p}, v{vc}")
    A(f"v_mul_u32_u24 v{t0 + 1}, 37, v{t0}")
    A(f"v_lshrrev_b32 v{t0 + 1}, 8, v{t0 + 1}")
    A(f"v_mul_u32_u24 v{t0 + 2}, 7, v{t0 + 1}")
    A(f"v_sub_u32 v{t0}, v{t0}, v{t0 + 2}")
    A(f"v_cmp_lt_u32 vcc, 3, v{t0}")
    A(f"v_lshlrev_b32 v{t0}, 4, v{t0}")
    A(f"v_cndmask_b32 v{t0 + 2}, v{vt64}, v{vt48}, vcc")
    A(f"v_add_u32 v{t0}, v{t0}, v{t0 + 2}")
    A(f"v_mul_u32_u24 v{t0 + 1}, 1792, v{t0 + 1}")
    A(f"v_add_u32 v{vd}, v{t0}, v{t0 + 1}")


def reduce_groups(A, reg, tmp):
    A(f"v_mov_b32 v{tmp}, v{reg}")
    A(f"v_permlane16_swap_b32 v{tmp}, v{reg}")
    A(f"v_add_f32 v{reg}, v{reg}, v{tmp}")
    A(f"v_mov_b32 v{tmp}, v{reg}")
    A(f"v_permlane32_swap_b32 v{tmp}, v{reg}")
    A(f"v_add_f32 v{reg}, v{reg}, v{tmp}")


def w1_prefetch(A, sr, nwg, vd, prep_only=False):
    per = 14336 // (nwg // 8) // 8
    A("s_lshr_b32 s34, s2, 3")
    A("s_lshl_b32 s34, s34, 3")
    A("s_add_u32 s34, s34, s22")
    A(f"s_mul_i32 s35, s34, {per}")
    A("v_add_u32 v10, s35, v1")
    A("s_bfe_u32 s36, s2, 0x20001")
    div_const(A, "v11", "v10", 7, 35, rng=14400)
    A("v_mul_u32_u24 v12, 7, v11")
    A("v_sub_u32 v12, v10, v12")
    A("v_mul_u32_u24 v11, 3584, v11")
    A("v_lshl_add_u32 v11, v12, 7, v11")
    A("s_mul_i32 s36, s36, 896")
    srd(A, sr, sr, sr + 1, S * F * 2)
    if prep_only:
        A("s_mov_b32 s33, s36")
        return
    if per < 64:
        A(f"s_mov_b32 exec_hi, {hex((1 << (per - 32)) - 1)}")
    A.touch(f"buffer_load_dword v{vd}, v11, s[{sr}:{sr + 3}], s36 offen")
    if per < 64:
        A("s_mov_b64 exec, -1")


G_RING = 9
G_RB = G_RING * 4096
G_TAB = 4 * G_RB
G_LDS = G_TAB + 16384
G_PRE0 = int(([o[5:] for o in OPT if o.startswith("pre0=")] + ["3"])[0])
G_PREA = int(([o[5:] for o in OPT if o.startswith("prea=")] + ["5"])[0])
G_SP = int(([o[3:] for o in OPT if o.startswith("sp=")] + ["2"])[0])


def gk(A, name, layer, which, fused=False, pers=False):
    g1 = which == 1
    nwg = 224 if g1 else 256
    NK = 16 if g1 else 14
    pitch = 3584 if g1 else 4096
    if pers:
        phase_begin(A)
        if g1:
            A("s_cmp_ge_u32 s2, 224")
            A(f"s_cbranch_scc1 L_{name}_skip")
    elif not fused:
        kernel_begin(A, name, nwg)
    elif g1:
        kernel_begin(A, name, 256)
        A("s_cmp_ge_u32 s2, 224")
        A(f"s_cbranch_scc1 L_{name}_p2")
    else:
        A.raw(f"L_{name}_p2:")
        phase_begin(A)
    A.stamp_base = 70
    if not (fused and not g1) and not pers:
        A.stamp(0)
    A(f"s_load_dwordx2 s[20:21], s[0:1], {KA_WS}")
    A(f"s_load_dwordx2 s[4:5], s[0:1], {KA_W1 if g1 else KA_W2}")
    A(f"s_load_dwordx2 s[12:13], s[0:1], {KA_B1 if g1 else KA_B2}")
    if (not g1) and layer == 1:
        A(f"s_load_dwordx2 s[16:17], s[0:1], {KA_OUT}")
    if g1 and PREFETCH and not fused:
        A(f"s_load_dwordx2 s[92:93], s[0:1], {KA_W2}")
    A("v_and_b32 v1, 63, v0")
    A("v_lshrrev_b32 v2, 6, v0")
    A("v_readfirstlane_b32 s22, v2")
    NI4 = 7 if g1 else 8
    A("s_and_b32 s25, s2, 7")
    A("s_lshr_b32 s26, s2, 3")
    A("s_and_b32 s24, s25, 1")
    A("s_lshl_b32 s24, s24, 2")
    A("s_and_b32 s27, s26, 3")
    A("s_add_u32 s24, s24, s27")
    A("s_lshr_b32 s23, s25, 1")
    A(f"s_mul_i32 s23, s23, {NI4}")
    A("s_lshr_b32 s27, s26, 2")
    A("s_add_u32 s23, s23, s27")
    A("s_and_b32 s47, s22, 3")
    A("s_lshr_b32 s48, s22, 2")
    A("v_lshrrev_b32 v3, 3, v1")
    A("v_bfe_u32 v4, v1, 4, 2")
    A("v_lshlrev_b32 v4, 1, v4")
    A("v_and_b32 v5, 7, v1")
    A("v_xor_b32 v4, v4, v5")
    A(f"v_mul_u32_u24 v5, {pitch}, v3")
    A("v_lshl_add_u32 v5, v4, 4, v5")
    A(f"s_mul_i32 s27, s47, {NK * 32 * pitch}")
    A(f"s_mul_i32 s28, s48, {16 * pitch}")
    A("s_add_u32 s27, s27, s28")
    A("s_lshl_b32 s28, s23, 7")
    A("s_add_u32 s27, s27, s28")
    A("v_add_u32 v5, s27, v5")
    A("v_lshrrev_b32 v7, 4, v1")
    A("v_and_b32 v8, 7, v1")
    A("v_lshlrev_b32 v8, 4, v8")
    A("v_lshl_add_u32 v8, v7, 7, v8")
    A("v_bfe_u32 v9, v1, 3, 1")
    A("v_lshl_add_u32 v6, v9, 9, v8")
    A("s_cmp_eq_u32 s48, 0")
    A("s_cselect_b64 s[50:51], -1, 0")
    A("v_cndmask_b32 v9, v8, v6, s[50:51]")
    A.wait_all(vm=False)
    srd(A, 4, 4, 5, (S * F * 2))
    srd(A, 8, 20, 21, WSZ)
    srd(A, 12, 12, 13, (F if g1 else S) * 2)
    if (not g1) and layer == 1:
        srd(A, 16, 16, 17, XBYTES)
    elif not g1:
        srd_off(A, 16, 20, 21, hex(WS_X2), XBYTES)
    if g1:
        A(f"s_mul_i32 s29, s47, {16 * 28672}")
        A("s_mul_i32 s30, s24, 3584")
        A("s_add_u32 s29, s29, s30")
        A(f"s_add_u32 s29, s29, {hex(WS_X1F + layer * LB)}")
        bstep = 28672
    else:
        A("s_mul_i32 s29, s24, 56")
        A("s_mul_i32 s30, s47, 14")
        A("s_add_u32 s29, s29, s30")
        A("s_mul_i32 s29, s29, 3584")
        A(f"s_add_u32 s29, s29, {hex(WS_UF + layer * LB)}")
        bstep = 3584
    A("s_lshl_b32 s30, s48, 11")
    A("s_add_u32 s29, s29, s30")
    A(f"s_mul_i32 s31, s47, {G_RB}")
    A("s_lshl_b32 s30, s48, 11")
    A("s_add_u32 s49, s31, s30")
    NB = 8
    BR = 112
    toks = {}
    A(f"v_add_u32 v4, {8 * pitch - 1024}, v5")
    USE_ROT = "rotg" in OPT
    ROT = 54
    if USE_ROT:
        A("s_lshr_b32 s34, s2, 3")
        A(f"s_mul_i32 s34, s34, {NK * 2341 if g1 else NK * 2048}")
        A("s_lshr_b32 s34, s34, 16")
        A(f"s_mul_i32 s54, s34, {32 * pitch}")
        A(f"s_mul_i32 s55, s34, {bstep}")
        A("s_add_u32 s55, s55, s29")
        A(f"s_sub_u32 s56, {NK}, s34")
        A(f"s_mov_b32 s57, s34")

    def issue_ops(st, part=None):
        slot = st % G_RING
        b = BR + 8 * (st % NB)

        def fa0():
            A(f"s_add_u32 m0, s49, {slot * 4096}")
            if USE_ROT:
                A(f"s_cmp_le_u32 s56, {st}")
                A(f"s_cselect_b32 s35, {NK * 32 * pitch}, 0")
                A(f"s_add_u32 s32, s54, {st * 32 * pitch}")
                A("s_sub_u32 s32, s32, s35")
            else:
                A(f"s_mov_b32 s32, {st * 32 * pitch}")
            A("buffer_load_dwordx4 v5, s[4:7], s32 offen lds")

        def fb0():
            if USE_ROT:
                A(f"s_cmp_le_u32 s56, {st}")
                A(f"s_cselect_b32 s35, {NK * bstep}, 0")
                A(f"s_add_u32 s33, s55, {st * bstep}")
                A("s_sub_u32 s33, s33, s35")
            else:
                A(f"s_add_u32 s33, s29, {st * bstep}")
            A(f"buffer_load_dwordx4 {v(b, 4)}, v6, s[8:11], s33 offen")

        def fa1():
            A("buffer_load_dwordx4 v4, s[4:7], s32 offen offset:1024 lds")

        def fb1():
            toks[st] = A(f"buffer_load_dwordx4 {v(b + 4, 4)}, v9, s[8:11], s33 offen offset:1024")
        if part == "A":
            return [fa0, fa1]
        if part == "B":
            return [fb0, fb1]
        return [fa0, fa1, fb0, fb1]

    if "notouch" not in OPT:
        A("s_lshr_b32 s34, s2, 3")
        A("s_lshl_b32 s34, s34, 3")
        A("s_add_u32 s34, s34, s22")
        A("s_and_b32 s37, s2, 1")
        if g1:
            A("s_lshl_b32 s35, s34, 5")
        else:
            A("s_mul_i32 s35, s34, 25")
        A("v_add_u32 v10, s35, v1")
        if g1:
            div_const(A, "v12", "v10", 112, 38, rng=7200)
            A("v_mul_u32_u24 v13, 112, v12")
            A("v_sub_u32 v13, v10, v13")
            A("v_mul_u32_u24 v12, 28672, v12")
            A("v_lshl_add_u32 v12, v13, 7, v12")
            A("s_mul_i32 s37, s37, 14336")
            A(f"s_add_u32 s37, s37, {hex(WS_X1F + layer * LB)}")
        else:
            A("v_lshlrev_b32 v12, 7, v10")
            A("s_mul_i32 s37, s37, 802816")
            A(f"s_add_u32 s37, s37, {hex(WS_UF + layer * LB)}")
        exec_lanes(A, 32 if g1 else 25)
        A.touch("buffer_load_dword v99, v12, s[8:11], s37 offen")
        exec_lanes(A, 64)
    def stats_loads():
        A("v_lshrrev_b32 v10, 2, v1")
        A("v_lshlrev_b32 v10, 7, v10")
        A("v_and_b32 v11, 3, v1")
        A("v_lshl_add_u32 v10, v11, 4, v10")
        A("s_lshl_b32 s34, s22, 11")
        A(f"s_add_u32 s34, s34, {hex(WS_ST + (0 if layer == 0 else 2) * 16384)}")
        A("buffer_load_dwordx4 v[16:19], v10, s[8:11], s34 offen")
        A("buffer_load_dwordx4 v[20:23], v10, s[8:11], s34 offen offset:64")

    if g1 and not pers:
        stats_loads()
    PRE0 = G_PRE0
    PRE = 7
    F2 = (fused and not g1) or pers
    if F2:
        PRE0 = PRE
        PREA = G_PREA
        for st in range(PREA):
            for f in issue_ops(st, "A"):
                f()
    else:
        for st in range(PRE0):
            for f in issue_ops(st):
                f()
    EP = 100
    if g1:
        A("s_lshr_b32 s36, s47, 1")
        A("s_lshl_b32 s37, s23, 7")
        A("s_lshl_b32 s38, s36, 6")
        A("s_add_u32 s37, s37, s38")
        A("v_lshlrev_b32 v33, 3, v7")
        A(f"buffer_load_dwordx2 {v(EP, 2)}, v33, s[12:15], s37 offen")
        A(f"buffer_load_dwordx2 {v(EP + 2, 2)}, v33, s[12:15], s37 offen offset:32")

    def g2_early():
        A("s_lshl_b32 s36, s23, 2")
        A("s_add_u32 s36, s36, s47")
        A("s_mul_i32 s37, s36, 14336")
        A("s_mul_i32 s38, s24, 1792")
        A("s_add_u32 s37, s37, s38")
        A("s_lshl_b32 s38, s48, 10")
        A("s_add_u32 s37, s37, s38")
        A(f"s_add_u32 s37, s37, {hex(WS_X1T + layer * LB)}")
        A("v_and_b32 v33, 15, v1")
        A("v_lshlrev_b32 v35, 3, v33")
        A("v_lshl_add_u32 v35, v7, 7, v35")
        for k in range(2):
            A(f"buffer_load_dwordx2 {v(EP + 2 * k, 2)}, v35, s[8:11], s37 offen offset:{k * 512}")
        A("s_lshl_b32 s38, s36, 5")
        A("v_lshlrev_b32 v36, 1, v33")
        A(f"buffer_load_ushort v{EP + 4}, v36, s[12:15], s38 offen")
    if (not g1) and not F2:
        g2_early()
    if F2:
        if g1:
            A(f"s_mov_b32 s34, {hex(C3(layer))}")
            A("v_lshlrev_b32 v10, 7, v1")
            await_cnt(A, 8, 34, 10, 8, 28)
            stats_loads()
        else:
            A("s_lshl_b32 s34, s24, 7")
            A(f"s_add_u32 s34, s34, {hex(C4(layer))}")
            A("v_mov_b32 v10, 0")
            await_cnt(A, 8, 34, 10, 1, 28)
        for st in range(PRE0):
            for f in issue_ops(st, "B" if st < PREA else None):
                f()
            if st == 0 and "nofb" not in OPT:
                A("s_barrier")
        if not g1:
            g2_early()
    A.stamp(1)
    A("v_bfe_u32 v12, v1, 2, 2")
    A("v_and_b32 v13, 3, v1")
    A("v_and_b32 v14, 1, v7")
    A("v_lshlrev_b32 v15, 2, v7")
    A("v_add_u32 v15, v15, v12")
    A("v_lshlrev_b32 v15, 7, v15")
    A("v_lshl_add_u32 v15, v13, 3, v15")
    A("v_add_u32 v15, s31, v15")
    A("v_lshrrev_b32 v32, 1, v12")
    A("v_lshl_add_u32 v32, v14, 1, v32")
    for mt in range(4):
        A(f"v_xor_b32 v33, {mt}, v32")
        A(f"v_lshl_add_u32 v{36 + mt}, v33, 5, v15")
    if g1:
        for i in range(4):
            sm, sq = 16 + i, 20 + i
            A(f"v_mul_f32 v{sm}, {hexf(1.0 / 448)}, v{sm}")
            A(f"v_mul_f32 v{sq}, {hexf(1.0 / 448)}, v{sq}")
            A(f"v_fma_f32 v{sq}, -v{sm}, v{sm}, v{sq}")
            A(f"v_max_f32 v{sq}, 0, v{sq}")
            A(f"v_add_f32 v34, {hexf(1e-5)}, v{sq}")
            A("v_rcp_f32 v34, v34")
            A(f"v_mul_f32 v35, v{sq}, v34")
            A(f"v_add_f32 v35, {hexf(1e-5)}, v35")
            A("v_rcp_f32 v35, v35")
            A("v_mul_f32 v34, v34, v35")
            A(f"v_sqrt_f32 v{sq}, v34")
            A(f"v_mul_f32 v{sm}, -v{sm}, v{sq}")
        A("v_lshlrev_b32 v34, 4, v1")
        A("s_lshl_b32 s34, s22, 10")
        A(f"s_add_u32 s34, s34, {G_TAB}")
        A("v_add_u32 v34, s34, v34")
        A("ds_write_b128 v34, v[20:23]")
        A("ds_write_b128 v34, v[16:19] offset:8192")
        A("v_lshlrev_b32 v35, 4, v7")
        A("s_lshl_b32 s34, s47, 11")
        A(f"s_add_u32 s34, s34, {G_TAB}")
        A("v_add_u32 v35, s34, v35")
    AFR = [0, 16]
    ACC = 32
    BN = [40, 48]
    AB = [56, 72]
    TMP = 88

    def a_reads(st):
        slot = st % G_RING
        buf = st & 1
        if "nolds" in OPT and st > 1:
            return []
        return [(lambda mt=mt, t=t: A(f"ds_read_b64_tr_b16 {a(AFR[buf] + 4 * mt + 2 * t, 2)}, v{36 + mt} "
                                      f"offset:{slot * 4096 + t * 2048}")) for mt in range(4) for t in range(2)]

    def ab_reads(st):
        buf = st & 1
        ops = []
        if "nolds" in OPT and st > 1:
            return []

        if USE_ROT:
            def addr():
                A(f"s_add_u32 s46, s57, {st}")
                A("s_and_b32 s46, s46, 15")
                A("s_lshl_b32 s46, s46, 7")
                A(f"v_add_u32 v{96 + buf}, s46, v35")
            ops.append(addr)
            for t in range(2):
                ops.append(lambda t=t: A(f"ds_read_b128 {v(AB[buf] + 4 * t, 4)}, v{96 + buf} offset:{t * 64}"))
                ops.append(lambda t=t: A(f"ds_read_b128 {v(AB[buf] + 8 + 4 * t, 4)}, v{96 + buf} offset:{8192 + t * 64}"))
            return ops
        for t in range(2):
            ops.append(lambda t=t: A(f"ds_read_b128 {v(AB[buf] + 4 * t, 4)}, v35 offset:{st * 128 + t * 64}"))
            ops.append(lambda t=t: A(f"ds_read_b128 {v(AB[buf] + 8 + 4 * t, 4)}, v35 offset:{8192 + st * 128 + t * 64}"))
        return ops

    def norm_ops(st):
        buf = st & 1
        b = BR + 8 * (st % NB)
        ops = []
        if "nonorm" in OPT:
            return [(lambda d=d: A(f"v_mov_b32 v{BN[buf] + d}, v{b + d}")) for d in range(8)]
        for nt in range(2):
            for dp in range(2):
                d0, d1 = 2 * dp, 2 * dp + 1
                x0, x1 = b + 4 * nt + d0, b + 4 * nt + d1
                tb = TMP + 4 * (dp & 1)
                ops.append(lambda x0=x0, tb=tb: A(f"v_lshlrev_b32 v{tb}, 16, v{x0}"))
                ops.append(lambda x0=x0, tb=tb: A(f"v_and_b32 v{tb + 1}, 0xffff0000, v{x0}"))
                ops.append(lambda x1=x1, tb=tb: A(f"v_lshlrev_b32 v{tb + 2}, 16, v{x1}"))
                ops.append(lambda x1=x1, tb=tb: A(f"v_and_b32 v{tb + 3}, 0xffff0000, v{x1}"))
                for (o, dd) in ((0, d0), (2, d1)):
                    for e in range(2):
                        ops.append(lambda tb=tb, o=o, dd=dd, e=e: A(
                            f"v_fma_f32 v{tb + o + e}, v{tb + o + e}, v{AB[buf] + 2 * dd + e}, v{AB[buf] + 8 + 2 * dd + e}"))
                ops.append(lambda tb=tb, nt=nt, d0=d0: A(f"v_cvt_pk_bf16_f32 v{BN[buf] + 4 * nt + d0}, v{tb}, v{tb + 1}"))
                ops.append(lambda tb=tb, nt=nt, d1=d1: A(f"v_cvt_pk_bf16_f32 v{BN[buf] + 4 * nt + d1}, v{tb + 2}, v{tb + 3}"))
        return ops

    def mfma_ops(st):
        buf = st & 1
        ops = []
        if "nomfma" in OPT and st > 0:
            return [lambda: A("s_nop 0")]
        for nt in range(2):
            for mt in range(4):
                acc = a(ACC + 4 * (2 * mt + nt), 4)
                c = "0" if st == 0 else acc
                if g1:
                    ops.append(lambda acc=acc, c=c, mt=mt, nt=nt: A(
                        f"v_mfma_f32_16x16x32_bf16 {acc}, {a(AFR[buf] + 4 * mt, 4)}, {v(BN[buf] + 4 * nt, 4)}, {c}"))
                else:
                    b = BR + 8 * (st % NB)
                    ops.append(lambda acc=acc, c=c, mt=mt, nt=nt, b=b: A(
                        f"v_mfma_f32_16x16x32_bf16 {acc}, {v(b + 4 * nt, 4)}, {a(AFR[buf] + 4 * mt, 4)}, {c}"))
        return ops

    def sync_op(st):
        def f():
            A.wait_vm(toks[st])
            if "nobar" not in OPT:
                A("s_barrier")
        return f

    def w2_touch_ops():
        def f0():
            A("s_lshr_b32 s44, s2, 3")
            A("s_bfe_u32 s45, s2, 0x20001")
            A("s_lshl_b32 s44, s44, 6")
            A("s_lshl_b32 s46, s22, 3")
            A("s_add_u32 s44, s44, s46")
            A("v_and_b32 v98, 7, v1")
            A("v_add_u32 v98, s44, v98")
            A("v_lshlrev_b32 v98, 12, v98")
            A("v_lshl_add_u32 v98, v3, 7, v98")
            A("s_lshl_b32 s45, s45, 10")
            A("v_add_u32 v98, s45, v98")
            srd(A, 92, 92, 93, S * F * 2)

        def f1():
            A.touch("buffer_load_dword v99, v98, s[92:95], 0 offen")
        return [f0, f1]

    next_issue = PRE0
    A.stamp(5)
    A.wait_vm(toks[0])
    A.wait_all(vm=False)
    A.stamp(6)
    A("s_barrier")
    A.stamp(7)
    if "rtg" in OPT:
        rtp(A, f"g{which}loop0")
    for f in a_reads(0):
        f()
    if g1:
        for f in ab_reads(0) + ab_reads(1):
            f()
        for f in norm_ops(0):
            f()
    SPD = G_SP
    synced = 0
    for st in range(NK):
        vm = []
        n_iss = 0
        issued_before = next_issue - 1
        while next_issue < NK and next_issue <= st + PRE and n_iss < 2:
            if F2 and next_issue < PREA:
                vm += issue_ops(next_issue, "B")
            else:
                vm += issue_ops(next_issue)
            next_issue += 1
            n_iss += 1
        lds = []
        if st + 1 < NK:
            if st + 1 > synced:
                tgt = min(NK - 1, st + SPD, issued_before)
                lds += [sync_op(tgt)]
                synced = tgt
            lds += a_reads(st + 1)
        va = norm_ops(st + 1) if (g1 and st + 1 < NK) else []
        ab = ab_reads(st + 2) if (g1 and st + 2 < NK) else []
        if g1 and PREFETCH and (not fused) and st == NK - PRE + 1:
            vm += w2_touch_ops()
        seq = lds + sprinkle(va + ab, vm)
        interleave(mfma_ops(st), seq)
    A.stamp(2)
    PBASE = 0 if g1 else 5 * 4096

    def owner(mt, nt):
        if g1:
            return (2 * (mt >> 1) + nt, mt & 1)
        return (mt, nt)
    A("v_lshlrev_b32 v34, 4, v1")
    A("s_lshl_b32 s35, s48, 13")
    A("s_add_u32 s34, s31, s35")
    A(f"s_add_u32 s34, s34, {PBASE}")
    A("v_add_u32 v33, s34, v34")
    for mt in range(4):
        for nt in range(2):
            o, k = owner(mt, nt)
            A(f"ds_write_b128 v33, {a(ACC + 4 * (2 * mt + nt), 4)} offset:{(o * 2 + k) * 1024}")
    A.wait_all(vm=False)
    A("s_barrier")
    A("s_lshl_b32 s34, s47, 11")
    A("s_add_u32 s34, s34, s35")
    A(f"s_add_u32 s34, s34, {PBASE}")
    A("v_add_u32 v33, s34, v34")
    A(f"v_add_u32 v35, {2 * G_RB}, v33")
    RD = 40
    for k in range(2):
        for src in range(4):
            A(f"ds_read_b128 {v(RD + 8 * src + 4 * k, 4)}, v{33 if src < 2 else 35} offset:{(src & 1) * G_RB + k * 1024}")
    for k in range(2):
        for r in range(4):
            A(f"v_add_f32 v{RD + 4 * k + r}, v{RD + 4 * k + r}, v{RD + 8 + 4 * k + r}")
            A(f"v_add_f32 v{RD + 16 + 4 * k + r}, v{RD + 16 + 4 * k + r}, v{RD + 24 + 4 * k + r}")
        for r in range(4):
            A(f"v_add_f32 v{RD + 4 * k + r}, v{RD + 4 * k + r}, v{RD + 16 + 4 * k + r}")
    A.stamp(3)
    if "rtg" in OPT:
        rtp(A, f"g{which}red")
    if g1:
        for m in range(2):
            for hlf in range(2):
                A(f"v_lshlrev_b32 v{76 + 4 * m + 2 * hlf}, 16, v{EP + 2 * m + hlf}")
                A(f"v_and_b32 v{77 + 4 * m + 2 * hlf}, 0xffff0000, v{EP + 2 * m + hlf}")
        c1 = -2.0 * 1.4426950408889634 * 0.7978845608028654
        c3 = c1 * 0.044715
        A(f"s_mov_b32 s39, {hexf(c1)}")
        A(f"s_mov_b32 s40, {hexf(c3)}")
        A("v_mov_b32 v84, s39")
        for m in range(2):
            for r in range(4):
                x = RD + 4 * m + r
                t = 85 + (r & 1)
                A(f"v_add_f32 v{x}, v{x}, v{76 + 4 * m + r}")
                A(f"v_mul_f32 v{t}, v{x}, v{x}")
                A(f"v_fma_f32 v{t}, v{t}, s40, v84")
                A(f"v_mul_f32 v{t}, v{t}, v{x}")
                A(f"v_exp_f32 v{t}, v{t}")
                A(f"v_add_f32 v{t}, 1.0, v{t}")
                A(f"v_rcp_f32 v{t}, v{t}")
                A(f"v_mul_f32 v{x}, v{x}, v{t}")
        for m in range(2):
            for hlf in range(2):
                A(f"v_cvt_pk_bf16_f32 v{88 + 2 * m + hlf}, v{RD + 4 * m + 2 * hlf}, v{RD + 4 * m + 2 * hlf + 1}")
        A("s_mul_i32 s41, s24, 56")
        A("s_lshl_b32 s42, s23, 1")
        A("s_add_u32 s41, s41, s42")
        A("s_add_u32 s41, s41, s36")
        A("s_mul_i32 s41, s41, 3584")
        A(f"s_add_u32 s41, s41, {hex(WS_UF + layer * LB)}")
        A("s_and_b32 s42, s47, 1")
        A("s_lshl_b32 s43, s48, 1")
        A("s_add_u32 s42, s42, s43")
        A("s_lshl_b32 s43, s42, 10")
        A("s_add_u32 s41, s41, s43")
        A("s_cmp_eq_u32 s42, 3")
        A("s_cselect_b32 s44, 0x00ff00ff, -1")
        A("s_mov_b32 s45, s44")
        A("s_mov_b64 exec, s[44:45]")
        A("buffer_store_dwordx4 v[88:91], v6, s[8:11], s41 offen")
        A("s_mov_b64 exec, -1")
    else:
        A("v_and_b32 v33, 15, v1")
        A(f"v_lshlrev_b32 v76, 16, v{EP + 4}")
        for k in range(2):
            for hlf in range(2):
                x = EP + 2 * k + hlf
                A(f"v_lshlrev_b32 v77, 16, v{x}")
                A(f"v_and_b32 v78, 0xffff0000, v{x}")
                y = RD + 4 * k + 2 * hlf
                A(f"v_add_f32 v{y}, v{y}, v76")
                A(f"v_add_f32 v{y + 1}, v{y + 1}, v76")
                A(f"v_add_f32 v{y}, v{y}, v77")
                A(f"v_add_f32 v{y + 1}, v{y + 1}, v78")
                A(f"v_cvt_pk_bf16_f32 v{88 + 2 * k + hlf}, v{y}, v{y + 1}")
        if layer == 0:
            A("s_cmp_eq_u32 s48, 0")
            A("s_cselect_b32 s45, -1, 0")
            A("s_mov_b32 s44, -1")
            A("v_cndmask_b32 v92, 0, v90, s[44:45]")
            A("v_cndmask_b32 v93, 0, v91, s[44:45]")
            A("v_mov_b32 v77, 0x3f803f80")
            A("v_mov_b32 v78, 0")
            A("v_mov_b32 v79, 0")
            for x in [88, 89, 92, 93]:
                A(f"v_dot2_f32_bf16 v78, v{x}, v77, v78")
                A(f"v_dot2_f32_bf16 v79, v{x}, v{x}, v79")
            reduce_groups(A, 78, 80)
            reduce_groups(A, 79, 81)
            A("v_cmp_gt_u32 vcc, 16, v1")
            A("v_cndmask_b32 v80, v79, v78, vcc")
            A("v_lshlrev_b32 v81, 2, v1")
            A("s_lshl_b32 s39, s36, 7")
            A(f"s_add_u32 s39, s39, {hex(WS_ST + 16384)}")
            exec_lanes(A, 32)
            A("buffer_atomic_add_f32 v80, v81, s[8:11], s39 offen")
            exec_lanes(A, 64)
        SP = 80
        A("s_lshl_b32 s40, s22, 11")
        A(f"s_add_u32 s40, s40, {G_TAB}")
        A(f"v_mul_u32_u24 v36, {SP}, v33")
        A("v_lshl_add_u32 v36, v7, 3, v36")
        A("v_add_u32 v36, s40, v36")
        for k in range(2):
            A(f"ds_write_b64 v36, {v(88 + 2 * k, 2)} offset:{32 * k}")
        A("v_lshrrev_b32 v37, 2, v1")
        A("v_and_b32 v38, 3, v1")
        A(f"v_mul_u32_u24 v39, {SP}, v37")
        A("v_lshl_add_u32 v39, v38, 4, v39")
        A("v_add_u32 v39, s40, v39")
        A("ds_read_b128 v[92:95], v39")
        if layer == 1:
            A("s_lshl_b32 s39, s36, 4")
            A("s_mul_i32 s39, s39, 896")
            A("s_mul_i32 s41, s24, 112")
            A("s_add_u32 s39, s39, s41")
            A("s_lshl_b32 s41, s48, 6")
            A("s_add_u32 s39, s39, s41")
            A("v_mul_u32_u24 v37, 896, v37")
            A("v_lshl_add_u32 v37, v38, 4, v37")
        else:
            A("s_lshl_b32 s39, s36, 3")
            A("s_add_u32 s39, s39, s24")
            A("s_mul_i32 s39, s39, 1792")
            A("s_lshl_b32 s41, s48, 10")
            A("s_add_u32 s39, s39, s41")
            A("s_lshl_b32 s41, s48, 4")
            A("s_sub_u32 s41, 64, s41")
            A("v_mul_lo_u32 v37, v37, s41")
            A("v_lshl_add_u32 v37, v38, 4, v37")
        A("s_cmp_eq_u32 s48, 0")
        A("s_cselect_b32 s44, -1, 0x77777777")
        A("s_mov_b32 s45, s44")
        A("s_mov_b64 exec, s[44:45]")
        A("buffer_store_dwordx4 v[92:95], v37, s[16:19], s39 offen")
        A("s_mov_b64 exec, -1")
    if (fused or pers) and g1:
        A("s_lshl_b32 s34, s24, 7")
        A(f"s_add_u32 s34, s34, {hex(C4(layer))}")
        publish(A, 8, 34)
        if pers:
            A.raw(f"L_{name}_skip:")
        return None
    if pers:
        if layer == 0:
            A("s_lshr_b32 s34, s23, 1")
            A("s_lshl_b32 s34, s34, 7")
            A(f"s_add_u32 s34, s34, {hex(C5)}")
            publish(A, 8, 34)
        return None
    A.stamp(4)
    A.dump_stamps(STAMP_WG)
    kernel_end(A, name)
    return G_LDS, 512, 256, 176


def g1v2(A, name, layer, pers=False):
    NK = 8
    pitch = 3584
    R = 4
    if pers:
        phase_begin(A)
        A("s_cmp_ge_u32 s2, 224")
        A(f"s_cbranch_scc1 L_{name}_skip")
    else:
        kernel_begin(A, name, 224)
    A(f"s_load_dwordx2 s[20:21], s[0:1], {KA_WS}")
    A(f"s_load_dwordx2 s[4:5], s[0:1], {KA_W1}")
    A(f"s_load_dwordx2 s[12:13], s[0:1], {KA_B1}")
    A("v_and_b32 v1, 63, v0")
    A("v_lshrrev_b32 v2, 6, v0")
    A("v_readfirstlane_b32 s22, v2")
    A("s_and_b32 s25, s2, 7")
    A("s_lshr_b32 s26, s2, 3")
    A("s_and_b32 s24, s25, 1")
    A("s_lshl_b32 s24, s24, 2")
    A("s_and_b32 s27, s26, 3")
    A("s_add_u32 s24, s24, s27")
    A("s_lshr_b32 s23, s25, 1")
    A("s_mul_i32 s23, s23, 7")
    A("s_lshr_b32 s27, s26, 2")
    A("s_add_u32 s23, s23, s27")
    A("v_lshrrev_b32 v3, 3, v1")
    A("v_bfe_u32 v4, v1, 4, 2")
    A("v_lshlrev_b32 v4, 1, v4")
    A("v_and_b32 v5, 7, v1")
    A("v_xor_b32 v4, v4, v5")
    A(f"v_mul_u32_u24 v5, {pitch}, v3")
    A("v_lshl_add_u32 v5, v4, 4, v5")
    A(f"s_mul_i32 s27, s22, {NK * 32 * pitch}")
    A("s_lshl_b32 s28, s23, 7")
    A("s_add_u32 s27, s27, s28")
    A("v_add_u32 v5, s27, v5")
    for q in range(1, 4):
        A(f"v_add_u32 v{23 + q}, {q * (8 * pitch - 1024)}, v5")
    A("v_lshrrev_b32 v7, 4, v1")
    A("v_and_b32 v8, 7, v1")
    A("v_lshlrev_b32 v8, 4, v8")
    A("v_lshl_add_u32 v8, v7, 7, v8")
    A("v_bfe_u32 v9, v1, 3, 1")
    A("v_lshl_add_u32 v6, v9, 9, v8")
    A.wait_all(vm=False)
    srd(A, 4, 4, 5, S * F * 2)
    srd(A, 8, 20, 21, WSZ)
    srd(A, 12, 12, 13, F * 2)
    A(f"s_mul_i32 s29, s22, {NK * 28672}")
    A("s_mul_i32 s30, s24, 3584")
    A("s_add_u32 s29, s29, s30")
    A(f"s_add_u32 s29, s29, {hex(WS_X1F + layer * LB)}")
    A("s_lshl_b32 s31, s22, 14")
    NB = 4
    BR = 112
    toks = {}
    tokA = {}

    def a_ops(st):
        slot = st % R

        def f0():
            A(f"s_add_u32 m0, s31, {slot * 4096}")
            A(f"s_mov_b32 s32, {st * 32 * pitch}")
            A("buffer_load_dwordx4 v5, s[4:7], s32 offen lds")
        ops = [f0]
        for q in range(1, 4):
            def fq(q=q):
                tokA[st] = A(f"buffer_load_dwordx4 v{23 + q}, s[4:7], s32 offen offset:{1024 * q} lds")
            ops.append(fq)
        return ops

    def b_ops(st):
        b = BR + 16 * (st % NB)

        def f0():
            A(f"s_add_u32 s33, s29, {st * 28672}")
            A(f"buffer_load_dwordx4 {v(b, 4)}, v6, s[8:11], s33 offen")
        ops = [f0]
        for nt in range(1, 3):
            ops.append(lambda nt=nt: A(f"buffer_load_dwordx4 {v(b + 4 * nt, 4)}, v6, s[8:11], s33 offen offset:{1024 * nt}"))

        def f3():
            toks[st] = A(f"buffer_load_dwordx4 {v(b + 12, 4)}, v8, s[8:11], s33 offen offset:3072")
        ops.append(f3)
        return ops

    PRE = 4
    PA = 3
    for st in range(R):
        for f in a_ops(st):
            f()
    EP = 28
    A("s_lshr_b32 s36, s22, 2")
    A("s_lshl_b32 s37, s23, 7")
    A("s_lshl_b32 s38, s36, 6")
    A("s_add_u32 s37, s37, s38")
    A("v_lshlrev_b32 v33, 3, v7")
    A(f"buffer_load_dwordx2 {v(EP, 2)}, v33, s[12:15], s37 offen")
    A(f"buffer_load_dwordx2 {v(EP + 2, 2)}, v33, s[12:15], s37 offen offset:32")
    if pers:
        A(f"s_mov_b32 s34, {hex(C3(layer))}")
        A("v_lshlrev_b32 v10, 7, v1")
        await_cnt(A, 8, 34, 10, 8, 28)
    A("v_lshrrev_b32 v10, 2, v1")
    A("v_lshlrev_b32 v10, 7, v10")
    A("v_and_b32 v11, 3, v1")
    A("v_lshl_add_u32 v10, v11, 4, v10")
    A("s_lshl_b32 s34, s22, 11")
    A(f"s_add_u32 s34, s34, {hex(WS_ST + (0 if layer == 0 else 2) * 16384)}")
    A("buffer_load_dwordx4 v[16:19], v10, s[8:11], s34 offen")
    A("buffer_load_dwordx4 v[20:23], v10, s[8:11], s34 offen offset:64")
    for st in range(PRE):
        for f in b_ops(st):
            f()
    A("v_bfe_u32 v12, v1, 2, 2")
    A("v_and_b32 v13, 3, v1")
    A("v_and_b32 v14, 1, v7")
    A("v_lshlrev_b32 v15, 2, v7")
    A("v_add_u32 v15, v15, v12")
    A("v_lshlrev_b32 v15, 7, v15")
    A("v_lshl_add_u32 v15, v13, 3, v15")
    A("v_add_u32 v15, s31, v15")
    A("v_lshrrev_b32 v32, 1, v12")
    A("v_lshl_add_u32 v32, v14, 1, v32")
    for mt in range(4):
        A(f"v_xor_b32 v33, {mt}, v32")
        A(f"v_lshl_add_u32 v{36 + mt}, v33, 5, v15")
    for i in range(4):
        sm, sq = 16 + i, 20 + i
        A(f"v_mul_f32 v{sm}, {hexf(1.0 / 448)}, v{sm}")
        A(f"v_mul_f32 v{sq}, {hexf(1.0 / 448)}, v{sq}")
        A(f"v_fma_f32 v{sq}, -v{sm}, v{sm}, v{sq}")
        A(f"v_max_f32 v{sq}, 0, v{sq}")
        A(f"v_add_f32 v34, {hexf(1e-5)}, v{sq}")
        A("v_rcp_f32 v34, v34")
        A(f"v_mul_f32 v35, v{sq}, v34")
        A(f"v_add_f32 v35, {hexf(1e-5)}, v35")
        A("v_rcp_f32 v35, v35")
        A("v_mul_f32 v34, v34, v35")
        A(f"v_sqrt_f32 v{sq}, v34")
        A(f"v_mul_f32 v{sm}, -v{sm}, v{sq}")
    TABW = 8 * 16384
    A("v_lshlrev_b32 v34, 4, v1")
    A("s_lshl_b32 s34, s22, 11")
    A(f"s_add_u32 s34, s34, {TABW}")
    A("v_add_u32 v34, s34, v34")
    A("ds_write_b128 v34, v[20:23]")
    A("ds_write_b128 v34, v[16:19] offset:1024")
    A("v_lshlrev_b32 v35, 4, v7")
    A("v_add_u32 v35, s34, v35")
    AF = 0
    ACC = 16
    BN = [40, 56]
    AB = [72, 88]
    AB = [72, 176 - 0]
    AB = [72, 16]
    AB = [72, 88]
    EP2 = 104
    for r in range(4):
        pass
    TMP = 104

    def a_reads(st, mt):
        slot = st % R
        return [(lambda t=t: A(f"ds_read_b64_tr_b16 {a(AF + 4 * mt + 2 * t, 2)}, v{36 + mt} offset:{slot * 4096 + t * 2048}"))
                for t in range(2)]

    def ab_reads(st):
        buf = st & 1
        ops = []
        for t in range(2):
            ops.append(lambda t=t: A(f"ds_read_b128 {v(AB[buf] + 4 * t, 4)}, v35 offset:{st * 128 + t * 64}"))
            ops.append(lambda t=t: A(f"ds_read_b128 {v(AB[buf] + 8 + 4 * t, 4)}, v35 offset:{1024 + st * 128 + t * 64}"))
        return ops

    def norm_ops(st):
        buf = st & 1
        b = BR + 16 * (st % NB)
        ops = []
        for nt in range(4):
            for dp in range(2):
                d0, d1 = 2 * dp, 2 * dp + 1
                x0, x1 = b + 4 * nt + d0, b + 4 * nt + d1
                tb = TMP + 4 * (dp & 1)
                ops.append(lambda x0=x0, tb=tb: A(f"v_lshlrev_b32 v{tb}, 16, v{x0}"))
                ops.append(lambda x0=x0, tb=tb: A(f"v_and_b32 v{tb + 1}, 0xffff0000, v{x0}"))
                ops.append(lambda x1=x1, tb=tb: A(f"v_lshlrev_b32 v{tb + 2}, 16, v{x1}"))
                ops.append(lambda x1=x1, tb=tb: A(f"v_and_b32 v{tb + 3}, 0xffff0000, v{x1}"))
                for (o, dd) in ((0, d0), (2, d1)):
                    for e in range(2):
                        ops.append(lambda tb=tb, o=o, dd=dd, e=e: A(
                            f"v_fma_f32 v{tb + o + e}, v{tb + o + e}, v{AB[buf] + 2 * dd + e}, v{AB[buf] + 8 + 2 * dd + e}"))
                ops.append(lambda tb=tb, nt=nt, d0=d0: A(f"v_cvt_pk_bf16_f32 v{BN[buf] + 4 * nt + d0}, v{tb}, v{tb + 1}"))
                ops.append(lambda tb=tb, nt=nt, d1=d1: A(f"v_cvt_pk_bf16_f32 v{BN[buf] + 4 * nt + d1}, v{tb + 2}, v{tb + 3}"))
        return ops

    def mfma(st, mt, nt):
        buf = st & 1
        acc = a(ACC + 4 * (4 * mt + nt), 4)
        c = "0" if st == 0 else acc
        A(f"v_mfma_f32_16x16x32_bf16 {acc}, {a(AF + 4 * mt, 4)}, {v(BN[buf] + 4 * nt, 4)}, {c}")

    A.wait_vm(tokA[0])
    for mt in range(4):
        for f in a_reads(0, mt):
            f()
    for f in ab_reads(0) + ab_reads(1):
        f()
    for f in norm_ops(0):
        f()
    nextA, nextB = R, PRE
    for st in range(NK):
        va = norm_ops(st + 1) if st + 1 < NK else []
        ab = ab_reads(st + 2) if st + 2 < NK else []
        vm = []
        if nextB < NK and nextB <= st + PRE - 0 and nextB - NB <= st:
            vm += b_ops(nextB)
            nextB += 1
        fill = sprinkle(va + ab, vm)
        k = 0
        tot = len(fill)
        n = 0
        if st + 1 < NK:
            A.wait_vm(tokA[st + 1])
        for mt in range(4):
            for nt in range(4):
                mfma(st, mt, nt)
                n += 1
                while k < (tot * n) // 16:
                    fill[k]()
                    k += 1
            if st + 1 < NK:
                for f in a_reads(st + 1, mt):
                    f()
        if nextA < NK:
            for f in a_ops(nextA):
                f()
            nextA += 1
    A("v_lshlrev_b32 v34, 4, v1")
    A("v_add_u32 v33, s31, v34")
    for mt in range(4):
        for nt in range(4):
            o, kk = 4 * (mt >> 1) + nt, mt & 1
            A(f"ds_write_b128 v33, {a(ACC + 4 * (4 * mt + nt), 4)} offset:{(o * 2 + kk) * 1024}")
    A.wait_all(vm=False)
    A("s_barrier")
    A("s_lshl_b32 s34, s22, 11")
    A("v_add_u32 v33, s34, v34")
    A(f"v_add_u32 v35, {4 * 16384}, v33")
    RD = 40
    for r in range(4):
        A(f"v_mov_b32 v{108 + r}, v{EP + r}")
    for kk in range(2):
        for src in range(8):
            A(f"ds_read_b128 {v(RD + 8 * src + 4 * kk, 4)}, v{33 if src < 4 else 35} offset:{(src & 3) * 16384 + kk * 1024}")
    for kk in range(2):
        for step in (1, 2, 4):
            for base in range(0, 8, 2 * step):
                for r in range(4):
                    x, y = RD + 8 * base + 4 * kk + r, RD + 8 * (base + step) + 4 * kk + r
                    A(f"v_add_f32 v{x}, v{x}, v{y}")
    for m in range(2):
        for hlf in range(2):
            A(f"v_lshlrev_b32 v{112 + 4 * m + 2 * hlf}, 16, v{108 + 2 * m + hlf}")
            A(f"v_and_b32 v{113 + 4 * m + 2 * hlf}, 0xffff0000, v{108 + 2 * m + hlf}")
    c1 = -2.0 * 1.4426950408889634 * 0.7978845608028654
    c3 = c1 * 0.044715
    A(f"s_mov_b32 s39, {hexf(c1)}")
    A(f"s_mov_b32 s40, {hexf(c3)}")
    A("v_mov_b32 v120, s39")
    for m in range(2):
        for r in range(4):
            x = RD + 4 * m + r
            t = 121 + (r & 1)
            A(f"v_add_f32 v{x}, v{x}, v{112 + 4 * m + r}")
            A(f"v_mul_f32 v{t}, v{x}, v{x}")
            A(f"v_fma_f32 v{t}, v{t}, s40, v120")
            A(f"v_mul_f32 v{t}, v{t}, v{x}")
            A(f"v_exp_f32 v{t}, v{t}")
            A(f"v_add_f32 v{t}, 1.0, v{t}")
            A(f"v_rcp_f32 v{t}, v{t}")
            A(f"v_mul_f32 v{x}, v{x}, v{t}")
    for m in range(2):
        for hlf in range(2):
            A(f"v_cvt_pk_bf16_f32 v{124 + 2 * m + hlf}, v{RD + 4 * m + 2 * hlf}, v{RD + 4 * m + 2 * hlf + 1}")
    A("s_mul_i32 s41, s24, 56")
    A("s_lshl_b32 s42, s23, 1")
    A("s_add_u32 s41, s41, s42")
    A("s_add_u32 s41, s41, s36")
    A("s_mul_i32 s41, s41, 3584")
    A(f"s_add_u32 s41, s41, {hex(WS_UF + layer * LB)}")
    A("s_and_b32 s42, s22, 3")
    A("s_lshl_b32 s43, s42, 10")
    A("s_add_u32 s41, s41, s43")
    A("s_cmp_eq_u32 s42, 3")
    A("s_cselect_b32 s44, 0x00ff00ff, -1")
    A("s_mov_b32 s45, s44")
    A("s_mov_b64 exec, s[44:45]")
    A("buffer_store_dwordx4 v[124:127], v6, s[8:11], s41 offen")
    A("s_mov_b64 exec, -1")
    if pers:
        A("s_lshl_b32 s34, s24, 7")
        A(f"s_add_u32 s34, s34, {hex(C4(layer))}")
        publish(A, 8, 34)
        A.raw(f"L_{name}_skip:")
        return None
    kernel_end(A, name)
    return G_LDS, 512, 256, 176


K1_XP = 16384
K1_WP = 64 * 192
K1_SLOT = K1_XP + K1_WP
K1_NS = 5
K1_MISC = K1_NS * K1_SLOT
K1_CSUM = K1_MISC
K1_TOK = K1_MISC + 1024
K1_LDS = K1_MISC + 1024 + 2048
K1_EX = 2 * K1_SLOT


def k1(A, name, layer, pers=False):
    L0 = layer == 0
    if pers:
        phase_begin(A)
    else:
        kernel_begin(A, name, 256)
        A.stamp_base = 70
        A.stamp(0)
    if L0:
        A(f"s_load_dwordx2 s[4:5], s[0:1], {KA_X}")
        A(f"s_load_dwordx2 s[8:9], s[0:1], {KA_WQKV}")
    A(f"s_load_dwordx2 s[20:21], s[0:1], {KA_WS}")
    A("v_and_b32 v1, 63, v0")
    A("v_lshrrev_b32 v2, 6, v0")
    A("v_readfirstlane_b32 s22, v2")
    A("s_lshr_b32 s23, s2, 4")
    A("s_and_b32 s24, s2, 15")
    A("s_and_b32 s47, s22, 3")
    A("s_lshr_b32 s48, s22, 2")
    A("s_lshl_b32 s25, s23, 7")
    A("s_lshl_b32 s26, s47, 5")
    A("s_add_u32 s49, s25, s26")
    A("s_lshl_b32 s26, s48, 4")
    A("s_add_u32 s25, s49, s26")
    A("s_mul_i32 s25, s25, 896")
    A("v_lshrrev_b32 v16, 3, v1")
    A("v_mul_u32_u24 v16, 896, v16")
    A("v_lshrrev_b32 v17, 4, v1")
    A("v_and_b32 v18, 7, v1")
    A("v_xor_b32 v19, v18, v17")
    A("v_lshl_add_u32 v2, v19, 4, v16")
    A("v_xor_b32 v19, 4, v19")
    A("v_lshl_add_u32 v3, v19, 4, v16")
    A("v_add_u32 v2, s25, v2")
    A("v_add_u32 v3, s25, v3")
    A(f"v_add_u32 v3, {8 * 896 - 1024}, v3")
    if not L0:
        A("v_lshrrev_b32 v16, 3, v1")
        A("v_lshrrev_b32 v17, 4, v1")
        A("v_and_b32 v18, 7, v1")
        A("v_xor_b32 v60, v18, v17")
        A("v_xor_b32 v61, 4, v60")
        A("v_lshlrev_b32 v62, 6, v16")
        A("v_mul_u32_u24 v63, 48, v16")
        A("v_add_u32 v63, 960, v63")
        A("v_add_u32 v6, 512, v62")
        A("v_add_u32 v7, 384, v63")
        A("s_lshl_b32 s59, s23, 3")
        A("s_lshl_b32 s26, s47, 1")
        A("s_add_u32 s59, s59, s26")
        A("s_add_u32 s59, s59, s48")
        A("s_mul_i32 s59, s59, 14336")
        A("s_add_u32 s59, s59, 4096")
        A("s_sub_u32 s60, s59, 1024")
    if L0:
        A("s_lshl_b32 s26, s22, 3")
        A("s_mul_i32 s26, s26, 2688")
        A("s_mul_i32 s27, s24, 56")
        A("s_add_u32 s26, s26, s27")
        for i in range(2):
            A(f"v_add_u32 v16, {64 * i}, v1")
            div_const(A, "v17", "v16", 12, 27)
            A("v_mul_u32_u24 v18, 12, v17")
            A("v_sub_u32 v18, v16, v18")
            A("v_mul_u32_u24 v17, 2688, v17")
            A("v_lshrrev_b32 v19, 2, v18")
            A("v_mul_u32_u24 v19, 896, v19")
            A("v_and_b32 v18, 3, v18")
            A("v_lshl_add_u32 v17, v18, 4, v17")
            A("v_add_u32 v17, v17, v19")
            A(f"v_add_u32 v{4 + i}, s26, v17")
        A("v_subrev_u32 v5, 1024, v5")
        wstep = 64 * 2688
    else:
        A("s_mul_i32 s26, s24, 86016")
        A("s_mul_i32 s27, s22, 1536")
        A("s_add_u32 s26, s26, s27")
        A("v_lshlrev_b32 v4, 4, v1")
        A("v_add_u32 v4, s26, v4")
        A("v_mov_b32 v5, v4")
        wstep = 12288
    A.wait_all(vm=False)
    if L0:
        srd(A, 4, 4, 5, XBYTES)
        srd(A, 8, 8, 9, D * 3 * D * 2)
    else:
        srd_off(A, 4, 20, 21, hex(WS_X2 - 4096), XBYTES + 4096)
        srd_off(A, 8, 20, 21, hex(WS_WC), 16 * 86016)
    srd(A, 12, 20, 21, WSZ)
    if "rtg" in OPT:
        rtp(A, "k1srd")
    A("s_lshl_b32 s28, s47, 12")
    A("s_lshl_b32 s29, s48, 11")
    A("s_add_u32 s28, s28, s29")
    A("s_mul_i32 s29, s22, 1536")
    A(f"s_add_u32 s29, s29, {K1_XP}")
    tokq = {}
    ROT = 52
    A("s_add_u32 s35, s23, s24")
    A("s_mul_i32 s34, s35, 9363")
    A("s_lshr_b32 s34, s34, 16")
    A("s_mul_i32 s34, s34, 7")
    A("s_sub_u32 s34, s35, s34")
    if "norot" in OPT:
        A("s_mov_b32 s34, 0")
    for q in range(7):
        A(f"s_add_u32 s{ROT + q}, s34, {q}")
        A(f"s_cmp_ge_u32 s{ROT + q}, 7")
        A("s_cselect_b32 s35, 7, 0")
        A(f"s_sub_u32 s{ROT + q}, s{ROT + q}, s35")

    def dma_ops(p):
        slot = (p % K1_NS) * K1_SLOT

        def f0():
            A(f"s_add_u32 m0, s28, {slot}")
            if L0:
                A(f"s_lshl_b32 s30, s{ROT + p}, 7")
                A("buffer_load_dwordx4 v2, s[4:7], s30 offen lds")
                A("buffer_load_dwordx4 v3, s[4:7], s30 offen offset:1024 lds")
            else:
                A(f"s_lshl_b32 s30, s{ROT + p}, 3")
                x2_addr(A, 2, 60, 30, 62, 63)
                A("buffer_load_dwordx4 v2, s[4:7], s59 offen lds")
                x2_addr(A, 3, 61, 30, 6, 7)
                A("buffer_load_dwordx4 v3, s[4:7], s60 offen offset:1024 lds")

        def f1():
            A(f"s_add_u32 m0, s29, {slot}")
            A(f"s_mul_i32 s31, s{ROT + p}, {wstep}")
            A("buffer_load_dwordx4 v4, s[8:11], s31 offen lds")
            exec_lanes(A, 32)
            tokq[p] = A("buffer_load_dwordx4 v5, s[8:11], s31 offen offset:1024 lds")
            exec_lanes(A, 64)
        return [f0, f1]

    def l1_stats():
        A("v_and_b32 v16, 31, v1")
        A("v_add_u32 v16, s49, v16")
        A("v_lshrrev_b32 v17, 4, v16")
        A("v_lshlrev_b32 v17, 7, v17")
        A("v_and_b32 v16, 15, v16")
        A("v_lshl_add_u32 v17, v16, 2, v17")
        A(f"s_mov_b32 s32, {hex(WS_ST + 16384)}")
        A("buffer_load_dword v52, v17, s[12:15], s32 offen")
        A("buffer_load_dword v48, v17, s[12:15], s32 offen offset:64")

    def l1_csum():
        A("v_lshrrev_b32 v17, 5, v1")
        A("v_lshlrev_b32 v17, 4, v17")
        A("s_mul_i32 s32, s24, 384")
        A("s_lshl_b32 s33, s48, 7")
        A("s_add_u32 s33, s33, s32")
        A(f"s_add_u32 s33, s33, {hex(WS_CS)}")
        for j in range(4):
            A(f"buffer_load_dwordx4 {v(120 + 4 * j, 4)}, v17, s[12:15], s33 offen offset:{32 * j}")
        A("v_and_b32 v16, 31, v1")
        A("v_lshlrev_b32 v16, 2, v16")
        A(f"s_add_u32 s32, s32, {hex(WS_CS + 256)}")
        A("buffer_load_dword v56, v16, s[12:15], s32 offen")

    PRE = 3
    pers1 = pers and not L0
    if pers1:
        PRE = 4
        for p in range(5):
            dma_ops(p)[1]()
        l1_csum()
        A("s_lshl_b32 s32, s23, 7")
        A(f"s_add_u32 s32, s32, {hex(C5)}")
        A("v_mov_b32 v10, 0")
        await_cnt(A, 12, 32, 10, 1, 16)
        l1_stats()
        for p in range(PRE):
            dma_ops(p)[0]()
            tokq[p] = A.vmq[-1]["tok"]
            if p == 0 and "nofb" not in OPT:
                A("s_barrier")
    else:
        for f in dma_ops(0):
            f()
        if "nofb" not in OPT:
            A("s_barrier")
    if L0:
        A("s_lshl_b32 s32, s2, 13")
        A(f"s_add_u32 s32, s32, {hex(WS_ST)}")
        A("s_cmp_lt_u32 s2, 8")
        A("s_cselect_b32 s32, s32, 0x7fff0000")
        A("v_lshlrev_b32 v16, 4, v0")
        for i in range(4):
            A(f"v_mov_b32 v{12 + i}, 0")
        A("buffer_store_dwordx4 v[12:15], v16, s[12:15], s32 offen")
        if pers:
            A(f"s_load_dwordx2 s[60:61], s[0:1], {KA_DBG}")
    elif not pers1:
        l1_stats()
        l1_csum()
    if not pers1:
        for p in range(1, PRE):
            for f in dma_ops(p):
                f()
    if pers and L0 and "tlb" in OPT:
        tlb_warm(A)
    if "rtg" in OPT:
        rtp(A, "k1issued")
    A.stamp(1)
    A("v_and_b32 v16, 31, v1")
    A("v_lshrrev_b32 v17, 5, v1")
    A("v_bfe_u32 v18, v1, 1, 3")
    A("v_xor_b32 v18, v18, v17")
    A("v_lshlrev_b32 v19, 7, v16")
    A("s_lshl_b32 s32, s47, 12")
    A("v_add_u32 v19, s32, v19")
    A("s_lshl_b32 s33, s48, 2")
    for ls in range(2):
        A(f"s_add_u32 s34, s33, {2 * ls}")
        A("v_xor_b32 v20, s34, v18")
        A(f"v_lshl_add_u32 v{8 + ls}, v20, 4, v19")
    A("v_bfe_u32 v18, v1, 2, 2")
    A("v_bfe_u32 v19, v1, 4, 1")
    A("v_and_b32 v20, 3, v1")
    A("v_lshlrev_b32 v22, 5, v19")
    A("v_lshl_add_u32 v22, v20, 3, v22")
    A("v_lshl_add_u32 v21, v17, 3, v18")
    A("v_mul_u32_u24 v21, 192, v21")
    A("v_add_u32 v21, v21, v22")
    A(f"s_mul_i32 s34, s48, {32 * 192}")
    A(f"s_add_u32 s34, s34, {K1_XP}")
    A("v_add_u32 v21, s34, v21")
    ONES = 28
    SS = 36
    if L0:
        A("s_mul_i32 s34, s22, 11")
        A("s_lshr_b32 s34, s34, 5")
        A("s_mul_i32 s35, s34, 3")
        A("s_sub_u32 s35, s22, s35")
        A("s_and_b32 s34, s34, 1")
        A(f"s_mul_i32 s34, s34, {32 * 192}")
        A("s_lshl_b32 s35, s35, 6")
        A("s_add_u32 s34, s34, s35")
        A(f"s_add_u32 s34, s34, {K1_XP}")
        A("v_lshl_add_u32 v23, v17, 3, v18")
        A("v_mul_u32_u24 v23, 192, v23")
        A("v_add_u32 v22, v22, v23")
        A("v_add_u32 v22, s34, v22")
        A("v_mul_u32_u24 v24, 192, v1")
        A("v_add_u32 v24, s29, v24")
        A("v_add_u32 v24, 56, v24")
        A("v_mov_b32 v26, 0x3f80")
        A("v_mov_b32 v27, 0")
        for i in range(4):
            A(f"v_mov_b32 v{ONES + i}, 0x3f803f80")
        for i in range(4):
            A(f"v_mov_b32 v{SS + i}, 0")
        A("v_lshlrev_b32 v33, 4, v1")
        A("v_add_u32 v34, s29, v33")
        A("s_mul_i32 s50, s24, 86016")
        A("s_mul_i32 s51, s22, 1536")
        A("s_add_u32 s50, s50, s51")
        A(f"s_add_u32 s50, s50, {hex(WS_WC)}")
    AQ, AK, AV, AC = 0, 16, 32, 48
    XF = 64
    WF = 76
    CF = 112
    VA = 40

    def token_stats(sumreg, sqreg):
        A(f"v_mul_f32 v{sumreg}, {hexf(1.0 / 448)}, v{sumreg}")
        A(f"v_mul_f32 v{sqreg}, {hexf(1.0 / 448)}, v{sqreg}")
        A(f"v_fma_f32 v{sqreg}, -v{sumreg}, v{sumreg}, v{sqreg}")
        A(f"v_max_f32 v{sqreg}, 0, v{sqreg}")
        A(f"v_add_f32 v{sqreg}, {hexf(1e-5)}, v{sqreg}")
        A(f"v_rsq_f32 v{sqreg}, v{sqreg}")
        A(f"v_mul_f32 v{sumreg}, -v{sumreg}, v{sqreg}")
        A("v_and_b32 v57, 31, v1")
        A("v_lshlrev_b32 v57, 2, v57")
        A("s_lshl_b32 s35, s22, 8")
        A(f"s_add_u32 s35, s35, {K1_TOK}")
        A("v_add_u32 v57, s35, v57")
        exec_lanes(A, 32)
        A(f"ds_write_b32 v57, v{sqreg}")
        A(f"ds_write_b32 v57, v{sumreg} offset:128")
        exec_lanes(A, 64)
        A("v_lshlrev_b32 v58, 4, v17")
        A("s_lshl_b32 s36, s48, 6")
        A("s_add_u32 s36, s36, s35")
        A("v_add_u32 v58, s36, v58")
        for j in range(2):
            A(f"ds_read_b128 {v(TA + 4 * j, 4)}, v58 offset:{32 * j}")
            A(f"ds_read_b128 {v(TB + 4 * j, 4)}, v58 offset:{128 + 32 * j}")

    TA, TB = 152, 160
    CS = 120
    if not L0:
        token_stats(52, 48)

    def set_addr(p):
        slot = (p % K1_NS) * K1_SLOT
        b = VA + 4 * (p & 1)
        A(f"v_add_u32 v{b}, {slot}, v8")
        A(f"v_add_u32 v{b + 1}, {slot}, v9")
        A(f"v_add_u32 v{b + 2}, {slot}, v21")
        if L0:
            A(f"v_add_u32 v{b + 3}, {slot}, v22")

    def sync(p):
        slot = (p % K1_NS) * K1_SLOT
        set_addr(p)
        A.wait_vm(tokq[p])
        if L0:
            A(f"v_add_u32 v49, {slot}, v24")
            if p == 0:
                A(f"v_add_u32 v35, {slot}, v34")
                A("ds_read_b128 v[120:123], v35")
                A("ds_read_b128 v[124:127], v35 offset:1024")
                A(f"s_mul_i32 s51, s{ROT}, 12288")
                A("s_add_u32 s51, s51, s50")
                A("s_cmp_lt_u32 s23, 7")
                A("s_cselect_b32 s51, s51, 0x7fff0000")
                A("buffer_store_dwordx4 v[120:123], v33, s[12:15], s51 offen")
                exec_lanes(A, 32)
                A("buffer_store_dwordx4 v[124:127], v33, s[12:15], s51 offen offset:1024")
            exec_lanes(A, 8)
            A("ds_write_b64 v49, v[26:27]")
            exec_lanes(A, 64)
            A.wait_all(vm=False)
        A("s_barrier")
        if pers and L0 and p == 1:
            srd(A, 60, 60, 61, 256)
            A("s_cmp_ge_u32 s2, 8")
            A(f"s_cbranch_scc1 L_{name}_nz")
            A("v_mov_b32 v10, 0")
            A("v_mov_b32 v11, 1")
            A("v_cmp_eq_u32 vcc, 0, v0")
            A("s_and_saveexec_b64 s[44:45], vcc")
            A(f"s_cbranch_execz L_{name}_nz2")
            A.raw("    buffer_atomic_add v11, v10, s[60:63], 0 offen sc1")
            A.raw(f"L_{name}_nz2:")
            A("s_mov_b64 exec, -1")
            A.raw(f"L_{name}_nz:")

    def read_ops(gs):
        p, ls = gs >> 1, gs & 1
        b = VA + 4 * (p & 1)
        buf = gs % 3
        ops = [lambda: A(f"ds_read_b128 {v(XF + 4 * buf, 4)}, v{b + ls}")]
        for t3 in range(3):
            for t in range(2):
                ops.append(lambda t3=t3, t=t: A(
                    f"ds_read_b64_tr_b16 {v(WF + 12 * buf + 4 * t3 + 2 * t, 2)}, v{b + 2} "
                    f"offset:{(16 * ls + 4 * t) * 192 + 64 * t3}"))
        return ops

    def cread_ops(p):
        b = VA + 4 * (p & 1)
        ops = []
        for f in range(2):
            for t in range(2):
                ops.append(lambda f=f, t=t: A(
                    f"ds_read_b64_tr_b16 {v(CF + 4 * f + 2 * t, 2)}, v{b + 3} offset:{(16 * f + 4 * t) * 192}"))
        return ops

    sync(0)
    for f in read_ops(0) + read_ops(1):
        f()
    A.stamp(2)
    if "rtg" in OPT:
        rtp(A, "k1loop0")
    for gs in range(14):
        p, ls = gs >> 1, gs & 1
        b = gs % 3
        xf = v(XF + 4 * b, 4)
        first = gs == 0
        m = [
            lambda: A(f"v_mfma_f32_32x32x16_bf16 {a(AQ, 16)}, {v(WF + 12 * b, 4)}, {xf}, {'0' if first else a(AQ, 16)}"),
            lambda: A(f"v_mfma_f32_32x32x16_bf16 {a(AK, 16)}, {v(WF + 12 * b + 4, 4)}, {xf}, {'0' if first else a(AK, 16)}"),
            lambda: A(f"v_mfma_f32_32x32x16_bf16 {a(AV, 16)}, {xf}, {v(WF + 12 * b + 8, 4)}, {'0' if first else a(AV, 16)}"),
        ]
        if ls == 1 and L0:
            for f in range(2):
                m.append(lambda f=f: A(
                    f"v_mfma_f32_32x32x16_bf16 {a(AC, 16)}, {v(ONES, 4)}, {v(CF + 4 * f, 4)}, "
                    f"{'0' if (p == 0 and f == 0) else a(AC, 16)}"))
        fill = []
        if ls == 0:
            if L0:
                fill += cread_ops(p)
            if p + 1 < 7:
                fill += [lambda p=p: sync(p + 1)]
        if gs + 2 < 14:
            fill += read_ops(gs + 2)
        dots = [(lambda d=d: A(f"v_dot2_f32_bf16 v{SS + d}, v{XF + 4 * b + d}, v{XF + 4 * b + d}, v{SS + d}"))
                for d in range(4)] if L0 else []
        vm = dma_ops(p + PRE) if (ls == 1 and p + PRE < 7) else []
        if pers1 and vm and p + PRE < 5:
            q_ = p + PRE

            def xonly(f=vm[0], q_=q_):
                f()
                tokq[q_] = A.vmq[-1]["tok"]
            vm = [xonly]
        elif pers1 and vm:
            vm = [vm[1], vm[0]]
            q_ = p + PRE
            vm.append(lambda q_=q_: tokq.__setitem__(q_, A.vmq[-1]["tok"]))
        fill = fill + sprinkle(dots, vm)
        interleave(m, fill)
    A.stamp(3)
    if "rtg" in OPT:
        rtp(A, "k1loopE")
    if pers and L0:
        A("v_mov_b32 v10, 0")
        exec_lanes(A, 1)
        A("buffer_load_dword v116, v10, s[60:63], 0 offen sc0 sc1")
        exec_lanes(A, 64)
    A("v_lshlrev_b32 v49, 4, v1")
    A("s_mul_i32 s33, s22, 7168")
    A(f"s_add_u32 s33, s33, {K1_EX}")
    A("v_add_u32 v50, s33, v49")
    A("s_xor_b32 s34, s22, 4")
    A("s_mul_i32 s34, s34, 7168")
    A(f"s_add_u32 s34, s34, {K1_EX}")
    A("v_add_u32 v51, s34, v49")
    if L0:
        A("v_and_b32 v47, 31, v1")
        A("v_lshlrev_b32 v47, 2, v47")
        A(f"v_add_u32 v47, {K1_CSUM}, v47")
        A(f"v_add_f32 v{SS}, v{SS}, v{SS + 1}")
        A(f"v_add_f32 v{SS + 2}, v{SS + 2}, v{SS + 3}")
        A(f"v_add_f32 v{SS}, v{SS}, v{SS + 2}")
        A(f"v_mov_b32 v53, v{SS}")
        A(f"v_permlane32_swap_b32 v53, v{SS}")
        A(f"v_add_f32 v53, v53, v{SS}")
        A("s_lshl_b32 s35, s22, 7")
        A("v_add_u32 v46, s35, v47")
        exec_lanes(A, 32)
        A(f"ds_write_b32 v46, a{AC}")
        exec_lanes(A, 64)
        A(f"v_accvgpr_read_b32 v52, a{AQ + 12}")
    A("s_lshl_b32 s36, s24, 6")
    A("s_lshl_b32 s37, s23, 2")
    A("s_add_u32 s36, s36, s37")
    A("s_add_u32 s36, s36, s47")
    A("s_lshl_b32 s36, s36, 11")
    A("v_add_u32 v59, s36, v49")
    A("v_cmp_eq_u32 s[38:39], 0, v17")
    A("v_and_b32 v62, 31, v1")
    A("v_cmp_gt_u32 s[42:43], 28, v62")
    A("v_cmp_eq_u32 vcc, 28, v62")
    A("v_mov_b32 v63, 0x3f803f80")
    A("v_cndmask_b32 v63, 0, v63, vcc")
    A("s_cmp_eq_u32 s48, 0")
    A(f"s_cbranch_scc0 L_{name}_e1")
    save_vm = [dict(o) for o in A.vmq]
    save_lg = [dict(o) for o in A.lgq]
    RX = 64
    KP = 92
    for kh in range(2):
        keep, send = (AQ, AK) if kh == 0 else (AK, AQ)
        vkeep, vsend = (AV, AV + 8) if kh == 0 else (AV + 8, AV)
        for j in range(4):
            A(f"ds_write_b128 v50, {a(send + 4 * j, 4)} offset:{1024 * j}")
        for j in range(2):
            A(f"ds_write_b128 v50, {a(vsend + 4 * j, 4)} offset:{4096 + 1024 * j}")
        if L0:
            A("ds_write_b64 v50, v[52:53] offset:6144")
        for r in range(16):
            A(f"v_accvgpr_read_b32 v{KP + r}, a{keep + r}")
        for r in range(8):
            A(f"v_accvgpr_read_b32 v{KP + 16 + r}, a{vkeep + r}")
        A.wait_all(vm=False)
        A.stamp(5)
        A("s_barrier")
        A.stamp(6)
        for j in range(6):
            A(f"ds_read_b128 {v(RX + 4 * j, 4)}, v51 offset:{1024 * j}")
        if L0:
            A(f"ds_read_b64 {v(RX + 24, 2)}, v51 offset:6144")
            A("v_lshlrev_b32 v54, 4, v17")
            A(f"v_add_u32 v55, {K1_CSUM}, v54")
            for j in range(4):
                A(f"ds_read_b128 {v(CS + 4 * j, 4)}, v55 offset:{128 * kh + 32 * j}")
                A(f"ds_read_b128 {v(136 + 4 * j, 4)}, v55 offset:{128 * (kh + 3) + 32 * j}")
            A("ds_read_b32 v56, v47 offset:256")
            A("ds_read_b32 v45, v47 offset:640")
            for r in range(16):
                A(f"v_add_f32 v{CS + r}, v{CS + r}, v{136 + r}")
            A("v_add_f32 v56, v56, v45")
            A("s_mul_i32 s40, s24, 384")
            A(f"s_add_u32 s40, s40, {hex(WS_CS + 128 * kh)}")
            A("s_or_b32 s41, s23, s47")
            A("s_cmp_eq_u32 s41, 0")
            A("s_cselect_b32 s40, s40, 0x7fff0000")
            A("v_and_b32 v60, 31, v1")
            A("v_lshlrev_b32 v60, 2, v60")
            A(f"ds_read_b32 v46, v47 offset:{128 * kh}")
            A(f"ds_read_b32 v45, v47 offset:{128 * (kh + 3)}")
            A("v_add_f32 v46, v46, v45")
            A("buffer_store_dword v46, v60, s[12:15], s40 offen")
            if kh == 0:
                A("buffer_store_dword v56, v60, s[12:15], s40 offen offset:256")
            A(f"v_add_f32 v52, v52, v{RX + 24}")
            A(f"v_add_f32 v48, v53, v{RX + 25}")
            A("v_mov_b32 v57, v52")
            A("v_permlane32_swap_b32 v57, v52")
            token_stats(52, 48)
        A.stamp(7)
        cq = (DH ** -0.5) * 1.4426950408889634
        if kh == 0:
            A(f"v_mul_f32 v60, {hexf(cq)}, v48")
            A(f"v_mul_f32 v61, {hexf(cq)}, v52")
            ra, rb_ = 60, 61
        else:
            ra, rb_ = 48, 52
        PK = 168
        for r in range(16):
            A(f"v_mul_f32 v{CS + r}, v{CS + r}, v{rb_}")
        for r in range(16):
            A(f"v_add_f32 v{KP + r}, v{KP + r}, v{RX + r}")
            A(f"v_fma_f32 v{KP + r}, v{KP + r}, v{ra}, v{CS + r}")
        for d in range(8):
            A(f"v_cvt_pk_bf16_f32 v{PK + d}, v{KP + 2 * d}, v{KP + 2 * d + 1}")
        if kh == 0:
            A("v_mov_b32 v62, 0x3f80")
            A(f"v_cndmask_b32 v{PK + 6}, v62, v{PK + 6}, s[38:39]")
        else:
            A(f"v_cndmask_b32 v{PK + 6}, 0, v{PK + 6}, s[38:39]")
        A(f"v_cndmask_b32 v{PK + 7}, 0, v{PK + 7}, s[38:39]")
        A(f"s_mov_b32 s40, {hex((WS_QF if kh == 0 else WS_KF) + layer * LB)}")
        A(f"buffer_store_dwordx4 {v(PK, 4)}, v59, s[12:15], s40 offen")
        A(f"buffer_store_dwordx4 {v(PK + 4, 4)}, v59, s[12:15], s40 offen offset:1024")
        for r in range(8):
            A(f"v_mul_f32 v{TB + r}, v{TB + r}, v56")
        for r in range(8):
            A(f"v_add_f32 v{KP + 16 + r}, v{KP + 16 + r}, v{RX + 16 + r}")
            A(f"v_fma_f32 v{KP + 16 + r}, v{KP + 16 + r}, v{TA + r}, v{TB + r}")
        for d in range(4):
            A(f"v_cvt_pk_bf16_f32 v{RX + d}, v{KP + 16 + 2 * d}, v{KP + 16 + 2 * d + 1}")
            A(f"v_cndmask_b32 v{RX + d}, v63, v{RX + d}, s[42:43]")
        A(f"s_mov_b32 s40, {hex(WS_VF + 1024 * kh + layer * LB)}")
        A(f"buffer_store_dwordx4 {v(RX, 4)}, v59, s[12:15], s40 offen")
        if kh == 0:
            A(f"s_branch L_{name}_e2")
            A.raw(f"L_{name}_e1:")
            A.hist = []
            A.vmq = [dict(o) for o in save_vm]
            A.lgq = [dict(o) for o in save_lg]
            A.nop(2)
    A.raw(f"L_{name}_e2:")
    if pers:
        phase_begin(A)
        if L0:
            A("s_mov_b32 s34, 0")
            A("v_mov_b32 v10, 0")
            await_cnt(A, 60, 34, 10, 1, 8, pre=116)
        A("s_lshl_b32 s34, s24, 7")
        A("s_lshl_b32 s35, s23, 2")
        A("s_add_u32 s34, s34, s35")
        A(f"s_add_u32 s34, s34, {hex(F0 if L0 else F1)}")
        publish(A, 12, 34)
        return None
    A.stamp(4)
    A.dump_stamps(STAMP_WG)
    kernel_end(A, name)
    return K1_LDS, 512, 256, 176


def k1v2(A, name, layer, pers=True):
    L0 = layer == 0
    assert pers
    phase_begin(A)
    if L0:
        A(f"s_load_dwordx2 s[4:5], s[0:1], {KA_X}")
        A(f"s_load_dwordx2 s[8:9], s[0:1], {KA_WQKV}")
        A(f"s_load_dwordx2 s[60:61], s[0:1], {KA_DBG}")
    A(f"s_load_dwordx2 s[20:21], s[0:1], {KA_WS}")
    A("v_and_b32 v1, 63, v0")
    A("v_lshrrev_b32 v2, 6, v0")
    A("v_readfirstlane_b32 s22, v2")
    A("s_lshr_b32 s23, s2, 4")
    A("s_and_b32 s24, s2, 15")
    A("s_and_b32 s47, s22, 3")
    A("s_lshr_b32 s48, s22, 2")
    A("s_lshl_b32 s25, s23, 7")
    A("s_lshl_b32 s26, s47, 5")
    A("s_add_u32 s49, s25, s26")
    A("v_lshrrev_b32 v16, 3, v1")
    A("v_lshrrev_b32 v17, 4, v1")
    A("v_and_b32 v18, 7, v1")
    if L0:
        A("s_lshl_b32 s26, s48, 4")
        A("s_add_u32 s25, s49, s26")
        A("s_mul_i32 s25, s25, 896")
        A("v_mul_u32_u24 v16, 896, v16")
        A("v_xor_b32 v19, v18, v17")
        A("v_lshl_add_u32 v2, v19, 4, v16")
        A("v_xor_b32 v19, 4, v19")
        A("v_lshl_add_u32 v3, v19, 4, v16")
        A("v_add_u32 v2, s25, v2")
        A("v_add_u32 v3, s25, v3")
        A(f"v_add_u32 v3, {8 * 896 - 1024}, v3")
        A("s_lshl_b32 s26, s22, 3")
        A("s_mul_i32 s26, s26, 2688")
        A("s_mul_i32 s27, s24, 56")
        A("s_add_u32 s26, s26, s27")
        for i in range(2):
            A(f"v_add_u32 v16, {64 * i}, v1")
            div_const(A, "v17", "v16", 12, 27)
            A("v_mul_u32_u24 v18, 12, v17")
            A("v_sub_u32 v18, v16, v18")
            A("v_mul_u32_u24 v17, 2688, v17")
            A("v_lshrrev_b32 v19, 2, v18")
            A("v_mul_u32_u24 v19, 896, v19")
            A("v_and_b32 v18, 3, v18")
            A("v_lshl_add_u32 v17, v18, 4, v17")
            A("v_add_u32 v17, v17, v19")
            A(f"v_add_u32 v{4 + i}, s26, v17")
        A("v_subrev_u32 v5, 1024, v5")
        wstep = 64 * 2688
    else:
        A("v_xor_b32 v60, v18, v17")
        A("v_xor_b32 v61, 4, v60")
        A("v_lshlrev_b32 v62, 6, v16")
        A("v_mul_u32_u24 v63, 48, v16")
        A("v_add_u32 v63, 960, v63")
        A("v_add_u32 v6, 512, v62")
        A("v_add_u32 v7, 384, v63")
        A("s_lshl_b32 s59, s23, 3")
        A("s_lshl_b32 s26, s47, 1")
        A("s_add_u32 s59, s59, s26")
        A("s_add_u32 s59, s59, s48")
        A("s_mul_i32 s59, s59, 14336")
        A("s_add_u32 s59, s59, 4096")
        A("s_sub_u32 s60, s59, 1024")
        A("s_mul_i32 s26, s24, 86016")
        A("s_mul_i32 s27, s22, 1536")
        A("s_add_u32 s26, s26, s27")
        A("v_lshlrev_b32 v4, 4, v1")
        A("v_add_u32 v4, s26, v4")
        A("v_mov_b32 v5, v4")
        wstep = 12288
    A.wait_all(vm=False)
    if L0:
        srd(A, 4, 4, 5, XBYTES)
        srd(A, 8, 8, 9, D * 3 * D * 2)
    else:
        srd_off(A, 4, 20, 21, hex(WS_X2 - 4096), XBYTES + 4096)
        srd_off(A, 8, 20, 21, hex(WS_WC), 16 * 86016)
    srd(A, 12, 20, 21, WSZ)
    A("s_lshl_b32 s28, s47, 12")
    A("s_lshl_b32 s29, s48, 11")
    A("s_add_u32 s28, s28, s29")
    A("s_mul_i32 s29, s22, 1536")
    A(f"s_add_u32 s29, s29, {K1_XP}")
    tokq = {}
    ROT = 52
    A("s_add_u32 s35, s23, s24")
    A("s_mul_i32 s34, s35, 9363")
    A("s_lshr_b32 s34, s34, 16")
    A("s_mul_i32 s34, s34, 7")
    A("s_sub_u32 s34, s35, s34")
    for q in range(7):
        A(f"s_add_u32 s{ROT + q}, s34, {q}")
        A(f"s_cmp_ge_u32 s{ROT + q}, 7")
        A("s_cselect_b32 s35, 7, 0")
        A(f"s_sub_u32 s{ROT + q}, s{ROT + q}, s35")

    def x_op(p):
        slot = (p % K1_NS) * K1_SLOT
        A(f"s_add_u32 m0, s28, {slot}")
        if L0:
            A(f"s_lshl_b32 s30, s{ROT + p}, 7")
            A("buffer_load_dwordx4 v2, s[4:7], s30 offen lds")
            t = A("buffer_load_dwordx4 v3, s[4:7], s30 offen offset:1024 lds")
        else:
            A(f"s_lshl_b32 s30, s{ROT + p}, 3")
            x2_addr(A, 2, 60, 30, 62, 63)
            A("buffer_load_dwordx4 v2, s[4:7], s59 offen lds")
            x2_addr(A, 3, 61, 30, 6, 7)
            t = A("buffer_load_dwordx4 v3, s[4:7], s60 offen offset:1024 lds")
        tokq[p] = t

    def w_op(p):
        slot = (p % K1_NS) * K1_SLOT
        A(f"s_add_u32 m0, s29, {slot}")
        A(f"s_mul_i32 s31, s{ROT + p}, {wstep}")
        A("buffer_load_dwordx4 v4, s[8:11], s31 offen lds")
        exec_lanes(A, 32)
        tokq[p] = A("buffer_load_dwordx4 v5, s[8:11], s31 offen offset:1024 lds")
        exec_lanes(A, 64)

    EA, EB = 120, 136
    if L0:
        PRE = 3
        x_op(0)
        w_op(0)
        A("s_barrier")
        A("s_lshl_b32 s32, s2, 13")
        A(f"s_add_u32 s32, s32, {hex(WS_ST)}")
        A("s_cmp_lt_u32 s2, 8")
        A("s_cselect_b32 s32, s32, 0x7fff0000")
        A("v_lshlrev_b32 v16, 4, v0")
        for i in range(4):
            A(f"v_mov_b32 v{12 + i}, 0")
        A("buffer_store_dwordx4 v[12:15], v16, s[12:15], s32 offen")
        for p in range(1, PRE):
            x_op(p)
            w_op(p)
    else:
        PRE = 4
        for p in range(5):
            w_op(p)
        A("v_lshrrev_b32 v17, 5, v1")
        A("v_lshlrev_b32 v17, 4, v17")
        A("s_mul_i32 s32, s24, 384")
        A(f"s_add_u32 s33, s32, {hex(WS_CS)}")
        for t3 in range(2):
            for j in range(4):
                A(f"buffer_load_dwordx4 {v(EA + 16 * t3 + 4 * j, 4)}, v17, s[12:15], s33 offen offset:{128 * t3 + 32 * j}")
        A("v_and_b32 v16, 31, v1")
        A("v_lshlrev_b32 v16, 2, v16")
        A("buffer_load_dword v56, v16, s[12:15], s33 offen offset:256")
        A("s_lshl_b32 s32, s23, 7")
        A(f"s_add_u32 s32, s32, {hex(C5)}")
        A("v_mov_b32 v10, 0")
        await_cnt(A, 12, 32, 10, 1, 16)
        A("v_and_b32 v16, 31, v1")
        A("v_add_u32 v16, s49, v16")
        A("v_lshrrev_b32 v17, 4, v16")
        A("v_lshlrev_b32 v17, 7, v17")
        A("v_and_b32 v16, 15, v16")
        A("v_lshl_add_u32 v17, v16, 2, v17")
        A(f"s_mov_b32 s32, {hex(WS_ST + 16384)}")
        A("buffer_load_dword v52, v17, s[12:15], s32 offen")
        A("buffer_load_dword v48, v17, s[12:15], s32 offen offset:64")
        for p in range(PRE):
            x_op(p)
            if p == 0:
                A("s_barrier")
    A("v_and_b32 v16, 31, v1")
    A("v_lshrrev_b32 v17, 5, v1")
    A("v_bfe_u32 v18, v1, 1, 3")
    A("v_xor_b32 v18, v18, v17")
    A("v_lshlrev_b32 v19, 7, v16")
    A("s_lshl_b32 s32, s47, 12")
    A("v_add_u32 v19, s32, v19")
    XB = 100
    for st in range(4):
        A(f"v_xor_b32 v20, {2 * st}, v18")
        A(f"v_lshl_add_u32 v{XB + st}, v20, 4, v19")
    A("v_bfe_u32 v18, v1, 2, 2")
    A("v_bfe_u32 v19, v1, 4, 1")
    A("v_and_b32 v20, 3, v1")
    A("v_lshlrev_b32 v22, 5, v19")
    A("v_lshl_add_u32 v22, v20, 3, v22")
    A("v_lshl_add_u32 v21, v17, 3, v18")
    A("v_mul_u32_u24 v21, 192, v21")
    A("v_add_u32 v21, v21, v22")
    A("s_lshl_b32 s34, s48, 7")
    A(f"s_add_u32 s34, s34, {K1_XP}")
    A("v_add_u32 v21, s34, v21")
    ONES, SS = 28, 36
    if L0:
        A("s_min_u32 s35, s47, 2")
        A("s_lshl_b32 s35, s35, 6")
        A("s_sub_u32 s35, s35, 128")
        A("v_add_u32 v22, s35, v21")
        A("v_mul_u32_u24 v24, 192, v1")
        A("v_add_u32 v24, s29, v24")
        A("v_add_u32 v24, 56, v24")
        A("v_mov_b32 v26, 0x3f80")
        A("v_mov_b32 v27, 0")
        for i in range(4):
            A(f"v_mov_b32 v{ONES + i}, 0x3f803f80")
            A(f"v_mov_b32 v{SS + i}, 0")
        A("v_lshlrev_b32 v33, 4, v1")
        A("v_add_u32 v34, s29, v33")
        A("s_mul_i32 s50, s24, 86016")
        A("s_mul_i32 s51, s22, 1536")
        A("s_add_u32 s50, s50, s51")
        A(f"s_add_u32 s50, s50, {hex(WS_WC)}")

    def stats(sumreg, sqreg):
        A(f"v_mul_f32 v{sumreg}, {hexf(1.0 / 448)}, v{sumreg}")
        A(f"v_mul_f32 v{sqreg}, {hexf(1.0 / 448)}, v{sqreg}")
        A(f"v_fma_f32 v{sqreg}, -v{sumreg}, v{sumreg}, v{sqreg}")
        A(f"v_max_f32 v{sqreg}, 0, v{sqreg}")
        A(f"v_add_f32 v{sqreg}, {hexf(1e-5)}, v{sqreg}")
        A(f"v_rsq_f32 v{sqreg}, v{sqreg}")
        A(f"v_mul_f32 v{sumreg}, -v{sumreg}, v{sqreg}")

    def token_table():
        A("v_and_b32 v57, 31, v1")
        A("v_lshlrev_b32 v57, 2, v57")
        A("s_lshl_b32 s35, s22, 8")
        A(f"s_add_u32 s35, s35, {K1_TOK}")
        A("v_add_u32 v57, s35, v57")
        exec_lanes(A, 32)
        A("ds_write_b32 v57, v48")
        A("ds_write_b32 v57, v52 offset:128")
        exec_lanes(A, 64)
        A("v_lshlrev_b32 v58, 4, v17")
        A("v_add_u32 v58, s35, v58")
        for j in range(4):
            A(f"ds_read_b128 {v(EA + 4 * j, 4)}, v58 offset:{32 * j}")
            A(f"ds_read_b128 {v(EB + 4 * j, 4)}, v58 offset:{128 + 32 * j}")

    AX, AY = 0, 16
    XF, WF = 64, 76
    SETS = [104, 110]

    def set_addr(p):
        slot = (p % K1_NS) * K1_SLOT
        b = SETS[p & 1]
        for st in range(4):
            A(f"v_add_u32 v{b + st}, {slot}, v{XB + st}")
        A(f"v_add_u32 v{b + 4}, {slot}, v21")
        if L0:
            A(f"v_add_u32 v{b + 5}, {slot}, v22")

    def sync(p):
        slot = (p % K1_NS) * K1_SLOT
        set_addr(p)
        A.wait_vm(tokq[p])
        if L0:
            A(f"v_add_u32 v49, {slot}, v24")
            if p == 0:
                A(f"v_add_u32 v35, {slot}, v34")
                A("ds_read_b128 v[152:155], v35")
                A("ds_read_b128 v[156:159], v35 offset:1024")
                A(f"s_mul_i32 s51, s{ROT}, 12288")
                A("s_add_u32 s51, s51, s50")
                A("s_cmp_lt_u32 s23, 7")
                A("s_cselect_b32 s51, s51, 0x7fff0000")
                A("buffer_store_dwordx4 v[152:155], v33, s[12:15], s51 offen")
                exec_lanes(A, 32)
                A("buffer_store_dwordx4 v[156:159], v33, s[12:15], s51 offen offset:1024")
            exec_lanes(A, 8)
            A("ds_write_b64 v49, v[26:27]")
            exec_lanes(A, 64)
            A.wait_all(vm=False)
        A("s_barrier")
        if L0 and p == 1:
            srd(A, 60, 60, 61, 256)
            UID[0] += 1
            l1_, l2_ = f"L_nz{UID[0]}", f"L_nzb{UID[0]}"
            A("s_cmp_ge_u32 s2, 8")
            A(f"s_cbranch_scc1 {l1_}")
            A("v_mov_b32 v10, 0")
            A("v_mov_b32 v11, 1")
            A("v_cmp_eq_u32 vcc, 0, v0")
            A("s_and_saveexec_b64 s[44:45], vcc")
            A(f"s_cbranch_execz {l2_}")
            A.raw("    buffer_atomic_add v11, v10, s[60:63], 0 offen sc1")
            A.raw(l2_ + ":")
            A("s_mov_b64 exec, -1")
            A.raw(l1_ + ":")

    cq = (DH ** -0.5) * 1.4426950408889634
    A("s_cmp_eq_u32 s48, 0")
    A(f"s_cbranch_scc0 L_{name}_t1")
    save = ([dict(o) for o in A.vmq], [dict(o) for o in A.lgq], dict(tokq))
    for th in range(2):
        nw = 2 if th == 0 else 1
        if not L0:
            stats(52, 48)
            if th == 0:
                A(f"v_mul_f32 v60, {hexf(cq)}, v48") if False else None
                A(f"v_mul_f32 v50, {hexf(cq)}, v48")
                A(f"v_mul_f32 v51, {hexf(cq)}, v52")
                for r in range(16):
                    A(f"v_mul_f32 v{EA + r}, v{EA + r}, v51")
                    A(f"v_mul_f32 v{EB + r}, v{EB + r}, v52")
            else:
                token_table()
                for r in range(16):
                    A(f"v_mul_f32 v{EB + r}, v{EB + r}, v56")

        def read_ops(gs):
            p, st = gs >> 2, gs & 3
            b = SETS[p & 1]
            buf = gs % 3
            ops = [lambda: A(f"ds_read_b128 {v(XF + 4 * buf, 4)}, v{b + st}")]
            for t3 in range(nw):
                for t in range(2):
                    ops.append(lambda t3=t3, t=t: A(
                        f"ds_read_b64_tr_b16 {v(WF + 8 * buf + 4 * t3 + 2 * t, 2)}, v{b + 4} "
                        f"offset:{(16 * st + 4 * t) * 192 + 64 * t3}"))
            if L0 and th == 1:
                for t in range(2):
                    ops.append(lambda t=t: A(
                        f"ds_read_b64_tr_b16 {v(WF + 8 * buf + 4 + 2 * t, 2)}, v{b + 5} offset:{(16 * st + 4 * t) * 192}"))
            return ops

        sync(0)
        for f in read_ops(0) + read_ops(1):
            f()
        for gs in range(28):
            p, st = gs >> 2, gs & 3
            b = gs % 3
            xf = v(XF + 4 * b, 4)
            first = gs == 0
            if th == 0:
                m = [lambda: A(f"v_mfma_f32_32x32x16_bf16 {a(AX, 16)}, {v(WF + 8 * b, 4)}, {xf}, {'0' if first else a(AX, 16)}"),
                     lambda: A(f"v_mfma_f32_32x32x16_bf16 {a(AY, 16)}, {v(WF + 8 * b + 4, 4)}, {xf}, {'0' if first else a(AY, 16)}")]
            else:
                m = [lambda: A(f"v_mfma_f32_32x32x16_bf16 {a(AX, 16)}, {xf}, {v(WF + 8 * b, 4)}, {'0' if first else a(AX, 16)}")]
                if L0:
                    m.append(lambda: A(f"v_mfma_f32_32x32x16_bf16 {a(AY, 16)}, {v(ONES, 4)}, {v(WF + 8 * b + 4, 4)}, "
                                       f"{'0' if first else a(AY, 16)}"))
            fill = []
            if st == 2 and p + 1 < 7:
                fill.append(lambda p=p: sync(p + 1))
            if gs + 2 < 28:
                fill += read_ops(gs + 2)
            if L0 and th == 1:
                fill += [(lambda d=d: A(f"v_dot2_f32_bf16 v{SS + d}, v{XF + 4 * b + d}, v{XF + 4 * b + d}, v{SS + d}"))
                         for d in range(4)]
            if st == 3 and p + PRE < 7:
                q_ = p + PRE
                if L0 or q_ >= 5:
                    fill += [lambda q_=q_: w_op(q_), lambda q_=q_: x_op(q_)]
                else:
                    fill += [lambda q_=q_: x_op(q_)]
            interleave(m, fill)
        A("s_lshl_b32 s36, s24, 6")
        A("s_lshl_b32 s37, s23, 2")
        A("s_add_u32 s36, s36, s37")
        A("s_add_u32 s36, s36, s47")
        A("s_lshl_b32 s36, s36, 11")
        A("v_lshlrev_b32 v59, 4, v1")
        A("v_add_u32 v59, s36, v59")
        if L0:
            A("v_mov_b32 v10, 0")
            exec_lanes(A, 1)
            A("buffer_load_dword v116, v10, s[60:63], 0 offen sc0 sc1")
            exec_lanes(A, 64)
            STX = K1_MISC + 3072
            A("v_and_b32 v47, 31, v1")
            A("v_lshlrev_b32 v47, 2, v47")
            A("s_lshl_b32 s35, s47, 8")
            A(f"s_add_u32 s35, s35, {STX}")
            A("v_add_u32 v46, s35, v47")
            if th == 0:
                A(f"v_accvgpr_read_b32 v52, a{AX + 12}")
                A("v_mov_b32 v57, v52")
                A("v_permlane32_swap_b32 v57, v52")
                exec_lanes(A, 32)
                A("ds_write_b32 v46, v52")
                exec_lanes(A, 64)
            else:
                A(f"v_add_f32 v{SS}, v{SS}, v{SS + 1}")
                A(f"v_add_f32 v{SS + 2}, v{SS + 2}, v{SS + 3}")
                A(f"v_add_f32 v{SS}, v{SS}, v{SS + 2}")
                A(f"v_mov_b32 v48, v{SS}")
                A(f"v_permlane32_swap_b32 v48, v{SS}")
                A(f"v_add_f32 v48, v48, v{SS}")
                A("s_min_u32 s35, s47, 2")
                A("s_lshl_b32 s35, s35, 7")
                A(f"s_add_u32 s35, s35, {K1_CSUM}")
                A("v_add_u32 v45, s35, v47")
                exec_lanes(A, 32)
                A("ds_write_b32 v46, v48 offset:128")
                A(f"ds_write_b32 v45, a{AY}")
                exec_lanes(A, 64)
            A.wait_all(vm=False)
            A("s_barrier")
            if th == 0:
                A("ds_read_b32 v48, v46 offset:128")
                A("v_lshlrev_b32 v54, 4, v17")
                A(f"v_add_u32 v55, {K1_CSUM}, v54")
                for t3 in range(2):
                    for j in range(4):
                        A(f"ds_read_b128 {v(EA + 16 * t3 + 4 * j, 4)}, v55 offset:{128 * t3 + 32 * j}")
                stats(52, 48)
                A(f"v_mul_f32 v50, {hexf(cq)}, v48")
                A(f"v_mul_f32 v51, {hexf(cq)}, v52")
                for r in range(16):
                    A(f"v_mul_f32 v{EA + r}, v{EA + r}, v51")
                    A(f"v_mul_f32 v{EB + r}, v{EB + r}, v52")
            else:
                A("ds_read_b32 v52, v46")
                A(f"v_add_u32 v55, {K1_CSUM}, v47")
                A("ds_read_b32 v56, v55 offset:256")
                A("s_mul_i32 s40, s24, 384")
                A(f"s_add_u32 s40, s40, {hex(WS_CS)}")
                A("s_or_b32 s41, s23, s47")
                A("s_cmp_eq_u32 s41, 0")
                A("s_cselect_b32 s40, s40, 0x7fff0000")
                A("v_lshlrev_b32 v60, 2, v1")
                A(f"v_add_u32 v61, {K1_CSUM}, v60")
                A("ds_read_b32 v45, v61")
                A("buffer_store_dword v45, v60, s[12:15], s40 offen")
                exec_lanes(A, 32)
                A("buffer_store_dword v56, v60, s[12:15], s40 offen offset:256")
                exec_lanes(A, 64)
                stats(52, 48)
                token_table()
                for r in range(16):
                    A(f"v_mul_f32 v{EB + r}, v{EB + r}, v56")
        KP, PK = 64, 96
        if th == 0:
            A("v_cmp_eq_u32 s[38:39], 0, v17")
            for t3, (acc, ra, E) in enumerate([(AX, 50, EA), (AY, 48, EB)]):
                for r in range(16):
                    A(f"v_accvgpr_read_b32 v{KP + r}, a{acc + r}")
                for r in range(16):
                    A(f"v_fma_f32 v{KP + r}, v{KP + r}, v{ra}, v{E + r}")
                for d in range(8):
                    A(f"v_cvt_pk_bf16_f32 v{PK + 8 * t3 + d}, v{KP + 2 * d}, v{KP + 2 * d + 1}")
                if t3 == 0:
                    A("v_mov_b32 v62, 0x3f80")
                    A(f"v_cndmask_b32 v{PK + 6}, v62, v{PK + 6}, s[38:39]")
                else:
                    A(f"v_cndmask_b32 v{PK + 14}, 0, v{PK + 14}, s[38:39]")
                A(f"v_cndmask_b32 v{PK + 8 * t3 + 7}, 0, v{PK + 8 * t3 + 7}, s[38:39]")
                A(f"s_mov_b32 s40, {hex((WS_QF if t3 == 0 else WS_KF) + layer * LB)}")
                A(f"buffer_store_dwordx4 {v(PK + 8 * t3, 4)}, v59, s[12:15], s40 offen")
                A(f"buffer_store_dwordx4 {v(PK + 8 * t3 + 4, 4)}, v59, s[12:15], s40 offen offset:1024")
            A(f"s_branch L_{name}_e2")
            A.raw(f"L_{name}_t1:")
            A.hist = []
            A.vmq = [dict(o) for o in save[0]]
            A.lgq = [dict(o) for o in save[1]]
            tokq.clear()
            tokq.update(save[2])
            A.nop(2)
        else:
            A("v_and_b32 v62, 31, v1")
            A("v_cmp_gt_u32 s[42:43], 28, v62")
            A("v_cmp_eq_u32 vcc, 28, v62")
            A("v_mov_b32 v63, 0x3f803f80")
            A("v_cndmask_b32 v63, 0, v63, vcc")
            for r in range(16):
                A(f"v_accvgpr_read_b32 v{KP + r}, a{AX + r}")
            for r in range(16):
                A(f"v_fma_f32 v{KP + r}, v{KP + r}, v{EA + r}, v{EB + r}")
            for d in range(8):
                A(f"v_cvt_pk_bf16_f32 v{PK + d}, v{KP + 2 * d}, v{KP + 2 * d + 1}")
                A(f"v_cndmask_b32 v{PK + d}, v63, v{PK + d}, s[42:43]")
            A(f"s_mov_b32 s40, {hex(WS_VF + layer * LB)}")
            A(f"buffer_store_dwordx4 {v(PK, 4)}, v59, s[12:15], s40 offen")
            A(f"buffer_store_dwordx4 {v(PK + 4, 4)}, v59, s[12:15], s40 offen offset:1024")
    A.raw(f"L_{name}_e2:")
    phase_begin(A)
    if L0:
        A("s_mov_b32 s34, 0")
        A("v_mov_b32 v10, 0")
        await_cnt(A, 60, 34, 10, 1, 8, pre=116)
    A("s_lshl_b32 s34, s24, 7")
    A("s_lshl_b32 s35, s23, 2")
    A("s_add_u32 s34, s34, s35")
    A(f"s_add_u32 s34, s34, {hex(F0 if L0 else F1)}")
    publish(A, 12, 34)


K2_K, K2_V, K2_Q = 0, 24576, 49152
K2_X = 57344
K2_LDS = K2_X + 8 * 4096


def k2(A, name, layer, pers=False):
    if pers:
        phase_begin(A)
    else:
        kernel_begin(A, name, 256)
        A.stamp_base = 76
        A.stamp(0)
    A(f"s_load_dwordx2 s[20:21], s[0:1], {KA_WS}")
    if PREFETCH and layer == 0:
        A(f"s_load_dwordx2 s[88:89], s[0:1], {KA_W2}")
        A(f"s_load_dwordx2 s[84:85], s[0:1], {KA_W1}")
    A("v_and_b32 v1, 63, v0")
    A("v_lshrrev_b32 v2, 6, v0")
    A("v_readfirstlane_b32 s22, v2")
    A("s_lshr_b32 s23, s2, 4")
    A("s_and_b32 s24, s2, 15")
    A("s_and_b32 s38, s22, 3")
    A("s_lshr_b32 s39, s22, 2")
    A("v_lshlrev_b32 v2, 4, v1")
    A("s_lshl_b32 s25, s24, 17")
    A("s_lshl_b32 s26, s23, 2")
    A("s_sub_u32 s26, s26, 8")
    A("s_mul_i32 s27, s22, 3")
    for i in range(3):
        A(f"s_add_u32 s34, s27, {i}")
        A("s_lshr_b32 s35, s34, 1")
        A("s_add_i32 s35, s35, s26")
        A("s_lshl_b32 s36, s35, 11")
        A("s_and_b32 s37, s34, 1")
        A("s_lshl_b32 s37, s37, 10")
        A("s_add_u32 s36, s36, s37")
        A("s_cmp_lt_i32 s35, 0")
        A(f"s_cselect_b32 s{72 + i}, 0x40000000, s36")
    A("s_lshl_b32 s29, s27, 10")
    A.wait_all(vm=False)
    for (d, off) in [(4, WS_QF), (8, WS_KF), (12, WS_VF)]:
        A(f"s_add_u32 s28, s25, {hex(off + layer * LB)}")
        A(f"s_add_u32 s{d}, s20, s28")
        A(f"s_addc_u32 s{d + 1}, s21, 0")
        A(f"s_and_b32 s{d + 1}, s{d + 1}, 0xffff")
        A(f"s_mov_b32 s{d + 2}, 0x20000")
        A(f"s_mov_b32 s{d + 3}, 0x00020000")
    srd(A, 92, 20, 21, WSZ)
    if pers and (layer == 1 or "one" in OPT):
        A("s_lshl_b32 s34, s24, 7")
        A(f"s_add_u32 s34, s34, {hex(F1 if layer == 1 else F0)}")
        A("v_add_u32 v10, s23, v1")
        A("v_subrev_u32 v10, 2, v10")
        A("v_max_i32 v10, 0, v10")
        A("v_lshlrev_b32 v10, 2, v10")
        await_cnt(A, 92, 34, 10, 3, 1)
    for i in range(3):
        A(f"s_add_u32 m0, s29, {K2_K + i * 1024}")
        A(f"buffer_load_dwordx4 v2, s[8:11], s{72 + i} offen lds")
    A("s_lshl_b32 s30, s23, 13")
    A("s_lshl_b32 s31, s22, 10")
    A("s_add_u32 s30, s30, s31")
    A(f"s_add_u32 m0, s31, {K2_Q}")
    tokK = A("buffer_load_dwordx4 v2, s[4:7], s30 offen lds")
    if "nofb" not in OPT:
        A("s_barrier")
    for i in range(3):
        A(f"s_add_u32 m0, s29, {K2_V + i * 1024}")
        tokV = A(f"buffer_load_dwordx4 v2, s[12:15], s{72 + i} offen lds")
    srd_off(A, 16, 20, 21, hex(WS_OF + layer * LB), 128 * 16 * 1024)
    K2PF = PREFETCH and layer == 0
    if K2PF:
        A("s_lshl_b32 s34, s2, 3")
        A("s_add_u32 s34, s34, s22")
        A("s_mul_i32 s34, s34, 3584")
        A("v_lshlrev_b32 v40, 7, v1")
        A("v_add_u32 v40, s34, v40")
        srd(A, 88, 88, 89, S * F * 2)
        srd(A, 84, 84, 85, S * F * 2)
    A.stamp(1)
    A("v_and_b32 v4, 31, v1")
    A("v_lshrrev_b32 v5, 5, v1")
    A("v_mov_b32 v18, 0xf14a")
    A("v_mul_lo_u32 v18, v18, v5")
    A("v_add_u32 v19, s29, v2")
    A("v_lshlrev_b32 v6, 2, v5")
    A("v_sub_u32 v6, v4, v6")
    MS = 40
    for r in range(16):
        kk = 8 * (r >> 2) + (r & 3)
        A(f"v_cmp_ge_i32 s[{MS + 2 * r}:{MS + 2 * r + 1}], v6, {kk}")
    PM = 8
    A("v_mov_b32 v7, 0xffff")
    A("v_mov_b32 v16, 0xffff0000")
    for d in range(8):
        A(f"v_cndmask_b32 v{PM + d}, 0, v7, s[{MS + 4 * d}:{MS + 4 * d + 1}]")
        A(f"v_cndmask_b32 v17, 0, v16, s[{MS + 4 * d + 2}:{MS + 4 * d + 3}]")
        A(f"v_or_b32 v{PM + d}, v{PM + d}, v17")
    A.wait_vm(tokK)
    for i in range(3):
        A(f"s_add_u32 s34, s27, {i}")
        A("s_and_b32 s34, s34, 1")
        A(f"s_cmp_eq_u32 s{72 + i}, 0x40000000")
        A("s_cselect_b32 s35, s34, 0")
        A("s_cmp_eq_u32 s35, 0")
        lab = f"L_{name}_np{i}"
        A(f"s_cbranch_scc1 {lab}")
        A(f"ds_write_b32 v19, v18 offset:{K2_K + i * 1024 + 8}")
        A.raw(lab + ":")
    A.force_wait(lg=0)
    A("s_barrier")
    A.stamp(2)
    if "rtg" in OPT:
        rtp(A, "k2bar1", 172)
    A("s_lshl_b32 s35, s38, 11")
    A("v_add_u32 v28, s35, v2")
    A(f"ds_read_b128 v[20:23], v28 offset:{K2_Q}")
    A(f"ds_read_b128 v[24:27], v28 offset:{K2_Q + 1024}")
    BW = 14 if "k2both" in OPT else 7
    NBU = 4
    bcount = [0]

    def burst(i=None):
        n = bcount[0]
        if not K2PF or n >= NBU:
            return
        bcount[0] += 1
        if "k2both" in OPT:
            m = ((1 << 14) - 1) << (14 * (n & 1))
            sr = 84 if n < 2 else 88
        else:
            m = ((1 << 7) - 1) << (7 * n)
            sr = 84 if pers else 88
        A(f"s_mov_b64 exec, {hex(m)}")
        A.touch(f"buffer_load_dword v42, v40, s[{sr}:{sr + 3}], 0 offen")
        exec_lanes(A, 64)
    A("s_mul_i32 s36, s22, 4096")
    A(f"s_add_u32 s36, s36, {K2_X}")
    A("v_add_u32 v44, s36, v2")
    A("s_xor_b32 s37, s22, 4")
    A("s_mul_i32 s37, s37, 4096")
    A(f"s_add_u32 s37, s37, {K2_X}")
    A("v_add_u32 v45, s37, v2")
    A("s_cmp_eq_u32 s39, 0")
    A(f"s_cbranch_scc0 L_{name}_h1")
    A.vmq_save = [dict(o) for o in A.vmq]
    A.lgq_save = [dict(o) for o in A.lgq]
    SB = [48, 64, 80, 96]
    MX = 30
    CN = 112
    OA = 128
    PB = [144, 152, 160]

    for hf in range(2):
        blocks = [0, 8, 1, 2, 3] if hf == 0 else [4, 5, 6, 7]
        slotk = {b: i for i, b in enumerate(blocks)}
        for b in blocks:
            for st in range(2):
                A(f"ds_read_b128 {a(8 * slotk[b] + 4 * st, 4)}, v28 offset:{K2_K + 2048 * b + 1024 * st}")

        bcount[0] = 0

        def qk(b, buf, cinit):
            k = 8 * slotk[b]
            A(f"v_mfma_f32_32x32x16_bf16 {v(buf, 16)}, {a(k, 4)}, v[20:23], {cinit}")
            A(f"v_mfma_f32_32x32x16_bf16 {v(buf, 16)}, {a(k + 4, 4)}, v[24:27], {v(buf, 16)}")

        def maxblk(buf, first):
            if first:
                A(f"v_max3_f32 v{MX}, v{buf}, v{buf + 1}, v{buf + 2}")
                rest = list(range(3, 16))
            else:
                rest = list(range(16))
            while len(rest) >= 2:
                A(f"v_max3_f32 v{MX}, v{MX}, v{buf + rest[0]}, v{buf + rest[1]}")
                rest = rest[2:]
            if rest:
                A(f"v_max_f32 v{MX}, v{MX}, v{buf + rest[0]}")

        def merge():
            for r in range(16):
                A(f"v_cndmask_b32 v{SB[0] + r}, v{SB[0] + r}, v{SB[1] + r}, s[{MS + 2 * r}:{MS + 2 * r + 1}]")

        if hf == 0:
            qk(0, SB[0], "0"); qk(8, SB[1], "0"); qk(1, SB[2], "0"); qk(2, SB[3], "0")
            merge()
            qk(3, SB[1], "0")
            maxblk(SB[0], True); maxblk(SB[2], False); maxblk(SB[3], False); maxblk(SB[1], False)
        else:
            for i, b in enumerate(blocks):
                qk(b, SB[i], "0")
            maxblk(SB[0], True); maxblk(SB[1], False); maxblk(SB[2], False); maxblk(SB[3], False)
        A(f"v_mov_b32 v31, v{MX}")
        A(f"v_permlane32_swap_b32 v31, v{MX}")
        A(f"v_max_f32 v{MX}, v{MX}, v31")
        A(f"ds_write_b32 v44, v{MX}")
        A.wait_vm(tokV)
        A.wait_all(vm=False)
        A("s_barrier")
        A("ds_read_b32 v31, v45")
        for b in blocks:
            for st in range(2):
                A(f"ds_read_b128 {a(40 + 8 * slotk[b] + 4 * st, 4)}, v28 offset:{K2_V + 2048 * b + 1024 * st}")
        A(f"v_max_f32 v{MX}, v{MX}, v31")
        for r in range(16):
            A(f"v_sub_f32 v{CN + r}, 0, v{MX}")
        cn = v(CN, 16)

        def exppack(buf, pb):
            for r in range(16):
                A(f"v_exp_f32 v{buf + r}, v{buf + r}")
            for d in range(8):
                A(f"v_cvt_pk_bf16_f32 v{pb + d}, v{buf + 2 * d}, v{buf + 2 * d + 1}")
            burst()

        first_pv = [True]

        def pv(b, pb):
            for st in range(2):
                c = "0" if first_pv[0] else v(OA, 16)
                first_pv[0] = False
                A(f"v_mfma_f32_32x32x16_bf16 {v(OA, 16)}, {a(40 + 8 * slotk[b] + 4 * st, 4)}, {v(pb + 4 * st, 4)}, {c}")

        if hf == 0:
            qk(0, SB[0], cn); qk(8, SB[1], cn); qk(1, SB[2], cn); qk(2, SB[3], cn)
            merge()
            qk(3, SB[1], cn)
            exppack(SB[0], PB[0])
            for d in range(8):
                A(f"v_and_b32 v{PB[1] + d}, v{PM + d}, v{PB[0] + d}")
                A(f"v_xor_b32 v{PB[0] + d}, v{PB[0] + d}, v{PB[1] + d}")
            pv(0, PB[0]); pv(8, PB[1])
            exppack(SB[2], PB[2]); pv(1, PB[2])
            exppack(SB[3], PB[0]); pv(2, PB[0])
            exppack(SB[1], PB[1]); pv(3, PB[1])
        else:
            for i, b in enumerate(blocks):
                qk(b, SB[i], cn)
            for i, b in enumerate(blocks):
                exppack(SB[i], PB[i % 3])
                pv(b, PB[i % 3])
        A.stamp(3)
        keep, send = (OA, OA + 8) if hf == 0 else (OA + 8, OA)
        A(f"ds_write_b128 v44, {v(send, 4)} offset:1024")
        A(f"ds_write_b128 v44, {v(send + 4, 4)} offset:2048")
        A(f"ds_write_b32 v44, v{OA + 12} offset:3072")
        A.wait_all(vm=False)
        A("s_barrier")
        A("ds_read_b128 v[144:147], v45 offset:1024")
        A("ds_read_b128 v[148:151], v45 offset:2048")
        A("ds_read_b32 v32, v45 offset:3072")
        A(f"v_add_f32 v32, v32, v{OA + 12}")
        A("v_mov_b32 v33, v32")
        A("v_permlane32_swap_b32 v33, v32")
        A("v_rcp_f32 v33, v32")
        for r in range(8):
            A(f"v_add_f32 v{keep + r}, v{keep + r}, v{144 + r}")
            A(f"v_mul_f32 v{keep + r}, v{keep + r}, v33")
        for d in range(4):
            A(f"v_cvt_pk_bf16_f32 v{152 + d}, v{keep + 2 * d}, v{keep + 2 * d + 1}")
        if hf == 1:
            A("v_cmp_eq_u32 vcc, 0, v5")
            A("v_cndmask_b32 v154, 0, v154, vcc")
            A("v_cndmask_b32 v155, 0, v155, vcc")
        A("s_lshl_b32 s37, s23, 2")
        A("s_add_u32 s37, s37, s38")
        A("s_lshl_b32 s37, s37, 15")
        A("s_lshl_b32 s36, s24, 10")
        A("s_add_u32 s37, s37, s36")
        A("v_bfe_u32 v35, v1, 4, 1")
        A("v_lshlrev_b32 v35, 14, v35")
        A("v_and_b32 v36, 15, v1")
        A("v_lshl_add_u32 v35, v36, 4, v35")
        A("v_lshl_add_u32 v35, v5, 8, v35")
        A(f"buffer_store_dwordx4 v[152:155], v35, s[16:19], s37 offen offset:{512 * hf}")
        if hf == 0:
            A(f"s_branch L_{name}_done")
            A.raw(f"L_{name}_h1:")
            A.hist = []
            A.lgq = [o for o in A.lgq_save] if hasattr(A, "lgq_save") else []
            A.vmq = list(A.vmq_save)
            A.force_wait(lg=0)
    A.raw(f"L_{name}_done:")
    if pers:
        phase_begin(A)
        A("s_lshl_b32 s34, s23, 7")
        A(f"s_add_u32 s34, s34, {hex(C2(layer))}")
        publish(A, 92, 34)
        return None
    A.stamp(4)
    A.dump_stamps(STAMP_WG)
    kernel_end(A, name)
    return K2_LDS, 512, 256, 176


K3_O, K3_W, K3_X, K3_T = 0, 65536, 122880, 131072
K3_LDS = K3_T + 64 * 136


def k3(A, name, layer, pers=False):
    if pers:
        phase_begin(A)
        A("s_cmp_ge_u32 s2, 224")
        A(f"s_cbranch_scc1 L_{name}_{'idle' if PREFETCH else 'skip'}")
    else:
        kernel_begin(A, name, 224)
        A.stamp_base = 70
        A.stamp(0)
    A(f"s_load_dwordx2 s[20:21], s[0:1], {KA_WS}")
    A(f"s_load_dwordx2 s[8:9], s[0:1], {KA_WO}")
    if layer == 0:
        A(f"s_load_dwordx2 s[12:13], s[0:1], {KA_X}")
    if PREFETCH:
        A(f"s_load_dwordx2 s[48:49], s[0:1], {KA_W1}")
    A("v_and_b32 v1, 63, v0")
    A("v_lshrrev_b32 v2, 6, v0")
    A("v_readfirstlane_b32 s22, v2")
    A("s_lshr_b32 s23, s2, 5")
    A("s_and_b32 s24, s2, 31")
    A("v_lshlrev_b32 v2, 4, v1")
    A("v_lshrrev_b32 v3, 3, v1")
    A("v_bfe_u32 v4, v1, 4, 2")
    A("v_lshlrev_b32 v4, 1, v4")
    A("v_and_b32 v5, 7, v1")
    A("v_xor_b32 v4, v4, v5")
    A("v_mul_u32_u24 v5, 896, v3")
    A("v_lshl_add_u32 v5, v4, 4, v5")
    A("s_lshl_b32 s25, s23, 7")
    A("v_add_u32 v5, s25, v5")
    A.wait_all(vm=False)
    srd_off(A, 4, 20, 21, hex(WS_OF + layer * LB), 128 * 16384)
    srd(A, 8, 8, 9, D * D * 2)
    if layer == 0:
        srd(A, 12, 12, 13, XBYTES)
    else:
        srd_off(A, 12, 20, 21, hex(WS_X2), XBYTES)
    srd(A, 16, 20, 21, WSZ)
    toks = {}
    A("s_mul_i32 s30, s22, 7168")
    A("s_lshl_b32 s32, s22, 10")
    for q in range(7):
        A(f"s_add_u32 m0, s32, {K3_W + q * 8192}")
        A(f"s_add_u32 s31, s30, {q * 64 * 896}")
        A("buffer_load_dwordx4 v5, s[8:11], s31 offen lds")

    def xtile():
        A("s_lshl_b32 s35, s22, 10")
        A(f"s_add_u32 m0, s35, {K3_X}")
        if layer == 0:
            A("s_lshl_b32 s34, s24, 6")
            A("s_lshl_b32 s35, s22, 3")
            A("s_add_u32 s34, s34, s35")
            A("s_mul_i32 s34, s34, 896")
            A("buffer_load_dwordx4 v5, s[12:15], s34 offen lds")
        else:
            A("s_and_b32 s34, s22, 1")
            A("s_lshl_b32 s34, s34, 3")
            A("v_add_u32 v20, s34, v3")
            A("v_lshlrev_b32 v21, 6, v20")
            A("v_mul_u32_u24 v22, 48, v20")
            A("v_add_u32 v22, 960, v22")
            A("s_lshl_b32 s34, s23, 3")
            x2_addr(A, 23, 4, 34, 21, 22)
            A("s_lshl_b32 s34, s24, 2")
            A("s_lshr_b32 s35, s22, 1")
            A("s_add_u32 s34, s34, s35")
            A("s_mul_i32 s34, s34, 14336")
            A("buffer_load_dwordx4 v23, s[12:15], s34 offen lds")
    if layer == 0:
        xtile()
    if pers:
        A("s_lshr_b32 s34, s24, 1")
        A("s_lshl_b32 s34, s34, 7")
        A(f"s_add_u32 s34, s34, {hex(C2(layer))}")
        A("v_mov_b32 v10, 0")
        await_cnt(A, 16, 34, 10, 1, 16)
    A("s_lshl_b32 s32, s22, 13")
    A("s_lshl_b32 s29, s24, 16")
    A("s_add_u32 s30, s29, s32")
    for q in range(8):
        A(f"s_add_u32 m0, s32, {K3_O + q * 1024}")
        A(f"s_add_u32 s31, s30, {q * 1024}")
        toks[0] = A("buffer_load_dwordx4 v2, s[4:7], s31 offen lds")
        if q == 1 and "nofb" not in OPT:
            A("s_barrier")
    if layer == 1:
        xtile()
        toks[0] = A.vmq[-1]["tok"]
    if PREFETCH and layer == 0 and not pers:
        w1_prefetch(A, 48, 224, 126)
    A.stamp(1)
    A("s_and_b32 s33, s22, 1")
    A("s_lshr_b32 s34, s22, 1")
    A("s_lshl_b32 s35, s33, 15")
    A("v_add_u32 v6, s35, v2")
    A("v_lshrrev_b32 v7, 4, v1")
    A("v_bfe_u32 v8, v1, 2, 2")
    A("v_and_b32 v9, 3, v1")
    A("v_lshrrev_b32 v10, 1, v7")
    A("v_and_b32 v11, 1, v7")
    A("v_lshlrev_b32 v12, 4, v10")
    A("v_lshl_add_u32 v12, v11, 2, v12")
    A("v_add_u32 v12, v12, v8")
    A("v_lshlrev_b32 v12, 7, v12")
    A("v_lshl_add_u32 v12, v9, 3, v12")
    A("v_lshrrev_b32 v13, 1, v8")
    A("v_lshl_add_u32 v13, v11, 1, v13")
    A("v_xor_b32 v14, s34, v13")
    A("v_lshl_add_u32 v16, v14, 5, v12")
    A(f"v_add_u32 v16, {K3_W}, v16")
    A("v_add_u32 v13, 2, v13")
    A("v_and_b32 v13, 3, v13")
    A("v_xor_b32 v14, s34, v13")
    A("v_lshl_add_u32 v17, v14, 5, v12")
    A(f"v_add_u32 v17, {K3_W}, v17")
    A("v_lshl_add_u32 v14, v7, 2, v8")
    A("v_bfe_u32 v15, v14, 1, 2")
    A("v_lshlrev_b32 v14, 7, v14")
    A("v_lshl_add_u32 v14, v9, 3, v14")
    A("s_lshl_b32 s38, s33, 12")
    A(f"s_add_u32 s38, s38, {K3_X}")
    A("v_add_u32 v14, s38, v14")
    A("v_xor_b32 v20, s34, v15")
    A("v_lshl_add_u32 v18, v20, 5, v14")
    ACC = 32
    AF3, BF3 = 48, 72

    def reads(kp, buf):
        for mt in range(2):
            A(f"ds_read_b128 {v(AF3 + 8 * buf + 4 * mt, 4)}, v6 offset:{mt * 16384 + kp * 1024}")
        for t in range(2):
            A(f"ds_read_b64_tr_b16 {v(BF3 + 4 * buf + 2 * t, 2)}, v{16 + (kp & 1)} offset:{kp * 3584 + t * 1024}")

    def mfmas(kp, buf):
        for mt in range(2):
            c = "0" if kp == 0 else v(ACC + 4 * mt, 4)
            A(f"v_mfma_f32_16x16x32_bf16 {v(ACC + 4 * mt, 4)}, {v(AF3 + 8 * buf + 4 * mt, 4)}, {v(BF3 + 4 * buf, 4)}, {c}")

    A.wait_vm(toks[0])
    A("s_barrier")
    A.stamp(2)
    if "rtg" in OPT:
        rtp(A, "k3bar1")
    reads(0, 0)
    reads(1, 1)
    for kp in range(16):
        if kp + 2 < 16:
            reads(kp + 2, (kp + 2) % 3)
        if kp == 13:
            for mt in range(2):
                A(f"ds_read_b64_tr_b16 {v(96 + 2 * mt, 2)}, v18 offset:{mt * 2048}")
        mfmas(kp, kp % 3)
    A.stamp(4)
    XR = 96
    PKD = 112
    for mt in range(2):
        for hlf in range(2):
            x = XR + 2 * mt + hlf
            A(f"v_lshlrev_b32 v104, 16, v{x}")
            A(f"v_and_b32 v105, 0xffff0000, v{x}")
            A(f"v_add_f32 v{ACC + 4 * mt + 2 * hlf}, v{ACC + 4 * mt + 2 * hlf}, v104")
            A(f"v_add_f32 v{ACC + 4 * mt + 2 * hlf + 1}, v{ACC + 4 * mt + 2 * hlf + 1}, v105")
            A(f"v_cvt_pk_bf16_f32 v{PKD + 2 * mt + hlf}, v{ACC + 4 * mt + 2 * hlf}, v{ACC + 4 * mt + 2 * hlf + 1}")
    A("s_lshl_b32 s39, s24, 1")
    A("s_add_u32 s39, s39, s33")
    A("s_mul_i32 s39, s39, 28672")
    A("s_lshl_b32 s40, s23, 3")
    A("s_lshl_b32 s41, s34, 1")
    A("s_add_u32 s40, s40, s41")
    A("s_lshl_b32 s40, s40, 9")
    A("s_add_u32 s39, s39, s40")
    A(f"s_add_u32 s39, s39, {hex(WS_X1F + layer * LB)}")
    A("v_bfe_u32 v21, v1, 3, 1")
    A("v_lshlrev_b32 v21, 9, v21")
    A("v_lshl_add_u32 v21, v7, 7, v21")
    A("v_and_b32 v22, 7, v1")
    A("v_lshl_add_u32 v21, v22, 4, v21")
    A(f"buffer_store_dwordx4 {v(PKD, 4)}, v21, s[16:19], s39 offen")
    TP = 136
    A("v_and_b32 v22, 15, v1")
    A(f"v_mul_u32_u24 v23, {TP}, v22")
    A("v_lshl_add_u32 v23, v7, 3, v23")
    A(f"s_mul_i32 s41, s34, {16 * TP}")
    A("s_lshl_b32 s42, s33, 6")
    A("s_add_u32 s41, s41, s42")
    A(f"s_add_u32 s41, s41, {K3_T}")
    A("v_add_u32 v23, s41, v23")
    for mt in range(2):
        A(f"ds_write_b64 v23, {v(PKD + 2 * mt, 2)} offset:{mt * 32}")
    A("v_lshl_add_u32 v24, v7, 2, v8")
    A(f"v_mul_u32_u24 v24, {TP}, v24")
    A("v_lshl_add_u32 v24, v9, 3, v24")
    A("v_add_u32 v24, s41, v24")
    TR = 120
    for mt in range(2):
        A(f"ds_read_b64_tr_b16 {v(TR + 2 * mt, 2)}, v24 offset:{mt * 32}")
    A("s_lshl_b32 s42, s24, 2")
    A("s_lshl_b32 s43, s33, 1")
    A("s_add_u32 s42, s42, s43")
    A("s_mul_i32 s43, s42, 14336")
    A("s_lshl_b32 s44, s23, 4")
    A("s_lshl_b32 s45, s34, 2")
    A("s_add_u32 s44, s44, s45")
    A("s_lshl_b32 s44, s44, 7")
    A("s_add_u32 s43, s43, s44")
    A(f"s_add_u32 s43, s43, {hex(WS_X1T + layer * LB)}")
    A("v_lshlrev_b32 v25, 7, v7")
    A("v_lshl_add_u32 v25, v22, 3, v25")
    A("v_mov_b32 v26, 0x3f803f80")
    for i in range(4):
        A(f"v_mov_b32 v{28 + i}, 0")
    for mt in range(2):
        A(f"s_add_u32 s44, s43, {mt * 14336}")
        A(f"buffer_store_dwordx2 {v(TR + 2 * mt, 2)}, v25, s[16:19], s44 offen")
        for hlf in range(2):
            A(f"v_dot2_f32_bf16 v{28 + 2 * mt}, v{TR + 2 * mt + hlf}, v26, v{28 + 2 * mt}")
            A(f"v_dot2_f32_bf16 v{29 + 2 * mt}, v{TR + 2 * mt + hlf}, v{TR + 2 * mt + hlf}, v{29 + 2 * mt}")
    A("v_cmp_gt_u32 vcc, 16, v1")
    A("v_lshlrev_b32 v27, 2, v1")
    A("s_lshl_b32 s44, s42, 7")
    A(f"s_add_u32 s44, s44, {hex(WS_ST + (0 if layer == 0 else 2) * 16384)}")
    for mt in range(2):
        reduce_groups(A, 28 + 2 * mt, 104)
        reduce_groups(A, 29 + 2 * mt, 105)
        A(f"v_cndmask_b32 v{106 + mt}, v{29 + 2 * mt}, v{28 + 2 * mt}, vcc")
    exec_lanes(A, 32)
    A("buffer_atomic_add_f32 v106, v27, s[16:19], s44 offen")
    A("buffer_atomic_add_f32 v107, v27, s[16:19], s44 offen offset:128")
    exec_lanes(A, 64)
    if pers:
        A("s_and_b32 s34, s2, 7")
        A("s_lshl_b32 s34, s34, 7")
        A(f"s_add_u32 s34, s34, {hex(C3(layer))}")
        publish(A, 16, 34)
        A.raw(f"L_{name}_skip:")
        return None
    A.stamp(5)
    A.dump_stamps(STAMP_WG)
    kernel_end(A, name)
    return K3_LDS, 512, 256, 176


def pfx(A, name, nwg):
    kernel_begin(A, name, nwg)
    A(f"s_load_dwordx2 s[48:49], s[0:1], {KA_W1}")
    A("v_and_b32 v1, 63, v0")
    A("v_lshrrev_b32 v2, 6, v0")
    A("v_readfirstlane_b32 s22, v2")
    A.wait_all(vm=False)
    w1_prefetch(A, 48, nwg, 20)
    kernel_end(A, name)
    return 0, 512, 64, 64


def g12(A, name, layer):
    gk(A, name, layer, 1, fused=True)
    return gk(A, name, layer, 2, fused=True)


def idle_prefetch(A, layer):
    phase_begin(A)
    A(f"s_load_dwordx2 s[48:49], s[0:1], {KA_W1}")
    A(f"s_load_dwordx2 s[52:53], s[0:1], {KA_W2}")
    A("v_and_b32 v1, 63, v0")
    A("v_lshrrev_b32 v2, 6, v0")
    A("v_readfirstlane_b32 s22, v2")
    A("s_lshr_b32 s34, s2, 3")
    A("s_sub_u32 s34, s34, 28")
    A("s_lshl_b32 s34, s34, 3")
    A("s_add_u32 s34, s34, s22")
    A("s_bfe_u32 s36, s2, 0x20001")
    A.wait_all(vm=False)
    srd(A, 48, 48, 49, S * F * 2)
    srd(A, 52, 52, 53, S * F * 2)
    A("s_mul_i32 s35, s34, 448")
    A("s_mul_i32 s37, s36, 896")
    for q in range(7):
        A(f"s_add_u32 s38, s35, {64 * q}")
        A("v_add_u32 v10, s38, v1")
        div_const(A, "v11", "v10", 7, 39, rng=14400)
        A("v_mul_u32_u24 v12, 7, v11")
        A("v_sub_u32 v12, v10, v12")
        A("v_mul_u32_u24 v11, 3584, v11")
        A("v_lshl_add_u32 v11, v12, 7, v11")
        A.touch("buffer_load_dword v13, v11, s[48:51], s37 offen")
    if layer == 0:
        A("s_sub_u32 s35, s2, 224")
        A("s_lshl_b32 s35, s35, 3")
        A("s_add_u32 s35, s35, s22")
        A("s_mul_i32 s35, s35, 28672")
        A("v_lshlrev_b32 v10, 7, v1")
        for q in range(4):
            A(f"s_add_u32 s38, s35, {8192 * q}")
            if q == 3:
                exec_lanes(A, 32)
            A.touch("buffer_load_dword v13, v10, s[52:55], s38 offen")
        exec_lanes(A, 64)
    else:
        A("s_mul_i32 s35, s34, 448")
        A("s_lshl_b32 s37, s36, 10")
        for q in range(7):
            A(f"s_add_u32 s38, s35, {64 * q}")
            A("v_add_u32 v10, s38, v1")
            A("v_lshrrev_b32 v11, 3, v10")
            A("v_lshlrev_b32 v11, 12, v11")
            A("v_and_b32 v12, 7, v10")
            A("v_lshl_add_u32 v11, v12, 7, v11")
            A.touch("buffer_load_dword v13, v11, s[52:55], s37 offen")


def tlb_warm(A):
    A(f"s_load_dwordx2 s[64:65], s[0:1], {KA_W1}")
    A(f"s_load_dwordx2 s[68:69], s[0:1], {KA_W2}")
    A(f"s_load_dwordx2 s[72:73], s[0:1], {KA_OUT}")
    A(f"s_load_dwordx2 s[76:77], s[0:1], {KA_WO}")
    A("v_lshlrev_b32 v12, 21, v1")
    A.wait_all(vm=False)
    srd(A, 64, 64, 65, S * F * 2)
    srd(A, 68, 68, 69, S * F * 2)
    srd(A, 72, 72, 73, XBYTES)
    srd(A, 76, 76, 77, D * D * 2)
    exec_lanes(A, 24)
    A.touch("buffer_load_dword v13, v12, s[12:15], 0 offen")
    exec_lanes(A, 4)
    A.touch("buffer_load_dword v13, v12, s[64:67], 0 offen")
    A.touch("buffer_load_dword v13, v12, s[68:71], 0 offen")
    exec_lanes(A, 1)
    A.touch("buffer_load_dword v13, v12, s[72:75], 0 offen")
    A.touch("buffer_load_dword v13, v12, s[76:79], 0 offen")
    exec_lanes(A, 64)


def pk(A, name):
    kernel_begin(A, name, 256)
    st = A.stamps
    A.stamps = False
    if "one" in OPT:
        (k1v2 if "k1v2" in OPT else k1)(A, "pk1a", 0, pers=True)
    k2(A, "pk2a", 0, pers=True)
    k3(A, "pk3a", 0, pers=True)
    if "g1old" in OPT:
        gk(A, "pg1a", 0, 1, pers=True)
    else:
        g1v2(A, "pg1a", 0, pers=True)
    if PREFETCH:
        A("s_branch L_pg1a_go")
        A.raw("L_pk3a_idle:")
        idle_prefetch(A, 0)
        A.raw("L_pg1a_go:")
    gk(A, "pg2a", 0, 2, pers=True)
    (k1v2 if "k1v2" in OPT else k1)(A, "pk1b", 1, pers=True)
    k2(A, "pk2b", 1, pers=True)
    k3(A, "pk3b", 1, pers=True)
    if "g1old" in OPT:
        gk(A, "pg1b", 1, 1, pers=True)
    else:
        g1v2(A, "pg1b", 1, pers=True)
    if PREFETCH:
        A("s_branch L_pg1b_go")
        A.raw("L_pk3b_idle:")
        idle_prefetch(A, 1)
        A.raw("L_pg1b_go:")
    gk(A, "pg2b", 1, 2, pers=True)
    A.stamps = st
    phase_begin(A)
    kernel_end(A, name)
    return G_LDS, 512, 256, 176


def kd2(name, nv, acc):
    return kd(name, nv=nv, acc=acc)


def build(kernels, path, stamps=False):
    A = Asm()
    A.stamps = stamps
    A.store_mod = "sc0 sc1"
    if "ldsc1" in OPT:
        A.load_mod = "sc1"
    for o in OPT:
        if o.startswith("st="):
            A.store_mod = o[3:].replace("+", " ")
    launches = []
    kds = []
    for (name, fn, args, grid) in kernels:
        lds, threads, nv, acc = fn(A, name, *args)
        if name == MAIN:
            launches.append(f"; @launch grid=({grid},1,1) block=({threads},1,1) lds={lds}")
        else:
            launches.append(f"; @launch kernel={name} grid=({grid},1,1) block=({threads},1,1) lds={lds}")
        kds.append(kd2(name, nv, acc))
    head = open("interleave_layers__sliding_block__mixer_token_mlp__prompt.s.ref").read()
    hdr = [l for l in head.splitlines() if l.startswith(";") and "@launch" not in l][:12]
    txt = "\n".join(hdr) + "\n" + "\n".join(launches) + "\n"
    txt += '.amdgcn_target "amdgcn-amd-amdhsa--gfx950"\n.text\n'
    txt += A.text()
    txt += '.section .rodata,"a"\n' + "\n".join(kds) + "\n"
    open(path, "w").write(txt)
    if RTN:
        open("rtn.txt", "w").write(repr(RTN))
    print(f"wrote {path}: {A.ninstr} instrs, {A.nops_inserted} nop states inserted, {len(txt)} bytes")


if __name__ == "__main__":
    ks = []
    for L, c in enumerate("ab"):
        ks += [(f"k1{c}_kernel", k1, (L,), 256), (f"k2{c}_kernel", k2, (L,), 256), (f"k3{c}_kernel", k3, (L,), 224),
               ] + ([(f"g12{c}_kernel", g12, (L,), 256)] if "fuse" in OPT else
                    [(f"g1{c}_kernel", gk, (L, 1), 224), (f"g2{c}_kernel", gk, (L, 2), 256)])
    if "pers" in OPT:
        ks = [("k1a_kernel", k1, (0,), 256), ("pb_kernel", pk, (), 256)]
        if "one" in OPT:
            ks = [(MAIN, pk, (), 256)]
    if "pfx" in OPT:
        ks += [("pfx_kernel", pfx, (224,), 224), ("pfy_kernel", pfx, (256,), 256)]
    build(ks, sys.argv[1] if len(sys.argv) > 1 else "dev.s", stamps=("--stamps" in sys.argv))
```
